```python
import torch

def _softmax(x, axis=-1):
    return torch.softmax(x, dim=axis)
def _gelu(x):
    return torch.nn.functional.gelu(x, approximate="tanh")
def _silu(x):
    return torch.nn.functional.silu(x)
def _sigmoid(x):
    return torch.sigmoid(x)
def _layernorm(x, axis=-1, eps=1e-5):
    m = x.mean(dim=axis, keepdim=True)
    v = x.var(dim=axis, keepdim=True, unbiased=False)
    return (x - m) / torch.sqrt(v + eps)
def _scatter_add(tgt, idx, src, axis=0):
    return tgt.clone().index_add_(axis, idx, src)
def _segment_sum(src, seg, n):
    out = torch.zeros((n,) + src.shape[1:], dtype=src.dtype)
    return out.index_add_(0, seg, src)
def _pad(x, pw):
    flat = tuple(v for pair in reversed(pw) for v in pair)
    return torch.nn.functional.pad(x, flat)

kernel_name = 'gated_mix__compressed_kv_cla__sliding_local_dilated__prompt'

def setup_inputs():

    _w = (lambda a: (lambda t: t.to(torch.bfloat16) if t.is_floating_point() else t)(torch.as_tensor(a)))
    def _A_setup():
        B, H, Sq, Sk, D, M = 1, 16, 2048, 2048, 256, 448
        Dc = 4 * D
        return {
            "x": _w((lambda *s: torch.randn(*s, dtype=torch.bfloat16) * 0.05)(B, Sq, M)),
            "c_kv": _w((lambda *s: torch.randn(*s, dtype=torch.bfloat16) * 1.6)(B, Sk, Dc)),
            "w_q": _w((lambda *s: torch.randn(*s, dtype=torch.bfloat16) * 3.2)(M, H, D) * (M ** -0.5)),
            "w_uk": _w((lambda *s: torch.randn(*s, dtype=torch.bfloat16) * 3.2)(Dc, H, D) * (Dc ** -0.5)),
            "w_uv": _w((lambda *s: torch.randn(*s, dtype=torch.bfloat16) * 1.6)(Dc, H, D) * (Dc ** -0.5)),
            "w_o": _w((lambda *s: torch.randn(*s, dtype=torch.bfloat16) * 1.6)(H, D, M) * ((H * D) ** -0.5)),
        }
    _A_in = _A_setup()

    def _B_setup():
        B, S, D = 1, 2048, 448
        return {
            "x": _w((lambda *s: torch.randn(*s, dtype=torch.bfloat16) * 0.05)(B, S, D)),
            "wqkv": _w((lambda *s: torch.randn(*s, dtype=torch.bfloat16) * 1.6)(D, 3 * D)),
            "wo": _w((lambda *s: torch.randn(*s, dtype=torch.bfloat16) * 0.05)(D, D)),
        }
    _B_in = _B_setup()

    return {
        "A_x": _A_in["x"],
        "A_c_kv": _A_in["c_kv"],
        "A_w_q": _A_in["w_q"],
        "A_w_uk": _A_in["w_uk"],
        "A_w_uv": _A_in["w_uv"],
        "A_w_o": _A_in["w_o"],
        "B_x": _B_in["x"],
        "B_wqkv": _B_in["wqkv"],
        "B_wo": _B_in["wo"],
        "gate_w": _w((lambda *s: torch.randn(*s, dtype=torch.bfloat16) * 0.05)(448) * 16.0),
    }

def reference(A_x, A_c_kv, A_w_q, A_w_uk, A_w_uv, A_w_o, B_x, B_wqkv, B_wo, gate_w):
    def _A_ref(x, c_kv, w_q, w_uk, w_uv, w_o):
        B, Sq, M = x.shape[0], x.shape[1], x.shape[2]
        Sk = c_kv.shape[1]
        H, D = w_q.shape[1], w_q.shape[2]
        q = torch.einsum("bqm,mhd->bhqd", x, w_q)
        k = torch.einsum("bkc,chd->bhkd", c_kv, w_uk)
        v = torch.einsum("bkc,chd->bhkd", c_kv, w_uv)
        scores = torch.einsum("bhqd,bhkd->bhqk", q, k) * (D ** -0.5)
        off = Sk - Sq
        qi = torch.arange(Sq)[:, None]
        kj = torch.arange(Sk)[None, :]
        cmask = kj <= (qi + off)
        scores = torch.where(cmask[None, None], scores, -1e9)
        p = _softmax(scores, axis=-1)
        ctx = torch.einsum("bhqk,bhkd->bhqd", p, v)
        return torch.einsum("bhqd,hdm->bqm", ctx, w_o)

    def _B_ref(x, wqkv, wo):
        B, S, D = x.shape
        H = 16; Dh = D // H
        W, dil = 8, 2
        qkv = (lambda x, *d: x.permute(*d))((x @ wqkv).reshape(B, S, 3, H, Dh), 2, 0, 3, 1, 4)
        q, k, v = qkv[0], qkv[1], qkv[2]
        scale = Dh ** -0.5
        pos = torch.arange(S)
        off = torch.arange(W) * dil
        idx = pos[:, None] - off[None, :]
        mask = idx >= 0
        idx_c = torch.where(mask, idx, 0).reshape(-1)
        kg = k[:, :, idx_c, :].reshape(B, H, S, W, Dh)
        vg = v[:, :, idx_c, :].reshape(B, H, S, W, Dh)
        logits = torch.einsum("bhsd,bhswd->bhsw", q, kg) * scale
        logits = torch.where(mask[None, None, :, :], logits, -1e9)
        attn = _softmax(logits, axis=-1)
        o = torch.einsum("bhsw,bhswd->bhsd", attn, vg)
        return (lambda x, *d: x.permute(*d))(o, 0, 2, 1, 3).reshape(B, S, D) @ wo

    x = A_x
    g = _sigmoid((x * gate_w).sum(-1, keepdims=True))
    a = _A_ref(x, A_c_kv, A_w_q, A_w_uk, A_w_uv, A_w_o)
    b = _B_ref(x, B_wqkv, B_wo)
    return g * a + (1 - g) * b
```

```python
class Asm:
    def __init__(self):
        self.L = []
        self.uid = 0
    def __call__(self, s):
        for ln in s.split("\n"):
            ln = ln.strip()
            if ln:
                self.L.append(("" if ln.endswith(":") or ln.startswith(".") or ln.startswith(";") else "    ") + ln)
    def label(self, base):
        self.uid += 1
        return f"{base}_{self.uid}"
    def text(self):
        return "\n".join(self.L) + "\n"

def rng(kind, base, n):
    return f"{kind}{base}" if n == 1 else f"{kind}[{base}:{base+n-1}]"
def v(b, n=1): return rng("v", b, n)
def a(b, n=1): return rng("a", b, n)
def s(b, n=1): return rng("s", b, n)

def interleave(A, mfmas, fillers):
    by = {}
    for p, t in fillers:
        by.setdefault(p, []).append(t)
    for t in by.get(-1, []): A(t)
    for i, m in enumerate(mfmas):
        A(m)
        for t in by.get(i, []): A(t)
    for p in by:
        assert -1 <= p < len(mfmas), p

def spread(items, lo, hi):
    n = len(items)
    out = []
    for k, t in enumerate(items):
        out.append((lo + (k * (hi - lo + 1)) // n, t))
    return out

def kd(name, vgpr=512, accum=256, sgpr=102):
    return f""".amdhsa_kernel {name}
  .amdhsa_next_free_vgpr {vgpr}
  .amdhsa_next_free_sgpr {sgpr}
  .amdhsa_accum_offset {accum}
  .amdhsa_group_segment_fixed_size 0
  .amdhsa_kernarg_size 104
  .amdhsa_user_sgpr_count 2
  .amdhsa_user_sgpr_kernarg_segment_ptr 1
  .amdhsa_system_sgpr_workgroup_id_x 1
.end_amdhsa_kernel
"""
```

```python
from asmlib import *
import math, struct

MB = 1 << 20
WS_K = 0
WS_V = 16 * MB
WS_Q = 32 * MB
WS_QB = 48 * MB
WS_KB = 50 * MB
WS_VB = 52 * MB
WS_G = 54 * MB
WS_CTX = 56 * MB
WS_PART = 80 * MB
WS_WO = 100 * MB
WS_SIZE = 256 * MB

def f32bits(x): return struct.unpack("<I", struct.pack("<f", x))[0]
LOG2E = 1.4426950408889634
MF = "v_mfma_f32_16x16x32_bf16"

def gen_k1(A, name="k1_kernel", stamps=False):
    sX, sWa, sWb, sO, sSide, sG = 28, 32, 36, 40, 44, 48
    sW, sWM, sWN, sT, sH, sP = 60, 61, 62, 63, 64, 65
    sXo, sXst = 66, 67
    sAo, sAst, sBo, sBst = 68, 69, 70, 71
    sAadv, sBadv = 72, 73
    sLst, sLgb = 74, 75
    sXl, sWl = 76, 77
    sCnt, sWd, sWrs = 78, 79, 80
    sT0, sT1, sT2, sT3 = 81, 82, 83, 84
    sWlw = 85
    sWls = 86
    sOb = 87
    sTb = 88
    vLane16 = 1
    vXd, vAd, vBd = 2, 3, 4
    vXd2, vAd2, vBd2 = 5, 6, 7
    vXr = 8
    vWr = 16
    vT = 26
    XS0, WS0 = 0, 65536

    def acc1(i, j):
        b = i * 8 + j
        return v(32 + 4 * b, 4) if b < 56 else a(128 + 4 * (b - 56), 4)
    X1 = [0, 64]; W1 = [32, 96]
    S2 = [160, 0]

    A(f".globl {name}\n.p2align 8\n.type {name},@function\n{name}:")
    Lend = A.label("K1_end")
    A(f"s_cmp_ge_u32 s2, 256\ns_cbranch_scc1 {Lend}")
    SR = [52, 54, 56, 58, 92, 94, 96, 98]
    def stamp(i):
        if stamps: A(f"s_memrealtime s[{SR[i]}:{SR[i]+1}]")
    stamp(0)
    A("s_load_dwordx16 s[4:19], s[0:1], 0\ns_load_dwordx4 s[20:23], s[0:1], 64\ns_load_dwordx2 s[24:25], s[0:1], 96")
    A(f"v_lshrrev_b32 v{vT}, 6, v0\nv_and_b32 v0, 63, v0\nv_readfirstlane_b32 s{sW}, v{vT}")
    A(f"v_lshlrev_b32 v{vLane16}, 4, v0")
    A(f"s_and_b32 s{sT0}, s2, 7\ns_lshr_b32 s{sT1}, s2, 3\ns_and_b32 s{sT}, s{sT1}, 7\ns_lshr_b32 s{sT1}, s{sT1}, 3")
    A(f"s_and_b32 s{sP}, s{sT1}, 1\ns_lshr_b32 s{sT1}, s{sT1}, 1\ns_lshl_b32 s{sH}, s{sT0}, 1\ns_add_u32 s{sH}, s{sH}, s{sT1}")
    A(f"s_lshr_b32 s{sWM}, s{sW}, 1\ns_and_b32 s{sWN}, s{sW}, 1")
    A(f"v_lshrrev_b32 v{vT}, 4, v0\ns_lshl_b32 s{sT0}, s{sWN}, 2\nv_add_u32 v{vT}, s{sT0}, v{vT}")
    A(f"v_and_b32 v{vT+1}, 7, v0\nv_xor_b32 v{vT}, v{vT}, v{vT+1}\nv_lshlrev_b32 v{vT}, 4, v{vT}")
    A(f"v_lshrrev_b32 v{vT+1}, 3, v0\ns_lshl_b32 s{sT0}, s{sW}, 3\nv_add_u32 v{vT+1}, s{sT0}, v{vT+1}")
    A(f"v_lshl_add_u32 v{vXd}, v{vT+1}, 11, v{vT}")
    A(f"v_mul_u32_u24 v{vXd2}, 896, v{vT+1}\nv_add_u32 v{vXd2}, v{vXd2}, v{vT}")
    A(f"v_lshrrev_b32 v{vT}, 5, v0\ns_lshl_b32 s{sT0}, s{sWN}, 1\nv_add_u32 v{vT}, s{sT0}, v{vT}")
    A(f"s_lshl_b32 s{sT0}, s{sWM}, 2\nv_or_b32 v{vT+1}, s{sT0}, v{vT}\nv_lshlrev_b32 v{vT+1}, 1, v{vT+1}")
    A(f"v_and_b32 v{vT+2}, 31, v0\nv_xor_b32 v{vT+1}, v{vT+1}, v{vT+2}\nv_lshlrev_b32 v{vT+1}, 4, v{vT+1}")
    A(f"s_lshl_b32 s{sT0}, s{sWM}, 3\nv_add_u32 v{vT}, s{sT0}, v{vT}")
    A(f"v_lshl_add_u32 v{vAd}, v{vT}, 13, v{vT+1}\nv_mov_b32 v{vBd}, v{vAd}")
    A(f"v_lshrrev_b32 v{vT}, 4, v0\ns_lshl_b32 s{sT0}, s{sWN}, 2\nv_or_b32 v{vT+1}, s{sT0}, v{vT}\nv_lshlrev_b32 v{vT+1}, 1, v{vT+1}")
    A(f"v_and_b32 v{vT+2}, 15, v0\nv_xor_b32 v{vT+1}, v{vT+1}, v{vT+2}")
    A(f"s_lshl_b32 s{sT0}, s{sWN}, 1\ns_add_u32 s{sT0}, s{sT0}, s{sWM}\ns_lshl_b32 s{sT1}, s{sT0}, 2\nv_add_u32 v{vT}, s{sT1}, v{vT}")
    A(f"s_lshl_b32 s{sT3}, s{sT0}, 10")
    A(f"s_mov_b32 s89, s{sT3}\ns_mov_b32 s90, 0x8000\ns_mov_b32 s91, {4096*896}")
    A(f"v_lshlrev_b32 v{vT+2}, 4, v{vT+1}\nv_lshl_add_u32 v{vAd2}, v{vT}, 13, v{vT+2}")
    A(f"v_lshrrev_b32 v{vT+2}, 2, v{vT+1}\nv_min_u32 v{vT+2}, 2, v{vT+2}\nv_mul_u32_u24 v{vT+2}, 896, v{vT+2}")
    A(f"v_and_b32 v{vT+1}, 3, v{vT+1}\nv_lshl_add_u32 v{vT+2}, v{vT+1}, 4, v{vT+2}")
    A(f"v_mul_u32_u24 v{vBd2}, 2688, v{vT}\nv_add_u32 v{vBd2}, v{vBd2}, v{vT+2}")
    A(f"v_and_b32 v{vT}, 15, v0\nv_lshrrev_b32 v{vT+1}, 4, v0\nv_lshrrev_b32 v{vT+2}, 1, v{vT}\nv_xor_b32 v{vT+2}, v{vT+2}, v{vT+1}")
    A(f"v_lshlrev_b32 v{vT+2}, 4, v{vT+2}\nv_lshl_add_u32 v{vXr}, v{vT}, 7, v{vT+2}\ns_lshl_b32 s{sT0}, s{sWM}, 14\nv_add_u32 v{vXr}, s{sT0}, v{vXr}")
    A(f"v_xor_b32 v{vXr+1}, 64, v{vXr}")
    A(f"v_lshrrev_b32 v{vT+2}, 2, v{vT}")
    A(f"v_and_b32 v{vT+3}, 1, v{vT+1}\nv_lshl_or_b32 v{vT+3}, v{vT+3}, 2, v{vT+2}")
    A(f"v_lshl_add_u32 v{vT+2}, v{vT+1}, 3, v{vT+2}")
    A(f"v_and_b32 v{vT+4}, 3, v0\nv_lshlrev_b32 v{vT+4}, 3, v{vT+4}\nv_lshl_add_u32 v{vT+4}, v{vT+3}, 5, v{vT+4}")
    A(f"v_lshl_add_u32 v{vWr}, v{vT+2}, 9, v{vT+4}\ns_lshl_b32 s{sT0}, s{sWN}, 8\ns_add_u32 s{sT0}, s{sT0}, {WS0}\nv_add_u32 v{vWr}, s{sT0}, v{vWr}")
    for j in range(1, 8):
        A(f"v_xor_b32 v{vWr+j}, {j << 5}, v{vWr}")
    A(f"v_lshl_add_u32 v{vT+5}, v{vT+2}, 8, v{vT+4}")
    A("s_waitcnt lgkmcnt(0)")
    A(f"s_mov_b32 s{sX}, s6\ns_mov_b32 s{sX+1}, s7\ns_mov_b32 s{sX+2}, {2048*2048}\ns_mov_b32 s{sX+3}, 0x00020000")
    A(f"s_cmp_eq_u32 s{sP}, 0\ns_cselect_b32 s{sWa}, s10, s12\ns_cselect_b32 s{sWa+1}, s11, s13\ns_mov_b32 s{sWa+2}, {1024*8192}\ns_mov_b32 s{sWa+3}, 0x00020000")
    A(f"s_mov_b32 s{sWb}, s{sWa}\ns_mov_b32 s{sWb+1}, s{sWa+1}\ns_mov_b32 s{sWb+2}, {1024*8192}\ns_mov_b32 s{sWb+3}, 0x00020000")
    A(f"s_mov_b32 s{sO}, s24\ns_mov_b32 s{sO+1}, s25\ns_mov_b32 s{sO+2}, {WS_SIZE}\ns_mov_b32 s{sO+3}, 0x00020000")
    A(f"s_lshl_b32 s{sXo}, s{sT}, 19\ns_mov_b32 s{sXst}, {32*2048}")
    A(f"s_lshl_b32 s{sAo}, s{sH}, 9\ns_add_u32 s{sBo}, s{sAo}, {4*8192}\ns_mov_b32 s{sAst}, {16*8192}\ns_mov_b32 s{sBst}, {16*8192}")
    A(f"s_mov_b32 s{sAadv}, {64*8192}\ns_mov_b32 s{sBadv}, {64*8192}\ns_mov_b32 s{sLst}, 8192\ns_mov_b32 s{sLgb}, 2048")
    A(f"s_lshl_b32 s{sXl}, s{sW}, 10")
    A(f"s_lshl_b32 s{sWlw}, s{sWM}, 2\ns_add_u32 s{sWlw}, s{sWlw}, s{sWN}\ns_lshl_b32 s{sWlw}, s{sWlw}, 10\ns_mov_b32 s{sWls}, {WS0}")

    def dmaX():
        out = []
        for p in range(8):
            t = []
            if p == 0:
                t.append(f"s_mov_b32 m0, s{sXl}\ns_mov_b32 s{sT0}, s{sXo}")
            else:
                t.append(f"s_add_u32 m0, m0, 4096\ns_add_u32 s{sT0}, s{sT0}, s{sXst}")
            t.append(f"buffer_load_dwordx4 v{vXd}, s[{sX}:{sX+3}], s{sT0} offen lds")
            if p == 7:
                t.append(f"s_add_u32 s{sXo}, s{sXo}, 128\ns_xor_b32 s{sXl}, s{sXl}, 0x8000")
            out.append("\n".join(t))
        return out
    def dmaW():
        out = []
        for gsel in range(2):
            so, st, adv, srd, vd = ((sAo, sAst, sAadv, sWa, vAd), (sBo, sBst, sBadv, sWb, vBd))[gsel]
            for p in range(4):
                t = []
                if p == 0:
                    if gsel == 0:
                        t.append(f"s_add_u32 s{sWl}, s{sWls}, s{sWlw}\ns_mov_b32 m0, s{sWl}\ns_mov_b32 s{sT1}, s{so}")
                    else:
                        t.append(f"s_add_u32 m0, s{sWl}, s{sLgb}\ns_mov_b32 s{sT1}, s{so}")
                else:
                    t.append(f"s_add_u32 m0, m0, s{sLst}\ns_add_u32 s{sT1}, s{sT1}, s{st}")
                t.append(f"buffer_load_dwordx4 v{vd}, s[{srd}:{srd+3}], s{sT1} offen lds")
                if p == 3:
                    t.append(f"s_add_u32 s{so}, s{so}, s{adv}")
                    if gsel == 1:
                        t.append(f"s_add_u32 s{sWls}, s{sWls}, 0x8000\ns_cmp_eq_u32 s{sWls}, {WS0 + 3*0x8000}\ns_cselect_b32 s{sWls}, {WS0}, s{sWls}")
                out.append("\n".join(t))
        return out
    def reads1(st, ks):
        r = []
        xs = [f"ds_read_b128 {a(X1[st]+4*i,4)}, v{vXr+ks} offset:{i*2048}" for i in range(8)]
        ws = []
        for j in range(8):
            for t in range(2):
                ws.append(f"ds_read_b64_tr_b16 {a(W1[st]+4*j+2*t,2)}, v{vWr+j} offset:{ks*16384+t*2048}")
        return [xs[0]] + ws + xs[1:]
    def reads2(st, ks):
        b = S2[st]
        xs = [f"ds_read_b128 {a(b+4*i,4)}, v{vXr+2*(i>>1)+ks} offset:{(i&1)*2048}" for i in range(8)]
        ws = []
        for j in range(10):
            for t in range(2):
                ws.append(f"ds_read_b64_tr_b16 {a(b+32+4*j+2*t,2)}, v{vWr+j} offset:{ks*8192+t*1024+(16384 if j >= 4 else 0)}")
        return [xs[0]] + ws[:8] + xs[1:] + ws[8:]
    def mf1(st, isV):
        out = []
        for i in range(8):
            for jj in range(8):
                j = jj if i % 2 == 0 else 7 - jj
                x, w = a(X1[st]+4*i, 4), a(W1[st]+4*j, 4)
                c = acc1(i, j)
                out.append(f"{MF} {c}, {x}, {w}, {c}" if isV else f"{MF} {c}, {w}, {x}, {c}")
        return out
    def acc2q(i, j): return 32 + 4 * (i * 4 + j)
    def acc2b(e, u): return 160 + 4 * (e * 6 + u)
    def mf2(st, first=False):
        b = S2[st]; out = []
        for i in range(8):
            for jj in range(4):
                j = jj if i % 2 == 0 else 3 - jj
                c = v(acc2q(i, j), 4)
                out.append(f"{MF} {c}, {a(b+32+4*j,4)}, {a(b+4*i,4)}, {0 if first else c}")
        for e in range(2):
            for uu in range(6):
                u = uu if e == 0 else 5 - uu
                c = v(acc2b(e, u), 4); x = a(b+4*e, 4); w = a(b+48+4*u, 4)
                out.append(f"{MF} {c}, {w}, {x}, {0 if first else c}" if u < 4 else f"{MF} {c}, {x}, {w}, {0 if first else c}")
        return out
    def adv_rd(nx, nw):
        t = [f"s_add_u32 s{sWrs}, s{sWrs}, 1\ns_cmp_eq_u32 s{sWrs}, 3\ns_cselect_b32 s{sWrs}, 0, s{sWrs}\ns_cselect_b32 s{sWd}, {(-2*0x8000) & 0xffffffff}, s90"]
        t += [f"v_xor_b32 v{vXr+i}, 0x8000, v{vXr+i}" for i in range(nx)]
        t += [f"v_add_u32 v{vWr+j}, s{sWd}, v{vWr+j}" for j in range(nw)]
        return t

    for t in dmaX() + dmaW() + dmaX() + dmaW(): A(t)
    for i in range(32, 256): A(f"v_mov_b32 v{i}, 0")
    for i in range(128, 160): A(f"v_accvgpr_write_b32 a{i}, 0")
    A(f"s_mov_b32 s{sCnt}, 0\ns_mov_b32 s{sWrs}, 0")
    A("s_waitcnt vmcnt(16)\ns_barrier")
    stamp(1)
    for t in reads1(0, 0): A(t)
    LV_entry = A.label("K1_V_B"); Lph2 = A.label("K1_ph2")
    A(f"s_cmp_eq_u32 s{sP}, 1\ns_cbranch_scc1 {LV_entry}")
    LK_entry = A.label("K1_K_B")
    A(f"s_branch {LK_entry}")

    for isV in (0, 1):
        Lloop = A.label("K1_loop"); Lent = LV_entry if isV else LK_entry
        Ls1 = A.label("K1_s1"); Ls2 = A.label("K1_s2")
        A(f".p2align 6\n{Lloop}:")
        A(f"s_cmp_lg_u32 s{sCnt}, 14\ns_cbranch_scc1 {Ls1}")
        A(f"s_mov_b32 s{sWa}, s8\ns_mov_b32 s{sWa+1}, s9\ns_mov_b32 s{sWa+2}, {448*8192}")
        A(f"s_mov_b32 s{sWb}, s18\ns_mov_b32 s{sWb+1}, s19\ns_mov_b32 s{sWb+2}, {448*2688}")
        A(f"s_lshl_b32 s{sAo}, s{sH}, 9\ns_lshl_b32 s{sT0}, s{sP}, 8\ns_add_u32 s{sAo}, s{sAo}, s{sT0}\ns_mul_i32 s{sBo}, s{sH}, 56")
        A(f"s_mov_b32 s{sBst}, {16*2688}\ns_mov_b32 s{sBadv}, {64*2688}\ns_mov_b32 s{sLst}, 4096\ns_mov_b32 s{sLgb}, 16384\ns_mov_b32 s{sWlw}, s89")
        A(f"v_mov_b32 v{vAd}, v{vAd2}\nv_mov_b32 v{vBd}, v{vBd2}")
        A(f"{Ls1}:")
        A(f"s_cmp_lg_u32 s{sCnt}, 15\ns_cbranch_scc1 {Ls2}")
        A(f"s_mov_b32 s{sX}, s4\ns_mov_b32 s{sX+1}, s5\ns_mov_b32 s{sX+2}, {2048*896}\ns_mul_i32 s{sXo}, s{sT}, {256*896}\ns_mov_b32 s{sXst}, {32*896}\nv_mov_b32 v{vXd}, v{vXd2}")
        A(f"{Ls2}:")
        interleave(A, mf1(1, isV), spread(reads1(0, 0), 0, 39) + spread(dmaX(), 2, 58))
        A(f"{Lent}:")
        A("s_waitcnt lgkmcnt(0)")
        interleave(A, mf1(0, isV), spread(reads1(1, 1), 0, 39) + spread(dmaW(), 2, 58) + spread(adv_rd(2, 8), 41, 62))
        A(f"s_add_u32 s{sCnt}, s{sCnt}, 1\ns_cmp_lt_u32 s{sCnt}, 16")
        A("s_waitcnt vmcnt(8) lgkmcnt(0)\ns_barrier")
        A(f"s_cbranch_scc1 {Lloop}")
        stamp(2)
        A(f"s_lshl_b32 s{sTb}, s{sP}, 1\ns_add_u32 s{sTb}, s{sTb}, s{sWN}\ns_lshl_b32 s{sT0}, s{sTb}, 12")
        A(f"v_add_u32 v{vXr}, s{sT0}, v{vXr}\nv_add_u32 v{vXr+1}, s{sT0}, v{vXr+1}")
        for sg in range(1, 4):
            A(f"v_xor_b32 v{vXr+2*sg}, {sg << 12}, v{vXr}\nv_xor_b32 v{vXr+2*sg+1}, {sg << 12}, v{vXr+1}")
        A(f"v_add_u32 v{vWr+4}, {WS0 + 0x8000}, v{vT+5}\ns_lshl_b32 s{sT0}, s{sWN}, 7\nv_xor_b32 v{vWr}, s{sT0}, v{vWr+4}")
        for j in range(1, 4): A(f"v_xor_b32 v{vWr+j}, {j << 5}, v{vWr}")
        for u in range(1, 6): A(f"v_xor_b32 v{vWr+4+u}, {u << 5}, v{vWr+4}")
        interleave(A, mf1(1, isV), spread(reads2(0, 0), 0, 45) + spread(dmaX(), 2, 58))
        if isV:
            A(f"s_lshl_b32 s{sOb}, s{sH}, 6\ns_lshl_b32 s{sT0}, s{sT}, 3\ns_add_u32 s{sOb}, s{sOb}, s{sT0}\ns_lshl_b32 s{sT0}, s{sWM}, 2\ns_add_u32 s{sOb}, s{sOb}, s{sT0}")
            A(f"s_lshl_b32 s{sOb}, s{sOb}, 14\ns_lshl_b32 s{sT0}, s{sWN}, 13\ns_add_u32 s{sOb}, s{sOb}, s{sT0}\ns_add_u32 s{sOb}, s{sOb}, {WS_V}")
            pairs = [((2*g, j), (2*g+1, j), g*16384 + (j >> 2)*4096, (j & 3)*1024) for g in range(4) for j in range(8)]
        else:
            A(f"s_lshl_b32 s{sOb}, s{sH}, 7\ns_lshl_b32 s{sT0}, s{sT}, 4\ns_add_u32 s{sOb}, s{sOb}, s{sT0}\ns_lshl_b32 s{sT0}, s{sWM}, 3\ns_add_u32 s{sOb}, s{sOb}, s{sT0}")
            A(f"s_lshl_b32 s{sOb}, s{sOb}, 13\ns_lshl_b32 s{sT0}, s{sWN}, 12\ns_add_u32 s{sOb}, s{sOb}, s{sT0}\ns_add_u32 s{sOb}, s{sOb}, {WS_K}")
            pairs = [((i, 2*g), (i, 2*g+1), i*8192, g*1024) for i in range(8) for g in range(4)]
        last_so = None
        tmpc = 0
        for (b0, b1, so, imm) in pairs:
            regs = []
            for bb in (b0, b1):
                bi = bb[0]*8 + bb[1]
                if bi < 56: regs.append(32 + 4*bi)
                else:
                    tb = 32 + 4 * (tmpc % 8); tmpc += 1
                    for q in range(4): A(f"v_accvgpr_read_b32 v{tb+q}, a{128+4*(bi-56)+q}")
                    regs.append(tb)
            r0, r1 = regs
            A(f"v_cvt_pk_bf16_f32 v{r0}, v{r0}, v{r0+1}\nv_cvt_pk_bf16_f32 v{r0+1}, v{r0+2}, v{r0+3}\nv_cvt_pk_bf16_f32 v{r0+2}, v{r1}, v{r1+1}\nv_cvt_pk_bf16_f32 v{r0+3}, v{r1+2}, v{r1+3}")
            if so != last_so:
                A(f"s_add_u32 s{sT0}, s{sOb}, {so}"); last_so = so
            A(f"buffer_store_dwordx4 {v(r0,4)}, v{vLane16}, s[{sO}:{sO+3}], s{sT0} offen offset:{imm}")
        if not isV: A(f"s_branch {Lph2}")
    A(f"{Lph2}:")
    stamp(3)
    A("s_waitcnt lgkmcnt(0)\ns_nop 1")
    interleave(A, mf2(0, True), spread(reads2(1, 1), 0, 30) + spread(dmaW(), 2, 40) + spread(adv_rd(8, 10), 31, 43))
    A(f"s_mov_b32 s{sCnt}, 17")
    A("s_waitcnt vmcnt(40) lgkmcnt(0)\ns_barrier")
    Lloop = A.label("K1_loop2"); Ls1 = A.label("K1_s3"); Ls2 = A.label("K1_s4")
    A(f".p2align 6\n{Lloop}:")
    A(f"s_cmp_lg_u32 s{sCnt}, 21\ns_cbranch_scc1 {Ls1}\ns_mov_b32 s{sWa+2}, 0\ns_mov_b32 s{sWb+2}, 0\n{Ls1}:")
    A(f"s_cmp_lg_u32 s{sCnt}, 22\ns_cbranch_scc1 {Ls2}\ns_mov_b32 s{sX+2}, 0\n{Ls2}:")
    interleave(A, mf2(1), spread(reads2(0, 0), 0, 30) + spread(dmaX(), 2, 40))
    A("s_waitcnt lgkmcnt(0)")
    interleave(A, mf2(0), spread(reads2(1, 1), 0, 30) + spread(dmaW(), 2, 40) + spread(adv_rd(8, 10), 31, 43))
    A(f"s_add_u32 s{sCnt}, s{sCnt}, 1\ns_cmp_lt_u32 s{sCnt}, 23")
    A("s_waitcnt vmcnt(8) lgkmcnt(0)\ns_barrier")
    A(f"s_cbranch_scc1 {Lloop}")
    stamp(4)
    side = []
    side.append(f"s_lshl_b32 s{sT0}, s2, 2\ns_add_u32 s{sT0}, s{sT0}, s{sW}\ns_mul_hi_u32 s{sT1}, s{sT0}, {(2**32 + 6)//7}\ns_mul_i32 s{sT2}, s{sT1}, 7\ns_sub_u32 s{sT2}, s{sT0}, s{sT2}")
    side.append(f"s_sub_u32 s{sT3}, s{sT1}, 128\ns_mul_i32 s{sT3}, s{sT3}, {28*896}\ns_mul_i32 s{sAo}, s{sT1}, {32*896}\ns_cmp_ge_u32 s{sT1}, 128\ns_cselect_b32 s{sAo}, s{sT3}, s{sAo}")
    side.append(f"s_cselect_b32 s{sSide}, s20, s14\ns_cselect_b32 s{sSide+1}, s21, s15\ns_cselect_b32 s{sSide+2}, {448*896}, s91\ns_mov_b32 s{sSide+3}, 0x00020000")
    side.append(f"s_lshl_b32 s{sT3}, s{sT2}, 7\ns_add_u32 s{sAo}, s{sAo}, s{sT3}")
    side.append(f"v_lshrrev_b32 v{vT}, 3, v0\nv_lshrrev_b32 v{vT+1}, 4, v0\nv_lshlrev_b32 v{vT+1}, 1, v{vT+1}\nv_and_b32 v{vT+2}, 7, v0\nv_xor_b32 v{vT+1}, v{vT+1}, v{vT+2}")
    side.append(f"v_mul_u32_u24 v{vT}, 896, v{vT}\nv_lshl_add_u32 v{vT}, v{vT+1}, 4, v{vT}\ns_lshl_b32 s{sXl}, s{sW}, 12")
    for p in range(4):
        side.append(f"s_add_u32 m0, s{sXl}, {p*1024}\ns_add_u32 s{sT3}, s{sAo}, {p*8*896}\nbuffer_load_dwordx4 v{vT}, s[{sSide}:{sSide+3}], s{sT3} offen lds")
    side.append(f"s_mov_b32 s{sG}, s22\ns_mov_b32 s{sG+1}, s23\ns_mov_b32 s{sG+2}, 896\ns_mov_b32 s{sG+3}, 0x00020000\ns_mov_b32 s{sX+2}, {2048*896}")
    side.append(f"v_and_b32 v{vT+1}, 31, v0\nv_mul_u32_u24 v{vT+1}, 28, v{vT+1}\nv_lshrrev_b32 v{vT+2}, 5, v0\nv_mul_u32_u24 v{vT+2}, 896, v{vT+2}\nv_add_u32 v{vT+2}, v{vT+2}, v{vT+1}")
    side.append(f"s_mul_i32 s{sT3}, s{sT0}, {2*896}")
    side.append(f"buffer_load_dwordx4 v[208:211], v{vT+2}, s[{sX}:{sX+3}], s{sT3} offen\nbuffer_load_dwordx3 v[212:214], v{vT+2}, s[{sX}:{sX+3}], s{sT3} offen offset:16")
    side.append(f"buffer_load_dwordx4 v[216:219], v{vT+1}, s[{sG}:{sG+3}], 0 offen\nbuffer_load_dwordx3 v[220:222], v{vT+1}, s[{sG}:{sG+3}], 0 offen offset:16")
    interleave(A, mf2(1), spread(side, 0, 30))
    A(f"s_mov_b32 s{sAst}, 0x{f32bits(LOG2E/16.0):08x}\ns_mov_b32 s{sBst}, 0x{f32bits(LOG2E/math.sqrt(28.0)):08x}")
    A(f"s_lshl_b32 s{sOb}, s{sH}, 7\ns_lshl_b32 s{sT3}, s{sT}, 4\ns_add_u32 s{sOb}, s{sOb}, s{sT3}\ns_lshl_b32 s{sT3}, s{sWM}, 3\ns_add_u32 s{sOb}, s{sOb}, s{sT3}")
    A(f"s_mov_b32 s{sBo}, s{sOb}")
    A(f"s_lshl_b32 s{sOb}, s{sOb}, 13\ns_lshl_b32 s{sT3}, s{sTb}, 11\ns_add_u32 s{sOb}, s{sOb}, s{sT3}\ns_add_u32 s{sOb}, s{sOb}, {WS_Q}")
    A(f"s_lshl_b32 s{sT3}, s{sTb}, 14\ns_add_u32 s{sOb}, s{sOb}, s{sT3}")
    A("s_nop 4")
    for i in range(8):
        sg, e = i >> 1, i & 1
        A(f"s_xor_b32 s{sAo}, s{sOb}, {sg << 14}\ns_add_u32 s{sAo}, s{sAo}, {e*8192}")
        for g in range(2):
            r0, r1 = acc2q(i, 2*g), acc2q(i, 2*g+1)
            for q in range(4): A(f"v_mul_f32 v{r0+q}, s{sAst}, v{r0+q}\nv_mul_f32 v{r1+q}, s{sAst}, v{r1+q}")
            A(f"v_cvt_pk_bf16_f32 v{r0}, v{r0}, v{r0+1}\nv_cvt_pk_bf16_f32 v{r0+1}, v{r0+2}, v{r0+3}\nv_cvt_pk_bf16_f32 v{r0+2}, v{r1}, v{r1+1}\nv_cvt_pk_bf16_f32 v{r0+3}, v{r1+2}, v{r1+3}")
            A(f"buffer_store_dwordx4 {v(r0,4)}, v{vLane16}, s[{sO}:{sO+3}], s{sAo} offen offset:{g*1024}")
    A(f"s_lshl_b32 s{sT3}, s{sTb}, 1\ns_add_u32 s{sBo}, s{sBo}, s{sT3}\ns_lshl_b32 s{sBo}, s{sBo}, 10")
    A(f"v_cmp_gt_u32 vcc, 48, v0")
    A(f"s_add_u32 s{sAo}, s{sBo}, {WS_QB}")
    for e in range(2):
        r0, r1 = acc2b(e, 0), acc2b(e, 1)
        for q in range(4): A(f"v_mul_f32 v{r0+q}, s{sBst}, v{r0+q}\nv_mul_f32 v{r1+q}, s{sBst}, v{r1+q}")
        A(f"v_cvt_pk_bf16_f32 v{r0}, v{r0}, v{r0+1}\nv_cvt_pk_bf16_f32 v{r0+1}, v{r0+2}, v{r0+3}\nv_cvt_pk_bf16_f32 v{r0+2}, v{r1}, v{r1+1}\nv_cvt_pk_bf16_f32 v{r0+3}, v{r1+2}, v{r1+3}")
        A(f"v_cndmask_b32 v{r0+2}, 0, v{r0+2}, vcc\nv_cndmask_b32 v{r0+3}, 0, v{r0+3}, vcc")
        A(f"buffer_store_dwordx4 {v(r0,4)}, v{vLane16}, s[{sO}:{sO+3}], s{sAo} offen offset:{e*1024}")
    A(f"s_add_u32 s{sAo}, s{sBo}, {WS_KB}")
    for e in range(2):
        r0, r1 = acc2b(e, 2), acc2b(e, 3)
        A(f"v_cvt_pk_bf16_f32 v{r0}, v{r0}, v{r0+1}\nv_cvt_pk_bf16_f32 v{r0+1}, v{r0+2}, v{r0+3}\nv_cvt_pk_bf16_f32 v{r0+2}, v{r1}, v{r1+1}\nv_cvt_pk_bf16_f32 v{r0+3}, v{r1+2}, v{r1+3}")
        A(f"buffer_store_dwordx4 {v(r0,4)}, v{vLane16}, s[{sO}:{sO+3}], s{sAo} offen offset:{e*1024}")
    A(f"s_add_u32 s{sAo}, s{sBo}, {WS_VB}")
    for db in range(2):
        r0, r1 = acc2b(0, 4+db), acc2b(1, 4+db)
        A(f"v_cvt_pk_bf16_f32 v{r0}, v{r0}, v{r0+1}\nv_cvt_pk_bf16_f32 v{r0+1}, v{r0+2}, v{r0+3}\nv_cvt_pk_bf16_f32 v{r0+2}, v{r1}, v{r1+1}\nv_cvt_pk_bf16_f32 v{r0+3}, v{r1+2}, v{r1+3}")
        A(f"buffer_store_dwordx4 {v(r0,4)}, v{vLane16}, s[{sO}:{sO+3}], s{sAo} offen offset:{db*1024}")
    stamp(5)
    A(f"v_lshrrev_b32 v{vT}, 2, v0\nv_lshrrev_b32 v{vT+1}, 3, v0\nv_and_b32 v{vT+1}, 3, v{vT+1}\nv_lshlrev_b32 v{vT+1}, 5, v{vT+1}")
    A(f"v_lshl_add_u32 v{vT}, v{vT}, 7, v{vT+1}\nv_and_b32 v{vT+1}, 3, v0\nv_lshl_add_u32 v{vT}, v{vT+1}, 3, v{vT}\nv_add_u32 v{vT}, s{sXl}, v{vT}")
    for nb in range(1, 4): A(f"v_xor_b32 v{vT+nb}, {nb << 5}, v{vT}")
    A("s_waitcnt vmcnt(22)")
    for nb in range(4):
        for t in range(2):
            A(f"ds_read_b64_tr_b16 {v(224+4*nb+2*t,2)}, v{vT+nb} offset:{t*2048}")
    A("v_mov_b32 v240, 0")
    for q in range(7): A(f"v_dot2_f32_bf16 v240, v{208+q}, v{216+q}, v240")
    A("s_nop 3")
    A("v_add_f32 v240, v240, v240 quad_perm:[1,0,3,2] row_mask:0xf bank_mask:0xf\ns_nop 1")
    A("v_add_f32 v240, v240, v240 quad_perm:[2,3,0,1] row_mask:0xf bank_mask:0xf\ns_nop 1")
    A("v_add_f32 v240, v240, v240 row_half_mirror row_mask:0xf bank_mask:0xf\ns_nop 1")
    A("v_add_f32 v240, v240, v240 row_mirror row_mask:0xf bank_mask:0xf\ns_nop 1")
    A("v_mov_b32 v241, v240\ns_nop 1\nv_permlane16_swap_b32 v240, v241\ns_nop 1\nv_add_f32 v240, v240, v241")
    A(f"v_mul_f32 v240, 0x{f32bits(-LOG2E):08x}, v240\nv_exp_f32 v240, v240\ns_nop 0\nv_add_f32 v240, 1.0, v240\nv_rcp_f32 v240, v240")
    A(f"v_lshrrev_b32 v241, 5, v0\nv_lshlrev_b32 v241, 2, v241\ns_lshl_b32 s{sT3}, s{sT0}, 3\ns_add_u32 s{sT3}, s{sT3}, {WS_G}")
    A(f"buffer_store_dword v240, v241, s[{sO}:{sO+3}], s{sT3} offen")
    Lsk = A.label("K1_skipwo")
    A(f"s_cmp_ge_u32 s{sT0}, 1008\ns_cbranch_scc1 {Lsk}")
    A(f"s_mul_i32 s{sT3}, s{sT2}, {4*144}\ns_add_u32 s{sT3}, s{sT3}, s{sT1}\ns_lshl_b32 s{sT3}, s{sT3}, 10\ns_add_u32 s{sT3}, s{sT3}, {WS_WO}")
    A("s_waitcnt lgkmcnt(0)")
    for nb in range(4):
        A(f"buffer_store_dwordx4 {v(224+4*nb,4)}, v{vLane16}, s[{sO}:{sO+3}], s{sT3} offen\ns_add_u32 s{sT3}, s{sT3}, {144*1024}")
    A(f"{Lsk}:")
    if stamps:
        stamp(6)
        A("s_waitcnt vmcnt(0)")
        stamp(7)
        A("s_waitcnt lgkmcnt(0)")
        for q, r in enumerate(SR): A(f"v_mov_b32 v{4+q}, s{r}")
        A(f"v_mov_b32 v12, 0\ns_lshl_b32 s{sT3}, s2, 5\ns_add_u32 s{sT3}, s{sT3}, {200*MB}")
        A(f"buffer_store_dwordx4 v[4:7], v12, s[{sO}:{sO+3}], s{sT3} offen\nbuffer_store_dwordx4 v[8:11], v12, s[{sO}:{sO+3}], s{sT3} offen offset:16")
    A(f"{Lend}:\ns_endpgm")
```

```python
from asmlib import *
from k1 import *

SPLIT = 18
R = 10
MPOS = 24
PART_STRIDE = 33 * 1024

def gen_k2(A, name="k2_kernel", stamps=False):
    sK, sV, sWS, sD = 8, 12, 16, 20
    sW, sH, sI, sTy = 24, 25, 26, 27
    sKo, sVo, sWrap, sKrem, sVrem = 28, 29, 30, 31, 32
    sKl, sVl = 33, 34
    sVs, sVrs, sVd = 35, 36, 37
    sQ, sJ, sL, sMode = 38, 39, 40, 41
    sDiag = 42
    sT0, sT1, sT2, sT3 = 43, 44, 45, 46
    sC8 = 47
    sPub = 48
    sPair = 49
    sM = 52
    SR = [76, 78, 80, 82, 84, 86, 88, 90]
    vL16, vDm, vKr, vVr, vBase, vD, vNeg = 1, 2, 3, 4, 5, 6, 7
    vT = 8
    vG = 32
    vTs = 34
    vLs = 38
    vNm = 40
    vP = 48; vS = 64; vp = 96; vO = 128
    aQ = 0; aF = 64
    VS0 = 65536
    def stamp(i):
        if stamps: A(f"s_memrealtime s[{SR[i]}:{SR[i]+1}]")
    def Ob(db, qb): return vO + 4 * (2 * db + qb)
    def Sb(kb, qb): return vS + 4 * (2 * kb + qb)
    def pb(kb, qb): return vp + 4 * (2 * kb + qb)
    def Pf(ks, qb): return vP + 4 * (2 * ks + qb)
    def fr(f): return a(aF + 4 * (f % 16), 4)
    def rdK(f): return f"ds_read_b128 {fr(f)}, v{vKr} offset:{f*1024}"
    def rdV(f): return f"ds_read_b128 {fr(f)}, v{vVr} offset:{f*1024}"

    def dma(kind):
        srd, so, rem, lb = (sK, sKo, sKrem, sKl) if kind == "K" else (sV, sVo, sVrem, sVl)
        tmp = sT0 if kind == "K" else sT1
        out = []
        for p in range(8):
            t = []
            if p == 0: t.append(f"s_mov_b32 m0, s{lb}\ns_add_u32 s{tmp}, s{so}, 4096")
            if p == 4: t.append(f"s_add_u32 m0, s{lb}, 4096\ns_nop 0")
            t.append(f"buffer_load_dwordx4 v{vDm}, s[{srd}:{srd+3}], s{so if p < 4 else tmp} offen offset:{(p&3)*1024} lds")
            if p == 7:
                t.append(f"s_add_u32 s{so}, s{so}, s{sC8}\ns_cmp_eq_u32 s{so}, s{sWrap}\ns_cselect_b32 s{so}, 0, s{so}")
                t.append(f"s_sub_u32 s{rem}, s{rem}, 1\ns_cmp_eq_u32 s{rem}, 0\ns_cselect_b32 s{srd+2}, 0, s{srd+2}")
                if kind == "K":
                    t.append(f"s_xor_b32 s{lb}, s{lb}, s{sC8}")
                else:
                    t.append(f"s_add_u32 s{sVs}, s{sVs}, 1\ns_cmp_eq_u32 s{sVs}, 3\ns_cselect_b32 s{sVs}, 0, s{sVs}\ns_cselect_b32 s{tmp}, {(-2*0x8000) & 0xffffffff}, s{sC8}\ns_add_u32 s{lb}, s{lb}, s{tmp}")
            out.append("\n".join(t))
        return out
    advK = f"v_xor_b32 v{vKr}, 0x8000, v{vKr}"
    advV = f"s_add_u32 s{sVrs}, s{sVrs}, 1\ns_cmp_eq_u32 s{sVrs}, 3\ns_cselect_b32 s{sVrs}, 0, s{sVrs}\ns_cselect_b32 s{sVd}, {(-2*0x8000) & 0xffffffff}, s{sC8}\nv_add_u32 v{vVr}, s{sVd}, v{vVr}"

    def phase(mf, events, pre):
        order = list(range(pre))
        done = -1
        def emit(lst):
            nonlocal done
            for kind, text in lst:
                A(text)
                if kind.startswith("rd:"): order.append(int(kind[3:]))
                elif kind == "rdx": order.append(-1)
                elif kind == "sync": done = len(order) - 1
        emit(events.get(-1, []))
        for f in range(32):
            if order.index(f) > done:
                need = order.index(f)
                if f + 1 in order and f % 2 == 0: need = max(need, order.index(f + 1))
                cnt = len(order) - 1 - need
                assert cnt <= 15
                A(f"s_waitcnt lgkmcnt({cnt})"); done = need
            m = mf(f)
            for h in range(2):
                A(m[h]); emit(events.get(2 * f + h, []))
    def add_ev(ev, items):
        for p, k, t in items: ev.setdefault(p, []).append((k, t))
    def mfQK(f):
        kb, ds = f >> 3, f & 7
        return [f"{MF} {v(Sb(kb,qb),4)}, {fr(f)}, {a(aQ+4*(8*qb+ds),4)}, {v(vNm+4*qb,4) if ds == 0 else v(Sb(kb,qb),4)}" for qb in range(2)]
    def mfPV(f):
        ks, db = f >> 4, f & 15
        return [f"{MF} {v(Ob(db,qb),4)}, {fr(f)}, {v(Pf(ks,qb),4)}, {v(Ob(db,qb),4)}" for qb in range(2)]
    def cvts():
        out = []
        for ks in range(2):
            for qb in range(2):
                for hh in range(2):
                    src = pb(2*ks+hh, qb)
                    out.append(f"v_cvt_pk_bf16_f32 v{Pf(ks,qb)+2*hh}, v{src}, v{src+1}")
                    out.append(f"v_cvt_pk_bf16_f32 v{Pf(ks,qb)+2*hh+1}, v{src+2}, v{src+3}")
        return out
    def xl_reduce(op, r, t):
        return (f"v_mov_b32 v{t}, v{r}\ns_nop 1\nv_permlane16_swap_b32 v{r}, v{t}\ns_nop 1\n{op} v{r}, v{r}, v{t}\n"
                f"v_mov_b32 v{t}, v{r}\ns_nop 1\nv_permlane32_swap_b32 v{r}, v{t}\ns_nop 1\n{op} v{r}, v{r}, v{t}")
    def mask_block():
        A(f"s_sub_u32 s{sT0}, s{sJ}, s{sDiag}\ns_lshl_b32 s{sT0}, s{sT0}, 6\nv_subrev_u32 v{vD}, s{sT0}, v{vBase}")
        for c in range(-1, 4):
            for i in range(4):
                A(f"v_cmp_gt_i32 s[{sM+2*i}:{sM+2*i+1}], {16*c+i}, v{vD}")
            A("s_nop 0")
            for i in range(4):
                for qb in range(2):
                    kb = c + qb
                    if 0 <= kb < 4:
                        r = Sb(kb, qb) + i
                        A(f"v_cndmask_b32 v{r}, v{r}, v{vNeg}, s[{sM+2*i}:{sM+2*i+1}]")
    def slow(first):
        for qb in range(2):
            m = vT + qb
            regs = [Sb(kb, qb) + i for kb in range(4) for i in range(4)]
            A(f"v_max3_f32 v{m}, v{regs[0]}, v{regs[1]}, v{regs[2]}")
            for x in range(3, 15, 2): A(f"v_max3_f32 v{m}, v{m}, v{regs[x]}, v{regs[x+1]}")
            A(f"v_max_f32 v{m}, v{m}, v{regs[15]}")
            A(xl_reduce("v_max_f32", m, vT + 2))
            if not first: A(f"v_max_f32 v{m}, 0, v{m}")
            for i in range(4): A(f"v_sub_f32 v{vNm+4*qb+i}, v{vNm+4*qb+i}, v{m}")
            if not first:
                A(f"v_sub_f32 v{vT+4+qb}, 0, v{m}\nv_exp_f32 v{vT+4+qb}, v{vT+4+qb}\ns_nop 0\nv_mul_f32 v{vLs+qb}, v{vLs+qb}, v{vT+4+qb}")
                for db in range(16):
                    for i in range(4): A(f"v_mul_f32 v{Ob(db,qb)+i}, v{Ob(db,qb)+i}, v{vT+4+qb}")
            for kb in range(4):
                for i in range(4): A(f"v_sub_f32 v{pb(kb,qb)+i}, v{Sb(kb,qb)+i}, v{m}")
            for kb in range(4):
                for i in range(4): A(f"v_exp_f32 v{pb(kb,qb)+i}, v{pb(kb,qb)+i}")
            A("s_nop 0")
            t = vTs + 2 * qb
            A(f"v_add_f32 v{t}, v{pb(0,qb)}, v{pb(0,qb)+1}")
            for x in range(2, 16): A(f"v_add_f32 v{t}, v{t}, v{pb(x>>2,qb)+(x&3)}")

    A(f".globl {name}\n.p2align 8\n.type {name},@function\n{name}:")
    Lend = A.label("K2_end")
    A(f"s_cmp_ge_u32 s2, 256\ns_cbranch_scc1 {Lend}")
    stamp(0)
    A("s_load_dwordx4 s[4:7], s[0:1], 88")
    A(f"v_lshrrev_b32 v{vT}, 6, v0\nv_and_b32 v0, 63, v0\nv_readfirstlane_b32 s{sW}, v{vT}\nv_lshlrev_b32 v{vL16}, 4, v0")
    A(f"s_lshr_b32 s{sTy}, s2, 7\ns_and_b32 s{sT0}, s2, 7\ns_bfe_u32 s{sT1}, s2, {(1 << 16) | 3}\ns_bfe_u32 s{sI}, s2, {(3 << 16) | 4}")
    A(f"s_lshl_b32 s{sH}, s{sT0}, 1\ns_add_u32 s{sH}, s{sH}, s{sT1}\ns_and_b32 s{sPair}, s2, 127\ns_mov_b32 s{sC8}, 0x8000\ns_mov_b32 s{sPub}, 0")
    A(f"s_lshl_b32 s{sKl}, s{sW}, 13\nv_add_u32 v{vDm}, s{sKl}, v{vL16}\ns_add_u32 s{sVl}, s{sKl}, {VS0}\ns_mov_b32 s{sVs}, 0\ns_mov_b32 s{sVrs}, 0")
    A(f"v_mov_b32 v{vKr}, v{vL16}\nv_add_u32 v{vVr}, {VS0}, v{vL16}\nv_mov_b32 v{vNeg}, 0x{f32bits(-1e30):08x}")
    A(f"v_and_b32 v{vT}, 15, v0\nv_lshrrev_b32 v{vT+1}, 4, v0\nv_lshlrev_b32 v{vT+1}, 2, v{vT+1}\nv_sub_u32 v{vT+1}, v{vT}, v{vT+1}\ns_lshl_b32 s{sT0}, s{sW}, 5\nv_add_u32 v{vBase}, s{sT0}, v{vT+1}")
    A(f"v_lshlrev_b32 v{vT+2}, 2, v{vT}")
    A(f"v_mov_b32 v31, v{vT+2}")
    LB = A.label("K2_B"); LB2 = A.label("K2_Bs2"); Lgo = A.label("K2_go")
    A(f"s_lshl_b32 s{sT0}, s{sI}, 1\ns_sub_u32 s{sT1}, 32, s{sT0}")
    A(f"s_cmp_eq_u32 s{sTy}, 0\ns_cbranch_scc1 {LB}")
    A(f"s_sub_u32 s{sQ}, 15, s{sI}\ns_mov_b32 s{sJ}, 0\ns_mov_b32 s{sL}, {SPLIT-1}\ns_mov_b32 s{sWrap}, -1\ns_mov_b32 s{sKrem}, {SPLIT}")
    A(f"s_cmp_eq_u32 s{sT1}, {SPLIT}\ns_cselect_b32 s{sMode}, 0, 2\ns_branch {Lgo}")
    A(f"{LB}:\ns_mov_b32 s{sKrem}, {34-SPLIT}\ns_lshl_b32 s{sWrap}, s{sT1}, 15\ns_cmp_eq_u32 s{sT1}, {SPLIT}\ns_cbranch_scc1 {LB2}")
    A(f"s_sub_u32 s{sQ}, 15, s{sI}\ns_mov_b32 s{sJ}, {SPLIT}\ns_sub_u32 s{sL}, s{sT1}, 1\ns_mov_b32 s{sMode}, 1\ns_branch {Lgo}")
    A(f"{LB2}:\ns_mov_b32 s{sQ}, s{sI}\ns_mov_b32 s{sJ}, 0\ns_add_u32 s{sL}, s{sT0}, 1\ns_mov_b32 s{sMode}, 0")
    A(f"{Lgo}:\ns_mov_b32 s{sVrem}, s{sKrem}\ns_lshl_b32 s{sKo}, s{sJ}, 15\ns_mov_b32 s{sVo}, s{sKo}\ns_lshl_b32 s{sDiag}, s{sQ}, 1")
    A("s_waitcnt lgkmcnt(0)")
    A(f"s_lshl_b32 s{sT0}, s{sH}, 20\ns_add_u32 s{sK}, s6, s{sT0}\ns_addc_u32 s{sK+1}, s7, 0\ns_mov_b32 s{sK+2}, {MB}\ns_mov_b32 s{sK+3}, 0x00020000")
    A(f"s_add_u32 s{sV}, s{sK}, {WS_V}\ns_addc_u32 s{sV+1}, s{sK+1}, 0\ns_mov_b32 s{sV+2}, {MB}\ns_mov_b32 s{sV+3}, 0x00020000")
    A(f"s_mov_b32 s{sWS}, s6\ns_mov_b32 s{sWS+1}, s7\ns_mov_b32 s{sWS+2}, {WS_SIZE}\ns_mov_b32 s{sWS+3}, 0x00020000")
    A(f"s_mov_b32 s{sD}, s4\ns_mov_b32 s{sD+1}, s5\ns_mov_b32 s{sD+2}, 256\ns_mov_b32 s{sD+3}, 0x00020000")
    ws = f"s[{sWS}:{sWS+3}]"
    bq, bk, bv, bm, bg, bS = 128, 136, 148, 156, 164, 168
    A(f"s_lshl_b32 s{sT2}, s{sTy}, 3\ns_add_u32 s{sT2}, s{sT2}, s{sI}\ns_lshl_b32 s{sT2}, s{sT2}, 2\ns_add_u32 s{sT2}, s{sT2}, s{sW}")
    A(f"s_lshl_b32 s{sT3}, s{sH}, 17\ns_lshl_b32 s{sT0}, s{sT2}, 11\ns_add_u32 s{sT3}, s{sT3}, s{sT0}")
    A(f"s_add_u32 s{sT0}, s{sT3}, {WS_QB}\ns_add_u32 s{sT1}, s{sT3}, {WS_KB - 1024}")
    for e in range(2): A(f"buffer_load_dwordx4 {v(bq+4*e,4)}, v{vL16}, {ws}, s{sT0} offen offset:{e*1024}")
    for e in range(3): A(f"buffer_load_dwordx4 {v(bk+4*e,4)}, v{vL16}, {ws}, s{sT1} offen offset:{e*1024}")
    A(f"s_add_u32 s{sT0}, s{sT3}, {WS_VB - 2048}\ns_lshl_b32 s{sT1}, s{sT2}, 7\ns_add_u32 s{sT1}, s{sT1}, {WS_G}")
    for db in range(2):
        A(f"buffer_load_dwordx4 {v(bv+4*db,4)}, v{vL16}, {ws}, s{sT0} offen offset:{2048+db*1024}")
        A(f"buffer_load_dwordx2 {v(bm+4*db,2)}, v{vL16}, {ws}, s{sT0} offen offset:{2048+db*1024}")
        A(f"buffer_load_dwordx2 {v(bm+4*db+2,2)}, v{vL16}, {ws}, s{sT0} offen offset:{db*1024+8}")
    for e in range(2): A(f"buffer_load_dword v{bg+e}, v31, {ws}, s{sT1} offen offset:{e*64}")
    def loadQ():
        out = [f"s_lshl_b32 s{sT2}, s{sH}, 7\ns_lshl_b32 s{sT3}, s{sQ}, 3\ns_add_u32 s{sT2}, s{sT2}, s{sT3}\ns_lshl_b32 s{sT3}, s{sW}, 1\ns_add_u32 s{sT2}, s{sT2}, s{sT3}\ns_lshl_b32 s{sT2}, s{sT2}, 13\ns_add_u32 s{sT2}, s{sT2}, {WS_Q}"]
        for f in range(16):
            t = f"buffer_load_dwordx4 {a(aQ+4*f,4)}, v{vL16}, {ws}, s{sT2} offen offset:{(f&3)*1024}"
            if f & 3 == 3: t += f"\ns_add_u32 s{sT2}, s{sT2}, 4096"
            out.append(t)
        return out
    A(f"s_mov_b32 s50, s{sT2}")
    for t in dma("K") + loadQ() + dma("K") + dma("V") + dma("V"): A(t)
    for i in range(4):
        A(f"v_subrev_u32 v{vT+2}, {i}, v{vT+1}\nv_and_b32 v{vT+2}, 0x80000001, v{vT+2}\nv_bfrev_b32 v{vT+2}, v{vT+2}")
        A(f"v_cmp_eq_u32 s[{sM+2*i}:{sM+2*i+1}], 0, v{vT+2}\nv_cmp_eq_u32 s[{sM+8+2*i}:{sM+8+2*i+1}], 1, v{vT+2}")
    A(f"s_cmp_eq_u32 s50, 0")
    for i in range(4): A(f"s_cselect_b64 s[{sM+16+2*i}:{sM+16+2*i+1}], 0, s[{sM+8+2*i}:{sM+8+2*i+1}]")
    A("s_waitcnt vmcnt(48)")
    for e in range(2):
        A(f"{MF} {v(bS+8*e,4)}, {v(bk+4*(e+1),4)}, {v(bq+4*e,4)}, 0")
        A(f"{MF} {v(bS+8*e+4,4)}, {v(bk+4*e,4)}, {v(bq+4*e,4)}, 0")
    A("s_nop 7")
    bP = 184; bO = 192
    for e in range(2):
        s0 = bS + 8 * e; m = vT + 2; t = vT + 3; l = vT + 4 + e
        for i in range(4):
            A(f"v_cndmask_b32 v{s0+i}, v{vNeg}, v{s0+i}, s[{sM+2*i}:{sM+2*i+1}]")
            pm = sM + (16 if e == 0 else 8) + 2 * i
            A(f"v_cndmask_b32 v{s0+4+i}, v{vNeg}, v{s0+4+i}, s[{pm}:{pm+1}]")
        A(f"v_max3_f32 v{m}, v{s0}, v{s0+1}, v{s0+2}\nv_max3_f32 v{m}, v{m}, v{s0+3}, v{s0+4}\nv_max3_f32 v{m}, v{m}, v{s0+5}, v{s0+6}\nv_max_f32 v{m}, v{m}, v{s0+7}")
        A(xl_reduce("v_max_f32", m, t))
        for i in range(8): A(f"v_sub_f32 v{s0+i}, v{s0+i}, v{m}")
        for i in range(8): A(f"v_exp_f32 v{s0+i}, v{s0+i}")
        A(f"s_nop 0\nv_add_f32 v{l}, v{s0}, v{s0+1}")
        for i in range(2, 8): A(f"v_add_f32 v{l}, v{l}, v{s0+i}")
        A(xl_reduce("v_add_f32", l, t))
        lo, hi = (s0, s0 + 4) if e == 0 else (s0 + 4, s0)
        A(f"v_cvt_pk_bf16_f32 v{bP+4*e}, v{lo}, v{lo+1}\nv_cvt_pk_bf16_f32 v{bP+4*e+1}, v{lo+2}, v{lo+3}\nv_cvt_pk_bf16_f32 v{bP+4*e+2}, v{hi}, v{hi+1}\nv_cvt_pk_bf16_f32 v{bP+4*e+3}, v{hi+2}, v{hi+3}")
        A(f"v_rcp_f32 v{l}, v{l}\nv_sub_f32 v{bg+e}, 1.0, v{bg+e}\nv_mul_f32 v{l}, v{l}, v{bg+e}")
        for db in range(2):
            A(f"{MF} {v(bO+8*e+4*db,4)}, {v((bm if e == 0 else bv)+4*db,4)}, {v(bP+4*e,4)}, 0")
    A(f"v_cmp_gt_u32 vcc, 48, v0")
    A(f"s_mul_i32 s{sT0}, s50, {2*144}\ns_add_u32 s{sT0}, s{sT0}, s{sH}\ns_lshl_b32 s{sT0}, s{sT0}, 10\ns_add_u32 s{sT0}, s{sT0}, {WS_CTX + 128*1024}\ns_add_u32 s{sT1}, s{sT0}, {144*1024}")
    A("s_nop 3")
    for e in range(2):
        o = bO + 8 * e
        for i in range(8): A(f"v_mul_f32 v{o+i}, v{o+i}, v{vT+4+e}")
        A(f"v_cvt_pk_bf16_f32 v{o}, v{o}, v{o+1}\nv_cvt_pk_bf16_f32 v{o+1}, v{o+2}, v{o+3}\nv_cvt_pk_bf16_f32 v{o+2}, v{o+4}, v{o+5}\nv_cvt_pk_bf16_f32 v{o+3}, v{o+6}, v{o+7}")
        A(f"v_cndmask_b32 v{o+2}, 0, v{o+2}, vcc\nv_cndmask_b32 v{o+3}, 0, v{o+3}, vcc")
        A(f"buffer_store_dwordx4 {v(o,4)}, v{vL16}, {ws}, s{sT0 if e == 0 else sT1} offen")
    A("s_nop 1")
    def zero_state():
        for i in range(vO, vO + 128): A(f"v_mov_b32 v{i}, 0")
        for i in range(vLs, vNm + 8): A(f"v_mov_b32 v{i}, 0")
    zero_state()
    A("s_waitcnt vmcnt(26)")
    Lseg = A.label("K2_seg"); Lloop = A.label("K2_loop"); Lqk = A.label("K2_qk"); Ltail = A.label("K2_tail")
    Lslow = A.label("K2_slow"); Lback = A.label("K2_back"); Lnm0 = A.label("K2_nm0"); Lnm1 = A.label("K2_nm1"); Lnp = A.label("K2_np")
    A(f"{Lseg}:\ns_barrier")
    stamp(1)
    ev = {}
    add_ev(ev, [(-1, f"rd:{f}", rdK(f)) for f in range(R)])
    add_ev(ev, [(2*(f-R)+1, f"rd:{f}", rdK(f)) for f in range(R, 32)])
    add_ev(ev, [(2*(31-R)+2, "", advK)])
    phase(mfQK, ev, 0)
    A("s_waitcnt vmcnt(0) lgkmcnt(0)\ns_barrier")
    NK0 = 32 - MPOS - 1 if (32 - MPOS - 1) < R else R
    NK0 = 7
    for f in range(NK0): A(rdK(f))
    A(f"s_cmp_eq_u32 s{sPub}, 0\ns_cbranch_scc1 {Lnp}\ns_cmp_lg_u32 s{sW}, 0\ns_cbranch_scc1 {Lnp}")
    A(f"s_and_b32 s{sT0}, s{sPair}, 1\ns_lshl_b32 s{sT0}, s{sT0}, 4\ns_lshl_b32 s{sT0}, 1, s{sT0}\nv_mov_b32 v{vT}, s{sT0}\ns_lshr_b32 s{sT0}, s{sPair}, 1\ns_lshl_b32 s{sT0}, s{sT0}, 2\nv_mov_b32 v{vT+1}, 0")
    A(f"s_mov_b64 exec, 1\nbuffer_atomic_add v{vT}, v{vT+1}, s[{sD}:{sD+3}], s{sT0} offen sc1\ns_mov_b64 exec, -1\ns_waitcnt vmcnt(0)")
    A(f"{Lnp}:\ns_mov_b32 s{sPub}, 0")
    A(f"s_cmp_lt_u32 s{sJ}, s{sDiag}\ns_cbranch_scc1 {Lnm0}")
    mask_block()
    A(f"{Lnm0}:")
    slow(True)
    A(f"v_mov_b32 v{vLs}, v{vTs}\nv_mov_b32 v{vLs+1}, v{vTs+2}\ns_branch {Lqk}")
    A(f"{Lslow}:")
    slow(False)
    A(f"s_branch {Lback}")
    A(f".p2align 6\n{Lloop}:")
    A(f"s_add_u32 s{sJ}, s{sJ}, 1\ns_cmp_lt_u32 s{sJ}, s{sDiag}\ns_cbranch_scc1 {Lnm1}")
    mask_block()
    A(f"{Lnm1}:")
    ev = {}
    add_ev(ev, [(2*(f-R)+1, f"rd:{f}", rdV(f)) for f in range(R, 32)])
    add_ev(ev, [(2*(31-R)+2, "", advV)])
    add_ev(ev, [(2*MPOS-1, "sync", "s_waitcnt vmcnt(8) lgkmcnt(0)\ns_barrier")])
    add_ev(ev, [(2*(MPOS+f)+1, "rdx", rdK(f)) for f in range(NK0)])
    els = [(kb, qb, i) for kb in range(4) for qb in range(2) for i in range(4)]
    seen = set()
    for x, (kb, qb, i) in enumerate(els):
        add_ev(ev, [(2*x, "", f"v_exp_f32 v{pb(kb,qb)+i}, v{Sb(kb,qb)+i}")])
        t = vTs + 2*qb + (i & 1)
        txt = f"v_add_f32 v{t}, v{t}, v{pb(kb,qb)+i}" if t in seen else f"v_mov_b32 v{t}, v{pb(kb,qb)+i}"
        seen.add(t)
        add_ev(ev, [(2*x+1, "", txt)])
    phase(mfPV, ev, R)
    A(f"v_add_f32 v{vTs}, v{vTs}, v{vTs+1}\nv_add_f32 v{vTs+2}, v{vTs+2}, v{vTs+3}\nv_max_f32 v{vT}, v{vTs}, v{vTs+2}\nv_cmp_nge_f32 vcc, 0x44800000, v{vT}")
    A(f"s_cbranch_vccnz {Lslow}\n{Lback}:")
    A(f"v_add_f32 v{vLs}, v{vLs}, v{vTs}\nv_add_f32 v{vLs+1}, v{vLs+1}, v{vTs+2}")
    A(f"s_cmp_eq_u32 s{sJ}, s{sL}\ns_cbranch_scc1 {Ltail}")
    A(f"{Lqk}:")
    ev = {}
    pos = 0; items = []
    f = NK0
    slot = 0
    while f < 32:
        p = max(2*(f-R)+1, slot)
        items.append((p, f"rd:{f}", rdK(f))); slot = p + 1; f += 1
    add_ev(ev, items)
    add_ev(ev, [(2*(31-R)+2, "", advK)])
    add_ev(ev, [(2*(32-R+f)+1, "rdx", rdV(f)) for f in range(R)])
    add_ev(ev, [(p, "", t) for p, t in spread(cvts(), 4, 50)])
    add_ev(ev, [(p, "", t) for p, t in spread(dma("K") + dma("V"), 2, 62)])
    phase(mfQK, ev, NK0)
    A(f"s_branch {Lloop}")
    A(f"{Ltail}:")
    stamp(2)
    for f in range(R): A(rdV(f))
    for t in cvts(): A(t)
    A(f"s_lshl_b32 s{sT2}, s{sQ}, 9\ns_lshl_b32 s{sT3}, s{sW}, 7\ns_add_u32 s{sT2}, s{sT2}, s{sT3}\ns_add_u32 s{sT2}, s{sT2}, {WS_G}")
    for e in range(2): A(f"buffer_load_dword v{vG+e}, v31, {ws}, s{sT2} offen offset:{e*64}")
    A(f"s_mov_b32 s51, s{sQ}\ns_mov_b32 s{sQ}, s{sI}")
    ev = {}
    add_ev(ev, [(2*(f-R)+1, f"rd:{f}", rdV(f)) for f in range(R, 32)])
    add_ev(ev, [(2*(31-R)+2, "", advV)])
    add_ev(ev, [(p, "", t) for p, t in spread(dma("K") + dma("V"), 2, 62)])
    phase(mfPV, ev, R)
    stamp(3)
    Lfin = A.label("K2_fin"); Lcomb = A.label("K2_comb"); Lpoll = A.label("K2_poll")
    A(f"s_mul_i32 s{sT3}, s{sPair}, {4*PART_STRIDE}\ns_mul_i32 s{sT2}, s{sW}, {PART_STRIDE}\ns_add_u32 s{sT3}, s{sT3}, s{sT2}\ns_add_u32 s{sT1}, s{sT3}, {WS_PART}")
    A(f"s_cmp_eq_u32 s{sMode}, 0\ns_cbranch_scc1 {Lfin}\ns_cmp_eq_u32 s{sMode}, 2\ns_cbranch_scc1 {Lcomb}")
    for t in loadQ(): A(t)
    A(f"v_mov_b32 v{vT}, v{vNm}\nv_mov_b32 v{vT+1}, v{vNm+4}\nv_mov_b32 v{vT+2}, v{vLs}\nv_mov_b32 v{vT+3}, v{vLs+1}")
    for b in range(32):
        A(f"buffer_store_dwordx4 {v(vO+4*b,4)}, v{vL16}, {ws}, s{sT1} offen offset:{(b&3)*1024} sc1")
        if b & 3 == 3: A(f"s_add_u32 s{sT1}, s{sT1}, 4096")
    A(f"buffer_store_dwordx4 {v(vT,4)}, v{vL16}, {ws}, s{sT1} offen sc1")
    A(f"s_mov_b32 s{sPub}, 1\ns_mov_b32 s{sMode}, 0\ns_mov_b32 s{sJ}, 0\ns_lshl_b32 s{sDiag}, s{sQ}, 1\ns_add_u32 s{sL}, s{sDiag}, 1")
    zero_state()
    A(f"s_waitcnt vmcnt(33)\ns_branch {Lseg}")
    A(f"{Lcomb}:")
    A(f"s_and_b32 s{sT0}, s{sPair}, 1\ns_lshl_b32 s{sT0}, s{sT0}, 4\ns_lshl_b32 s{sT0}, 1, s{sT0}\ns_lshr_b32 s{sT2}, s{sPair}, 1\ns_lshl_b32 s{sT2}, s{sT2}, 2\nv_mov_b32 v{vT+1}, 0")
    A(f"{Lpoll}:\nbuffer_load_dword v{vT}, v{vT+1}, s[{sD}:{sD+3}], s{sT2} offen sc1\ns_waitcnt vmcnt(0)\nv_readfirstlane_b32 s{sT3}, v{vT}\ns_nop 3\ns_and_b32 s{sT3}, s{sT3}, s{sT0}\ns_cbranch_scc0 {Lpoll}")
    A(f"s_add_u32 s{sT2}, s{sT1}, 32768\nbuffer_load_dwordx4 {v(vT,4)}, v{vL16}, {ws}, s{sT2} offen sc1")
    for b in range(32):
        dst = v(vS + 4*b, 4) if b < 16 else a(4*(b-16), 4)
        A(f"buffer_load_dwordx4 {dst}, v{vL16}, {ws}, s{sT1} offen offset:{(b&3)*1024} sc1")
        if b & 3 == 3: A(f"s_add_u32 s{sT1}, s{sT1}, 4096")
    A("s_waitcnt vmcnt(32)")
    fA, fB = vT + 4, vT + 6
    for qb in range(2):
        A(f"v_min_f32 v{vT+8}, v{vNm+4*qb}, v{vT+qb}\nv_sub_f32 v{fA+qb}, v{vT+8}, v{vNm+4*qb}\nv_sub_f32 v{fB+qb}, v{vT+8}, v{vT+qb}\nv_exp_f32 v{fA+qb}, v{fA+qb}\nv_exp_f32 v{fB+qb}, v{fB+qb}\ns_nop 0")
        A(f"v_mul_f32 v{vLs+qb}, v{vLs+qb}, v{fA+qb}\nv_fmac_f32 v{vLs+qb}, v{vT+2+qb}, v{fB+qb}")
        A(xl_reduce("v_add_f32", vLs+qb, vT+8))
        A(f"v_rcp_f32 v{vLs+qb}, v{vLs+qb}\ns_nop 0\nv_mul_f32 v{vLs+qb}, v{vLs+qb}, v{vG+qb}\nv_mul_f32 v{fA+qb}, v{fA+qb}, v{vLs+qb}\nv_mul_f32 v{fB+qb}, v{fB+qb}, v{vLs+qb}")
    for b in range(32):
        for i in range(4): A(f"v_mul_f32 v{vO+4*b+i}, v{vO+4*b+i}, v{fA+(b&1)}")
    for b in range(32):
        if b % 4 == 0: A(f"s_waitcnt vmcnt({28-b})")
        if b >= 16:
            for i in range(4): A(f"v_accvgpr_read_b32 v{vS+4*(b-16)+i}, a{4*(b-16)+i}")
        for i in range(4): A(f"v_fmac_f32 v{vO+4*b+i}, v{vS+4*(b&15)+i}, v{fB+(b&1)}")
    Lst = A.label("K2_store")
    A(f"s_branch {Lst}")
    A(f"{Lfin}:\ns_waitcnt vmcnt(16)")
    for qb in range(2):
        A(xl_reduce("v_add_f32", vLs+qb, vT+8))
        A(f"v_rcp_f32 v{vLs+qb}, v{vLs+qb}\ns_nop 0\nv_mul_f32 v{vLs+qb}, v{vLs+qb}, v{vG+qb}")
    for b in range(32):
        for i in range(4): A(f"v_mul_f32 v{vO+4*b+i}, v{vO+4*b+i}, v{vLs+(b&1)}")
    A(f"{Lst}:")
    stamp(4)
    A(f"s_lshl_b32 s{sT0}, s51, 3\ns_lshl_b32 s{sT1}, s{sW}, 1\ns_add_u32 s{sT0}, s{sT0}, s{sT1}\ns_mul_i32 s{sT0}, s{sT0}, 144\ns_lshl_b32 s{sT1}, s{sH}, 3\ns_add_u32 s{sT0}, s{sT0}, s{sT1}\ns_lshl_b32 s{sT0}, s{sT0}, 10\ns_add_u32 s{sT0}, s{sT0}, {WS_CTX}")
    for qb in range(2):
        for g in range(8):
            r0, r1 = Ob(2*g, qb), Ob(2*g+1, qb)
            A(f"v_cvt_pk_bf16_f32 v{r0}, v{r0}, v{r0+1}\nv_cvt_pk_bf16_f32 v{r0+1}, v{r0+2}, v{r0+3}\nv_cvt_pk_bf16_f32 v{r0+2}, v{r1}, v{r1+1}\nv_cvt_pk_bf16_f32 v{r0+3}, v{r1+2}, v{r1+3}")
            if g & 3 == 0: A(f"s_add_u32 s{sT1}, s{sT0}, {qb*144*1024 + (g>>2)*4096}")
            A(f"buffer_store_dwordx4 {v(r0,4)}, v{vL16}, {ws}, s{sT1} offen offset:{(g&3)*1024}")
    if stamps:
        stamp(5); stamp(6)
        A("s_waitcnt vmcnt(0)")
        stamp(7)
        A("s_waitcnt lgkmcnt(0)")
        for q, r in enumerate(SR): A(f"v_mov_b32 v{4+q}, s{r}")
        A(f"v_mov_b32 v12, 0\ns_lshl_b32 s{sT3}, s2, 5\ns_add_u32 s{sT3}, s{sT3}, {200*MB + 65536}")
        A(f"buffer_store_dwordx4 v[4:7], v12, {ws}, s{sT3} offen\nbuffer_store_dwordx4 v[8:11], v12, {ws}, s{sT3} offen offset:16")
    A(f"{Lend}:\ns_endpgm")
```

```python
from asmlib import *
from k1 import *

def gen_k3(A, name="k3_kernel", stamps=False):
    sWS, sO = 8, 12
    sW, sT, sN = 16, 17, 18
    sB = 20
    sT0, sT1, sCnt = 28, 29, 30
    SR = [76, 78, 80, 82, 84, 86, 88, 90]
    vL16 = 1; vT = 2
    vAcc = 16; vR = 80
    def stamp(i):
        if stamps: A(f"s_memrealtime s[{SR[i]}:{SR[i]+1}]")
    A(f".globl {name}\n.p2align 8\n.type {name},@function\n{name}:")
    Lend = A.label("K3_end")
    A(f"s_cmp_ge_u32 s2, 224\ns_cbranch_scc1 {Lend}")
    stamp(0)
    A("s_load_dwordx2 s[4:5], s[0:1], 80\ns_load_dwordx2 s[6:7], s[0:1], 96")
    A(f"v_lshrrev_b32 v{vT}, 6, v0\nv_and_b32 v0, 63, v0\nv_readfirstlane_b32 s{sW}, v{vT}\nv_lshlrev_b32 v{vL16}, 4, v0")
    A(f"s_and_b32 s{sT0}, s2, 7\ns_lshl_b32 s{sT}, s{sT0}, 2\ns_bfe_u32 s{sT0}, s2, {(2 << 16) | 3}\ns_add_u32 s{sT}, s{sT}, s{sT0}\ns_lshr_b32 s{sN}, s2, 5")
    A(f"s_mul_i32 s{sT0}, s{sW}, {36*1024}")
    A(f"s_mul_i32 s{sB}, s{sT}, {4*144*1024}\ns_add_u32 s{sB}, s{sB}, s{sT0}\ns_add_u32 s{sB}, s{sB}, {WS_CTX}")
    A(f"s_mul_i32 s{sB+4}, s{sN}, {4*144*1024}\ns_add_u32 s{sB+4}, s{sB+4}, s{sT0}\ns_add_u32 s{sB+4}, s{sB+4}, {WS_WO}")
    for t in range(1, 4):
        A(f"s_add_u32 s{sB+t}, s{sB+t-1}, {144*1024}\ns_add_u32 s{sB+4+t}, s{sB+4+t-1}, {144*1024}")
    A("s_waitcnt lgkmcnt(0)")
    A(f"s_mov_b32 s{sWS}, s6\ns_mov_b32 s{sWS+1}, s7\ns_mov_b32 s{sWS+2}, {WS_SIZE}\ns_mov_b32 s{sWS+3}, 0x00020000")
    A(f"s_mov_b32 s{sO}, s4\ns_mov_b32 s{sO+1}, s5\ns_mov_b32 s{sO+2}, {2048*896}\ns_mov_b32 s{sO+3}, 0x00020000")
    ws = f"s[{sWS}:{sWS+3}]"
    def loads(k):
        return [f"buffer_load_dwordx4 {v(vR+32*k+4*f,4)}, v{vL16}, {ws}, s{sB+f} offen offset:{k*1024}" for f in range(8)]
    def adv(): return [f"s_add_u32 s{sB+f}, s{sB+f}, 4096" for f in range(8)]
    def mf(k):
        out = []
        for u in range(4):
            for tt in range(4):
                t = tt if u % 2 == 0 else 3 - tt
                c = v(vAcc + 4*(4*u+t), 4)
                out.append(f"{MF} {c}, {v(vR+32*k+16+4*u,4)}, {v(vR+32*k+4*t,4)}, {c}")
        return out
    for k in range(4):
        for t in loads(k): A(t)
    for t in adv(): A(t)
    for i in range(64): A(f"v_mov_b32 v{vAcc+i}, 0")
    A(f"s_mov_b32 s{sCnt}, 0")
    Lloop = A.label("K3_loop")
    A(f".p2align 6\n{Lloop}:")
    for k in range(4):
        A("s_waitcnt vmcnt(24)")
        if k == 0 and stamps:
            Ls = A.label("K3_st"); A(f"s_cmp_lg_u32 s{sCnt}, 0\ns_cbranch_scc1 {Ls}"); stamp(1); A(f"{Ls}:")
        for m in mf(k): A(m)
        for t in loads(k): A(t)
    for t in adv(): A(t)
    A(f"s_add_u32 s{sCnt}, s{sCnt}, 1\ns_cmp_lt_u32 s{sCnt}, 8\ns_cbranch_scc1 {Lloop}")
    for k in range(4):
        A(f"s_waitcnt vmcnt({24-8*k})")
        for m in mf(k): A(m)
    stamp(2)
    A(f"v_and_b32 v{vT}, 15, v0\nv_mul_u32_u24 v{vT}, 272, v{vT}\nv_lshrrev_b32 v{vT+1}, 4, v0\nv_lshl_add_u32 v{vT}, v{vT+1}, 4, v{vT}\ns_mul_i32 s{sT0}, s{sW}, {64*272}\nv_add_u32 v{vT}, s{sT0}, v{vT}")
    A(f"v_lshrrev_b32 v{vT+1}, 3, v0\ns_lshl_b32 s{sT0}, s{sW}, 4\nv_add_u32 v{vT+1}, s{sT0}, v{vT+1}\nv_mul_u32_u24 v{vT+2}, 272, v{vT+1}\nv_and_b32 v{vT+3}, 7, v0\nv_lshl_add_u32 v{vT+2}, v{vT+3}, 5, v{vT+2}")
    A(f"v_mul_u32_u24 v{vT+4}, 896, v{vT+1}\nv_lshl_add_u32 v{vT+4}, v{vT+3}, 4, v{vT+4}")
    A(f"s_mul_i32 s{sT0}, s{sT}, {64*896}\ns_lshl_b32 s{sT1}, s{sN}, 7\ns_add_u32 s{sT0}, s{sT0}, s{sT1}\ns_add_u32 s{sT1}, s{sT0}, {8*896}")
    for u in range(4):
        for t in range(4):
            A(f"ds_write_b128 v{vT}, {v(vAcc+4*(4*u+t),4)} offset:{t*16*272 + u*64}")
    A("s_waitcnt lgkmcnt(0)\ns_barrier")
    for r in range(2):
        for p in range(4):
            for hh in range(2):
                A(f"ds_read_b128 {v(vR + 32*r + 8*p + 4*hh, 4)}, v{vT+2} offset:{p*64*272 + r*8*272 + hh*16}")
    for r in range(2):
        A(f"s_waitcnt lgkmcnt({8 - 8*r})")
        b = vR + 32*r
        for i in range(8):
            A(f"v_add_f32 v{b+i}, v{b+i}, v{b+8+i}\nv_add_f32 v{b+16+i}, v{b+16+i}, v{b+24+i}")
        for i in range(8): A(f"v_add_f32 v{b+i}, v{b+i}, v{b+16+i}")
        for i in range(4): A(f"v_cvt_pk_bf16_f32 v{b+i}, v{b+2*i}, v{b+2*i+1}")
        A(f"buffer_store_dwordx4 {v(b,4)}, v{vT+4}, s[{sO}:{sO+3}], s{sT0 if r == 0 else sT1} offen")
    if stamps:
        stamp(3); stamp(4); stamp(5); stamp(6)
        A("s_waitcnt vmcnt(0)")
        stamp(7)
        A("s_waitcnt lgkmcnt(0)")
        for q, r in enumerate(SR): A(f"v_mov_b32 v{4+q}, s{r}")
        A(f"v_mov_b32 v12, 0\ns_lshl_b32 s{sT0}, s2, 5\ns_add_u32 s{sT0}, s{sT0}, {200*MB + 131072}")
        A(f"buffer_store_dwordx4 v[4:7], v12, {ws}, s{sT0} offen\nbuffer_store_dwordx4 v[8:11], v12, {ws}, s{sT0} offen offset:16")
    A(f"{Lend}:\ns_endpgm")
```

```python
import sys
from asmlib import *
import k1
NAME = "gated_mix__compressed_kv_cla__sliding_local_dilated__prompt"
def build(path, kernels=("k1",), stamps=False):
    A = Asm()
    hdr = open("cdna_kernels/" + NAME + ".s.ref").read().split("\n") if False else []
    if "k1" in kernels: A("; @launch kernel=k1_kernel grid=(256,1,1) block=(256,1,1) lds=163840")
    if "k2" in kernels: A("; @launch kernel=k2_kernel grid=(256,1,1) block=(256,1,1) lds=163840")
    if "k3" in kernels: A("; @launch kernel=k3_kernel grid=(224,1,1) block=(256,1,1) lds=69632")
    A('.amdgcn_target "amdgcn-amd-amdhsa--gfx950"\n.text')
    if "k1" in kernels: k1.gen_k1(A, stamps=stamps)
    if "k2" in kernels:
        import k2; k2.gen_k2(A, stamps=stamps)
    if "k3" in kernels:
        import k3; k3.gen_k3(A, stamps=stamps)
    A("CODE_END:")
    A('.section .rodata,"a"\n.p2align 6')
    t = A.text()
    if "k1" in kernels: t += kd("k1_kernel")
    if "k2" in kernels: t += ".p2align 6\n" + kd("k2_kernel")
    if "k3" in kernels: t += ".p2align 6\n" + kd("k3_kernel", 256, 256)
    open(path, "w").write(t)
if __name__ == "__main__":
    build(sys.argv[1], tuple(sys.argv[2].split(",")), stamps=len(sys.argv) > 3)
```

```python
class Asm:
    def __init__(self):
        self.L = []
        self.uid = 0
    def __call__(self, s):
        for ln in s.split("\n"):
            ln = ln.strip()
            if ln:
                self.L.append(("" if ln.endswith(":") or ln.startswith(".") or ln.startswith(";") else "    ") + ln)
    def label(self, base):
        self.uid += 1
        return f"{base}_{self.uid}"
    def text(self):
        out = []; q = None
        for ln in self.L:
            t = ln.strip()
            if t.startswith("VMSEED"):
                q = []
                for it in t.split()[1:]:
                    tag, n = it.split("*"); q += [tag] * int(n)
                continue
            if t.startswith("VMEND"):
                q = None; continue
            if t.startswith("WAITVM"):
                parts = t.split()
                tags = parts[1].split(",")
                for tg in tags: assert tg in q, (tg, q)
                last = max(i for i, x in enumerate(q) if x in tags)
                cnt = len(q) - 1 - last
                assert cnt <= 63
                out.append(f"    s_waitcnt vmcnt({cnt}) " + " ".join(parts[2:]))
                continue
            if q is not None and (t.startswith("buffer_") or t.startswith("global_")):
                q.append(t.split("; vm:")[1].strip() if "; vm:" in t else "?")
            out.append(ln)
        return "\n".join(out) + "\n"

def rng(kind, base, n):
    return f"{kind}{base}" if n == 1 else f"{kind}[{base}:{base+n-1}]"
def v(b, n=1): return rng("v", b, n)
def a(b, n=1): return rng("a", b, n)
def s(b, n=1): return rng("s", b, n)

def interleave(A, mfmas, fillers):
    by = {}
    for p, t in fillers:
        by.setdefault(p, []).append(t)
    for t in by.get(-1, []): A(t)
    for i, m in enumerate(mfmas):
        A(m)
        for t in by.get(i, []): A(t)
    for p in by:
        assert -1 <= p < len(mfmas), p

def spread(items, lo, hi):
    n = len(items)
    out = []
    for k, t in enumerate(items):
        out.append((lo + (k * (hi - lo + 1)) // n, t))
    return out

def kd(name, vgpr=512, accum=256, sgpr=102):
    return f""".amdhsa_kernel {name}
  .amdhsa_next_free_vgpr {vgpr}
  .amdhsa_next_free_sgpr {sgpr}
  .amdhsa_accum_offset {accum}
  .amdhsa_group_segment_fixed_size 0
  .amdhsa_kernarg_size 104
  .amdhsa_user_sgpr_count 2
  .amdhsa_user_sgpr_kernarg_segment_ptr 1
  .amdhsa_system_sgpr_workgroup_id_x 1
.end_amdhsa_kernel
"""

import os
OPT = dict(kv.split("=") for kv in os.environ.get("OPT", "").split(",") if kv)
def opt(k, d=None):
    return OPT.get(k, d)
def opti(k, d=0):
    return int(OPT.get(k, d))
def flags(k, d="sc1"):
    return OPT.get(k, d).replace("+", " ")
```

```python
from asmlib import *
import math, struct

MB = 1 << 20
WS_K = 0
WS_V = 16 * MB
WS_Q = 32 * MB
WS_QB = 48 * MB
WS_KB = 50 * MB
WS_VB = 52 * MB
WS_G = 54 * MB
WS_CTX = 56 * MB
WS_PART = 80 * MB
WS_WO = 100 * MB
WS_SIZE = 256 * MB

def f32bits(x): return struct.unpack("<I", struct.pack("<f", x))[0]
LOG2E = 1.4426950408889634
MF = "v_mfma_f32_16x16x32_bf16"

def gen_k1(A, name="k1_kernel", stamps=False):
    sX, sWa, sWb, sO, sSide, sG = 28, 32, 36, 40, 44, 48
    sW, sWM, sWN, sT, sH, sP = 60, 61, 62, 63, 64, 65
    sXo, sXst = 66, 67
    sAo, sAst, sBo, sBst = 68, 69, 70, 71
    sAadv, sBadv = 72, 73
    sLst, sLgb = 74, 75
    sXl, sWl = 76, 77
    sCnt, sWd, sWrs = 78, 79, 80
    sT0, sT1, sT2, sT3 = 81, 82, 83, 84
    sWlw = 85
    sWls = 86
    sOb = 87
    sTb = 88
    vLane16 = 1
    vXd, vAd, vBd = 2, 3, 4
    vXd2, vAd2, vBd2 = 5, 6, 7
    vXr = 8
    vWr = 16
    vT = 26
    XS0, WS0 = 0, 65536

    def acc1(i, j, isV):
        n, sec = ((8 * (i >> 1) + j, i & 1) if isV else (4 * i + (j >> 1), j & 1))
        if not sec: return v(128 + 4 * n, 4)
        return a(128 + 4 * n, 4) if n < 8 else v(32 + 4 * (n - 8), 4)
    def pack1(n):
        r0 = 128 + 4 * n
        out = [f"v_cvt_pk_bf16_f32 v{r0}, v{r0}, v{r0+1}", f"v_cvt_pk_bf16_f32 v{r0+1}, v{r0+2}, v{r0+3}"]
        if n < 8:
            r1 = vT
            out += [f"v_accvgpr_read_b32 v{vT+q}, a{128+4*n+q}" for q in range(4)]
        else: r1 = 32 + 4 * (n - 8)
        out += [f"v_cvt_pk_bf16_f32 v{r0+2}, v{r1}, v{r1+1}", f"v_cvt_pk_bf16_f32 v{r0+3}, v{r1+2}, v{r1+3}"]
        return out
    X1 = [0, 64]; W1 = [32, 96]
    S2 = [160, 0]

    A(f".globl {name}\n.p2align 8\n.type {name},@function\n{name}:")
    Lend = A.label("K1_end")
    A(f"s_cmp_ge_u32 s2, 256\ns_cbranch_scc1 {Lend}")
    SR = [52, 54, 56, 58, 92, 94, 96, 98]
    def stamp(i):
        if stamps: A(f"{'s_memtime' if opti('cyc') else 's_memrealtime'} s[{SR[i]}:{SR[i]+1}]")
    stamp(0)
    A("s_load_dwordx16 s[4:19], s[0:1], 0\ns_load_dwordx4 s[20:23], s[0:1], 64\ns_load_dwordx2 s[24:25], s[0:1], 96")
    A(f"v_lshrrev_b32 v{vT}, 6, v0\nv_and_b32 v0, 63, v0\nv_readfirstlane_b32 s{sW}, v{vT}")
    A(f"v_lshlrev_b32 v{vLane16}, 4, v0")
    A(f"s_and_b32 s{sT0}, s2, 7\ns_lshr_b32 s{sT1}, s2, 3\ns_and_b32 s{sT}, s{sT1}, 7\ns_lshr_b32 s{sT1}, s{sT1}, 3")
    A(f"s_and_b32 s{sP}, s{sT1}, 1\ns_lshr_b32 s{sT1}, s{sT1}, 1\ns_lshl_b32 s{sH}, s{sT0}, 1\ns_add_u32 s{sH}, s{sH}, s{sT1}")
    A(f"s_lshr_b32 s{sWM}, s{sW}, 1\ns_and_b32 s{sWN}, s{sW}, 1")
    A(f"v_lshrrev_b32 v{vT}, 4, v0\ns_lshl_b32 s{sT0}, s{sWN}, 2\nv_add_u32 v{vT}, s{sT0}, v{vT}")
    A(f"v_and_b32 v{vT+1}, 7, v0\nv_xor_b32 v{vT}, v{vT}, v{vT+1}\nv_lshlrev_b32 v{vT}, 4, v{vT}")
    A(f"v_lshrrev_b32 v{vT+1}, 3, v0\ns_lshl_b32 s{sT0}, s{sW}, 3\nv_add_u32 v{vT+1}, s{sT0}, v{vT+1}")
    A(f"v_lshl_add_u32 v{vXd}, v{vT+1}, 11, v{vT}")
    A(f"v_mul_u32_u24 v{vXd2}, 896, v{vT+1}\nv_add_u32 v{vXd2}, v{vXd2}, v{vT}")
    A(f"v_lshrrev_b32 v{vT}, 5, v0\ns_lshl_b32 s{sT0}, s{sWN}, 1\nv_add_u32 v{vT}, s{sT0}, v{vT}")
    A(f"s_lshl_b32 s{sT0}, s{sWM}, 2\nv_or_b32 v{vT+1}, s{sT0}, v{vT}\nv_lshlrev_b32 v{vT+1}, 1, v{vT+1}")
    A(f"v_and_b32 v{vT+2}, 31, v0\nv_xor_b32 v{vT+1}, v{vT+1}, v{vT+2}\nv_lshlrev_b32 v{vT+1}, 4, v{vT+1}")
    A(f"s_lshl_b32 s{sT0}, s{sWM}, 3\nv_add_u32 v{vT}, s{sT0}, v{vT}")
    A(f"v_lshl_add_u32 v{vAd}, v{vT}, 13, v{vT+1}\nv_mov_b32 v{vBd}, v{vAd}")
    A(f"v_lshrrev_b32 v{vT}, 4, v0\ns_lshl_b32 s{sT0}, s{sWN}, 2\nv_or_b32 v{vT+1}, s{sT0}, v{vT}\nv_lshlrev_b32 v{vT+1}, 1, v{vT+1}")
    A(f"v_and_b32 v{vT+2}, 15, v0\nv_xor_b32 v{vT+1}, v{vT+1}, v{vT+2}")
    A(f"s_lshl_b32 s{sT0}, s{sWN}, 1\ns_add_u32 s{sT0}, s{sT0}, s{sWM}\ns_lshl_b32 s{sT1}, s{sT0}, 2\nv_add_u32 v{vT}, s{sT1}, v{vT}")
    A(f"s_lshl_b32 s{sT3}, s{sT0}, 10")
    A(f"s_mov_b32 s89, s{sT3}\ns_mov_b32 s90, 0x8000\ns_mov_b32 s91, {4096*896}")
    A(f"v_lshlrev_b32 v{vT+2}, 4, v{vT+1}\nv_lshl_add_u32 v{vAd2}, v{vT}, 13, v{vT+2}")
    A(f"v_lshrrev_b32 v{vT+2}, 2, v{vT+1}\nv_min_u32 v{vT+2}, 2, v{vT+2}\nv_mul_u32_u24 v{vT+2}, 896, v{vT+2}")
    A(f"v_and_b32 v{vT+1}, 3, v{vT+1}\nv_lshl_add_u32 v{vT+2}, v{vT+1}, 4, v{vT+2}")
    A(f"v_mul_u32_u24 v{vBd2}, 2688, v{vT}\nv_add_u32 v{vBd2}, v{vBd2}, v{vT+2}")
    A(f"v_and_b32 v{vT}, 15, v0\nv_lshrrev_b32 v{vT+1}, 4, v0\nv_lshrrev_b32 v{vT+2}, 1, v{vT}\nv_xor_b32 v{vT+2}, v{vT+2}, v{vT+1}")
    A(f"v_lshlrev_b32 v{vT+2}, 4, v{vT+2}\nv_lshl_add_u32 v{vXr}, v{vT}, 7, v{vT+2}\ns_lshl_b32 s{sT0}, s{sWM}, 14\nv_add_u32 v{vXr}, s{sT0}, v{vXr}")
    A(f"v_xor_b32 v{vXr+1}, 64, v{vXr}")
    A(f"v_lshrrev_b32 v{vT+2}, 2, v{vT}")
    A(f"v_and_b32 v{vT+3}, 1, v{vT+1}\nv_lshl_or_b32 v{vT+3}, v{vT+3}, 2, v{vT+2}")
    A(f"v_lshl_add_u32 v{vT+2}, v{vT+1}, 3, v{vT+2}")
    A(f"v_and_b32 v{vT+4}, 3, v0\nv_lshlrev_b32 v{vT+4}, 3, v{vT+4}\nv_lshl_add_u32 v{vT+4}, v{vT+3}, 5, v{vT+4}")
    A(f"v_lshl_add_u32 v{vWr}, v{vT+2}, 9, v{vT+4}\ns_lshl_b32 s{sT0}, s{sWN}, 8\ns_add_u32 s{sT0}, s{sT0}, {WS0}\nv_add_u32 v{vWr}, s{sT0}, v{vWr}")
    for j in range(1, 8):
        A(f"v_xor_b32 v{vWr+j}, {j << 5}, v{vWr}")
    A(f"v_lshl_add_u32 v{vT+5}, v{vT+2}, 8, v{vT+4}")
    A("s_waitcnt lgkmcnt(0)")
    A(f"s_mov_b32 s{sX}, s6\ns_mov_b32 s{sX+1}, s7\ns_mov_b32 s{sX+2}, {2048*2048}\ns_mov_b32 s{sX+3}, 0x00020000")
    A(f"s_cmp_eq_u32 s{sP}, 0\ns_cselect_b32 s{sWa}, s10, s12\ns_cselect_b32 s{sWa+1}, s11, s13\ns_mov_b32 s{sWa+2}, {1024*8192}\ns_mov_b32 s{sWa+3}, 0x00020000")
    A(f"s_mov_b32 s{sWb}, s{sWa}\ns_mov_b32 s{sWb+1}, s{sWa+1}\ns_mov_b32 s{sWb+2}, {1024*8192}\ns_mov_b32 s{sWb+3}, 0x00020000")
    A(f"s_mov_b32 s{sO}, s24\ns_mov_b32 s{sO+1}, s25\ns_mov_b32 s{sO+2}, {WS_SIZE}\ns_mov_b32 s{sO+3}, 0x00020000")
    A(f"s_lshl_b32 s{sXo}, s{sT}, 19\ns_mov_b32 s{sXst}, {32*2048}")
    A(f"s_lshl_b32 s{sAo}, s{sH}, 9\ns_add_u32 s{sBo}, s{sAo}, {4*8192}\ns_mov_b32 s{sAst}, {16*8192}\ns_mov_b32 s{sBst}, {16*8192}")
    A(f"s_mov_b32 s{sAadv}, {64*8192}\ns_mov_b32 s{sBadv}, {64*8192}\ns_mov_b32 s{sLst}, 8192\ns_mov_b32 s{sLgb}, 2048")
    A(f"s_lshl_b32 s{sXl}, s{sW}, 10")
    A(f"s_lshl_b32 s{sWlw}, s{sWM}, 2\ns_add_u32 s{sWlw}, s{sWlw}, s{sWN}\ns_lshl_b32 s{sWlw}, s{sWlw}, 10\ns_mov_b32 s{sWls}, {WS0}")

    def dmaX(tag='x'):
        out = []
        for p in range(8):
            t = []
            if p == 0:
                t.append(f"s_mov_b32 m0, s{sXl}\ns_mov_b32 s{sT0}, s{sXo}")
            else:
                t.append(f"s_add_u32 m0, m0, 4096\ns_add_u32 s{sT0}, s{sT0}, s{sXst}")
            t.append(f"buffer_load_dwordx4 v{vXd}, s[{sX}:{sX+3}], s{sT0} offen lds ; vm:{tag}")
            if p == 7:
                t.append(f"s_add_u32 s{sXo}, s{sXo}, 128\ns_xor_b32 s{sXl}, s{sXl}, 0x8000")
            out.append("\n".join(t))
        return out
    def dmaW(tag='w'):
        out = []
        for gsel in range(2):
            so, st, adv, srd, vd = ((sAo, sAst, sAadv, sWa, vAd), (sBo, sBst, sBadv, sWb, vBd))[gsel]
            for p in range(4):
                t = []
                if p == 0:
                    if gsel == 0:
                        t.append(f"s_add_u32 s{sWl}, s{sWls}, s{sWlw}\ns_mov_b32 m0, s{sWl}\ns_mov_b32 s{sT1}, s{so}")
                    else:
                        t.append(f"s_add_u32 m0, s{sWl}, s{sLgb}\ns_mov_b32 s{sT1}, s{so}")
                else:
                    t.append(f"s_add_u32 m0, m0, s{sLst}\ns_add_u32 s{sT1}, s{sT1}, s{st}")
                t.append(f"buffer_load_dwordx4 v{vd}, s[{srd}:{srd+3}], s{sT1} offen lds ; vm:{tag}")
                if p == 3:
                    t.append(f"s_add_u32 s{so}, s{so}, s{adv}")
                    if gsel == 1:
                        t.append(f"s_add_u32 s{sWls}, s{sWls}, 0x8000\ns_cmp_eq_u32 s{sWls}, {WS0 + 3*0x8000}\ns_cselect_b32 s{sWls}, {WS0}, s{sWls}")
                out.append("\n".join(t))
        return out
    def reads1(st, ks):
        r = []
        xs = [f"ds_read_b128 {a(X1[st]+4*i,4)}, v{vXr+ks} offset:{i*2048}" for i in range(8)]
        ws = []
        for j in range(8):
            for t in range(2):
                ws.append(f"ds_read_b64_tr_b16 {a(W1[st]+4*j+2*t,2)}, v{vWr+j} offset:{ks*16384+t*2048}")
        return [xs[0]] + ws + xs[1:]
    def reads2(st, ks):
        b = S2[st]
        xs = [f"ds_read_b128 {a(b+4*i,4)}, v{vXr+2*(i>>1)+ks} offset:{(i&1)*2048}" for i in range(8)]
        ws = []
        for j in range(10):
            for t in range(2):
                ws.append(f"ds_read_b64_tr_b16 {a(b+32+4*j+2*t,2)}, v{vWr+j} offset:{ks*8192+t*1024+(16384 if j >= 4 else 0)}")
        return [xs[0]] + ws[:8] + xs[1:] + ws[8:]
    def mf1(st, isV):
        out = []
        for i in range(8):
            for jj in range(8):
                j = jj if i % 2 == 0 else 7 - jj
                x, w = a(X1[st]+4*i, 4), a(W1[st]+4*j, 4)
                c = acc1(i, j, isV)
                out.append(f"{MF} {c}, {x}, {w}, {c}" if isV else f"{MF} {c}, {w}, {x}, {c}")
        return out
    def acc2q(i, j): return a(72 + 4 * (i * 4 + j), 4) if i < 5 else v(32 + 4 * ((i - 5) * 4 + j), 4)
    def acc2b(e, u): return 80 + 4 * (e * 6 + u)
    def mf2row(st, i, first=False):
        b = S2[st]; out = []
        for jj in range(4):
            j = jj if i % 2 == 0 else 3 - jj
            c = acc2q(i, j)
            out.append(f"{MF} {c}, {a(b+32+4*j,4)}, {a(b+4*i,4)}, {0 if first else c}")
        return out
    def mf2b(st, first=False):
        b = S2[st]; out = []
        for e in range(2):
            for uu in range(6):
                u = uu if e == 0 else 5 - uu
                c = v(acc2b(e, u), 4); x = a(b+4*e, 4); w = a(b+48+4*u, 4)
                out.append(f"{MF} {c}, {w}, {x}, {0 if first else c}" if u < 4 else f"{MF} {c}, {x}, {w}, {0 if first else c}")
        return out
    def mf2(st, first=False):
        out = []
        for i in range(8): out += mf2row(st, i, first)
        return out + mf2b(st, first)
    def adv_rd(nx, nw):
        t = [f"s_add_u32 s{sWrs}, s{sWrs}, 1\ns_cmp_eq_u32 s{sWrs}, 3\ns_cselect_b32 s{sWrs}, 0, s{sWrs}\ns_cselect_b32 s{sWd}, {(-2*0x8000) & 0xffffffff}, s90"]
        t += [f"v_xor_b32 v{vXr+i}, 0x8000, v{vXr+i}" for i in range(nx)]
        t += [f"v_add_u32 v{vWr+j}, s{sWd}, v{vWr+j}" for j in range(nw)]
        return t

    sId, sKs, sNb = 100, 101, 26
    sI0, sI1 = 27, 3
    sEx = 16; sMk = 17
    for t in dmaX() + dmaW() + dmaX() + dmaW(): A(t)
    A(f"s_lshl_b32 s{sId}, s2, 2\ns_add_u32 s{sId}, s{sId}, s{sW}\ns_mul_hi_u32 s{sKs}, s{sId}, {(2**32 + 6)//7}\ns_mul_i32 s{sNb}, s{sKs}, 7\ns_sub_u32 s{sNb}, s{sId}, s{sNb}")
    A(f"s_mov_b32 s{sG+3}, 0x00020000\ns_mov_b32 s{sG}, s22\ns_mov_b32 s{sG+1}, s23\ns_mov_b32 s{sG+2}, 896")
    A(f"s_mov_b32 s{sSide}, s4\ns_mov_b32 s{sSide+1}, s5\ns_mov_b32 s{sSide+2}, {2048*896}\ns_mov_b32 s{sSide+3}, 0x00020000")
    vPx, vPq, vPb = 10, 11, 12
    A(f"s_lshr_b32 s{sT0}, s2, 3\ns_lshl_b32 s{sT0}, s{sT0}, 2\ns_add_u32 s{sT0}, s{sT0}, s{sW}\ns_and_b32 s{sT1}, s2, 7")
    A(f"s_mul_i32 s{sT2}, s{sT0}, 14336\nv_min_u32 v{vPx}, 55, v0\nv_lshlrev_b32 v{vPx}, 7, v{vPx}\nv_add_u32 v{vPx}, s{sT2}, v{vPx}")
    A(f"s_mul_i32 s{sT2}, s{sT0}, 28\nv_min_u32 v{vT}, 27, v0\nv_add_u32 v{vT}, s{sT2}, v{vT}\nv_lshrrev_b32 v{vT+1}, 3, v{vT}\nv_and_b32 v{vT}, 7, v{vT}\nv_lshlrev_b32 v{vT}, 7, v{vT}\nv_lshl_add_u32 v{vPq}, v{vT+1}, 13, v{vT}\ns_lshl_b32 s{sT2}, s{sT1}, 10\nv_add_u32 v{vPq}, s{sT2}, v{vPq}")
    A(f"s_mul_i32 s{sT2}, s{sT0}, 21\nv_min_u32 v{vT}, 20, v0\nv_add_u32 v{vT}, s{sT2}, v{vT}\nv_mul_u32_u24 v{vT+1}, 43691, v{vT}\nv_lshrrev_b32 v{vT+1}, 18, v{vT+1}")
    A(f"v_mul_u32_u24 v{vT+2}, 6, v{vT+1}\nv_sub_u32 v{vT}, v{vT}, v{vT+2}\nv_mul_u32_u24 v{vPb}, 2688, v{vT+1}\nv_lshrrev_b32 v{vT+1}, 1, v{vT}\nv_mul_u32_u24 v{vT+1}, 896, v{vT+1}\nv_add_u32 v{vPb}, v{vPb}, v{vT+1}")
    A(f"v_and_b32 v{vT}, 1, v{vT}\nv_mul_u32_u24 v{vT}, 116, v{vT}\nv_add_u32 v{vPb}, v{vPb}, v{vT}\ns_mul_i32 s{sT2}, s{sT1}, 112\nv_add_u32 v{vPb}, s{sT2}, v{vPb}")
    for i in range(32, 256, 2): A(f"v_mov_b64 {v(i,2)}, 0")
    for i in range(128, 160): A(f"v_accvgpr_write_b32 a{i}, 0")
    PF = opti("pf", 9)
    T_G, T_WO, T_GF, T_WOF = 1, 2, 4, 5
    specials = {}
    aG = 160; aWo = 176
    specials[T_G] = (4, [
        f"v_and_b32 v{vT+1}, 31, v0\nv_mul_u32_u24 v{vT+1}, 28, v{vT+1}\nv_lshrrev_b32 v{vT+2}, 5, v0\nv_mul_u32_u24 v{vT+2}, 896, v{vT+2}\nv_add_u32 v{vT+2}, v{vT+2}, v{vT+1}\ns_mul_i32 s{sT3}, s{sId}, {2*896}",
        f"buffer_load_dwordx4 {a(aG,4)}, v{vT+2}, s[{sSide}:{sSide+3}], s{sT3} offen\nbuffer_load_dwordx3 {a(aG+4,3)}, v{vT+2}, s[{sSide}:{sSide+3}], s{sT3} offen offset:16",
        f"buffer_load_dwordx4 {a(aG+8,4)}, v{vT+1}, s[{sG}:{sG+3}], 0 offen\nbuffer_load_dwordx3 {a(aG+12,3)}, v{vT+1}, s[{sG}:{sG+3}], 0 offen offset:16"])
    specials[T_WO] = (8, [
        f"s_sub_u32 s{sT3}, s{sKs}, 128\ns_mul_i32 s{sT3}, s{sT3}, {28*896}\ns_mul_i32 s{sT2}, s{sKs}, {32*896}\ns_cmp_ge_u32 s{sKs}, 128\ns_cselect_b32 s{sT2}, s{sT3}, s{sT2}",
        f"s_cselect_b32 s{sG}, s20, s14\ns_cselect_b32 s{sG+1}, s21, s15\ns_cselect_b32 s{sG+2}, {448*896}, s91",
        f"s_lshl_b32 s{sT3}, s{sNb}, 7\ns_add_u32 s{sT2}, s{sT2}, s{sT3}\ns_add_u32 s{sT3}, s{sT2}, {16*896}",
        f"v_lshrrev_b32 v{vT}, 4, v0\nv_mul_u32_u24 v{vT}, {4*896}, v{vT}\nv_and_b32 v{vT+1}, 15, v0\nv_lshl_add_u32 v{vT}, v{vT+1}, 3, v{vT}"] +
        [f"buffer_load_dwordx2 {a(aWo+2*j,2)}, v{vT}, s[{sG}:{sG+3}], s{sT2 if j < 4 else sT3} offen offset:{(j&3)*896}" for j in range(8)])
    g = vT
    gf = [f"v_mov_b32 v{g}, 0"]
    for q in range(7): gf.append(f"v_accvgpr_read_b32 v{g+1+2*(q&1)}, a{aG+q}\nv_accvgpr_read_b32 v{g+2+2*(q&1)}, a{aG+8+q}\nv_dot2_f32_bf16 v{g}, v{g+1+2*(q&1)}, v{g+2+2*(q&1)}, v{g}")
    gf += [f"v_lshrrev_b32 v{g+2}, 5, v0\nv_lshlrev_b32 v{g+2}, 2, v{g+2}\ns_lshl_b32 s{sT3}, s{sId}, 3\ns_add_u32 s{sT3}, s{sT3}, {WS_G}",
        f"v_add_f32 v{g}, v{g}, v{g} quad_perm:[1,0,3,2] row_mask:0xf bank_mask:0xf\ns_nop 1",
        f"v_add_f32 v{g}, v{g}, v{g} quad_perm:[2,3,0,1] row_mask:0xf bank_mask:0xf\ns_nop 1",
        f"v_add_f32 v{g}, v{g}, v{g} row_half_mirror row_mask:0xf bank_mask:0xf\ns_nop 1",
        f"v_add_f32 v{g}, v{g}, v{g} row_mirror row_mask:0xf bank_mask:0xf\ns_nop 1",
        f"v_mov_b32 v{g+1}, v{g}\ns_nop 1\nv_permlane16_swap_b32 v{g}, v{g+1}\ns_nop 1\nv_add_f32 v{g}, v{g}, v{g+1}",
        f"v_mul_f32 v{g}, 0x{f32bits(-LOG2E):08x}, v{g}\nv_exp_f32 v{g}, v{g}\ns_nop 0\nv_add_f32 v{g}, 1.0, v{g}\nv_rcp_f32 v{g}, v{g}\ns_nop 1",
        f"buffer_store_dword v{g}, v{g+2}, s[{sO}:{sO+3}], s{sT3} offen {flags('st2')}"]
    specials[T_GF] = (1, gf)
    wf = [f"s_mov_b32 s{sT2}, 0x05040100\ns_mov_b32 s{sT3}, 0x07060302"]
    for hh in range(2):
        for m in range(4):
            wf.append(f"v_accvgpr_read_b32 v{vT}, a{aWo+2*(2*m)+hh}\nv_accvgpr_read_b32 v{vT+1}, a{aWo+2*(2*m+1)+hh}\nv_perm_b32 v{vT+2}, v{vT+1}, v{vT}, s{sT2}\nv_perm_b32 v{vT+3}, v{vT+1}, v{vT}, s{sT3}")
            wf.append(f"v_accvgpr_write_b32 a{192+4*(2*hh)+m}, v{vT+2}\nv_accvgpr_write_b32 a{192+4*(2*hh+1)+m}, v{vT+3}")
    wf.append(f"s_mul_i32 s{sT2}, s{sNb}, {4*144}\ns_add_u32 s{sT2}, s{sT2}, s{sKs}\ns_lshl_b32 s{sT2}, s{sT2}, 10\ns_add_u32 s{sT2}, s{sT2}, {WS_WO}\ns_cmp_ge_u32 s{sId}, 1008\ns_cselect_b32 s{sT2}, {WS_SIZE}, s{sT2}")
    wf += [f"buffer_store_dwordx4 {a(192+4*c,4)}, v{vLane16}, s[{sO}:{sO+3}], s{sT2} offen {flags('st2')}\ns_add_u32 s{sT2}, s{sT2}, {144*1024}" for c in range(4)]
    specials[T_WOF] = (4, wf)
    if PF:
        specials[PF] = (1, [f"s_mov_b32 s{sG}, s8\ns_mov_b32 s{sG+1}, s9\ns_mov_b32 s{sG+2}, {448*8192}\nbuffer_load_dword v15, v{vPq}, s[{sG}:{sG+3}], 0 offen"])
        specials[PF+1] = (1, [f"s_mov_b32 s{sG}, s18\ns_mov_b32 s{sG+1}, s19\ns_mov_b32 s{sG+2}, {448*2688}\nbuffer_load_dword v24, v{vPb}, s[{sG}:{sG+3}], 0 offen"])
        specials[PF+2] = (1, [f"buffer_load_dword v13, v{vPx}, s[{sSide}:{sSide+3}], 0 offen"])
        specials[PF+3] = (1, [f"s_movk_i32 s{sT2}, 7168\nbuffer_load_dword v14, v{vPx}, s[{sSide}:{sSide+3}], s{sT2} offen"])
    specials[14] = (0, [
        f"s_mov_b32 s{sWa}, s8\ns_mov_b32 s{sWa+1}, s9\ns_mov_b32 s{sWa+2}, {448*8192}",
        f"s_mov_b32 s{sWb}, s18\ns_mov_b32 s{sWb+1}, s19\ns_mov_b32 s{sWb+2}, {448*2688}",
        f"s_lshl_b32 s{sAo}, s{sH}, 9\ns_lshl_b32 s{sT2}, s{sP}, 8\ns_add_u32 s{sAo}, s{sAo}, s{sT2}\ns_mul_i32 s{sBo}, s{sH}, 56",
        f"s_mov_b32 s{sBst}, {16*2688}\ns_mov_b32 s{sBadv}, {64*2688}\ns_mov_b32 s{sLst}, 4096\ns_mov_b32 s{sLgb}, 16384\ns_mov_b32 s{sWlw}, s89",
        f"v_mov_b32 v{vAd}, v{vAd2}\nv_mov_b32 v{vBd}, v{vBd2}",
        f"s_mov_b32 s{sX}, s4\ns_mov_b32 s{sX+1}, s5\ns_mov_b32 s{sX+2}, {2048*896}\ns_mul_i32 s{sXo}, s{sT}, {256*896}\ns_mov_b32 s{sXst}, {32*896}\nv_mov_b32 v{vXd}, v{vXd2}"])
    A(f"s_mov_b32 s{sCnt}, 0\ns_mov_b32 s{sWrs}, 0\ns_mov_b32 s{sEx}, 0\ns_mov_b32 s{sMk}, {sum(1 << t for t in specials)}")
    A("s_waitcnt vmcnt(16)\ns_barrier")
    stamp(1)
    for t in reads1(0, 0): A(t)
    LV_entry = A.label("K1_V_B"); Lph2 = A.label("K1_ph2")
    A(f"s_cmp_eq_u32 s{sP}, 1\ns_cbranch_scc1 {LV_entry}")
    LK_entry = A.label("K1_K_B")
    A(f"s_branch {LK_entry}")
    XE = opti("xe", 24)

    for isV in (0, 1):
        Lloop = A.label("K1_loop"); Lent = LV_entry if isV else LK_entry
        Ldis = A.label("K1_dis"); Lret = A.label("K1_ret"); Lw = A.label("K1_w"); Lwr = A.label("K1_wr")
        A(f"{Ldis}:")
        labs = {t: A.label("K1_sp") for t in specials}
        for t in specials: A(f"s_cmp_eq_u32 s{sCnt}, {t}\ns_cbranch_scc1 {labs[t]}")
        A(f"s_branch {Lret}")
        for t, (n, lst) in specials.items():
            A(f"{labs[t]}:")
            for x in lst: A(x)
            A(f"s_mov_b32 s{sEx}, {n}\ns_branch {Lret}")
        A(f"{Lw}:")
        for n in (1, 4):
            Ln = A.label("K1_wn")
            A(f"s_cmp_lg_u32 s{sEx}, {n}\ns_cbranch_scc1 {Ln}\ns_mov_b32 s{sEx}, 0\ns_waitcnt vmcnt({8+n}) lgkmcnt(0)\ns_branch {Lwr}\n{Ln}:")
        A(f"s_mov_b32 s{sEx}, 0\ns_waitcnt vmcnt(16) lgkmcnt(0)\ns_branch {Lwr}")
        A(f".p2align 6\n{Lloop}:")
        interleave(A, mf1(1, isV), spread(reads1(0, 0), 0, 39) + spread(dmaX(), 1, XE) + [(XE + 2, f"s_bitcmp1_b32 s{sMk}, s{sCnt}\ns_cbranch_scc1 {Ldis}\n{Lret}:")])
        A(f"{Lent}:")
        A("s_waitcnt lgkmcnt(0)")
        interleave(A, mf1(0, isV), spread(reads1(1, 1), 0, 39) + spread(dmaW(), 2, 58) + spread(adv_rd(2, 8), 41, 62))
        A(f"s_add_u32 s{sCnt}, s{sCnt}, 1\ns_cmp_lg_u32 s{sEx}, 0\ns_cbranch_scc1 {Lw}")
        A(f"s_waitcnt vmcnt(8) lgkmcnt(0)\n{Lwr}:\ns_cmp_lt_u32 s{sCnt}, 16\ns_barrier")
        A(f"s_cbranch_scc1 {Lloop}")
        stamp(2)
        setup = []
        setup.append(f"s_lshl_b32 s{sTb}, s{sP}, 1\ns_add_u32 s{sTb}, s{sTb}, s{sWN}\ns_lshl_b32 s{sT2}, s{sTb}, 12")
        setup.append(f"v_add_u32 v{vXr}, s{sT2}, v{vXr}\nv_add_u32 v{vXr+1}, s{sT2}, v{vXr+1}")
        setup.append(f"v_add_u32 v{vWr+4}, {WS0 + 0x8000}, v{vT+5}\ns_lshl_b32 s{sT2}, s{sWN}, 7\nv_xor_b32 v{vWr}, s{sT2}, v{vWr+4}")
        for j in range(1, 4): setup.append(f"v_xor_b32 v{vWr+j}, {j << 5}, v{vWr}")
        for sg in range(1, 4):
            setup.append(f"v_xor_b32 v{vXr+2*sg}, {sg << 12}, v{vXr}\nv_xor_b32 v{vXr+2*sg+1}, {sg << 12}, v{vXr+1}")
        for u in range(1, 6): setup.append(f"v_xor_b32 v{vWr+4+u}, {u << 5}, v{vWr+4}")
        if isV:
            setup.append(f"s_lshl_b32 s{sOb}, s{sH}, 6\ns_lshl_b32 s{sT2}, s{sT}, 3\ns_add_u32 s{sOb}, s{sOb}, s{sT2}\ns_lshl_b32 s{sT2}, s{sWM}, 2\ns_add_u32 s{sOb}, s{sOb}, s{sT2}")
            setup.append(f"s_lshl_b32 s{sOb}, s{sOb}, 14\ns_lshl_b32 s{sT2}, s{sWN}, 13\ns_add_u32 s{sOb}, s{sOb}, s{sT2}\ns_add_u32 s{sOb}, s{sOb}, {WS_V}\ns_movk_i32 s{sI0}, 4096\ns_movk_i32 s{sI1}, 12288")
        else:
            setup.append(f"s_lshl_b32 s{sOb}, s{sH}, 7\ns_lshl_b32 s{sT2}, s{sT}, 4\ns_add_u32 s{sOb}, s{sOb}, s{sT2}\ns_lshl_b32 s{sT2}, s{sWM}, 3\ns_add_u32 s{sOb}, s{sOb}, s{sT2}")
            setup.append(f"s_lshl_b32 s{sOb}, s{sOb}, 13\ns_lshl_b32 s{sT2}, s{sWN}, 12\ns_add_u32 s{sOb}, s{sOb}, s{sT2}\ns_add_u32 s{sOb}, s{sOb}, {WS_K}\ns_movk_i32 s{sI0}, 8192\ns_movk_i32 s{sI1}, 8192")
        packs = []
        for q in range(3):
            lst = []
            for n in (range(8*q+7, 8*q-1, -1) if isV else range(8*q, 8*q+8)): lst += pack1(n)
            packs += spread(lst, 16*q + 18, min(16*q + 33, 63))
        interleave(A, mf1(1, isV), spread(setup, 0, 7) + spread(reads2(0, 0), 8, 50) + spread(dmaX(), 2, 58) + packs)
        if not isV: A(f"s_branch {Lph2}")
    A(f"{Lph2}:")
    stamp(3)
    A("VMSEED w17*8 x17*8")
    def st1(n):
        t = f"buffer_store_dwordx4 {v(128+4*n,4)}, v{vLane16}, s[{sO}:{sO+3}], s{sOb} offen offset:{(n&3)*1024} {flags('st1')} ; vm:st"
        if n & 3 == 3: t += f"\ns_add_u32 s{sOb}, s{sOb}, s{sI0 if (n >> 2) % 2 == 0 else sI1}"
        return t
    stq = [st1(n) for n in range(32)]
    per = [int(x) for x in opt("trk", "4/6/6/6/5/5").split("/")]
    A("s_waitcnt lgkmcnt(0)")
    lastp = []
    for n in range(31, 23, -1): lastp += pack1(n)
    for t in range(16, 22):
        k = t - 16
        mine = [stq.pop(0) for _ in range(per[k])] if k < len(per) else []
        if t > 16:
            interleave(A, mf2(1), spread(reads2(0, 0), 0, 30) + spread(dmaX(f"x{t+1}"), 1, 17) + (spread(mine, 19, 43) if mine else []))
            A("s_waitcnt lgkmcnt(0)")
        fl = spread(reads2(1, 1), 0, 30) + spread(adv_rd(8, 10), 31, 43)
        if t == 16:
            fl += spread(lastp, 0, 20) + (spread(mine, 0, 10) if mine else []) + spread(dmaW(f"w{t+2}"), 12, 42)
        elif t + 2 <= 22:
            fl += spread(dmaW(f"w{t+2}"), 1, 40)
        interleave(A, mf2(0, t == 16), fl)
        A(f"WAITVM x{t+1},w{t+1} lgkmcnt(0)\ns_barrier")
    assert not stq
    stamp(4)
    ep = [f"s_mov_b32 s{sAst}, 0x{f32bits(LOG2E/16.0):08x}\ns_mov_b32 s{sBst}, 0x{f32bits(LOG2E/math.sqrt(28.0)):08x}"]
    ep.append(f"s_lshl_b32 s{sOb}, s{sH}, 7\ns_lshl_b32 s{sT3}, s{sT}, 4\ns_add_u32 s{sOb}, s{sOb}, s{sT3}\ns_lshl_b32 s{sT3}, s{sWM}, 3\ns_add_u32 s{sOb}, s{sOb}, s{sT3}\ns_mov_b32 s{sBo}, s{sOb}")
    ep.append(f"s_lshl_b32 s{sOb}, s{sOb}, 13\ns_lshl_b32 s{sT3}, s{sTb}, 11\ns_add_u32 s{sOb}, s{sOb}, s{sT3}\ns_add_u32 s{sOb}, s{sOb}, {WS_Q}\ns_lshl_b32 s{sT3}, s{sTb}, 14\ns_add_u32 s{sOb}, s{sOb}, s{sT3}")
    ep.append(f"s_lshl_b32 s{sT3}, s{sTb}, 1\ns_add_u32 s{sBo}, s{sBo}, s{sT3}\ns_lshl_b32 s{sBo}, s{sBo}, 10\nv_cmp_gt_u32 vcc, 48, v0")
    ep.append(f"v_mov_b32 v{vT}, s{sAst}\nv_mov_b32 v{vT+1}, s{sAst}\nv_mov_b32 v{vT+2}, s{sBst}\nv_mov_b32 v{vT+3}, s{sBst}")
    interleave(A, mf2(1), spread(reads2(0, 0), 0, 30) + spread(ep, 32, 43))
    A("s_waitcnt lgkmcnt(0)")
    def pk4(r0, r1):
        return [f"v_cvt_pk_bf16_f32 v{r0}, v{r0}, v{r0+1}", f"v_cvt_pk_bf16_f32 v{r0+1}, v{r0+2}, v{r0+3}", f"v_cvt_pk_bf16_f32 v{r0+2}, v{r1}, v{r1+1}", f"v_cvt_pk_bf16_f32 v{r0+3}, v{r1+2}, v{r1+3}"]
    def rowepi(i):
        out = []
        if i < 5:
            b = 160 + 16 * i
            out += [f"v_accvgpr_read_b32 v{b+q}, a{72+16*i+q}" for q in range(16)]
        else: b = 32 + 16 * (i - 5)
        out += [f"v_pk_mul_f32 {v(b+2*q,2)}, {v(b+2*q,2)}, {v(vT,2)}" for q in range(8)]
        out.append(f"s_xor_b32 s{sAo}, s{sOb}, {(i >> 1) << 14}\ns_add_u32 s{sAo}, s{sAo}, {(i & 1)*8192}")
        for g in range(2):
            out += pk4(b + 8*g, b + 8*g + 4)
            out.append(f"buffer_store_dwordx4 {v(b+8*g,4)}, v{vLane16}, s[{sO}:{sO+3}], s{sAo} offen offset:{g*1024} {flags('st2')}")
        return out
    ms = mf2row(0, 0) + mf2row(0, 1) + mf2row(0, 2)
    fl = spread(reads2(1, 1), 0, 10) + [(11, "s_waitcnt lgkmcnt(0)")]
    b0 = mf2b(0)
    for i in range(8):
        ms += mf2row(1, i)
        done = len(ms)
        ms += mf2row(0, i + 3) if i + 3 < 8 else b0[4*(i-5):4*(i-5)+4]
        fl += spread(rowepi(i), done + 4, done + 11)
    ms += mf2b(1)
    interleave(A, ms, fl)
    A(f"s_add_u32 s{sAo}, s{sBo}, {WS_QB}\ns_add_u32 s{sT2}, s{sBo}, {WS_KB}\ns_add_u32 s{sT3}, s{sBo}, {WS_VB}\ns_nop 3")
    for db in (1, 0):
        r0, r1 = acc2b(0, 4+db), acc2b(1, 4+db)
        for t in pk4(r0, r1): A(t)
        A(f"buffer_store_dwordx4 {v(r0,4)}, v{vLane16}, s[{sO}:{sO+3}], s{sT3} offen offset:{db*1024} {flags('st2')}")
    for e in range(2):
        r0, r1 = acc2b(e, 2), acc2b(e, 3)
        for t in pk4(r0, r1): A(t)
        A(f"buffer_store_dwordx4 {v(r0,4)}, v{vLane16}, s[{sO}:{sO+3}], s{sT2} offen offset:{e*1024} {flags('st2')}")
    for e in range(2):
        r0, r1 = acc2b(e, 0), acc2b(e, 1)
        for q in range(4): A(f"v_pk_mul_f32 {v(r0+2*q,2)}, {v(r0+2*q,2)}, {v(vT+2,2)}")
        for t in pk4(r0, r1): A(t)
        A(f"v_cndmask_b32 v{r0+2}, 0, v{r0+2}, vcc\nv_cndmask_b32 v{r0+3}, 0, v{r0+3}, vcc")
        A(f"buffer_store_dwordx4 {v(r0,4)}, v{vLane16}, s[{sO}:{sO+3}], s{sAo} offen offset:{e*1024} {flags('st2')}")
    A("VMEND")
    if stamps:
        stamp(5); stamp(6)
        A("s_waitcnt vmcnt(0)")
        stamp(7)
        A("s_waitcnt lgkmcnt(0)")
        for q, r in enumerate(SR): A(f"v_mov_b32 v{4+q}, s{r}")
        A(f"v_mov_b32 v12, 0\ns_lshl_b32 s{sT3}, s2, 5\ns_add_u32 s{sT3}, s{sT3}, {200*MB}")
        A(f"buffer_store_dwordx4 v[4:7], v12, s[{sO}:{sO+3}], s{sT3} offen\nbuffer_store_dwordx4 v[8:11], v12, s[{sO}:{sO+3}], s{sT3} offen offset:16")
    A(f"{Lend}:\ns_endpgm")
```

```python
from asmlib import *
from k1 import *

SPLIT = 18
R = 10
MPOS = 24
PART_STRIDE = 17 * 1024

def gen_k2(A, name="k2_kernel", stamps=False):
    sK, sV, sWS, sD = 8, 12, 16, 20
    sW, sH, sI, sTy = 24, 25, 26, 27
    sKo, sVo, sWrap, sKrem, sVrem = 28, 29, 30, 31, 32
    sKl, sVl = 33, 34
    sVs, sVrs, sVd = 35, 36, 37
    sQ, sJ, sL, sMode = 38, 39, 40, 41
    sDiag = 42
    sT0, sT1, sT2, sT3 = 43, 44, 45, 46
    sC8 = 47
    sPub = 48
    sPair = 49
    sM = 52
    SR = [76, 78, 80, 82, 84, 86, 88, 90]
    vL16, vDm, vKr, vVr, vBase, vD, vNeg = 1, 2, 3, 4, 5, 6, 7
    vT = 8
    vG = 32
    vTs = 34
    vLs = 38
    vNm = 40
    vP = 48; vS = 64; vp = 96; vO = 128
    aQ = 0; aF = 64
    VS0 = 65536
    def stamp(i):
        if stamps: A(f"{'s_memtime' if opti('cyc') else 's_memrealtime'} s[{SR[i]}:{SR[i]+1}]")
    def Ob(db, qb): return vO + 4 * (2 * db + qb)
    def Sb(kb, qb): return vS + 4 * (2 * kb + qb)
    def pb(kb, qb): return vp + 4 * (2 * kb + qb)
    def Pf(ks, qb): return vP + 4 * (2 * ks + qb)
    def fr(f): return a(aF + 4 * (f % 16), 4)
    def rdK(f): return f"ds_read_b128 {fr(f)}, v{vKr} offset:{f*1024}"
    def rdV(f): return f"ds_read_b128 {fr(f)}, v{vVr} offset:{f*1024}"

    def dma(kind):
        srd, so, rem, lb = (sK, sKo, sKrem, sKl) if kind == "K" else (sV, sVo, sVrem, sVl)
        tmp = sT0 if kind == "K" else sT1
        out = []
        for p in range(8):
            t = []
            if p == 0: t.append(f"s_mov_b32 m0, s{lb}\ns_add_u32 s{tmp}, s{so}, 4096")
            if p == 4: t.append(f"s_add_u32 m0, s{lb}, 4096\ns_nop 0")
            t.append(f"buffer_load_dwordx4 v{vDm}, s[{srd}:{srd+3}], s{so if p < 4 else tmp} offen offset:{(p&3)*1024} lds")
            if p == 7:
                t.append(f"s_add_u32 s{so}, s{so}, s{sC8}\ns_cmp_eq_u32 s{so}, s{sWrap}\ns_cselect_b32 s{so}, 0, s{so}")
                t.append(f"s_sub_u32 s{rem}, s{rem}, 1\ns_cmp_eq_u32 s{rem}, 0\ns_cselect_b32 s{srd+2}, 0, s{srd+2}")
                if kind == "K":
                    t.append(f"s_xor_b32 s{lb}, s{lb}, s{sC8}")
                else:
                    t.append(f"s_add_u32 s{sVs}, s{sVs}, 1\ns_cmp_eq_u32 s{sVs}, 3\ns_cselect_b32 s{sVs}, 0, s{sVs}\ns_cselect_b32 s{tmp}, {(-2*0x8000) & 0xffffffff}, s{sC8}\ns_add_u32 s{lb}, s{lb}, s{tmp}")
            out.append("\n".join(t))
        return out
    advK = f"v_xor_b32 v{vKr}, 0x8000, v{vKr}"
    advV = f"s_add_u32 s{sVrs}, s{sVrs}, 1\ns_cmp_eq_u32 s{sVrs}, 3\ns_cselect_b32 s{sVrs}, 0, s{sVrs}\ns_cselect_b32 s{sVd}, {(-2*0x8000) & 0xffffffff}, s{sC8}\nv_add_u32 v{vVr}, s{sVd}, v{vVr}"

    def phase(mf, events, pre):
        order = list(range(pre))
        done = -1
        def emit(lst):
            nonlocal done
            for kind, text in lst:
                A(text)
                if kind.startswith("rd:"): order.append(int(kind[3:]))
                elif kind == "rdx": order.append(-1)
                elif kind == "sync": done = len(order) - 1
        emit(events.get(-1, []))
        for f in range(32):
            if order.index(f) > done:
                need = order.index(f)
                if f + 1 in order and f % 2 == 0: need = max(need, order.index(f + 1))
                cnt = len(order) - 1 - need
                assert cnt <= 15
                A(f"s_waitcnt lgkmcnt({cnt})"); done = need
            m = mf(f)
            for h in range(2):
                A(m[h]); emit(events.get(2 * f + h, []))
    def add_ev(ev, items):
        for p, k, t in items: ev.setdefault(p, []).append((k, t))
    def mfQK(f):
        kb, ds = f >> 3, f & 7
        return [f"{MF} {v(Sb(kb,qb),4)}, {fr(f)}, {a(aQ+4*(8*qb+ds),4)}, {v(vNm+4*qb,4) if ds == 0 else v(Sb(kb,qb),4)}" for qb in range(2)]
    def mfPV(f):
        ks, db = f >> 4, f & 15
        return [f"{MF} {v(Ob(db,qb),4)}, {fr(f)}, {v(Pf(ks,qb),4)}, {v(Ob(db,qb),4)}" for qb in range(2)]
    def cvts():
        out = []
        for ks in range(2):
            for qb in range(2):
                for hh in range(2):
                    src = pb(2*ks+hh, qb)
                    out.append(f"v_cvt_pk_bf16_f32 v{Pf(ks,qb)+2*hh}, v{src}, v{src+1}")
                    out.append(f"v_cvt_pk_bf16_f32 v{Pf(ks,qb)+2*hh+1}, v{src+2}, v{src+3}")
        return out
    def xl_reduce(op, r, t):
        return (f"v_mov_b32 v{t}, v{r}\ns_nop 1\nv_permlane16_swap_b32 v{r}, v{t}\ns_nop 1\n{op} v{r}, v{r}, v{t}\n"
                f"v_mov_b32 v{t}, v{r}\ns_nop 1\nv_permlane32_swap_b32 v{r}, v{t}\ns_nop 1\n{op} v{r}, v{r}, v{t}")
    def mask_block():
        A(f"s_sub_u32 s{sT0}, s{sJ}, s{sDiag}\ns_lshl_b32 s{sT0}, s{sT0}, 6\nv_subrev_u32 v{vD}, s{sT0}, v{vBase}")
        for c in range(-1, 4):
            for i in range(4):
                A(f"v_cmp_gt_i32 s[{sM+2*i}:{sM+2*i+1}], {16*c+i}, v{vD}")
            A("s_nop 0")
            for i in range(4):
                for qb in range(2):
                    kb = c + qb
                    if 0 <= kb < 4:
                        r = Sb(kb, qb) + i
                        A(f"v_cndmask_b32 v{r}, v{r}, v{vNeg}, s[{sM+2*i}:{sM+2*i+1}]")
    def slow(first):
        for qb in range(2):
            m = vT + qb
            regs = [Sb(kb, qb) + i for kb in range(4) for i in range(4)]
            A(f"v_max3_f32 v{m}, v{regs[0]}, v{regs[1]}, v{regs[2]}")
            for x in range(3, 15, 2): A(f"v_max3_f32 v{m}, v{m}, v{regs[x]}, v{regs[x+1]}")
            A(f"v_max_f32 v{m}, v{m}, v{regs[15]}")
            A(xl_reduce("v_max_f32", m, vT + 2))
            if not first: A(f"v_max_f32 v{m}, 0, v{m}")
            for i in range(4): A(f"v_sub_f32 v{vNm+4*qb+i}, v{vNm+4*qb+i}, v{m}")
            if not first:
                A(f"v_sub_f32 v{vT+4+qb}, 0, v{m}\nv_exp_f32 v{vT+4+qb}, v{vT+4+qb}\ns_nop 0\nv_mul_f32 v{vLs+qb}, v{vLs+qb}, v{vT+4+qb}")
                for db in range(16):
                    for i in range(4): A(f"v_mul_f32 v{Ob(db,qb)+i}, v{Ob(db,qb)+i}, v{vT+4+qb}")
            for kb in range(4):
                for i in range(4): A(f"v_sub_f32 v{pb(kb,qb)+i}, v{Sb(kb,qb)+i}, v{m}")
            for kb in range(4):
                for i in range(4): A(f"v_exp_f32 v{pb(kb,qb)+i}, v{pb(kb,qb)+i}")
            A("s_nop 0")
            t = vTs + 2 * qb
            A(f"v_add_f32 v{t}, v{pb(0,qb)}, v{pb(0,qb)+1}")
            for x in range(2, 16): A(f"v_add_f32 v{t}, v{t}, v{pb(x>>2,qb)+(x&3)}")

    A(f".globl {name}\n.p2align 8\n.type {name},@function\n{name}:")
    Lend = A.label("K2_end")
    A(f"s_cmp_ge_u32 s2, 256\ns_cbranch_scc1 {Lend}")
    stamp(0)
    A("s_load_dwordx4 s[4:7], s[0:1], 88")
    A(f"v_lshrrev_b32 v{vT}, 6, v0\nv_and_b32 v0, 63, v0\nv_readfirstlane_b32 s{sW}, v{vT}\nv_lshlrev_b32 v{vL16}, 4, v0")
    A(f"s_lshr_b32 s{sTy}, s2, 7\ns_and_b32 s{sT0}, s2, 7\ns_bfe_u32 s{sT1}, s2, {(1 << 16) | 3}\ns_bfe_u32 s{sI}, s2, {(3 << 16) | 4}")
    A(f"s_lshl_b32 s{sH}, s{sT0}, 1\ns_add_u32 s{sH}, s{sH}, s{sT1}\ns_and_b32 s{sPair}, s2, 127\ns_mov_b32 s{sC8}, 0x8000\ns_mov_b32 s{sPub}, 0")
    A(f"s_lshl_b32 s{sKl}, s{sW}, 13\nv_add_u32 v{vDm}, s{sKl}, v{vL16}\ns_add_u32 s{sVl}, s{sKl}, {VS0}\ns_mov_b32 s{sVs}, 0\ns_mov_b32 s{sVrs}, 0")
    A(f"v_mov_b32 v{vKr}, v{vL16}\nv_add_u32 v{vVr}, {VS0}, v{vL16}\nv_mov_b32 v{vNeg}, 0x{f32bits(-1e30):08x}")
    A(f"v_and_b32 v{vT}, 15, v0\nv_lshrrev_b32 v{vT+1}, 4, v0\nv_lshlrev_b32 v{vT+1}, 2, v{vT+1}\nv_sub_u32 v{vT+1}, v{vT}, v{vT+1}\ns_lshl_b32 s{sT0}, s{sW}, 5\nv_add_u32 v{vBase}, s{sT0}, v{vT+1}")
    A(f"v_lshlrev_b32 v{vT+2}, 2, v{vT}")
    A(f"v_mov_b32 v31, v{vT+2}")
    LB = A.label("K2_B"); LB2 = A.label("K2_Bs2"); Lgo = A.label("K2_go")
    A(f"s_lshl_b32 s{sT0}, s{sI}, 1\ns_sub_u32 s{sT1}, 32, s{sT0}")
    A(f"s_cmp_eq_u32 s{sTy}, 0\ns_cbranch_scc1 {LB}")
    A(f"s_sub_u32 s{sQ}, 15, s{sI}\ns_mov_b32 s{sJ}, 0\ns_mov_b32 s{sL}, {SPLIT-1}\ns_mov_b32 s{sWrap}, -1\ns_mov_b32 s{sKrem}, {SPLIT}")
    A(f"s_cmp_eq_u32 s{sT1}, {SPLIT}\ns_cselect_b32 s{sMode}, 0, 2\ns_branch {Lgo}")
    A(f"{LB}:\ns_mov_b32 s{sKrem}, {34-SPLIT}\ns_lshl_b32 s{sWrap}, s{sT1}, 15\ns_cmp_eq_u32 s{sT1}, {SPLIT}\ns_cbranch_scc1 {LB2}")
    A(f"s_sub_u32 s{sQ}, 15, s{sI}\ns_mov_b32 s{sJ}, {SPLIT}\ns_sub_u32 s{sL}, s{sT1}, 1\ns_mov_b32 s{sMode}, 1\ns_branch {Lgo}")
    A(f"{LB2}:\ns_mov_b32 s{sQ}, s{sI}\ns_mov_b32 s{sJ}, 0\ns_add_u32 s{sL}, s{sT0}, 1\ns_mov_b32 s{sMode}, 0")
    A(f"{Lgo}:\ns_mov_b32 s{sVrem}, s{sKrem}\ns_lshl_b32 s{sKo}, s{sJ}, 15\ns_mov_b32 s{sVo}, s{sKo}\ns_lshl_b32 s{sDiag}, s{sQ}, 1")
    A("s_waitcnt lgkmcnt(0)")
    A(f"s_lshl_b32 s{sT0}, s{sH}, 20\ns_add_u32 s{sK}, s6, s{sT0}\ns_addc_u32 s{sK+1}, s7, 0\ns_mov_b32 s{sK+2}, {MB}\ns_mov_b32 s{sK+3}, 0x00020000")
    A(f"s_add_u32 s{sV}, s{sK}, {WS_V}\ns_addc_u32 s{sV+1}, s{sK+1}, 0\ns_mov_b32 s{sV+2}, {MB}\ns_mov_b32 s{sV+3}, 0x00020000")
    A(f"s_mov_b32 s{sWS}, s6\ns_mov_b32 s{sWS+1}, s7\ns_mov_b32 s{sWS+2}, {WS_SIZE}\ns_mov_b32 s{sWS+3}, 0x00020000")
    A(f"s_mov_b32 s{sD}, s4\ns_mov_b32 s{sD+1}, s5\ns_mov_b32 s{sD+2}, 256\ns_mov_b32 s{sD+3}, 0x00020000")
    ws = f"s[{sWS}:{sWS+3}]"
    vFlag, vZ = 30, 29
    A(f"v_mov_b32 v{vZ}, 0\nv_mov_b32 v{vFlag}, 0\nv_mov_b32 v28, v{vT+1}")
    sFo, sFb = 92, 93
    A(f"s_and_b32 s{sFb}, s{sPair}, 1\ns_lshl_b32 s{sFb}, s{sFb}, 4\ns_lshl_b32 s{sFb}, 1, s{sFb}\ns_lshr_b32 s{sFo}, s{sPair}, 1\ns_lshl_b32 s{sFo}, s{sFo}, 2")
    sPo = 94
    A(f"s_mul_i32 s{sPo}, s{sPair}, {4*PART_STRIDE}\ns_mul_i32 s{sT2}, s{sW}, {PART_STRIDE}\ns_add_u32 s{sPo}, s{sPo}, s{sT2}\ns_add_u32 s{sPo}, s{sPo}, {WS_PART}")
    def loadQ():
        out = [f"s_lshl_b32 s{sT2}, s{sH}, 7\ns_lshl_b32 s{sT3}, s{sQ}, 3\ns_add_u32 s{sT2}, s{sT2}, s{sT3}\ns_lshl_b32 s{sT3}, s{sW}, 1\ns_add_u32 s{sT2}, s{sT2}, s{sT3}\ns_lshl_b32 s{sT2}, s{sT2}, 13\ns_add_u32 s{sT2}, s{sT2}, {WS_Q}"]
        for f in range(16):
            t = f"buffer_load_dwordx4 {a(aQ+4*f,4)}, v{vL16}, {ws}, s{sT2} offen offset:{(f&3)*1024}"
            if f & 3 == 3: t += f"\ns_add_u32 s{sT2}, s{sT2}, 4096"
            out.append(t)
        return out
    for t in dma("K") + loadQ() + dma("K") + dma("V") + dma("V"): A(t)
    for i in range(vO, vO + 128): A(f"v_mov_b32 v{i}, 0")
    for i in range(vLs, vNm + 8): A(f"v_mov_b32 v{i}, 0")
    Lloop = A.label("K2_loop"); Lqk = A.label("K2_qk"); Ltail = A.label("K2_tail"); Lfirst = A.label("K2_first")
    Lslow = A.label("K2_slow"); Lback = A.label("K2_back"); Lnm0 = A.label("K2_nm0"); Lnm1 = A.label("K2_nm1"); Lnp = A.label("K2_np"); Lpub = A.label("K2_pub")
    NK0 = 7
    def qk_first(fill):
        ev = {}
        add_ev(ev, [(-1, f"rd:{f}", rdK(f)) for f in range(R)])
        add_ev(ev, [(2*(f-R)+1, f"rd:{f}", rdK(f)) for f in range(R, 32)])
        add_ev(ev, [(2*(31-R)+2, "", advK)])
        add_ev(ev, [(p, "", t) for p, t in fill])
        phase(mfQK, ev, 0)
    A("s_waitcnt vmcnt(24)\ns_barrier")
    stamp(1)
    qk_first([])
    A("s_waitcnt vmcnt(8) lgkmcnt(0)\ns_barrier")
    bq, bk, bv, bm = 128, 144, 164, 180
    bg = 24
    A(f"s_cmp_lg_u32 s{sTy}, 0\ns_cbranch_scc1 {Lfirst}")
    A(f"s_lshl_b32 s50, s{sI}, 2\ns_add_u32 s50, s50, s{sW}\ns_lshl_b32 s50, s50, 1")
    A(f"s_lshl_b32 s{sT3}, s{sH}, 17\ns_lshl_b32 s{sT0}, s50, 11\ns_add_u32 s{sT3}, s{sT3}, s{sT0}")
    A(f"s_add_u32 s{sT0}, s{sT3}, {WS_QB}\ns_add_u32 s{sT1}, s{sT3}, {WS_KB - 1024}\ns_add_u32 s{sT2}, s{sT3}, {WS_KB + 3072}")
    for e in range(4): A(f"buffer_load_dwordx4 {a(bq+4*e,4)}, v{vL16}, {ws}, s{sT0} offen offset:{e*1024}")
    for e in range(4): A(f"buffer_load_dwordx4 {a(bk+4*e,4)}, v{vL16}, {ws}, s{sT1} offen offset:{e*1024}")
    A(f"buffer_load_dwordx4 {a(bk+16,4)}, v{vL16}, {ws}, s{sT2} offen")
    A(f"s_add_u32 s{sT0}, s{sT3}, {WS_VB - 2048}\ns_add_u32 s{sT2}, s{sT3}, {WS_VB}\ns_lshl_b32 s{sT1}, s50, 7\ns_add_u32 s{sT1}, s{sT1}, {WS_G}")
    for tk in range(2):
        for db in range(2):
            o = tk*2048 + db*1024
            A(f"buffer_load_dwordx4 {a(bv+8*tk+4*db,4)}, v{vL16}, {ws}, s{sT2} offen offset:{o}")
            A(f"buffer_load_dwordx2 {a(bm+8*tk+4*db,2)}, v{vL16}, {ws}, s{sT2} offen offset:{o}")
            A(f"buffer_load_dwordx2 {a(bm+8*tk+4*db+2,2)}, v{vL16}, {ws}, s{sT0} offen offset:{o+8}")
    for e in range(4): A(f"buffer_load_dword v{bg+e}, v31, {ws}, s{sT1} offen offset:{e*64}")
    A(f"{Lfirst}:")
    for f in range(NK0): A(rdK(f))
    A(f"s_cmp_lt_u32 s{sJ}, s{sDiag}\ns_cbranch_scc1 {Lnm0}")
    mask_block()
    A(f"{Lnm0}:")
    slow(True)
    A(f"v_mov_b32 v{vLs}, v{vTs}\nv_mov_b32 v{vLs+1}, v{vTs+2}\ns_branch {Lqk}")
    A(f"{Lslow}:")
    slow(False)
    A(f"s_branch {Lback}")
    A(f"{Lpub}:\nv_mov_b32 v{vT+1}, s{sFb}\ns_mov_b32 s{sPub}, 0\ns_mov_b64 exec, 1\nbuffer_atomic_add v{vT+1}, v{vZ}, s[{sD}:{sD+3}], s{sFo} offen sc1\ns_mov_b64 exec, -1\ns_branch {Lnp}")
    A(f".p2align 6\n{Lloop}:")
    A(f"s_add_u32 s{sJ}, s{sJ}, 1\ns_cmp_lt_u32 s{sJ}, s{sDiag}\ns_cbranch_scc1 {Lnm1}")
    mask_block()
    A(f"{Lnm1}:")
    ev = {}
    add_ev(ev, [(2*(f-R)+1, f"rd:{f}", rdV(f)) for f in range(R, 32)])
    add_ev(ev, [(2*(31-R)+2, "", advV)])
    add_ev(ev, [(2*MPOS-1, "sync", "s_waitcnt vmcnt(8) lgkmcnt(0)\ns_barrier")])
    add_ev(ev, [(2*(MPOS+f)+1, "rdx", rdK(f)) for f in range(NK0)])
    els = [(kb, qb, i) for kb in range(4) for qb in range(2) for i in range(4)]
    seen = set()
    for x, (kb, qb, i) in enumerate(els):
        add_ev(ev, [(2*x, "", f"v_exp_f32 v{pb(kb,qb)+i}, v{Sb(kb,qb)+i}")])
        t = vTs + 2*qb + (i & 1)
        txt = f"v_add_f32 v{t}, v{t}, v{pb(kb,qb)+i}" if t in seen else f"v_mov_b32 v{t}, v{pb(kb,qb)+i}"
        seen.add(t)
        add_ev(ev, [(2*x+1, "", txt)])
    phase(mfPV, ev, R)
    A(f"v_add_f32 v{vTs}, v{vTs}, v{vTs+1}\nv_add_f32 v{vTs+2}, v{vTs+2}, v{vTs+3}\ns_cmp_lg_u32 s{sPub}, 0\nv_max_f32 v{vT}, v{vTs}, v{vTs+2}\nv_cmp_nge_f32 vcc, 0x44800000, v{vT}")
    A(f"s_cbranch_scc1 {Lpub}\n{Lnp}:")
    A(f"s_cbranch_vccnz {Lslow}\n{Lback}:")
    A(f"v_add_f32 v{vLs}, v{vLs}, v{vTs}\nv_add_f32 v{vLs+1}, v{vLs+1}, v{vTs+2}")
    A(f"s_cmp_eq_u32 s{sJ}, s{sL}\ns_cbranch_scc1 {Ltail}")
    A(f"{Lqk}:")
    ev = {}
    items = []; f = NK0; slot = 0
    while f < 32:
        p = max(2*(f-R)+1, slot)
        items.append((p, f"rd:{f}", rdK(f))); slot = p + 1; f += 1
    add_ev(ev, items)
    add_ev(ev, [(2*(31-R)+2, "", advK)])
    add_ev(ev, [(2*(32-R+f)+1, "rdx", rdV(f)) for f in range(R)])
    add_ev(ev, [(p, "", t) for p, t in spread(cvts(), 4, 50)])
    dk, dv = dma("K"), dma("V")
    add_ev(ev, [(p, "", t) for p, t in spread(dk + [f"buffer_load_dword v{vFlag}, v{vZ}, s[{sD}:{sD+3}], s{sFo} offen sc1"] + dv, 2, 62)])
    phase(mfQK, ev, NK0)
    A(f"s_branch {Lloop}")
    def pv_last(fill):
        ev = {}
        add_ev(ev, [(2*(f-R)+1, f"rd:{f}", rdV(f)) for f in range(R, 32)])
        add_ev(ev, [(2*(31-R)+2, "", advV)])
        add_ev(ev, [(p, "", t) for p, t in fill])
        phase(mfPV, ev, R)
    def pack(qb, g):
        r0, r1 = Ob(2*g, qb), Ob(2*g+1, qb)
        return [f"v_cvt_pk_bf16_f32 v{r0}, v{r0}, v{r0+1}", f"v_cvt_pk_bf16_f32 v{r0+1}, v{r0+2}, v{r0+3}", f"v_cvt_pk_bf16_f32 v{r0+2}, v{r1}, v{r1+1}", f"v_cvt_pk_bf16_f32 v{r0+3}, v{r1+2}, v{r1+3}"]
    def part_loads():
        out = [f"s_add_u32 s{sT2}, s{sPo}, 16384\nbuffer_load_dwordx4 {v(vT,4)}, v{vL16}, {ws}, s{sT2} offen sc1"]
        for n in range(16):
            t = f"s_add_u32 s{sT2}, s{sPo}, {(n>>2)*4096}\n" if n & 3 == 0 else ""
            out.append(t + f"buffer_load_dwordx4 {v(vS+4*n,4)}, v{vL16}, {ws}, s{sT2} offen offset:{(n&3)*1024} sc1")
        return out
    Lt1 = A.label("K2_t1"); Lt2 = A.label("K2_t2"); Lt0 = A.label("K2_t0"); Lmerge = A.label("K2_merge"); Lpoll = A.label("K2_poll"); Lst = A.label("K2_store"); Lfin = A.label("K2_fin")
    A(f"{Ltail}:")
    stamp(2)
    for f in range(R): A(rdV(f))
    A(f"v_readfirstlane_b32 s95, v{vFlag}")
    for t in cvts(): A(t)
    A(f"s_cmp_eq_u32 s{sMode}, 1\ns_cbranch_scc1 {Lt1}")
    A(f"s_lshl_b32 s{sT2}, s{sQ}, 9\ns_lshl_b32 s{sT3}, s{sW}, 7\ns_add_u32 s{sT2}, s{sT2}, s{sT3}\ns_add_u32 s{sT2}, s{sT2}, {WS_G}")
    for e in range(2): A(f"buffer_load_dword v{vG+e}, v31, {ws}, s{sT2} offen offset:{e*64}")
    A(f"s_cmp_eq_u32 s{sMode}, 0\ns_cbranch_scc1 {Lt0}\ns_and_b32 s95, s95, s{sFb}\ns_cbranch_scc0 {Lt0}")
    pv_last(spread(part_loads(), 0, 34))
    stamp(3)
    A(f"s_branch {Lmerge}")
    A(f"{Lt0}:")
    pv_last([])
    stamp(3)
    A(f"s_cmp_eq_u32 s{sMode}, 0\ns_cbranch_scc1 {Lfin}")
    A(f"{Lpoll}:\nbuffer_load_dword v{vFlag}, v{vZ}, s[{sD}:{sD+3}], s{sFo} offen sc1\ns_waitcnt vmcnt(0)\nv_readfirstlane_b32 s95, v{vFlag}\ns_nop 3\ns_and_b32 s95, s95, s{sFb}\ns_cbranch_scc0 {Lpoll}")
    for t in part_loads(): A(t)
    A(f"{Lmerge}:\ns_waitcnt vmcnt(16)")
    fA, fB = vT + 4, vT + 6
    for qb in range(2):
        A(f"v_min_f32 v{vT+8}, v{vNm+4*qb}, v{vT+qb}\nv_sub_f32 v{fA+qb}, v{vT+8}, v{vNm+4*qb}\nv_sub_f32 v{fB+qb}, v{vT+8}, v{vT+qb}\nv_exp_f32 v{fA+qb}, v{fA+qb}\nv_exp_f32 v{fB+qb}, v{fB+qb}\ns_nop 0")
        A(f"v_mul_f32 v{vLs+qb}, v{vLs+qb}, v{fA+qb}\nv_fmac_f32 v{vLs+qb}, v{vT+2+qb}, v{fB+qb}")
        A(xl_reduce("v_add_f32", vLs+qb, vT+8))
        A(f"v_rcp_f32 v{vLs+qb}, v{vLs+qb}\ns_nop 0\nv_mul_f32 v{vLs+qb}, v{vLs+qb}, v{vG+qb}\nv_mul_f32 v{fA+qb}, v{fA+qb}, v{vLs+qb}\nv_mul_f32 v{fB+qb}, v{fB+qb}, v{vLs+qb}")
    def ctx_base():
        A(f"s_lshl_b32 s{sT0}, s{sQ}, 3\ns_lshl_b32 s{sT1}, s{sW}, 1\ns_add_u32 s{sT0}, s{sT0}, s{sT1}\ns_mul_i32 s{sT0}, s{sT0}, 144\ns_lshl_b32 s{sT1}, s{sH}, 3\ns_add_u32 s{sT0}, s{sT0}, s{sT1}\ns_lshl_b32 s{sT0}, s{sT0}, 10\ns_add_u32 s{sT0}, s{sT0}, {WS_CTX}")
    def ctx_store(qb, g):
        for t in pack(qb, g): A(t)
        if g & 3 == 0: A(f"s_add_u32 s{sT1}, s{sT0}, {qb*144*1024 + (g>>2)*4096}")
        A(f"buffer_store_dwordx4 {v(Ob(2*g,qb),4)}, v{vL16}, {ws}, s{sT1} offen offset:{(g&3)*1024} {flags('st3')}")
    sel = lambda qb: f"op_sel:[0,{qb}] op_sel_hi:[1,{qb}]"
    sel3 = lambda qb: f"op_sel:[0,{qb},0] op_sel_hi:[1,{qb},1]"
    ctx_base()
    A(f"s_mov_b32 s{sT3}, 0xffff0000")
    nst = 0
    for qb in range(2):
        for g in range(8):
            n = qb * 8 + g
            if n % 4 == 0: A(f"s_waitcnt vmcnt({12 - n + nst})")
            for hh in range(4):
                o = Ob(2*g + (hh >> 1), qb) + 2 * (hh & 1); r = vS + 4*n + hh; t = vT + 10 + 2 * (hh & 1)
                A(f"v_lshlrev_b32 v{t}, 16, v{r}\nv_and_b32 v{t+1}, s{sT3}, v{r}\nv_pk_mul_f32 {v(o,2)}, {v(o,2)}, {v(fA,2)} {sel(qb)}\nv_pk_fma_f32 {v(o,2)}, {v(t,2)}, {v(fB,2)}, {v(o,2)} {sel3(qb)}")
            ctx_store(qb, g); nst += 1
    stamp(4)
    A(f"s_branch {Lst}")
    A(f"{Lt1}:")
    A(f"s_mov_b32 s{sQ}, s{sI}")
    pv_last(spread(loadQ() + dma("K") + dma("V"), 0, 62))
    A(f"v_mov_b32 v{vT}, v{vNm}\nv_mov_b32 v{vT+1}, v{vNm+4}\nv_mov_b32 v{vT+2}, v{vLs}\nv_mov_b32 v{vT+3}, v{vLs+1}")
    for i in range(vNm, vNm + 8): A(f"v_mov_b32 v{i}, 0")
    A(f"s_cmp_eq_u32 s{sW}, 0\ns_cselect_b32 s{sPub}, 1, 0\ns_mov_b32 s{sMode}, 0\ns_mov_b32 s{sJ}, 0\ns_lshl_b32 s{sDiag}, s{sQ}, 1\ns_add_u32 s{sL}, s{sDiag}, 1")
    A(f"s_add_u32 s{sT2}, s{sPo}, 16384\nbuffer_store_dwordx4 {v(vT,4)}, v{vL16}, {ws}, s{sT2} offen sc1")
    A("s_waitcnt vmcnt(17)\ns_barrier")
    stamp(1)
    fill = []
    prevz = []
    for qb in range(2):
        for g in range(8):
            n = qb * 8 + g
            fill += pack(qb, g)
            t = f"s_add_u32 s{sT2}, s{sPo}, {(n>>2)*4096}\n" if n & 3 == 0 else ""
            fill.append(t + f"buffer_store_dwordx4 {v(Ob(2*g,qb),4)}, v{vL16}, {ws}, s{sT2} offen offset:{(n&3)*1024} sc1")
            fill += prevz
            r0, r1 = Ob(2*g, qb), Ob(2*g+1, qb)
            prevz = [f"v_mov_b64 {v(r,2)}, 0" for r in (r1, r1+2, r0, r0+2)]
    fill += ["s_nop 1"] + prevz
    qk_first(spread(fill, 0, 63))
    A(f"s_waitcnt vmcnt(17) lgkmcnt(0)\ns_barrier\ns_branch {Lfirst}")
    A(f"{Lfin}:\ns_waitcnt vmcnt(0)")
    for qb in range(2):
        A(xl_reduce("v_add_f32", vLs+qb, vT+8))
        A(f"v_rcp_f32 v{vLs+qb}, v{vLs+qb}\ns_nop 0\nv_mul_f32 v{vLs+qb}, v{vLs+qb}, v{vG+qb}")
    ctx_base()
    for qb in range(2):
        for g in range(8):
            for hh in range(4):
                o = Ob(2*g + (hh >> 1), qb) + 2 * (hh & 1)
                A(f"v_pk_mul_f32 {v(o,2)}, {v(o,2)}, {v(vLs,2)} {sel(qb)}")
            ctx_store(qb, g)
    stamp(4)
    A(f"s_cmp_lg_u32 s{sTy}, 0\ns_cbranch_scc1 {Lst}")
    bS, bP, bO = 64, 96, 112
    for e in range(4):
        A(f"{MF} {v(bS+8*e,4)}, {a(bk+4*(e+1),4)}, {a(bq+4*e,4)}, 0")
        A(f"{MF} {v(bS+8*e+4,4)}, {a(bk+4*e,4)}, {a(bq+4*e,4)}, 0")
    for i in range(4):
        A(f"v_subrev_u32 v{vT+2}, {i}, v28\nv_and_b32 v{vT+2}, 0x80000001, v{vT+2}\nv_bfrev_b32 v{vT+2}, v{vT+2}")
        A(f"v_cmp_eq_u32 s[{sM+2*i}:{sM+2*i+1}], 0, v{vT+2}\nv_cmp_eq_u32 s[{sM+8+2*i}:{sM+8+2*i+1}], 1, v{vT+2}")
    A(f"s_cmp_eq_u32 s50, 0")
    for i in range(4): A(f"s_cselect_b64 s[{sM+16+2*i}:{sM+16+2*i+1}], 0, s[{sM+8+2*i}:{sM+8+2*i+1}]")
    A(f"v_cmp_gt_u32 vcc, 48, v0")
    def each(fn):
        for e in range(4): A(fn(e))
    m = lambda e: vT + e
    tt = lambda e: vT + 4 + e
    l = lambda e: vT + 8 + e
    for e in range(4):
        s0 = bS + 8 * e
        for i in range(4):
            A(f"v_cndmask_b32 v{s0+i}, v{vNeg}, v{s0+i}, s[{sM+2*i}:{sM+2*i+1}]")
            pm = sM + (16 if e == 0 else 8) + 2 * i
            A(f"v_cndmask_b32 v{s0+4+i}, v{vNeg}, v{s0+4+i}, s[{pm}:{pm+1}]")
        A(f"v_max3_f32 v{m(e)}, v{s0}, v{s0+1}, v{s0+2}\nv_max3_f32 v{m(e)}, v{m(e)}, v{s0+3}, v{s0+4}\nv_max3_f32 v{m(e)}, v{m(e)}, v{s0+5}, v{s0+6}\nv_max_f32 v{m(e)}, v{m(e)}, v{s0+7}")
    def xl4(op, r):
        for sw in ("v_permlane16_swap_b32", "v_permlane32_swap_b32"):
            each(lambda e: f"v_mov_b32 v{tt(e)}, v{r(e)}")
            A("s_nop 1")
            each(lambda e: f"{sw} v{r(e)}, v{tt(e)}")
            A("s_nop 1")
            each(lambda e: f"{op} v{r(e)}, v{r(e)}, v{tt(e)}")
    xl4("v_max_f32", m)
    for e in range(4):
        s0 = bS + 8 * e
        for i in range(8): A(f"v_sub_f32 v{s0+i}, v{s0+i}, v{m(e)}")
        for i in range(8): A(f"v_exp_f32 v{s0+i}, v{s0+i}")
    for e in range(4):
        s0 = bS + 8 * e
        lo, hi = (s0, s0 + 4) if e % 2 == 0 else (s0 + 4, s0)
        A(f"v_cvt_pk_bf16_f32 v{bP+4*e}, v{lo}, v{lo+1}\nv_cvt_pk_bf16_f32 v{bP+4*e+1}, v{lo+2}, v{lo+3}\nv_cvt_pk_bf16_f32 v{bP+4*e+2}, v{hi}, v{hi+1}\nv_cvt_pk_bf16_f32 v{bP+4*e+3}, v{hi+2}, v{hi+3}")
        A(f"v_add_f32 v{l(e)}, v{s0}, v{s0+1}")
        for i in range(2, 8): A(f"v_add_f32 v{l(e)}, v{l(e)}, v{s0+i}")
        for db in range(2):
            A(f"{MF} {v(s0+4*db,4)}, {a((bm if e % 2 == 0 else bv)+8*(e>>1)+4*db,4)}, {v(bP+4*e,4)}, 0")
    xl4("v_add_f32", l)
    each(lambda e: f"v_rcp_f32 v{l(e)}, v{l(e)}\nv_sub_f32 v{bg+e}, 1.0, v{bg+e}\nv_mul_f32 v{l(e)}, v{l(e)}, v{bg+e}")
    A(f"s_mul_i32 s{sT0}, s50, {2*144}\ns_add_u32 s{sT0}, s{sT0}, s{sH}\ns_lshl_b32 s{sT0}, s{sT0}, 10\ns_add_u32 s{sT0}, s{sT0}, {WS_CTX + 128*1024}")
    for e in range(4):
        o = bS + 8 * e
        for i in range(8): A(f"v_mul_f32 v{o+i}, v{o+i}, v{l(e)}")
        A(f"v_cvt_pk_bf16_f32 v{o}, v{o}, v{o+1}\nv_cvt_pk_bf16_f32 v{o+1}, v{o+2}, v{o+3}\nv_cvt_pk_bf16_f32 v{o+2}, v{o+4}, v{o+5}\nv_cvt_pk_bf16_f32 v{o+3}, v{o+6}, v{o+7}")
        A(f"v_cndmask_b32 v{o+2}, 0, v{o+2}, vcc\nv_cndmask_b32 v{o+3}, 0, v{o+3}, vcc")
        A(f"buffer_store_dwordx4 {v(o,4)}, v{vL16}, {ws}, s{sT0} offen {flags('st3')}\ns_add_u32 s{sT0}, s{sT0}, {144*1024}")
    A(f"{Lst}:")
    if stamps:
        stamp(5); stamp(6)
        A("s_waitcnt vmcnt(0)")
        stamp(7)
        A("s_waitcnt lgkmcnt(0)")
        for q, r in enumerate(SR): A(f"v_mov_b32 v{4+q}, s{r}")
        A(f"v_mov_b32 v12, 0\ns_lshl_b32 s{sT3}, s2, 5\ns_add_u32 s{sT3}, s{sT3}, {200*MB + 65536}")
        A(f"buffer_store_dwordx4 v[4:7], v12, {ws}, s{sT3} offen\nbuffer_store_dwordx4 v[8:11], v12, {ws}, s{sT3} offen offset:16")
    A(f"{Lend}:\ns_endpgm")
```

```python
from asmlib import *
from k1 import *

def gen_k3(A, name="k3_kernel", stamps=False):
    sWS, sO = 8, 12
    sW, sT, sN = 16, 17, 18
    sB = 20
    sT0, sT1, sCnt = 28, 29, 30
    SR = [76, 78, 80, 82, 84, 86, 88, 90]
    vL16 = 1; vT = 2
    vAcc = 16; vR = 80
    def stamp(i):
        if stamps: A(f"{'s_memtime' if opti('cyc') else 's_memrealtime'} s[{SR[i]}:{SR[i]+1}]")
    A(f".globl {name}\n.p2align 8\n.type {name},@function\n{name}:")
    Lend = A.label("K3_end")
    A(f"s_cmp_ge_u32 s2, 224\ns_cbranch_scc1 {Lend}")
    stamp(0)
    A("s_load_dwordx2 s[4:5], s[0:1], 80\ns_load_dwordx2 s[6:7], s[0:1], 96")
    A(f"v_lshrrev_b32 v{vT}, 6, v0\nv_and_b32 v0, 63, v0\nv_readfirstlane_b32 s{sW}, v{vT}\nv_lshlrev_b32 v{vL16}, 4, v0")
    A(f"s_and_b32 s{sT0}, s2, 7\ns_lshl_b32 s{sT}, s{sT0}, 2\ns_bfe_u32 s{sT0}, s2, {(2 << 16) | 3}\ns_add_u32 s{sT}, s{sT}, s{sT0}\ns_lshr_b32 s{sN}, s2, 5")
    A(f"s_mul_i32 s{sT0}, s{sW}, {36*1024}")
    A(f"s_mul_i32 s{sB}, s{sT}, {4*144*1024}\ns_add_u32 s{sB}, s{sB}, s{sT0}\ns_add_u32 s{sB}, s{sB}, {WS_CTX}")
    A(f"s_mul_i32 s{sB+4}, s{sN}, {4*144*1024}\ns_add_u32 s{sB+4}, s{sB+4}, s{sT0}\ns_add_u32 s{sB+4}, s{sB+4}, {WS_WO}")
    for t in range(1, 4):
        A(f"s_add_u32 s{sB+t}, s{sB+t-1}, {144*1024}\ns_add_u32 s{sB+4+t}, s{sB+4+t-1}, {144*1024}")
    A("s_waitcnt lgkmcnt(0)")
    A(f"s_mov_b32 s{sWS}, s6\ns_mov_b32 s{sWS+1}, s7\ns_mov_b32 s{sWS+2}, {WS_SIZE}\ns_mov_b32 s{sWS+3}, 0x00020000")
    A(f"s_mov_b32 s{sO}, s4\ns_mov_b32 s{sO+1}, s5\ns_mov_b32 s{sO+2}, {2048*896}\ns_mov_b32 s{sO+3}, 0x00020000")
    ws = f"s[{sWS}:{sWS+3}]"
    def loads(k):
        return [f"buffer_load_dwordx4 {v(vR+32*k+4*f,4)}, v{vL16}, {ws}, s{sB+f} offen offset:{k*1024}" for f in range(8)]
    def adv(): return [f"s_add_u32 s{sB+f}, s{sB+f}, 4096" for f in range(8)]
    def mf(k):
        out = []
        for u in range(4):
            for tt in range(4):
                t = tt if u % 2 == 0 else 3 - tt
                c = v(vAcc + 4*(4*u+t), 4)
                out.append(f"{MF} {c}, {v(vR+32*k+16+4*u,4)}, {v(vR+32*k+4*t,4)}, {c}")
        return out
    for k in range(4):
        for t in loads(k): A(t)
    for t in adv(): A(t)
    for i in range(64): A(f"v_mov_b32 v{vAcc+i}, 0")
    A(f"s_mov_b32 s{sCnt}, 0")
    Lloop = A.label("K3_loop")
    A(f".p2align 6\n{Lloop}:")
    for k in range(4):
        A("s_waitcnt vmcnt(24)")
        if k == 0 and stamps:
            Ls = A.label("K3_st"); A(f"s_cmp_lg_u32 s{sCnt}, 0\ns_cbranch_scc1 {Ls}"); stamp(1); A(f"{Ls}:")
        for m in mf(k): A(m)
        for t in loads(k): A(t)
    for t in adv(): A(t)
    A(f"s_add_u32 s{sCnt}, s{sCnt}, 1\ns_cmp_lt_u32 s{sCnt}, 8\ns_cbranch_scc1 {Lloop}")
    for k in range(4):
        A(f"s_waitcnt vmcnt({24-8*k})")
        for m in mf(k): A(m)
    stamp(2)
    A(f"v_and_b32 v{vT}, 15, v0\nv_mul_u32_u24 v{vT}, 272, v{vT}\nv_lshrrev_b32 v{vT+1}, 4, v0\nv_lshl_add_u32 v{vT}, v{vT+1}, 6, v{vT}\ns_mul_i32 s{sT0}, s{sW}, {64*272}\nv_add_u32 v{vT}, s{sT0}, v{vT}")
    A(f"v_lshrrev_b32 v{vT+1}, 2, v0\ns_lshl_b32 s{sT0}, s{sW}, 4\nv_add_u32 v{vT+1}, s{sT0}, v{vT+1}\nv_mul_u32_u24 v{vT+2}, 272, v{vT+1}\nv_and_b32 v{vT+3}, 3, v0\nv_lshl_add_u32 v{vT+2}, v{vT+3}, 6, v{vT+2}")
    A(f"v_mul_u32_u24 v{vT+4}, 896, v{vT+1}\nv_lshl_add_u32 v{vT+4}, v{vT+3}, 5, v{vT+4}")
    A(f"s_mul_i32 s{sT0}, s{sT}, {64*896}\ns_lshl_b32 s{sT1}, s{sN}, 7\ns_add_u32 s{sT0}, s{sT0}, s{sT1}")
    for u in range(4):
        for t in range(4):
            A(f"ds_write_b128 v{vT}, {v(vAcc+4*(4*u+t),4)} offset:{t*16*272 + u*16}")
    A("s_waitcnt lgkmcnt(0)\ns_barrier")
    for p in range(4):
        for c in range(4):
            A(f"ds_read_b128 {v(vR + 16*p + 4*c, 4)}, v{vT+2} offset:{p*64*272 + c*16}")
    A("s_waitcnt lgkmcnt(8)")
    for i in range(0, 16, 2): A(f"v_pk_add_f32 {v(vR+i,2)}, {v(vR+i,2)}, {v(vR+16+i,2)}")
    A("s_waitcnt lgkmcnt(0)")
    for i in range(0, 16, 2): A(f"v_pk_add_f32 {v(vR+32+i,2)}, {v(vR+32+i,2)}, {v(vR+48+i,2)}")
    for i in range(0, 16, 2): A(f"v_pk_add_f32 {v(vR+i,2)}, {v(vR+i,2)}, {v(vR+32+i,2)}")
    for i in range(4):
        A(f"v_cvt_pk_bf16_f32 v{vR+64+2*i}, v{vR+i}, v{vR+4+i}\nv_cvt_pk_bf16_f32 v{vR+64+2*i+1}, v{vR+8+i}, v{vR+12+i}")
    A(f"buffer_store_dwordx4 {v(vR+64,4)}, v{vT+4}, s[{sO}:{sO+3}], s{sT0} offen\nbuffer_store_dwordx4 {v(vR+68,4)}, v{vT+4}, s[{sO}:{sO+3}], s{sT0} offen offset:16")
    if stamps:
        stamp(3); stamp(4); stamp(5); stamp(6)
        A("s_waitcnt vmcnt(0)")
        stamp(7)
        A("s_waitcnt lgkmcnt(0)")
        for q, r in enumerate(SR): A(f"v_mov_b32 v{4+q}, s{r}")
        A(f"v_mov_b32 v12, 0\ns_lshl_b32 s{sT0}, s2, 5\ns_add_u32 s{sT0}, s{sT0}, {200*MB + 131072}")
        A(f"buffer_store_dwordx4 v[4:7], v12, {ws}, s{sT0} offen\nbuffer_store_dwordx4 v[8:11], v12, {ws}, s{sT0} offen offset:16")
    A(f"{Lend}:\ns_endpgm")
```

```python
class Asm:
    def __init__(self):
        self.L = []
        self.uid = 0
    def __call__(self, s):
        for ln in s.split("\n"):
            ln = ln.strip()
            if ln:
                self.L.append(("" if ln.endswith(":") or ln.startswith(".") or ln.startswith(";") else "    ") + ln)
    def label(self, base):
        self.uid += 1
        return f"{base}_{self.uid}"
    def text(self):
        out = []; q = None
        for ln in self.L:
            t = ln.strip()
            if t.startswith("VMSEED"):
                q = []
                for it in t.split()[1:]:
                    tag, n = it.split("*"); q += [tag] * int(n)
                continue
            if t.startswith("VMEND"):
                q = None; continue
            if t.startswith("WAITVM"):
                parts = t.split()
                tags = parts[1].split(",")
                for tg in tags: assert tg in q, (tg, q)
                last = max(i for i, x in enumerate(q) if x in tags)
                cnt = len(q) - 1 - last
                assert cnt <= 63
                out.append(f"    s_waitcnt vmcnt({cnt}) " + " ".join(parts[2:]))
                continue
            if q is not None and (t.startswith("buffer_") or t.startswith("global_")):
                q.append(t.split("; vm:")[1].strip() if "; vm:" in t else "?")
            out.append(ln)
        return "\n".join(out) + "\n"

def rng(kind, base, n):
    return f"{kind}{base}" if n == 1 else f"{kind}[{base}:{base+n-1}]"
def v(b, n=1): return rng("v", b, n)
def a(b, n=1): return rng("a", b, n)
def s(b, n=1): return rng("s", b, n)

def interleave(A, mfmas, fillers):
    by = {}
    for p, t in fillers:
        by.setdefault(p, []).append(t)
    for t in by.get(-1, []): A(t)
    for i, m in enumerate(mfmas):
        A(m)
        for t in by.get(i, []): A(t)
    for p in by:
        assert -1 <= p < len(mfmas), p

def spread(items, lo, hi):
    n = len(items)
    out = []
    for k, t in enumerate(items):
        out.append((lo + (k * (hi - lo + 1)) // n, t))
    return out

def kd(name, vgpr=512, accum=256, sgpr=102):
    return f""".amdhsa_kernel {name}
  .amdhsa_next_free_vgpr {vgpr}
  .amdhsa_next_free_sgpr {sgpr}
  .amdhsa_accum_offset {accum}
  .amdhsa_group_segment_fixed_size 0
  .amdhsa_kernarg_size 104
  .amdhsa_user_sgpr_count 2
  .amdhsa_user_sgpr_kernarg_segment_ptr 1
  .amdhsa_system_sgpr_workgroup_id_x 1
.end_amdhsa_kernel
"""

import os
OPT = dict(kv.split("=") for kv in os.environ.get("OPT", "").split(",") if kv)
def opt(k, d=None):
    return OPT.get(k, d)
def opti(k, d=0):
    return int(OPT.get(k, d))
def flags(k, d="sc1"):
    return OPT.get(k, d).replace("+", " ")

def code_prefetch(A, start_label, end_label, s_pair, s_chunk, v_off, v_dst, nchunk_mask):
    if not opti("cpf", 1): return 0
    L = A.label("PC")
    A(f"s_getpc_b64 s[{s_pair}:{s_pair+1}]\n{L}:")
    A(f"s_sub_u32 s{s_pair}, s{s_pair}, {L} - {start_label}\ns_subb_u32 s{s_pair+1}, s{s_pair+1}, 0")
    A(f"s_and_b32 s{s_chunk}, s{s_chunk}, {nchunk_mask}\ns_lshl_b32 s{s_chunk}, s{s_chunk}, 13\nv_lshlrev_b32 v{v_off}, 7, v0\nv_add_u32 v{v_off}, s{s_chunk}, v{v_off}")
    A(f"v_min_u32 v{v_off}, {end_label} - {start_label} - 4, v{v_off}")
    A(f"global_load_dword v{v_dst}, v{v_off}, s[{s_pair}:{s_pair+1}]")
    return 1
```

```python
from asmlib import *
import math, struct

MB = 1 << 20
WS_K = 0
WS_V = 16 * MB
WS_Q = 32 * MB
WS_QB = 48 * MB
WS_KB = 50 * MB
WS_VB = 52 * MB
WS_G = 54 * MB
WS_CTX = 56 * MB
WS_PART = 80 * MB
WS_WO = 100 * MB
WS_SIZE = 256 * MB

def f32bits(x): return struct.unpack("<I", struct.pack("<f", x))[0]
LOG2E = 1.4426950408889634
MF = "v_mfma_f32_16x16x32_bf16"

def gen_k1(A, name="k1_kernel", stamps=False):
    sX, sWa, sWb, sO, sSide, sG = 28, 32, 36, 40, 44, 48
    sW, sWM, sWN, sT, sH, sP = 60, 61, 62, 63, 64, 65
    sXo, sXst = 66, 67
    sAo, sAst, sBo, sBst = 68, 69, 70, 71
    sAadv, sBadv = 72, 73
    sLst, sLgb = 74, 75
    sXl, sWl = 76, 77
    sCnt, sWd, sWrs = 78, 79, 80
    sT0, sT1, sT2, sT3 = 81, 82, 83, 84
    sWlw = 85
    sWls = 86
    sOb = 87
    sTb = 88
    vLane16 = 1
    vXd, vAd, vBd = 2, 3, 4
    vXd2, vAd2, vBd2 = 5, 6, 7
    vXr = 8
    vWr = 16
    vT = 26
    XS0, WS0 = 0, 65536

    def acc1(i, j, isV):
        n, sec = ((8 * (i >> 1) + j, i & 1) if isV else (4 * i + (j >> 1), j & 1))
        if not sec: return v(128 + 4 * n, 4)
        return a(128 + 4 * n, 4) if n < 8 else v(32 + 4 * (n - 8), 4)
    def pack1(n):
        r0 = 128 + 4 * n
        out = [f"v_cvt_pk_bf16_f32 v{r0}, v{r0}, v{r0+1}", f"v_cvt_pk_bf16_f32 v{r0+1}, v{r0+2}, v{r0+3}"]
        if n < 8:
            r1 = vT
            out += [f"v_accvgpr_read_b32 v{vT+q}, a{128+4*n+q}" for q in range(4)]
        else: r1 = 32 + 4 * (n - 8)
        out += [f"v_cvt_pk_bf16_f32 v{r0+2}, v{r1}, v{r1+1}", f"v_cvt_pk_bf16_f32 v{r0+3}, v{r1+2}, v{r1+3}"]
        return out
    X1 = [0, 64]; W1 = [32, 96]
    S2 = [160, 0]

    A(f".globl {name}\n.p2align 8\n.type {name},@function\n{name}:")
    Lend = A.label("K1_end")
    A(f"s_cmp_ge_u32 s2, 256\ns_cbranch_scc1 {Lend}")
    SR = [52, 54, 56, 58, 92, 94, 96, 98]
    def stamp(i):
        if stamps: A(f"{'s_memtime' if opti('cyc') else 's_memrealtime'} s[{SR[i]}:{SR[i]+1}]")
    stamp(0)
    A("s_load_dwordx16 s[4:19], s[0:1], 0\ns_load_dwordx4 s[20:23], s[0:1], 64\ns_load_dwordx2 s[24:25], s[0:1], 96")
    A(f"v_lshrrev_b32 v{vT}, 6, v0\nv_and_b32 v0, 63, v0\nv_readfirstlane_b32 s{sW}, v{vT}")
    A(f"v_lshlrev_b32 v{vLane16}, 4, v0")
    A(f"s_and_b32 s{sT0}, s2, 7\ns_lshr_b32 s{sT1}, s2, 3\ns_and_b32 s{sT}, s{sT1}, 7\ns_lshr_b32 s{sT1}, s{sT1}, 3")
    A(f"s_and_b32 s{sP}, s{sT1}, 1\ns_lshr_b32 s{sT1}, s{sT1}, 1\ns_lshl_b32 s{sH}, s{sT0}, 1\ns_add_u32 s{sH}, s{sH}, s{sT1}")
    A(f"s_lshr_b32 s{sWM}, s{sW}, 1\ns_and_b32 s{sWN}, s{sW}, 1")
    A(f"v_lshrrev_b32 v{vT}, 4, v0\ns_lshl_b32 s{sT0}, s{sWN}, 2\nv_add_u32 v{vT}, s{sT0}, v{vT}")
    A(f"v_and_b32 v{vT+1}, 7, v0\nv_xor_b32 v{vT}, v{vT}, v{vT+1}\nv_lshlrev_b32 v{vT}, 4, v{vT}")
    A(f"v_lshrrev_b32 v{vT+1}, 3, v0\ns_lshl_b32 s{sT0}, s{sW}, 3\nv_add_u32 v{vT+1}, s{sT0}, v{vT+1}")
    A(f"v_lshl_add_u32 v{vXd}, v{vT+1}, 11, v{vT}")
    A(f"v_mul_u32_u24 v{vXd2}, 896, v{vT+1}\nv_add_u32 v{vXd2}, v{vXd2}, v{vT}")
    A(f"v_lshrrev_b32 v{vT}, 5, v0\ns_lshl_b32 s{sT0}, s{sWN}, 1\nv_add_u32 v{vT}, s{sT0}, v{vT}")
    A(f"s_lshl_b32 s{sT0}, s{sWM}, 2\nv_or_b32 v{vT+1}, s{sT0}, v{vT}\nv_lshlrev_b32 v{vT+1}, 1, v{vT+1}")
    A(f"v_and_b32 v{vT+2}, 31, v0\nv_xor_b32 v{vT+1}, v{vT+1}, v{vT+2}\nv_lshlrev_b32 v{vT+1}, 4, v{vT+1}")
    A(f"s_lshl_b32 s{sT0}, s{sWM}, 3\nv_add_u32 v{vT}, s{sT0}, v{vT}")
    A(f"v_lshl_add_u32 v{vAd}, v{vT}, 13, v{vT+1}\nv_mov_b32 v{vBd}, v{vAd}")
    A(f"v_lshrrev_b32 v{vT}, 4, v0\ns_lshl_b32 s{sT0}, s{sWN}, 2\nv_or_b32 v{vT+1}, s{sT0}, v{vT}\nv_lshlrev_b32 v{vT+1}, 1, v{vT+1}")
    A(f"v_and_b32 v{vT+2}, 15, v0\nv_xor_b32 v{vT+1}, v{vT+1}, v{vT+2}")
    A(f"s_lshl_b32 s{sT0}, s{sWN}, 1\ns_add_u32 s{sT0}, s{sT0}, s{sWM}\ns_lshl_b32 s{sT1}, s{sT0}, 2\nv_add_u32 v{vT}, s{sT1}, v{vT}")
    A(f"s_lshl_b32 s{sT3}, s{sT0}, 10")
    A(f"s_mov_b32 s89, s{sT3}\ns_mov_b32 s90, 0x8000\ns_mov_b32 s91, {4096*896}")
    A(f"v_lshlrev_b32 v{vT+2}, 4, v{vT+1}\nv_lshl_add_u32 v{vAd2}, v{vT}, 13, v{vT+2}")
    A(f"v_lshrrev_b32 v{vT+2}, 2, v{vT+1}\nv_min_u32 v{vT+2}, 2, v{vT+2}\nv_mul_u32_u24 v{vT+2}, 896, v{vT+2}")
    A(f"v_and_b32 v{vT+1}, 3, v{vT+1}\nv_lshl_add_u32 v{vT+2}, v{vT+1}, 4, v{vT+2}")
    A(f"v_mul_u32_u24 v{vBd2}, 2688, v{vT}\nv_add_u32 v{vBd2}, v{vBd2}, v{vT+2}")
    A(f"v_and_b32 v{vT}, 15, v0\nv_lshrrev_b32 v{vT+1}, 4, v0\nv_lshrrev_b32 v{vT+2}, 1, v{vT}\nv_xor_b32 v{vT+2}, v{vT+2}, v{vT+1}")
    A(f"v_lshlrev_b32 v{vT+2}, 4, v{vT+2}\nv_lshl_add_u32 v{vXr}, v{vT}, 7, v{vT+2}\ns_lshl_b32 s{sT0}, s{sWM}, 14\nv_add_u32 v{vXr}, s{sT0}, v{vXr}")
    A(f"v_xor_b32 v{vXr+1}, 64, v{vXr}")
    A(f"v_lshrrev_b32 v{vT+2}, 2, v{vT}")
    A(f"v_and_b32 v{vT+3}, 1, v{vT+1}\nv_lshl_or_b32 v{vT+3}, v{vT+3}, 2, v{vT+2}")
    A(f"v_lshl_add_u32 v{vT+2}, v{vT+1}, 3, v{vT+2}")
    A(f"v_and_b32 v{vT+4}, 3, v0\nv_lshlrev_b32 v{vT+4}, 3, v{vT+4}\nv_lshl_add_u32 v{vT+4}, v{vT+3}, 5, v{vT+4}")
    A(f"v_lshl_add_u32 v{vWr}, v{vT+2}, 9, v{vT+4}\ns_lshl_b32 s{sT0}, s{sWN}, 8\ns_add_u32 s{sT0}, s{sT0}, {WS0}\nv_add_u32 v{vWr}, s{sT0}, v{vWr}")
    for j in range(1, 8):
        A(f"v_xor_b32 v{vWr+j}, {j << 5}, v{vWr}")
    A(f"v_lshl_add_u32 v{vT+5}, v{vT+2}, 8, v{vT+4}")
    A("s_waitcnt lgkmcnt(0)")
    A(f"s_mov_b32 s{sX}, s6\ns_mov_b32 s{sX+1}, s7\ns_mov_b32 s{sX+2}, {2048*2048}\ns_mov_b32 s{sX+3}, 0x00020000")
    A(f"s_cmp_eq_u32 s{sP}, 0\ns_cselect_b32 s{sWa}, s10, s12\ns_cselect_b32 s{sWa+1}, s11, s13\ns_mov_b32 s{sWa+2}, {1024*8192}\ns_mov_b32 s{sWa+3}, 0x00020000")
    A(f"s_mov_b32 s{sWb}, s{sWa}\ns_mov_b32 s{sWb+1}, s{sWa+1}\ns_mov_b32 s{sWb+2}, {1024*8192}\ns_mov_b32 s{sWb+3}, 0x00020000")
    A(f"s_mov_b32 s{sO}, s24\ns_mov_b32 s{sO+1}, s25\ns_mov_b32 s{sO+2}, {WS_SIZE}\ns_mov_b32 s{sO+3}, 0x00020000")
    A(f"s_lshl_b32 s{sXo}, s{sT}, 19\ns_mov_b32 s{sXst}, {32*2048}")
    A(f"s_lshl_b32 s{sAo}, s{sH}, 9\ns_add_u32 s{sBo}, s{sAo}, {4*8192}\ns_mov_b32 s{sAst}, {16*8192}\ns_mov_b32 s{sBst}, {16*8192}")
    A(f"s_mov_b32 s{sAadv}, {64*8192}\ns_mov_b32 s{sBadv}, {64*8192}\ns_mov_b32 s{sLst}, 8192\ns_mov_b32 s{sLgb}, 2048")
    A(f"s_lshl_b32 s{sXl}, s{sW}, 10")
    A(f"s_lshl_b32 s{sWlw}, s{sWM}, 2\ns_add_u32 s{sWlw}, s{sWlw}, s{sWN}\ns_lshl_b32 s{sWlw}, s{sWlw}, 10\ns_mov_b32 s{sWls}, {WS0}")

    def dmaX(tag='x'):
        out = []
        for p in range(8):
            t = []
            if p == 0:
                t.append(f"s_mov_b32 m0, s{sXl}\ns_mov_b32 s{sT0}, s{sXo}")
            else:
                t.append(f"s_add_u32 m0, m0, 4096\ns_add_u32 s{sT0}, s{sT0}, s{sXst}")
            t.append(f"buffer_load_dwordx4 v{vXd}, s[{sX}:{sX+3}], s{sT0} offen lds ; vm:{tag}")
            if p == 7:
                t.append(f"s_add_u32 s{sXo}, s{sXo}, 128\ns_xor_b32 s{sXl}, s{sXl}, 0x8000")
            out.append("\n".join(t))
        return out
    def dmaW(tag='w'):
        out = []
        for gsel in range(2):
            so, st, adv, srd, vd = ((sAo, sAst, sAadv, sWa, vAd), (sBo, sBst, sBadv, sWb, vBd))[gsel]
            for p in range(4):
                t = []
                if p == 0:
                    if gsel == 0:
                        t.append(f"s_add_u32 s{sWl}, s{sWls}, s{sWlw}\ns_mov_b32 m0, s{sWl}\ns_mov_b32 s{sT1}, s{so}")
                    else:
                        t.append(f"s_add_u32 m0, s{sWl}, s{sLgb}\ns_mov_b32 s{sT1}, s{so}")
                else:
                    t.append(f"s_add_u32 m0, m0, s{sLst}\ns_add_u32 s{sT1}, s{sT1}, s{st}")
                t.append(f"buffer_load_dwordx4 v{vd}, s[{srd}:{srd+3}], s{sT1} offen lds ; vm:{tag}")
                if p == 3:
                    t.append(f"s_add_u32 s{so}, s{so}, s{adv}")
                    if gsel == 1:
                        t.append(f"s_add_u32 s{sWls}, s{sWls}, 0x8000\ns_cmp_eq_u32 s{sWls}, {WS0 + 3*0x8000}\ns_cselect_b32 s{sWls}, {WS0}, s{sWls}")
                out.append("\n".join(t))
        return out
    def reads1(st, ks):
        r = []
        xs = [f"ds_read_b128 {a(X1[st]+4*i,4)}, v{vXr+ks} offset:{i*2048}" for i in range(8)]
        ws = []
        for j in range(8):
            for t in range(2):
                ws.append(f"ds_read_b64_tr_b16 {a(W1[st]+4*j+2*t,2)}, v{vWr+j} offset:{ks*16384+t*2048}")
        return [xs[0]] + ws + xs[1:]
    def reads2(st, ks):
        b = S2[st]
        xs = [f"ds_read_b128 {a(b+4*i,4)}, v{vXr+2*(i>>1)+ks} offset:{(i&1)*2048}" for i in range(8)]
        ws = []
        for j in range(10):
            for t in range(2):
                ws.append(f"ds_read_b64_tr_b16 {a(b+32+4*j+2*t,2)}, v{vWr+j} offset:{ks*8192+t*1024+(16384 if j >= 4 else 0)}")
        return [xs[0]] + ws[:8] + xs[1:] + ws[8:]
    def mf1(st, isV):
        out = []
        for i in range(8):
            for jj in range(8):
                j = jj if i % 2 == 0 else 7 - jj
                x, w = a(X1[st]+4*i, 4), a(W1[st]+4*j, 4)
                c = acc1(i, j, isV)
                out.append(f"{MF} {c}, {x}, {w}, {c}" if isV else f"{MF} {c}, {w}, {x}, {c}")
        return out
    def acc2q(i, j): return a(72 + 4 * (i * 4 + j), 4) if i < 5 else v(32 + 4 * ((i - 5) * 4 + j), 4)
    def acc2b(e, u): return 80 + 4 * (e * 6 + u)
    def mf2row(st, i, first=False):
        b = S2[st]; out = []
        for jj in range(4):
            j = jj if i % 2 == 0 else 3 - jj
            c = acc2q(i, j)
            out.append(f"{MF} {c}, {a(b+32+4*j,4)}, {a(b+4*i,4)}, {0 if first else c}")
        return out
    def mf2b(st, first=False):
        b = S2[st]; out = []
        for e in range(2):
            for uu in range(6):
                u = uu if e == 0 else 5 - uu
                c = v(acc2b(e, u), 4); x = a(b+4*e, 4); w = a(b+48+4*u, 4)
                out.append(f"{MF} {c}, {w}, {x}, {0 if first else c}" if u < 4 else f"{MF} {c}, {x}, {w}, {0 if first else c}")
        return out
    def mf2(st, first=False):
        out = []
        for i in range(8): out += mf2row(st, i, first)
        return out + mf2b(st, first)
    def adv_rd(nx, nw):
        t = [f"s_add_u32 s{sWrs}, s{sWrs}, 1\ns_cmp_eq_u32 s{sWrs}, 3\ns_cselect_b32 s{sWrs}, 0, s{sWrs}\ns_cselect_b32 s{sWd}, {(-2*0x8000) & 0xffffffff}, s90"]
        t += [f"v_xor_b32 v{vXr+i}, 0x8000, v{vXr+i}" for i in range(nx)]
        t += [f"v_add_u32 v{vWr+j}, s{sWd}, v{vWr+j}" for j in range(nw)]
        return t

    sId, sKs, sNb = 100, 101, 26
    sI0, sI1 = 27, 3
    sEx = 16; sMk = 17
    for t in dmaX() + dmaW(): A(t)
    A(f"s_lshr_b32 s{sT2}, s2, 3\ns_lshl_b32 s{sT2}, s{sT2}, 2\ns_add_u32 s{sT2}, s{sT2}, s{sW}")
    NCP = code_prefetch(A, name, "CODE_END", sEx, sT2, 13, 14, 7)
    for t in dmaX() + dmaW(): A(t)
    A(f"s_lshl_b32 s{sId}, s2, 2\ns_add_u32 s{sId}, s{sId}, s{sW}\ns_mul_hi_u32 s{sKs}, s{sId}, {(2**32 + 6)//7}\ns_mul_i32 s{sNb}, s{sKs}, 7\ns_sub_u32 s{sNb}, s{sId}, s{sNb}")
    A(f"s_mov_b32 s{sG+3}, 0x00020000\ns_mov_b32 s{sG}, s22\ns_mov_b32 s{sG+1}, s23\ns_mov_b32 s{sG+2}, 896")
    A(f"s_mov_b32 s{sSide}, s4\ns_mov_b32 s{sSide+1}, s5\ns_mov_b32 s{sSide+2}, {2048*896}\ns_mov_b32 s{sSide+3}, 0x00020000")
    vPx, vPq, vPb = 10, 11, 12
    A(f"s_lshr_b32 s{sT0}, s2, 3\ns_lshl_b32 s{sT0}, s{sT0}, 2\ns_add_u32 s{sT0}, s{sT0}, s{sW}\ns_and_b32 s{sT1}, s2, 7")
    A(f"s_mul_i32 s{sT2}, s{sT0}, 14336\nv_min_u32 v{vPx}, 55, v0\nv_lshlrev_b32 v{vPx}, 7, v{vPx}\nv_add_u32 v{vPx}, s{sT2}, v{vPx}")
    A(f"s_mul_i32 s{sT2}, s{sT0}, 28\nv_min_u32 v{vT}, 27, v0\nv_add_u32 v{vT}, s{sT2}, v{vT}\nv_lshrrev_b32 v{vT+1}, 3, v{vT}\nv_and_b32 v{vT}, 7, v{vT}\nv_lshlrev_b32 v{vT}, 7, v{vT}\nv_lshl_add_u32 v{vPq}, v{vT+1}, 13, v{vT}\ns_lshl_b32 s{sT2}, s{sT1}, 10\nv_add_u32 v{vPq}, s{sT2}, v{vPq}")
    A(f"s_mul_i32 s{sT2}, s{sT0}, 21\nv_min_u32 v{vT}, 20, v0\nv_add_u32 v{vT}, s{sT2}, v{vT}\nv_mul_u32_u24 v{vT+1}, 43691, v{vT}\nv_lshrrev_b32 v{vT+1}, 18, v{vT+1}")
    A(f"v_mul_u32_u24 v{vT+2}, 6, v{vT+1}\nv_sub_u32 v{vT}, v{vT}, v{vT+2}\nv_mul_u32_u24 v{vPb}, 2688, v{vT+1}\nv_lshrrev_b32 v{vT+1}, 1, v{vT}\nv_mul_u32_u24 v{vT+1}, 896, v{vT+1}\nv_add_u32 v{vPb}, v{vPb}, v{vT+1}")
    A(f"v_and_b32 v{vT}, 1, v{vT}\nv_mul_u32_u24 v{vT}, 116, v{vT}\nv_add_u32 v{vPb}, v{vPb}, v{vT}\ns_mul_i32 s{sT2}, s{sT1}, 112\nv_add_u32 v{vPb}, s{sT2}, v{vPb}")
    for i in range(32, 256, 2): A(f"v_mov_b64 {v(i,2)}, 0")
    for i in range(128, 160): A(f"v_accvgpr_write_b32 a{i}, 0")
    PF = opti("pf", 9)
    T_G, T_WO, T_GF, T_WOF = 1, 2, 4, 5
    specials = {}
    aG = 160; aWo = 176
    specials[T_G] = (4, [
        f"v_and_b32 v{vT+1}, 31, v0\nv_mul_u32_u24 v{vT+1}, 28, v{vT+1}\nv_lshrrev_b32 v{vT+2}, 5, v0\nv_mul_u32_u24 v{vT+2}, 896, v{vT+2}\nv_add_u32 v{vT+2}, v{vT+2}, v{vT+1}\ns_mul_i32 s{sT3}, s{sId}, {2*896}",
        f"buffer_load_dwordx4 {a(aG,4)}, v{vT+2}, s[{sSide}:{sSide+3}], s{sT3} offen\nbuffer_load_dwordx3 {a(aG+4,3)}, v{vT+2}, s[{sSide}:{sSide+3}], s{sT3} offen offset:16",
        f"buffer_load_dwordx4 {a(aG+8,4)}, v{vT+1}, s[{sG}:{sG+3}], 0 offen\nbuffer_load_dwordx3 {a(aG+12,3)}, v{vT+1}, s[{sG}:{sG+3}], 0 offen offset:16"])
    specials[T_WO] = (8, [
        f"s_sub_u32 s{sT3}, s{sKs}, 128\ns_mul_i32 s{sT3}, s{sT3}, {28*896}\ns_mul_i32 s{sT2}, s{sKs}, {32*896}\ns_cmp_ge_u32 s{sKs}, 128\ns_cselect_b32 s{sT2}, s{sT3}, s{sT2}",
        f"s_cselect_b32 s{sG}, s20, s14\ns_cselect_b32 s{sG+1}, s21, s15\ns_cselect_b32 s{sG+2}, {448*896}, s91",
        f"s_lshl_b32 s{sT3}, s{sNb}, 7\ns_add_u32 s{sT2}, s{sT2}, s{sT3}\ns_add_u32 s{sT3}, s{sT2}, {16*896}",
        f"v_lshrrev_b32 v{vT}, 4, v0\nv_mul_u32_u24 v{vT}, {4*896}, v{vT}\nv_and_b32 v{vT+1}, 15, v0\nv_lshl_add_u32 v{vT}, v{vT+1}, 3, v{vT}"] +
        [f"buffer_load_dwordx2 {a(aWo+2*j,2)}, v{vT}, s[{sG}:{sG+3}], s{sT2 if j < 4 else sT3} offen offset:{(j&3)*896}" for j in range(8)])
    g = vT
    gf = [f"v_mov_b32 v{g}, 0"]
    for q in range(7): gf.append(f"v_accvgpr_read_b32 v{g+1+2*(q&1)}, a{aG+q}\nv_accvgpr_read_b32 v{g+2+2*(q&1)}, a{aG+8+q}\nv_dot2_f32_bf16 v{g}, v{g+1+2*(q&1)}, v{g+2+2*(q&1)}, v{g}")
    gf += [f"v_lshrrev_b32 v{g+2}, 5, v0\nv_lshlrev_b32 v{g+2}, 2, v{g+2}\ns_lshl_b32 s{sT3}, s{sId}, 3\ns_add_u32 s{sT3}, s{sT3}, {WS_G}",
        f"v_add_f32 v{g}, v{g}, v{g} quad_perm:[1,0,3,2] row_mask:0xf bank_mask:0xf\ns_nop 1",
        f"v_add_f32 v{g}, v{g}, v{g} quad_perm:[2,3,0,1] row_mask:0xf bank_mask:0xf\ns_nop 1",
        f"v_add_f32 v{g}, v{g}, v{g} row_half_mirror row_mask:0xf bank_mask:0xf\ns_nop 1",
        f"v_add_f32 v{g}, v{g}, v{g} row_mirror row_mask:0xf bank_mask:0xf\ns_nop 1",
        f"v_mov_b32 v{g+1}, v{g}\ns_nop 1\nv_permlane16_swap_b32 v{g}, v{g+1}\ns_nop 1\nv_add_f32 v{g}, v{g}, v{g+1}",
        f"v_mul_f32 v{g}, 0x{f32bits(-LOG2E):08x}, v{g}\nv_exp_f32 v{g}, v{g}\ns_nop 0\nv_add_f32 v{g}, 1.0, v{g}\nv_rcp_f32 v{g}, v{g}\ns_nop 1",
        f"buffer_store_dword v{g}, v{g+2}, s[{sO}:{sO+3}], s{sT3} offen {flags('st2')}"]
    specials[T_GF] = (1, gf)
    wf = [f"s_mov_b32 s{sT2}, 0x05040100\ns_mov_b32 s{sT3}, 0x07060302"]
    for hh in range(2):
        for m in range(4):
            wf.append(f"v_accvgpr_read_b32 v{vT}, a{aWo+2*(2*m)+hh}\nv_accvgpr_read_b32 v{vT+1}, a{aWo+2*(2*m+1)+hh}\nv_perm_b32 v{vT+2}, v{vT+1}, v{vT}, s{sT2}\nv_perm_b32 v{vT+3}, v{vT+1}, v{vT}, s{sT3}")
            wf.append(f"v_accvgpr_write_b32 a{192+4*(2*hh)+m}, v{vT+2}\nv_accvgpr_write_b32 a{192+4*(2*hh+1)+m}, v{vT+3}")
    wf.append(f"s_mul_i32 s{sT2}, s{sNb}, {4*144}\ns_add_u32 s{sT2}, s{sT2}, s{sKs}\ns_lshl_b32 s{sT2}, s{sT2}, 10\ns_add_u32 s{sT2}, s{sT2}, {WS_WO}\ns_cmp_ge_u32 s{sId}, 1008\ns_cselect_b32 s{sT2}, {WS_SIZE}, s{sT2}")
    wf += [f"buffer_store_dwordx4 {a(192+4*c,4)}, v{vLane16}, s[{sO}:{sO+3}], s{sT2} offen {flags('st2')}\ns_add_u32 s{sT2}, s{sT2}, {144*1024}" for c in range(4)]
    specials[T_WOF] = (4, wf)
    if PF:
        specials[PF] = (1, [f"s_mov_b32 s{sG}, s8\ns_mov_b32 s{sG+1}, s9\ns_mov_b32 s{sG+2}, {448*8192}\nbuffer_load_dword v15, v{vPq}, s[{sG}:{sG+3}], 0 offen"])
        specials[PF+1] = (1, [f"s_mov_b32 s{sG}, s18\ns_mov_b32 s{sG+1}, s19\ns_mov_b32 s{sG+2}, {448*2688}\nbuffer_load_dword v24, v{vPb}, s[{sG}:{sG+3}], 0 offen"])
        specials[PF+2] = (1, [f"buffer_load_dword v13, v{vPx}, s[{sSide}:{sSide+3}], 0 offen"])
        specials[PF+3] = (1, [f"s_movk_i32 s{sT2}, 7168\nbuffer_load_dword v14, v{vPx}, s[{sSide}:{sSide+3}], s{sT2} offen"])
    specials[14] = (0, [
        f"s_mov_b32 s{sWa}, s8\ns_mov_b32 s{sWa+1}, s9\ns_mov_b32 s{sWa+2}, {448*8192}",
        f"s_mov_b32 s{sWb}, s18\ns_mov_b32 s{sWb+1}, s19\ns_mov_b32 s{sWb+2}, {448*2688}",
        f"s_lshl_b32 s{sAo}, s{sH}, 9\ns_lshl_b32 s{sT2}, s{sP}, 8\ns_add_u32 s{sAo}, s{sAo}, s{sT2}\ns_mul_i32 s{sBo}, s{sH}, 56",
        f"s_mov_b32 s{sBst}, {16*2688}\ns_mov_b32 s{sBadv}, {64*2688}\ns_mov_b32 s{sLst}, 4096\ns_mov_b32 s{sLgb}, 16384\ns_mov_b32 s{sWlw}, s89",
        f"v_mov_b32 v{vAd}, v{vAd2}\nv_mov_b32 v{vBd}, v{vBd2}",
        f"s_mov_b32 s{sX}, s4\ns_mov_b32 s{sX+1}, s5\ns_mov_b32 s{sX+2}, {2048*896}\ns_mul_i32 s{sXo}, s{sT}, {256*896}\ns_mov_b32 s{sXst}, {32*896}\nv_mov_b32 v{vXd}, v{vXd2}"])
    A(f"s_mov_b32 s{sCnt}, 0\ns_mov_b32 s{sWrs}, 0\ns_mov_b32 s{sEx}, 0\ns_mov_b32 s{sMk}, {sum(1 << t for t in specials)}")
    A(f"s_waitcnt vmcnt({16+NCP})\ns_barrier")
    stamp(1)
    for t in reads1(0, 0): A(t)
    LV_entry = A.label("K1_V_B"); Lph2 = A.label("K1_ph2")
    A(f"s_cmp_eq_u32 s{sP}, 1\ns_cbranch_scc1 {LV_entry}")
    LK_entry = A.label("K1_K_B")
    A(f"s_branch {LK_entry}")
    XE = opti("xe", 24)

    for isV in (0, 1):
        Lloop = A.label("K1_loop"); Lent = LV_entry if isV else LK_entry
        Ldis = A.label("K1_dis"); Lret = A.label("K1_ret"); Lw = A.label("K1_w"); Lwr = A.label("K1_wr")
        A(f"{Ldis}:")
        labs = {t: A.label("K1_sp") for t in specials}
        for t in specials: A(f"s_cmp_eq_u32 s{sCnt}, {t}\ns_cbranch_scc1 {labs[t]}")
        A(f"s_branch {Lret}")
        for t, (n, lst) in specials.items():
            A(f"{labs[t]}:")
            for x in lst: A(x)
            A(f"s_mov_b32 s{sEx}, {n}\ns_branch {Lret}")
        A(f"{Lw}:")
        for n in (1, 4):
            Ln = A.label("K1_wn")
            A(f"s_cmp_lg_u32 s{sEx}, {n}\ns_cbranch_scc1 {Ln}\ns_mov_b32 s{sEx}, 0\ns_waitcnt vmcnt({8+n}) lgkmcnt(0)\ns_branch {Lwr}\n{Ln}:")
        A(f"s_mov_b32 s{sEx}, 0\ns_waitcnt vmcnt(16) lgkmcnt(0)\ns_branch {Lwr}")
        A(f".p2align 6\n{Lloop}:")
        interleave(A, mf1(1, isV), spread(reads1(0, 0), 0, 39) + spread(dmaX(), 1, XE) + [(XE + 2, f"s_bitcmp1_b32 s{sMk}, s{sCnt}\ns_cbranch_scc1 {Ldis}\n{Lret}:")])
        A(f"{Lent}:")
        A("s_waitcnt lgkmcnt(0)")
        interleave(A, mf1(0, isV), spread(reads1(1, 1), 0, 39) + spread(dmaW(), 2, 58) + spread(adv_rd(2, 8), 41, 62))
        A(f"s_add_u32 s{sCnt}, s{sCnt}, 1\ns_cmp_lg_u32 s{sEx}, 0\ns_cbranch_scc1 {Lw}")
        A(f"s_waitcnt vmcnt(8) lgkmcnt(0)\n{Lwr}:\ns_cmp_lt_u32 s{sCnt}, 16\ns_barrier")
        A(f"s_cbranch_scc1 {Lloop}")
        stamp(2)
        setup = []
        setup.append(f"s_lshl_b32 s{sTb}, s{sP}, 1\ns_add_u32 s{sTb}, s{sTb}, s{sWN}\ns_lshl_b32 s{sT2}, s{sTb}, 12")
        setup.append(f"v_add_u32 v{vXr}, s{sT2}, v{vXr}\nv_add_u32 v{vXr+1}, s{sT2}, v{vXr+1}")
        setup.append(f"v_add_u32 v{vWr+4}, {WS0 + 0x8000}, v{vT+5}\ns_lshl_b32 s{sT2}, s{sWN}, 7\nv_xor_b32 v{vWr}, s{sT2}, v{vWr+4}")
        for j in range(1, 4): setup.append(f"v_xor_b32 v{vWr+j}, {j << 5}, v{vWr}")
        for sg in range(1, 4):
            setup.append(f"v_xor_b32 v{vXr+2*sg}, {sg << 12}, v{vXr}\nv_xor_b32 v{vXr+2*sg+1}, {sg << 12}, v{vXr+1}")
        for u in range(1, 6): setup.append(f"v_xor_b32 v{vWr+4+u}, {u << 5}, v{vWr+4}")
        if isV:
            setup.append(f"s_lshl_b32 s{sOb}, s{sH}, 6\ns_lshl_b32 s{sT2}, s{sT}, 3\ns_add_u32 s{sOb}, s{sOb}, s{sT2}\ns_lshl_b32 s{sT2}, s{sWM}, 2\ns_add_u32 s{sOb}, s{sOb}, s{sT2}")
            setup.append(f"s_lshl_b32 s{sOb}, s{sOb}, 14\ns_lshl_b32 s{sT2}, s{sWN}, 13\ns_add_u32 s{sOb}, s{sOb}, s{sT2}\ns_add_u32 s{sOb}, s{sOb}, {WS_V}\ns_movk_i32 s{sI0}, 4096\ns_movk_i32 s{sI1}, 12288")
        else:
            setup.append(f"s_lshl_b32 s{sOb}, s{sH}, 7\ns_lshl_b32 s{sT2}, s{sT}, 4\ns_add_u32 s{sOb}, s{sOb}, s{sT2}\ns_lshl_b32 s{sT2}, s{sWM}, 3\ns_add_u32 s{sOb}, s{sOb}, s{sT2}")
            setup.append(f"s_lshl_b32 s{sOb}, s{sOb}, 13\ns_lshl_b32 s{sT2}, s{sWN}, 12\ns_add_u32 s{sOb}, s{sOb}, s{sT2}\ns_add_u32 s{sOb}, s{sOb}, {WS_K}\ns_movk_i32 s{sI0}, 8192\ns_movk_i32 s{sI1}, 8192")
        packs = []
        for q in range(3):
            lst = []
            for n in (range(8*q+7, 8*q-1, -1) if isV else range(8*q, 8*q+8)): lst += pack1(n)
            packs += spread(lst, 16*q + 18, min(16*q + 33, 63))
        interleave(A, mf1(1, isV), spread(setup, 0, 7) + spread(reads2(0, 0), 8, 50) + spread(dmaX(), 2, 58) + packs)
        if not isV: A(f"s_branch {Lph2}")
    A(f"{Lph2}:")
    stamp(3)
    A("VMSEED w17*8 x17*8")
    def st1(n):
        t = f"buffer_store_dwordx4 {v(128+4*n,4)}, v{vLane16}, s[{sO}:{sO+3}], s{sOb} offen offset:{(n&3)*1024} {flags('st1')} ; vm:st"
        if n & 3 == 3: t += f"\ns_add_u32 s{sOb}, s{sOb}, s{sI0 if (n >> 2) % 2 == 0 else sI1}"
        return t
    stq = [st1(n) for n in range(32)]
    per = [int(x) for x in opt("trk", "4/6/6/6/5/5").split("/")]
    A("s_waitcnt lgkmcnt(0)")
    lastp = []
    for n in range(31, 23, -1): lastp += pack1(n)
    for t in range(16, 22):
        k = t - 16
        mine = [stq.pop(0) for _ in range(per[k])] if k < len(per) else []
        if t > 16:
            interleave(A, mf2(1), spread(reads2(0, 0), 0, 30) + spread(dmaX(f"x{t+1}"), 1, 17) + (spread(mine, 19, 43) if mine else []))
            A("s_waitcnt lgkmcnt(0)")
        fl = spread(reads2(1, 1), 0, 30) + spread(adv_rd(8, 10), 31, 43)
        if t == 16:
            fl += spread(lastp, 0, 20) + (spread(mine, 0, 10) if mine else []) + spread(dmaW(f"w{t+2}"), 12, 42)
        elif t + 2 <= 22:
            fl += spread(dmaW(f"w{t+2}"), 1, 40)
        interleave(A, mf2(0, t == 16), fl)
        A(f"WAITVM x{t+1},w{t+1} lgkmcnt(0)\ns_barrier")
    assert not stq
    stamp(4)
    ep = [f"s_mov_b32 s{sAst}, 0x{f32bits(LOG2E/16.0):08x}\ns_mov_b32 s{sBst}, 0x{f32bits(LOG2E/math.sqrt(28.0)):08x}"]
    ep.append(f"s_lshl_b32 s{sOb}, s{sH}, 7\ns_lshl_b32 s{sT3}, s{sT}, 4\ns_add_u32 s{sOb}, s{sOb}, s{sT3}\ns_lshl_b32 s{sT3}, s{sWM}, 3\ns_add_u32 s{sOb}, s{sOb}, s{sT3}\ns_mov_b32 s{sBo}, s{sOb}")
    ep.append(f"s_lshl_b32 s{sOb}, s{sOb}, 13\ns_lshl_b32 s{sT3}, s{sTb}, 11\ns_add_u32 s{sOb}, s{sOb}, s{sT3}\ns_add_u32 s{sOb}, s{sOb}, {WS_Q}\ns_lshl_b32 s{sT3}, s{sTb}, 14\ns_add_u32 s{sOb}, s{sOb}, s{sT3}")
    ep.append(f"s_lshl_b32 s{sT3}, s{sTb}, 1\ns_add_u32 s{sBo}, s{sBo}, s{sT3}\ns_lshl_b32 s{sBo}, s{sBo}, 10\nv_cmp_gt_u32 vcc, 48, v0")
    ep.append(f"v_mov_b32 v{vT}, s{sAst}\nv_mov_b32 v{vT+1}, s{sAst}\nv_mov_b32 v{vT+2}, s{sBst}\nv_mov_b32 v{vT+3}, s{sBst}")
    interleave(A, mf2(1), spread(reads2(0, 0), 0, 30) + spread(ep, 32, 43))
    A("s_waitcnt lgkmcnt(0)")
    def pk4(r0, r1):
        return [f"v_cvt_pk_bf16_f32 v{r0}, v{r0}, v{r0+1}", f"v_cvt_pk_bf16_f32 v{r0+1}, v{r0+2}, v{r0+3}", f"v_cvt_pk_bf16_f32 v{r0+2}, v{r1}, v{r1+1}", f"v_cvt_pk_bf16_f32 v{r0+3}, v{r1+2}, v{r1+3}"]
    def rowepi(i):
        out = []
        if i < 5:
            b = 160 + 16 * i
            out += [f"v_accvgpr_read_b32 v{b+q}, a{72+16*i+q}" for q in range(16)]
        else: b = 32 + 16 * (i - 5)
        out += [f"v_pk_mul_f32 {v(b+2*q,2)}, {v(b+2*q,2)}, {v(vT,2)}" for q in range(8)]
        out.append(f"s_xor_b32 s{sAo}, s{sOb}, {(i >> 1) << 14}\ns_add_u32 s{sAo}, s{sAo}, {(i & 1)*8192}")
        for g in range(2):
            out += pk4(b + 8*g, b + 8*g + 4)
            out.append(f"buffer_store_dwordx4 {v(b+8*g,4)}, v{vLane16}, s[{sO}:{sO+3}], s{sAo} offen offset:{g*1024} {flags('st2')}")
        return out
    ms = mf2row(0, 0) + mf2row(0, 1) + mf2row(0, 2)
    fl = spread(reads2(1, 1), 0, 10) + [(11, "s_waitcnt lgkmcnt(0)")]
    b0 = mf2b(0)
    for i in range(8):
        ms += mf2row(1, i)
        done = len(ms)
        ms += mf2row(0, i + 3) if i + 3 < 8 else b0[4*(i-5):4*(i-5)+4]
        fl += spread(rowepi(i), done + 4, done + 11)
    ms += mf2b(1)
    interleave(A, ms, fl)
    A(f"s_add_u32 s{sAo}, s{sBo}, {WS_QB}\ns_add_u32 s{sT2}, s{sBo}, {WS_KB}\ns_add_u32 s{sT3}, s{sBo}, {WS_VB}\ns_nop 3")
    for db in (1, 0):
        r0, r1 = acc2b(0, 4+db), acc2b(1, 4+db)
        for t in pk4(r0, r1): A(t)
        A(f"buffer_store_dwordx4 {v(r0,4)}, v{vLane16}, s[{sO}:{sO+3}], s{sT3} offen offset:{db*1024} {flags('st2')}")
    for e in range(2):
        r0, r1 = acc2b(e, 2), acc2b(e, 3)
        for t in pk4(r0, r1): A(t)
        A(f"buffer_store_dwordx4 {v(r0,4)}, v{vLane16}, s[{sO}:{sO+3}], s{sT2} offen offset:{e*1024} {flags('st2')}")
    for e in range(2):
        r0, r1 = acc2b(e, 0), acc2b(e, 1)
        for q in range(4): A(f"v_pk_mul_f32 {v(r0+2*q,2)}, {v(r0+2*q,2)}, {v(vT+2,2)}")
        for t in pk4(r0, r1): A(t)
        A(f"v_cndmask_b32 v{r0+2}, 0, v{r0+2}, vcc\nv_cndmask_b32 v{r0+3}, 0, v{r0+3}, vcc")
        A(f"buffer_store_dwordx4 {v(r0,4)}, v{vLane16}, s[{sO}:{sO+3}], s{sAo} offen offset:{e*1024} {flags('st2')}")
    A("VMEND")
    if stamps:
        stamp(5); stamp(6)
        A("s_waitcnt vmcnt(0)")
        stamp(7)
        A("s_waitcnt lgkmcnt(0)")
        for q, r in enumerate(SR): A(f"v_mov_b32 v{4+q}, s{r}")
        A(f"v_mov_b32 v12, 0\ns_lshl_b32 s{sT3}, s2, 5\ns_add_u32 s{sT3}, s{sT3}, {200*MB}")
        A(f"buffer_store_dwordx4 v[4:7], v12, s[{sO}:{sO+3}], s{sT3} offen\nbuffer_store_dwordx4 v[8:11], v12, s[{sO}:{sO+3}], s{sT3} offen offset:16")
    A(f"{Lend}:\ns_endpgm")
```

```python
from asmlib import *
from k1 import *

SPLIT = 18
R = 10
MPOS = 24
PART_STRIDE = 17 * 1024

def gen_k2(A, name="k2_kernel", stamps=False):
    sK, sV, sWS, sD = 8, 12, 16, 20
    sW, sH, sI, sTy = 24, 25, 26, 27
    sKo, sVo, sWrap, sKrem, sVrem = 28, 29, 30, 31, 32
    sKl, sVl = 33, 34
    sVs, sVrs, sVd = 35, 36, 37
    sQ, sJ, sL, sMode = 38, 39, 40, 41
    sDiag = 42
    sT0, sT1, sT2, sT3 = 43, 44, 45, 46
    sC8 = 47
    sPub = 48
    sPair = 49
    sM = 52
    SR = [76, 78, 80, 82, 84, 86, 88, 90]
    vL16, vDm, vKr, vVr, vBase, vD, vNeg = 1, 2, 3, 4, 5, 6, 7
    vT = 8
    vG = 32
    vTs = 34
    vLs = 38
    vNm = 40
    vP = 48; vS = 64; vp = 96; vO = 128
    aQ = 0; aF = 64
    VS0 = 65536
    def stamp(i):
        if stamps: A(f"{'s_memtime' if opti('cyc') else 's_memrealtime'} s[{SR[i]}:{SR[i]+1}]")
    def Ob(db, qb): return vO + 4 * (2 * db + qb)
    def Sb(kb, qb): return vS + 4 * (2 * kb + qb)
    def pb(kb, qb): return vp + 4 * (2 * kb + qb)
    def Pf(ks, qb): return vP + 4 * (2 * ks + qb)
    def fr(f): return a(aF + 4 * (f % 16), 4)
    def rdK(f): return f"ds_read_b128 {fr(f)}, v{vKr} offset:{f*1024}"
    def rdV(f): return f"ds_read_b128 {fr(f)}, v{vVr} offset:{f*1024}"

    def dma(kind):
        srd, so, rem, lb = (sK, sKo, sKrem, sKl) if kind == "K" else (sV, sVo, sVrem, sVl)
        tmp = sT0 if kind == "K" else sT1
        out = []
        for p in range(8):
            t = []
            if p == 0: t.append(f"s_mov_b32 m0, s{lb}\ns_add_u32 s{tmp}, s{so}, 4096")
            if p == 4: t.append(f"s_add_u32 m0, s{lb}, 4096\ns_nop 0")
            t.append(f"buffer_load_dwordx4 v{vDm}, s[{srd}:{srd+3}], s{so if p < 4 else tmp} offen offset:{(p&3)*1024} lds")
            if p == 7:
                t.append(f"s_add_u32 s{so}, s{so}, s{sC8}\ns_cmp_eq_u32 s{so}, s{sWrap}\ns_cselect_b32 s{so}, 0, s{so}")
                t.append(f"s_sub_u32 s{rem}, s{rem}, 1\ns_cmp_eq_u32 s{rem}, 0\ns_cselect_b32 s{srd+2}, 0, s{srd+2}")
                if kind == "K":
                    t.append(f"s_xor_b32 s{lb}, s{lb}, s{sC8}")
                else:
                    t.append(f"s_add_u32 s{sVs}, s{sVs}, 1\ns_cmp_eq_u32 s{sVs}, 3\ns_cselect_b32 s{sVs}, 0, s{sVs}\ns_cselect_b32 s{tmp}, {(-2*0x8000) & 0xffffffff}, s{sC8}\ns_add_u32 s{lb}, s{lb}, s{tmp}")
            out.append("\n".join(t))
        return out
    advK = f"v_xor_b32 v{vKr}, 0x8000, v{vKr}"
    advV = f"s_add_u32 s{sVrs}, s{sVrs}, 1\ns_cmp_eq_u32 s{sVrs}, 3\ns_cselect_b32 s{sVrs}, 0, s{sVrs}\ns_cselect_b32 s{sVd}, {(-2*0x8000) & 0xffffffff}, s{sC8}\nv_add_u32 v{vVr}, s{sVd}, v{vVr}"

    def phase(mf, events, pre):
        order = list(range(pre))
        done = -1
        def emit(lst):
            nonlocal done
            for kind, text in lst:
                A(text)
                if kind.startswith("rd:"): order.append(int(kind[3:]))
                elif kind == "rdx": order.append(-1)
                elif kind == "sync": done = len(order) - 1
        emit(events.get(-1, []))
        for f in range(32):
            if order.index(f) > done:
                need = order.index(f)
                if f + 1 in order and f % 2 == 0: need = max(need, order.index(f + 1))
                cnt = len(order) - 1 - need
                assert cnt <= 15
                A(f"s_waitcnt lgkmcnt({cnt})"); done = need
            m = mf(f)
            for h in range(2):
                A(m[h]); emit(events.get(2 * f + h, []))
    def add_ev(ev, items):
        for p, k, t in items: ev.setdefault(p, []).append((k, t))
    def mfQK(f):
        kb, ds = f >> 3, f & 7
        return [f"{MF} {v(Sb(kb,qb),4)}, {fr(f)}, {a(aQ+4*(8*qb+ds),4)}, {v(vNm+4*qb,4) if ds == 0 else v(Sb(kb,qb),4)}" for qb in range(2)]
    def mfPV(f):
        ks, db = f >> 4, f & 15
        return [f"{MF} {v(Ob(db,qb),4)}, {fr(f)}, {v(Pf(ks,qb),4)}, {v(Ob(db,qb),4)}" for qb in range(2)]
    def cvts():
        out = []
        for ks in range(2):
            for qb in range(2):
                for hh in range(2):
                    src = pb(2*ks+hh, qb)
                    out.append(f"v_cvt_pk_bf16_f32 v{Pf(ks,qb)+2*hh}, v{src}, v{src+1}")
                    out.append(f"v_cvt_pk_bf16_f32 v{Pf(ks,qb)+2*hh+1}, v{src+2}, v{src+3}")
        return out
    def xl_reduce(op, r, t):
        return (f"v_mov_b32 v{t}, v{r}\ns_nop 1\nv_permlane16_swap_b32 v{r}, v{t}\ns_nop 1\n{op} v{r}, v{r}, v{t}\n"
                f"v_mov_b32 v{t}, v{r}\ns_nop 1\nv_permlane32_swap_b32 v{r}, v{t}\ns_nop 1\n{op} v{r}, v{r}, v{t}")
    def mask_block():
        A(f"s_sub_u32 s{sT0}, s{sJ}, s{sDiag}\ns_lshl_b32 s{sT0}, s{sT0}, 6\nv_subrev_u32 v{vD}, s{sT0}, v{vBase}")
        for c in range(-1, 4):
            for i in range(4):
                A(f"v_cmp_gt_i32 s[{sM+2*i}:{sM+2*i+1}], {16*c+i}, v{vD}")
            A("s_nop 0")
            for i in range(4):
                for qb in range(2):
                    kb = c + qb
                    if 0 <= kb < 4:
                        r = Sb(kb, qb) + i
                        A(f"v_cndmask_b32 v{r}, v{r}, v{vNeg}, s[{sM+2*i}:{sM+2*i+1}]")
    def slow(first):
        for qb in range(2):
            m = vT + qb
            regs = [Sb(kb, qb) + i for kb in range(4) for i in range(4)]
            A(f"v_max3_f32 v{m}, v{regs[0]}, v{regs[1]}, v{regs[2]}")
            for x in range(3, 15, 2): A(f"v_max3_f32 v{m}, v{m}, v{regs[x]}, v{regs[x+1]}")
            A(f"v_max_f32 v{m}, v{m}, v{regs[15]}")
            A(xl_reduce("v_max_f32", m, vT + 2))
            if not first: A(f"v_max_f32 v{m}, 0, v{m}")
            for i in range(4): A(f"v_sub_f32 v{vNm+4*qb+i}, v{vNm+4*qb+i}, v{m}")
            if not first:
                A(f"v_sub_f32 v{vT+4+qb}, 0, v{m}\nv_exp_f32 v{vT+4+qb}, v{vT+4+qb}\ns_nop 0\nv_mul_f32 v{vLs+qb}, v{vLs+qb}, v{vT+4+qb}")
                for db in range(16):
                    for i in range(4): A(f"v_mul_f32 v{Ob(db,qb)+i}, v{Ob(db,qb)+i}, v{vT+4+qb}")
            for kb in range(4):
                for i in range(4): A(f"v_sub_f32 v{pb(kb,qb)+i}, v{Sb(kb,qb)+i}, v{m}")
            for kb in range(4):
                for i in range(4): A(f"v_exp_f32 v{pb(kb,qb)+i}, v{pb(kb,qb)+i}")
            A("s_nop 0")
            t = vTs + 2 * qb
            A(f"v_add_f32 v{t}, v{pb(0,qb)}, v{pb(0,qb)+1}")
            for x in range(2, 16): A(f"v_add_f32 v{t}, v{t}, v{pb(x>>2,qb)+(x&3)}")

    A(f".globl {name}\n.p2align 8\n.type {name},@function\n{name}:")
    Lend = A.label("K2_end")
    A(f"s_cmp_ge_u32 s2, 256\ns_cbranch_scc1 {Lend}")
    stamp(0)
    A("s_load_dwordx4 s[4:7], s[0:1], 88")
    A(f"v_lshrrev_b32 v{vT}, 6, v0\nv_and_b32 v0, 63, v0\nv_readfirstlane_b32 s{sW}, v{vT}\nv_lshlrev_b32 v{vL16}, 4, v0")
    A(f"s_lshr_b32 s{sTy}, s2, 7\ns_and_b32 s{sT0}, s2, 7\ns_bfe_u32 s{sT1}, s2, {(1 << 16) | 3}\ns_bfe_u32 s{sI}, s2, {(3 << 16) | 4}")
    A(f"s_lshl_b32 s{sH}, s{sT0}, 1\ns_add_u32 s{sH}, s{sH}, s{sT1}\ns_and_b32 s{sPair}, s2, 127\ns_mov_b32 s{sC8}, 0x8000\ns_mov_b32 s{sPub}, 0")
    A(f"s_lshl_b32 s{sKl}, s{sW}, 13\nv_add_u32 v{vDm}, s{sKl}, v{vL16}\ns_add_u32 s{sVl}, s{sKl}, {VS0}\ns_mov_b32 s{sVs}, 0\ns_mov_b32 s{sVrs}, 0")
    A(f"v_mov_b32 v{vKr}, v{vL16}\nv_add_u32 v{vVr}, {VS0}, v{vL16}\nv_mov_b32 v{vNeg}, 0x{f32bits(-1e30):08x}")
    A(f"v_and_b32 v{vT}, 15, v0\nv_lshrrev_b32 v{vT+1}, 4, v0\nv_lshlrev_b32 v{vT+1}, 2, v{vT+1}\nv_sub_u32 v{vT+1}, v{vT}, v{vT+1}\ns_lshl_b32 s{sT0}, s{sW}, 5\nv_add_u32 v{vBase}, s{sT0}, v{vT+1}")
    A(f"v_lshlrev_b32 v{vT+2}, 2, v{vT}")
    A(f"v_mov_b32 v31, v{vT+2}")
    LB = A.label("K2_B"); LB2 = A.label("K2_Bs2"); Lgo = A.label("K2_go")
    A(f"s_lshl_b32 s{sT0}, s{sI}, 1\ns_sub_u32 s{sT1}, 32, s{sT0}")
    A(f"s_cmp_eq_u32 s{sTy}, 0\ns_cbranch_scc1 {LB}")
    A(f"s_sub_u32 s{sQ}, 15, s{sI}\ns_mov_b32 s{sJ}, 0\ns_mov_b32 s{sL}, {SPLIT-1}\ns_mov_b32 s{sWrap}, -1\ns_mov_b32 s{sKrem}, {SPLIT}")
    A(f"s_cmp_eq_u32 s{sT1}, {SPLIT}\ns_cselect_b32 s{sMode}, 0, 2\ns_branch {Lgo}")
    A(f"{LB}:\ns_mov_b32 s{sKrem}, {34-SPLIT}\ns_lshl_b32 s{sWrap}, s{sT1}, 15\ns_cmp_eq_u32 s{sT1}, {SPLIT}\ns_cbranch_scc1 {LB2}")
    A(f"s_sub_u32 s{sQ}, 15, s{sI}\ns_mov_b32 s{sJ}, {SPLIT}\ns_sub_u32 s{sL}, s{sT1}, 1\ns_mov_b32 s{sMode}, 1\ns_branch {Lgo}")
    A(f"{LB2}:\ns_mov_b32 s{sQ}, s{sI}\ns_mov_b32 s{sJ}, 0\ns_add_u32 s{sL}, s{sT0}, 1\ns_mov_b32 s{sMode}, 0")
    A(f"{Lgo}:\ns_mov_b32 s{sVrem}, s{sKrem}\ns_lshl_b32 s{sKo}, s{sJ}, 15\ns_mov_b32 s{sVo}, s{sKo}\ns_lshl_b32 s{sDiag}, s{sQ}, 1")
    A("s_waitcnt lgkmcnt(0)")
    A(f"s_lshl_b32 s{sT0}, s{sH}, 20\ns_add_u32 s{sK}, s6, s{sT0}\ns_addc_u32 s{sK+1}, s7, 0\ns_mov_b32 s{sK+2}, {MB}\ns_mov_b32 s{sK+3}, 0x00020000")
    A(f"s_add_u32 s{sV}, s{sK}, {WS_V}\ns_addc_u32 s{sV+1}, s{sK+1}, 0\ns_mov_b32 s{sV+2}, {MB}\ns_mov_b32 s{sV+3}, 0x00020000")
    A(f"s_mov_b32 s{sWS}, s6\ns_mov_b32 s{sWS+1}, s7\ns_mov_b32 s{sWS+2}, {WS_SIZE}\ns_mov_b32 s{sWS+3}, 0x00020000")
    A(f"s_mov_b32 s{sD}, s4\ns_mov_b32 s{sD+1}, s5\ns_mov_b32 s{sD+2}, 256\ns_mov_b32 s{sD+3}, 0x00020000")
    ws = f"s[{sWS}:{sWS+3}]"
    vFlag, vZ = 30, 29
    A(f"v_mov_b32 v{vZ}, 0\nv_mov_b32 v{vFlag}, 0\nv_mov_b32 v28, v{vT+1}")
    sFo, sFb = 92, 93
    A(f"s_and_b32 s{sFb}, s{sPair}, 1\ns_lshl_b32 s{sFb}, s{sFb}, 4\ns_lshl_b32 s{sFb}, 1, s{sFb}\ns_lshr_b32 s{sFo}, s{sPair}, 1\ns_lshl_b32 s{sFo}, s{sFo}, 2")
    sPo = 94
    A(f"s_mul_i32 s{sPo}, s{sPair}, {4*PART_STRIDE}\ns_mul_i32 s{sT2}, s{sW}, {PART_STRIDE}\ns_add_u32 s{sPo}, s{sPo}, s{sT2}\ns_add_u32 s{sPo}, s{sPo}, {WS_PART}")
    def loadQ():
        out = [f"s_lshl_b32 s{sT2}, s{sH}, 7\ns_lshl_b32 s{sT3}, s{sQ}, 3\ns_add_u32 s{sT2}, s{sT2}, s{sT3}\ns_lshl_b32 s{sT3}, s{sW}, 1\ns_add_u32 s{sT2}, s{sT2}, s{sT3}\ns_lshl_b32 s{sT2}, s{sT2}, 13\ns_add_u32 s{sT2}, s{sT2}, {WS_Q}"]
        for f in range(16):
            t = f"buffer_load_dwordx4 {a(aQ+4*f,4)}, v{vL16}, {ws}, s{sT2} offen offset:{(f&3)*1024}"
            if f & 3 == 3: t += f"\ns_add_u32 s{sT2}, s{sT2}, 4096"
            out.append(t)
        return out
    for t in dma("K") + loadQ(): A(t)
    A(f"s_lshr_b32 s{sT2}, s2, 3\ns_lshl_b32 s{sT2}, s{sT2}, 2\ns_add_u32 s{sT2}, s{sT2}, s{sW}")
    NCP = code_prefetch(A, name, "CODE_END", 96, sT2, vT, vT+1, 3)
    for t in dma("K") + dma("V") + dma("V"): A(t)
    for i in range(vO, vO + 128): A(f"v_mov_b32 v{i}, 0")
    for i in range(vLs, vNm + 8): A(f"v_mov_b32 v{i}, 0")
    Lloop = A.label("K2_loop"); Lqk = A.label("K2_qk"); Ltail = A.label("K2_tail"); Lfirst = A.label("K2_first")
    Lslow = A.label("K2_slow"); Lback = A.label("K2_back"); Lnm0 = A.label("K2_nm0"); Lnm1 = A.label("K2_nm1"); Lnp = A.label("K2_np"); Lpub = A.label("K2_pub")
    NK0 = 7
    def qk_first(fill):
        ev = {}
        add_ev(ev, [(-1, f"rd:{f}", rdK(f)) for f in range(R)])
        add_ev(ev, [(2*(f-R)+1, f"rd:{f}", rdK(f)) for f in range(R, 32)])
        add_ev(ev, [(2*(31-R)+2, "", advK)])
        add_ev(ev, [(p, "", t) for p, t in fill])
        phase(mfQK, ev, 0)
    A(f"s_waitcnt vmcnt({24+NCP})\ns_barrier")
    stamp(1)
    qk_first([])
    A("s_waitcnt vmcnt(8) lgkmcnt(0)\ns_barrier")
    bq, bk, bv, bm = 128, 144, 164, 180
    bg = 24
    A(f"s_cmp_lg_u32 s{sTy}, 0\ns_cbranch_scc1 {Lfirst}")
    A(f"s_lshl_b32 s50, s{sI}, 2\ns_add_u32 s50, s50, s{sW}\ns_lshl_b32 s50, s50, 1")
    A(f"s_lshl_b32 s{sT3}, s{sH}, 17\ns_lshl_b32 s{sT0}, s50, 11\ns_add_u32 s{sT3}, s{sT3}, s{sT0}")
    A(f"s_add_u32 s{sT0}, s{sT3}, {WS_QB}\ns_add_u32 s{sT1}, s{sT3}, {WS_KB - 1024}\ns_add_u32 s{sT2}, s{sT3}, {WS_KB + 3072}")
    for e in range(4): A(f"buffer_load_dwordx4 {a(bq+4*e,4)}, v{vL16}, {ws}, s{sT0} offen offset:{e*1024}")
    for e in range(4): A(f"buffer_load_dwordx4 {a(bk+4*e,4)}, v{vL16}, {ws}, s{sT1} offen offset:{e*1024}")
    A(f"buffer_load_dwordx4 {a(bk+16,4)}, v{vL16}, {ws}, s{sT2} offen")
    A(f"s_add_u32 s{sT0}, s{sT3}, {WS_VB - 2048}\ns_add_u32 s{sT2}, s{sT3}, {WS_VB}\ns_lshl_b32 s{sT1}, s50, 7\ns_add_u32 s{sT1}, s{sT1}, {WS_G}")
    for tk in range(2):
        for db in range(2):
            o = tk*2048 + db*1024
            A(f"buffer_load_dwordx4 {a(bv+8*tk+4*db,4)}, v{vL16}, {ws}, s{sT2} offen offset:{o}")
            A(f"buffer_load_dwordx2 {a(bm+8*tk+4*db,2)}, v{vL16}, {ws}, s{sT2} offen offset:{o}")
            A(f"buffer_load_dwordx2 {a(bm+8*tk+4*db+2,2)}, v{vL16}, {ws}, s{sT0} offen offset:{o+8}")
    for e in range(4): A(f"buffer_load_dword v{bg+e}, v31, {ws}, s{sT1} offen offset:{e*64}")
    A(f"{Lfirst}:")
    for f in range(NK0): A(rdK(f))
    A(f"s_cmp_lt_u32 s{sJ}, s{sDiag}\ns_cbranch_scc1 {Lnm0}")
    mask_block()
    A(f"{Lnm0}:")
    slow(True)
    A(f"v_mov_b32 v{vLs}, v{vTs}\nv_mov_b32 v{vLs+1}, v{vTs+2}\ns_branch {Lqk}")
    A(f"{Lslow}:")
    slow(False)
    A(f"s_branch {Lback}")
    A(f"{Lpub}:\nv_mov_b32 v{vT+1}, s{sFb}\ns_mov_b32 s{sPub}, 0\ns_mov_b64 exec, 1\nbuffer_atomic_add v{vT+1}, v{vZ}, s[{sD}:{sD+3}], s{sFo} offen sc1\ns_mov_b64 exec, -1\ns_branch {Lnp}")
    A(f".p2align 6\n{Lloop}:")
    A(f"s_add_u32 s{sJ}, s{sJ}, 1\ns_cmp_lt_u32 s{sJ}, s{sDiag}\ns_cbranch_scc1 {Lnm1}")
    mask_block()
    A(f"{Lnm1}:")
    ev = {}
    add_ev(ev, [(2*(f-R)+1, f"rd:{f}", rdV(f)) for f in range(R, 32)])
    add_ev(ev, [(2*(31-R)+2, "", advV)])
    add_ev(ev, [(2*MPOS-1, "sync", "s_waitcnt vmcnt(8) lgkmcnt(0)\ns_barrier")])
    add_ev(ev, [(2*(MPOS+f)+1, "rdx", rdK(f)) for f in range(NK0)])
    els = [(kb, qb, i) for kb in range(4) for qb in range(2) for i in range(4)]
    seen = set()
    for x, (kb, qb, i) in enumerate(els):
        add_ev(ev, [(2*x, "", f"v_exp_f32 v{pb(kb,qb)+i}, v{Sb(kb,qb)+i}")])
        t = vTs + 2*qb + (i & 1)
        txt = f"v_add_f32 v{t}, v{t}, v{pb(kb,qb)+i}" if t in seen else f"v_mov_b32 v{t}, v{pb(kb,qb)+i}"
        seen.add(t)
        add_ev(ev, [(2*x+1, "", txt)])
    phase(mfPV, ev, R)
    A(f"v_add_f32 v{vTs}, v{vTs}, v{vTs+1}\nv_add_f32 v{vTs+2}, v{vTs+2}, v{vTs+3}\ns_cmp_lg_u32 s{sPub}, 0\nv_max_f32 v{vT}, v{vTs}, v{vTs+2}\nv_cmp_nge_f32 vcc, 0x44800000, v{vT}")
    A(f"s_cbranch_scc1 {Lpub}\n{Lnp}:")
    A(f"s_cbranch_vccnz {Lslow}\n{Lback}:")
    A(f"v_add_f32 v{vLs}, v{vLs}, v{vTs}\nv_add_f32 v{vLs+1}, v{vLs+1}, v{vTs+2}")
    A(f"s_cmp_eq_u32 s{sJ}, s{sL}\ns_cbranch_scc1 {Ltail}")
    A(f"{Lqk}:")
    ev = {}
    items = []; f = NK0; slot = 0
    while f < 32:
        p = max(2*(f-R)+1, slot)
        items.append((p, f"rd:{f}", rdK(f))); slot = p + 1; f += 1
    add_ev(ev, items)
    add_ev(ev, [(2*(31-R)+2, "", advK)])
    add_ev(ev, [(2*(32-R+f)+1, "rdx", rdV(f)) for f in range(R)])
    add_ev(ev, [(p, "", t) for p, t in spread(cvts(), 4, 50)])
    dk, dv = dma("K"), dma("V")
    add_ev(ev, [(p, "", t) for p, t in spread(dk + [f"buffer_load_dword v{vFlag}, v{vZ}, s[{sD}:{sD+3}], s{sFo} offen sc1"] + dv, 2, 62)])
    phase(mfQK, ev, NK0)
    A(f"s_branch {Lloop}")
    def pv_last(fill):
        ev = {}
        add_ev(ev, [(2*(f-R)+1, f"rd:{f}", rdV(f)) for f in range(R, 32)])
        add_ev(ev, [(2*(31-R)+2, "", advV)])
        add_ev(ev, [(p, "", t) for p, t in fill])
        phase(mfPV, ev, R)
    def pack(qb, g):
        r0, r1 = Ob(2*g, qb), Ob(2*g+1, qb)
        return [f"v_cvt_pk_bf16_f32 v{r0}, v{r0}, v{r0+1}", f"v_cvt_pk_bf16_f32 v{r0+1}, v{r0+2}, v{r0+3}", f"v_cvt_pk_bf16_f32 v{r0+2}, v{r1}, v{r1+1}", f"v_cvt_pk_bf16_f32 v{r0+3}, v{r1+2}, v{r1+3}"]
    def part_loads():
        out = [f"s_add_u32 s{sT2}, s{sPo}, 16384\nbuffer_load_dwordx4 {v(vT,4)}, v{vL16}, {ws}, s{sT2} offen sc1"]
        for n in range(16):
            t = f"s_add_u32 s{sT2}, s{sPo}, {(n>>2)*4096}\n" if n & 3 == 0 else ""
            out.append(t + f"buffer_load_dwordx4 {v(vS+4*n,4)}, v{vL16}, {ws}, s{sT2} offen offset:{(n&3)*1024} sc1")
        return out
    Lt1 = A.label("K2_t1"); Lt2 = A.label("K2_t2"); Lt0 = A.label("K2_t0"); Lmerge = A.label("K2_merge"); Lpoll = A.label("K2_poll"); Lst = A.label("K2_store"); Lfin = A.label("K2_fin")
    A(f"{Ltail}:")
    stamp(2)
    for f in range(R): A(rdV(f))
    A(f"v_readfirstlane_b32 s95, v{vFlag}")
    for t in cvts(): A(t)
    A(f"s_cmp_eq_u32 s{sMode}, 1\ns_cbranch_scc1 {Lt1}")
    A(f"s_lshl_b32 s{sT2}, s{sQ}, 9\ns_lshl_b32 s{sT3}, s{sW}, 7\ns_add_u32 s{sT2}, s{sT2}, s{sT3}\ns_add_u32 s{sT2}, s{sT2}, {WS_G}")
    for e in range(2): A(f"buffer_load_dword v{vG+e}, v31, {ws}, s{sT2} offen offset:{e*64}")
    A(f"s_cmp_eq_u32 s{sMode}, 0\ns_cbranch_scc1 {Lt0}\ns_and_b32 s95, s95, s{sFb}\ns_cbranch_scc0 {Lt0}")
    pv_last(spread(part_loads(), 0, 34))
    stamp(3)
    A(f"s_branch {Lmerge}")
    A(f"{Lt0}:")
    pv_last([])
    stamp(3)
    A(f"s_cmp_eq_u32 s{sMode}, 0\ns_cbranch_scc1 {Lfin}")
    A(f"{Lpoll}:\nbuffer_load_dword v{vFlag}, v{vZ}, s[{sD}:{sD+3}], s{sFo} offen sc1\ns_waitcnt vmcnt(0)\nv_readfirstlane_b32 s95, v{vFlag}\ns_nop 3\ns_and_b32 s95, s95, s{sFb}\ns_cbranch_scc0 {Lpoll}")
    for t in part_loads(): A(t)
    A(f"{Lmerge}:\ns_waitcnt vmcnt(16)")
    fA, fB = vT + 4, vT + 6
    for qb in range(2):
        A(f"v_min_f32 v{vT+8}, v{vNm+4*qb}, v{vT+qb}\nv_sub_f32 v{fA+qb}, v{vT+8}, v{vNm+4*qb}\nv_sub_f32 v{fB+qb}, v{vT+8}, v{vT+qb}\nv_exp_f32 v{fA+qb}, v{fA+qb}\nv_exp_f32 v{fB+qb}, v{fB+qb}\ns_nop 0")
        A(f"v_mul_f32 v{vLs+qb}, v{vLs+qb}, v{fA+qb}\nv_fmac_f32 v{vLs+qb}, v{vT+2+qb}, v{fB+qb}")
        A(xl_reduce("v_add_f32", vLs+qb, vT+8))
        A(f"v_rcp_f32 v{vLs+qb}, v{vLs+qb}\ns_nop 0\nv_mul_f32 v{vLs+qb}, v{vLs+qb}, v{vG+qb}\nv_mul_f32 v{fA+qb}, v{fA+qb}, v{vLs+qb}\nv_mul_f32 v{fB+qb}, v{fB+qb}, v{vLs+qb}")
    def ctx_base():
        A(f"s_lshl_b32 s{sT0}, s{sQ}, 3\ns_lshl_b32 s{sT1}, s{sW}, 1\ns_add_u32 s{sT0}, s{sT0}, s{sT1}\ns_mul_i32 s{sT0}, s{sT0}, 144\ns_lshl_b32 s{sT1}, s{sH}, 3\ns_add_u32 s{sT0}, s{sT0}, s{sT1}\ns_lshl_b32 s{sT0}, s{sT0}, 10\ns_add_u32 s{sT0}, s{sT0}, {WS_CTX}")
    def ctx_store(qb, g):
        for t in pack(qb, g): A(t)
        if g & 3 == 0: A(f"s_add_u32 s{sT1}, s{sT0}, {qb*144*1024 + (g>>2)*4096}")
        A(f"buffer_store_dwordx4 {v(Ob(2*g,qb),4)}, v{vL16}, {ws}, s{sT1} offen offset:{(g&3)*1024} {flags('st3')}")
    sel = lambda qb: f"op_sel:[0,{qb}] op_sel_hi:[1,{qb}]"
    sel3 = lambda qb: f"op_sel:[0,{qb},0] op_sel_hi:[1,{qb},1]"
    ctx_base()
    A(f"s_mov_b32 s{sT3}, 0xffff0000")
    nst = 0
    for qb in range(2):
        for g in range(8):
            n = qb * 8 + g
            if n % 4 == 0: A(f"s_waitcnt vmcnt({12 - n + nst})")
            for hh in range(4):
                o = Ob(2*g + (hh >> 1), qb) + 2 * (hh & 1); r = vS + 4*n + hh; t = vT + 10 + 2 * (hh & 1)
                A(f"v_lshlrev_b32 v{t}, 16, v{r}\nv_and_b32 v{t+1}, s{sT3}, v{r}\nv_pk_mul_f32 {v(o,2)}, {v(o,2)}, {v(fA,2)} {sel(qb)}\nv_pk_fma_f32 {v(o,2)}, {v(t,2)}, {v(fB,2)}, {v(o,2)} {sel3(qb)}")
            ctx_store(qb, g); nst += 1
    stamp(4)
    A(f"s_branch {Lst}")
    A(f"{Lt1}:")
    A(f"s_mov_b32 s{sQ}, s{sI}")
    pv_last(spread(loadQ() + dma("K") + dma("V"), 0, 62))
    A(f"v_mov_b32 v{vT}, v{vNm}\nv_mov_b32 v{vT+1}, v{vNm+4}\nv_mov_b32 v{vT+2}, v{vLs}\nv_mov_b32 v{vT+3}, v{vLs+1}")
    for i in range(vNm, vNm + 8): A(f"v_mov_b32 v{i}, 0")
    A(f"s_cmp_eq_u32 s{sW}, 0\ns_cselect_b32 s{sPub}, 1, 0\ns_mov_b32 s{sMode}, 0\ns_mov_b32 s{sJ}, 0\ns_lshl_b32 s{sDiag}, s{sQ}, 1\ns_add_u32 s{sL}, s{sDiag}, 1")
    A(f"s_add_u32 s{sT2}, s{sPo}, 16384\nbuffer_store_dwordx4 {v(vT,4)}, v{vL16}, {ws}, s{sT2} offen sc1")
    A("s_waitcnt vmcnt(17)\ns_barrier")
    stamp(1)
    fill = []
    prevz = []
    for qb in range(2):
        for g in range(8):
            n = qb * 8 + g
            fill += pack(qb, g)
            t = f"s_add_u32 s{sT2}, s{sPo}, {(n>>2)*4096}\n" if n & 3 == 0 else ""
            fill.append(t + f"buffer_store_dwordx4 {v(Ob(2*g,qb),4)}, v{vL16}, {ws}, s{sT2} offen offset:{(n&3)*1024} sc1")
            fill += prevz
            r0, r1 = Ob(2*g, qb), Ob(2*g+1, qb)
            prevz = [f"v_mov_b64 {v(r,2)}, 0" for r in (r1, r1+2, r0, r0+2)]
    fill += ["s_nop 1"] + prevz
    qk_first(spread(fill, 0, 63))
    A(f"s_waitcnt vmcnt(17) lgkmcnt(0)\ns_barrier\ns_branch {Lfirst}")
    A(f"{Lfin}:\ns_waitcnt vmcnt(0)")
    for qb in range(2):
        A(xl_reduce("v_add_f32", vLs+qb, vT+8))
        A(f"v_rcp_f32 v{vLs+qb}, v{vLs+qb}\ns_nop 0\nv_mul_f32 v{vLs+qb}, v{vLs+qb}, v{vG+qb}")
    ctx_base()
    for qb in range(2):
        for g in range(8):
            for hh in range(4):
                o = Ob(2*g + (hh >> 1), qb) + 2 * (hh & 1)
                A(f"v_pk_mul_f32 {v(o,2)}, {v(o,2)}, {v(vLs,2)} {sel(qb)}")
            ctx_store(qb, g)
    stamp(4)
    A(f"s_cmp_lg_u32 s{sTy}, 0\ns_cbranch_scc1 {Lst}")
    bS, bP, bO = 64, 96, 112
    for e in range(4):
        A(f"{MF} {v(bS+8*e,4)}, {a(bk+4*(e+1),4)}, {a(bq+4*e,4)}, 0")
        A(f"{MF} {v(bS+8*e+4,4)}, {a(bk+4*e,4)}, {a(bq+4*e,4)}, 0")
    for i in range(4):
        A(f"v_subrev_u32 v{vT+2}, {i}, v28\nv_and_b32 v{vT+2}, 0x80000001, v{vT+2}\nv_bfrev_b32 v{vT+2}, v{vT+2}")
        A(f"v_cmp_eq_u32 s[{sM+2*i}:{sM+2*i+1}], 0, v{vT+2}\nv_cmp_eq_u32 s[{sM+8+2*i}:{sM+8+2*i+1}], 1, v{vT+2}")
    A(f"s_cmp_eq_u32 s50, 0")
    for i in range(4): A(f"s_cselect_b64 s[{sM+16+2*i}:{sM+16+2*i+1}], 0, s[{sM+8+2*i}:{sM+8+2*i+1}]")
    A(f"v_cmp_gt_u32 vcc, 48, v0")
    def each(fn):
        for e in range(4): A(fn(e))
    m = lambda e: vT + e
    tt = lambda e: vT + 4 + e
    l = lambda e: vT + 8 + e
    for e in range(4):
        s0 = bS + 8 * e
        for i in range(4):
            A(f"v_cndmask_b32 v{s0+i}, v{vNeg}, v{s0+i}, s[{sM+2*i}:{sM+2*i+1}]")
            pm = sM + (16 if e == 0 else 8) + 2 * i
            A(f"v_cndmask_b32 v{s0+4+i}, v{vNeg}, v{s0+4+i}, s[{pm}:{pm+1}]")
        A(f"v_max3_f32 v{m(e)}, v{s0}, v{s0+1}, v{s0+2}\nv_max3_f32 v{m(e)}, v{m(e)}, v{s0+3}, v{s0+4}\nv_max3_f32 v{m(e)}, v{m(e)}, v{s0+5}, v{s0+6}\nv_max_f32 v{m(e)}, v{m(e)}, v{s0+7}")
    def xl4(op, r):
        for sw in ("v_permlane16_swap_b32", "v_permlane32_swap_b32"):
            each(lambda e: f"v_mov_b32 v{tt(e)}, v{r(e)}")
            A("s_nop 1")
            each(lambda e: f"{sw} v{r(e)}, v{tt(e)}")
            A("s_nop 1")
            each(lambda e: f"{op} v{r(e)}, v{r(e)}, v{tt(e)}")
    xl4("v_max_f32", m)
    for e in range(4):
        s0 = bS + 8 * e
        for i in range(8): A(f"v_sub_f32 v{s0+i}, v{s0+i}, v{m(e)}")
        for i in range(8): A(f"v_exp_f32 v{s0+i}, v{s0+i}")
    for e in range(4):
        s0 = bS + 8 * e
        lo, hi = (s0, s0 + 4) if e % 2 == 0 else (s0 + 4, s0)
        A(f"v_cvt_pk_bf16_f32 v{bP+4*e}, v{lo}, v{lo+1}\nv_cvt_pk_bf16_f32 v{bP+4*e+1}, v{lo+2}, v{lo+3}\nv_cvt_pk_bf16_f32 v{bP+4*e+2}, v{hi}, v{hi+1}\nv_cvt_pk_bf16_f32 v{bP+4*e+3}, v{hi+2}, v{hi+3}")
        A(f"v_add_f32 v{l(e)}, v{s0}, v{s0+1}")
        for i in range(2, 8): A(f"v_add_f32 v{l(e)}, v{l(e)}, v{s0+i}")
        for db in range(2):
            A(f"{MF} {v(s0+4*db,4)}, {a((bm if e % 2 == 0 else bv)+8*(e>>1)+4*db,4)}, {v(bP+4*e,4)}, 0")
    xl4("v_add_f32", l)
    each(lambda e: f"v_rcp_f32 v{l(e)}, v{l(e)}\nv_sub_f32 v{bg+e}, 1.0, v{bg+e}\nv_mul_f32 v{l(e)}, v{l(e)}, v{bg+e}")
    A(f"s_mul_i32 s{sT0}, s50, {2*144}\ns_add_u32 s{sT0}, s{sT0}, s{sH}\ns_lshl_b32 s{sT0}, s{sT0}, 10\ns_add_u32 s{sT0}, s{sT0}, {WS_CTX + 128*1024}")
    for e in range(4):
        o = bS + 8 * e
        for i in range(8): A(f"v_mul_f32 v{o+i}, v{o+i}, v{l(e)}")
        A(f"v_cvt_pk_bf16_f32 v{o}, v{o}, v{o+1}\nv_cvt_pk_bf16_f32 v{o+1}, v{o+2}, v{o+3}\nv_cvt_pk_bf16_f32 v{o+2}, v{o+4}, v{o+5}\nv_cvt_pk_bf16_f32 v{o+3}, v{o+6}, v{o+7}")
        A(f"v_cndmask_b32 v{o+2}, 0, v{o+2}, vcc\nv_cndmask_b32 v{o+3}, 0, v{o+3}, vcc")
        A(f"buffer_store_dwordx4 {v(o,4)}, v{vL16}, {ws}, s{sT0} offen {flags('st3')}\ns_add_u32 s{sT0}, s{sT0}, {144*1024}")
    A(f"{Lst}:")
    if stamps:
        stamp(5); stamp(6)
        A("s_waitcnt vmcnt(0)")
        stamp(7)
        A("s_waitcnt lgkmcnt(0)")
        for q, r in enumerate(SR): A(f"v_mov_b32 v{4+q}, s{r}")
        A(f"v_mov_b32 v12, 0\ns_lshl_b32 s{sT3}, s2, 5\ns_add_u32 s{sT3}, s{sT3}, {200*MB + 65536}")
        A(f"buffer_store_dwordx4 v[4:7], v12, {ws}, s{sT3} offen\nbuffer_store_dwordx4 v[8:11], v12, {ws}, s{sT3} offen offset:16")
    A(f"{Lend}:\ns_endpgm")
```

```python
class Asm:
    def __init__(self):
        self.L = []
        self.uid = 0
    def __call__(self, s):
        for ln in s.split("\n"):
            ln = ln.strip()
            if ln:
                self.L.append(("" if ln.endswith(":") or ln.startswith(".") or ln.startswith(";") else "    ") + ln)
    def label(self, base):
        self.uid += 1
        return f"{base}_{self.uid}"
    def text(self):
        out = []; q = None
        for ln in self.L:
            t = ln.strip()
            if t.startswith("VMSEED"):
                q = []
                for it in t.split()[1:]:
                    tag, n = it.split("*"); q += [tag] * int(n)
                continue
            if t.startswith("VMEND"):
                q = None; continue
            if t.startswith("WAITVM"):
                parts = t.split()
                tags = parts[1].split(",")
                for tg in tags: assert tg in q, (tg, q)
                last = max(i for i, x in enumerate(q) if x in tags)
                cnt = len(q) - 1 - last
                assert cnt <= 63
                out.append(f"    s_waitcnt vmcnt({cnt}) " + " ".join(parts[2:]))
                continue
            if q is not None and (t.startswith("buffer_") or t.startswith("global_")):
                q.append(t.split("; vm:")[1].strip() if "; vm:" in t else "?")
            out.append(ln)
        return "\n".join(out) + "\n"

def rng(kind, base, n):
    return f"{kind}{base}" if n == 1 else f"{kind}[{base}:{base+n-1}]"
def v(b, n=1): return rng("v", b, n)
def a(b, n=1): return rng("a", b, n)
def s(b, n=1): return rng("s", b, n)

def interleave(A, mfmas, fillers):
    by = {}
    for p, t in fillers:
        by.setdefault(p, []).append(t)
    for t in by.get(-1, []): A(t)
    for i, m in enumerate(mfmas):
        A(m)
        for t in by.get(i, []): A(t)
    for p in by:
        assert -1 <= p < len(mfmas), p

def spread(items, lo, hi):
    n = len(items)
    out = []
    for k, t in enumerate(items):
        out.append((lo + (k * (hi - lo + 1)) // n, t))
    return out

def kd(name, vgpr=512, accum=256, sgpr=102):
    return f""".amdhsa_kernel {name}
  .amdhsa_next_free_vgpr {vgpr}
  .amdhsa_next_free_sgpr {sgpr}
  .amdhsa_accum_offset {accum}
  .amdhsa_group_segment_fixed_size 0
  .amdhsa_kernarg_size 104
  .amdhsa_user_sgpr_count 2
  .amdhsa_user_sgpr_kernarg_segment_ptr 1
  .amdhsa_system_sgpr_workgroup_id_x 1
.end_amdhsa_kernel
"""

import os
OPT = dict(kv.split("=") for kv in os.environ.get("OPT", "").split(",") if kv)
def opt(k, d=None):
    return OPT.get(k, d)
def opti(k, d=0):
    return int(OPT.get(k, d))
def flags(k, d="sc1"):
    return OPT.get(k, d).replace("+", " ")

def code_prefetch(A, start_label, end_label, s_pair, s_chunk, v_off, v_dst, nchunk_mask):
    if not opti("cpf", 1): return 0
    L = A.label("PC")
    A(f"s_getpc_b64 s[{s_pair}:{s_pair+1}]\n{L}:")
    A(f"s_sub_u32 s{s_pair}, s{s_pair}, {L} - {start_label}\ns_subb_u32 s{s_pair+1}, s{s_pair+1}, 0")
    A(f"s_and_b32 s{s_chunk}, s{s_chunk}, {nchunk_mask}\ns_lshl_b32 s{s_chunk}, s{s_chunk}, 13\nv_lshlrev_b32 v{v_off}, 7, v0\nv_add_u32 v{v_off}, s{s_chunk}, v{v_off}")
    A(f"v_min_u32 v{v_off}, {end_label} - {start_label} - 4, v{v_off}")
    A(f"global_load_dword v{v_dst}, v{v_off}, s[{s_pair}:{s_pair+1}]")
    return 1

def split_items(items):
    out = []
    for it in items:
        lines = [l for l in it.split("\n") if l.strip()]
        k = 0
        while k < len(lines):
            g = [lines[k]]
            if lines[k].startswith("s_cmp"):
                while k + 1 < len(lines) and lines[k+1].startswith("s_cselect"):
                    k += 1; g.append(lines[k])
            while k + 1 < len(lines) and lines[k+1].startswith("s_nop"):
                k += 1; g.append(lines[k])
            out.append("\n".join(g)); k += 1
    return out

def cost(t):
    c = 0.0
    for l in t.split("\n"):
        if l.startswith("buffer_") or l.startswith("global_"): c += 2
        elif l.startswith("v_exp") or l.startswith("v_rcp"): c += 2
        else: c += 1
    return c

def sched(nm, streams, base=None):
    load = [0.0] * nm
    for p, t in (base or []): load[p] += cost(t)
    todo = []
    for si, (items, lo, hi) in enumerate(streams):
        items = split_items(items)
        n = len(items)
        for k, t in enumerate(items):
            todo.append((lo + (k + 0.5) * (hi - lo + 1) / n - 0.5, si, k, t, lo, hi))
    todo.sort(key=lambda x: (x[0], x[1], x[2]))
    prev = {}
    out = list(base or [])
    for d, si, k, t, lo, hi in todo:
        a0 = max(lo, prev.get(si, lo), int(d) - 2); b0 = max(a0, min(hi, int(d) + 3))
        best = min(range(a0, b0 + 1), key=lambda p: (load[p], abs(p - d)))
        load[best] += cost(t); prev[si] = best
        out.append((best, t))
    return out

def sched2(nm, streams, load=None):
    load = list(load) if load else [0.0] * nm
    todo = []
    for si, items in enumerate(streams):
        for k, (t, lo, hi, d, kind) in enumerate(items):
            todo.append((d, si, k, t, lo, hi, kind))
    todo.sort(key=lambda x: (x[0], x[1], x[2]))
    prev = {}; out = []
    for d, si, k, t, lo, hi, kind in todo:
        a0 = max(lo, prev.get(si, 0), int(d) - 2); a0 = min(a0, hi); b0 = max(a0, min(hi, int(d) + 3))
        c = cost(t)
        best = min(range(a0, b0 + 1), key=lambda p: (max(0, load[p] + c - 2), load[p] > 0 and c >= 2, abs(p - d)))
        load[best] += c; prev[si] = best
        out.append((best, kind, t))
    return out, load
def even(items, lo, hi, kind=""):
    items = split_items(items); n = len(items)
    return [(t, lo, hi, lo + (k + 0.5) * (hi - lo + 1) / n - 0.5, kind) for k, t in enumerate(items)]

def cls(l):
    if l.startswith("s_"): return 0
    if l.startswith("ds_") or l.startswith("buffer_") or l.startswith("global_"): return 1
    return 2
def gap_cost(items):
    lines = [l for t in items for l in t.split("\n") if not l.endswith(":")]
    c = 0.0; seen_valu = False
    vm = any(l.startswith("buffer_") or l.startswith("global_") for l in lines)
    for k, l in enumerate(lines):
        k0 = cls(l)
        if k0 == 0:
            if l.startswith("s_nop"): c += 1 + int(l.split()[1])
            elif not (k == 0 and not vm): c += 1
        elif k0 == 1:
            c += 2 if not l.startswith("ds_") else 1
            if seen_valu: c += 2
        else:
            c += 2 if (l.startswith("v_exp") or l.startswith("v_rcp") or l.startswith("v_pk_")) else 1
            seen_valu = True
    return c
def order_gap(entries):
    out = []; rest = list(entries)
    while rest:
        heads = {}
        for e in rest:
            if e[0] not in heads or e[1] < heads[e[0]][1]: heads[e[0]] = e
        b = min(heads.values(), key=lambda e: (cls(e[3].split("\n")[0]), e[0]))
        out.append(b); rest.remove(b)
    return out
def sched3(nm, streams, fixed=None, slack=3):
    gaps = [[] for _ in range(nm)]
    for k, (p, kind, t) in enumerate(fixed or []): gaps[p].append((-1, k, kind, t))
    todo = []
    for si, items in enumerate(streams):
        for k, (t, lo, hi, d, kind) in enumerate(items): todo.append((d, si, k, t, lo, hi, kind))
    todo.sort(key=lambda x: (x[0], x[1], x[2]))
    prev = {}
    for d, si, k, t, lo, hi, kind in todo:
        a0 = min(max(lo, prev.get(si, 0), int(d) - slack), hi); b0 = max(a0, min(hi, int(d) + slack + 1))
        def pen(p):
            old = gap_cost([e[3] for e in order_gap(gaps[p])])
            new = gap_cost([e[3] for e in order_gap(gaps[p] + [(si, k, kind, t)])])
            return (max(0, new - 2) - max(0, old - 2), abs(p - d))
        best = min(range(a0, b0 + 1), key=pen)
        gaps[best].append((si, k, kind, t)); prev[si] = best
    out = []; over = 0
    for p in range(nm):
        o = order_gap(gaps[p]); over += max(0, gap_cost([e[3] for e in o]) - 2)
        out += [(p, e[2], e[3]) for e in o]
    if opti("verbose"): print("sched3 overflow slots", over)
    return out
def sched(nm, streams, base=None):
    r = sched3(nm, [even(i, lo, hi) for i, lo, hi in streams if i], [(p, "", t) for p, t in (base or [])])
    return [(p, t) for p, k, t in r]
```

```python
from asmlib import *
import math, struct

MB = 1 << 20
WS_K = 0
WS_V = 16 * MB
WS_Q = 32 * MB
WS_QB = 48 * MB
WS_KB = 50 * MB
WS_VB = 52 * MB
WS_G = 54 * MB
WS_FLAG = 55 * MB
WS_CTX = 56 * MB
WS_PART = 80 * MB
WS_WO = 100 * MB
WS_SIZE = 256 * MB

def f32bits(x): return struct.unpack("<I", struct.pack("<f", x))[0]
LOG2E = 1.4426950408889634
MF = "v_mfma_f32_16x16x32_bf16"

def gen_k1(A, name="k1_kernel", stamps=False):
    sC, sWk, sXx, sWq, sWb, sO, sG = 28, 32, 36, 40, 44, 48, 68
    sW, sWM, sWN, sT, sH, sP = 60, 61, 62, 63, 64, 65
    sXo1, sWo1, sXo2, sQo2, sBo2 = 66, 67, 72, 73, 74
    sXl, sWl = 76, 77
    sCnt, sWd, sWrs = 78, 79, 80
    sT0, sT1, sT2, sT3 = 81, 82, 83, 84
    sWlw1, sWlw2, sWls = 85, 89, 86
    sOb, sTb = 87, 88
    sC8, sCwo = 90, 91
    sId, sKs, sNb = 100, 101, 26
    sQb, sBb = 27, 3
    sEx, sMk = 16, 17
    sAo = 75
    vLane16 = 1
    vXd1, vWd1, vXd2, vQd2, vBd2 = 2, 3, 4, 5, 6
    vWb1 = 7
    vXr = 8
    vWr = 16
    vT = 26
    vXb = 30
    vWb2 = 31
    WS0 = 65536
    so = f"s[{sO}:{sO+3}]"

    def acc1(i, j, isV):
        n, sec = ((8 * (i >> 1) + j, i & 1) if isV else (4 * i + (j >> 1), j & 1))
        if not sec: return v(128 + 4 * n, 4)
        return a(128 + 4 * n, 4) if n < 8 else v(32 + 4 * (n - 8), 4)
    def pk4(r0, r1):
        return [f"v_cvt_pk_bf16_f32 v{r0}, v{r0}, v{r0+1}", f"v_cvt_pk_bf16_f32 v{r0+1}, v{r0+2}, v{r0+3}", f"v_cvt_pk_bf16_f32 v{r0+2}, v{r1}, v{r1+1}", f"v_cvt_pk_bf16_f32 v{r0+3}, v{r1+2}, v{r1+3}"]
    def pack1(n):
        r0 = 128 + 4 * n
        if n >= 8: return pk4(r0, 32 + 4 * (n - 8))
        p = pk4(r0, vT)
        return p[:2] + [f"v_accvgpr_read_b32 v{vT+q}, a{128+4*n+q}" for q in range(4)] + p[2:]
    X1 = [0, 64]; W1 = [32, 96]

    A(f".globl {name}\n.p2align 8\n.type {name},@function\n{name}:")
    Lend = A.label("K1_end")
    A(f"s_cmp_ge_u32 s2, 256\ns_cbranch_scc1 {Lend}")
    SR = [52, 54, 56, 58, 92, 94, 0, 24]
    def stamp(i):
        if stamps: A(f"{'s_memtime' if opti('cyc') else 's_memrealtime'} s[{SR[i]}:{SR[i]+1}]")
    stamp(0)
    A("s_load_dwordx16 s[4:19], s[0:1], 0\ns_load_dwordx4 s[20:23], s[0:1], 64\ns_load_dwordx2 s[24:25], s[0:1], 96")
    A(f"v_lshrrev_b32 v{vT}, 6, v0\nv_and_b32 v0, 63, v0\nv_readfirstlane_b32 s{sW}, v{vT}")
    A(f"v_lshlrev_b32 v{vLane16}, 4, v0")
    A(f"s_and_b32 s{sT0}, s2, 7\ns_lshr_b32 s{sT1}, s2, 3\ns_and_b32 s{sT}, s{sT1}, 7\ns_lshr_b32 s{sT1}, s{sT1}, 3")
    A(f"s_and_b32 s{sP}, s{sT1}, 1\ns_lshr_b32 s{sT1}, s{sT1}, 1\ns_lshl_b32 s{sH}, s{sT0}, 1\ns_add_u32 s{sH}, s{sH}, s{sT1}")
    A(f"s_lshr_b32 s{sWM}, s{sW}, 1\ns_and_b32 s{sWN}, s{sW}, 1")
    A(f"v_lshrrev_b32 v{vT}, 4, v0\ns_lshl_b32 s{sT0}, s{sWN}, 2\nv_add_u32 v{vT}, s{sT0}, v{vT}")
    A(f"v_and_b32 v{vT+1}, 7, v0\nv_xor_b32 v{vT}, v{vT}, v{vT+1}\nv_lshlrev_b32 v{vT}, 4, v{vT}")
    A(f"v_lshrrev_b32 v{vT+1}, 3, v0\ns_lshl_b32 s{sT0}, s{sW}, 3\nv_add_u32 v{vT+1}, s{sT0}, v{vT+1}")
    A(f"v_lshl_add_u32 v{vXd1}, v{vT+1}, 11, v{vT}")
    A(f"v_mul_u32_u24 v{vXd2}, 896, v{vT+1}\nv_add_u32 v{vXd2}, v{vXd2}, v{vT}")
    A(f"v_lshrrev_b32 v{vT}, 5, v0\ns_lshl_b32 s{sT0}, s{sWN}, 1\nv_add_u32 v{vT}, s{sT0}, v{vT}")
    A(f"s_lshl_b32 s{sT0}, s{sWM}, 2\nv_or_b32 v{vT+1}, s{sT0}, v{vT}\nv_lshlrev_b32 v{vT+1}, 1, v{vT+1}")
    A(f"v_and_b32 v{vT+2}, 31, v0\nv_xor_b32 v{vT+1}, v{vT+1}, v{vT+2}\nv_lshlrev_b32 v{vT+1}, 4, v{vT+1}")
    A(f"s_lshl_b32 s{sT0}, s{sWM}, 3\nv_add_u32 v{vT}, s{sT0}, v{vT}")
    A(f"v_lshl_add_u32 v{vWd1}, v{vT}, 13, v{vT+1}")
    A(f"v_lshrrev_b32 v{vT}, 4, v0\ns_lshl_b32 s{sT0}, s{sWN}, 2\nv_or_b32 v{vT+1}, s{sT0}, v{vT}\nv_lshlrev_b32 v{vT+1}, 1, v{vT+1}")
    A(f"v_and_b32 v{vT+2}, 15, v0\nv_xor_b32 v{vT+1}, v{vT+1}, v{vT+2}")
    A(f"s_lshl_b32 s{sT0}, s{sWN}, 1\ns_add_u32 s{sT0}, s{sT0}, s{sWM}\ns_lshl_b32 s{sT1}, s{sT0}, 2\nv_add_u32 v{vT}, s{sT1}, v{vT}")
    A(f"s_lshl_b32 s{sWlw2}, s{sT0}, 10\ns_mov_b32 s{sC8}, 0x8000\ns_mov_b32 s{sCwo}, {4096*896}")
    A(f"v_lshlrev_b32 v{vT+2}, 4, v{vT+1}\nv_lshl_add_u32 v{vQd2}, v{vT}, 13, v{vT+2}")
    A(f"v_lshrrev_b32 v{vT+2}, 2, v{vT+1}\nv_min_u32 v{vT+2}, 2, v{vT+2}\nv_mul_u32_u24 v{vT+2}, 896, v{vT+2}")
    A(f"v_and_b32 v{vT+1}, 3, v{vT+1}\nv_lshl_add_u32 v{vT+2}, v{vT+1}, 4, v{vT+2}")
    A(f"v_mul_u32_u24 v{vBd2}, 2688, v{vT}\nv_add_u32 v{vBd2}, v{vBd2}, v{vT+2}")
    A(f"s_lshl_b32 s{sXo1}, s{sT}, 19\ns_lshl_b32 s{sWo1}, s{sH}, 9\ns_mul_i32 s{sXo2}, s{sT}, {256*896}\ns_lshl_b32 s{sT0}, s{sP}, 8\ns_add_u32 s{sQo2}, s{sWo1}, s{sT0}\ns_mul_i32 s{sBo2}, s{sH}, 56")
    A(f"s_lshl_b32 s{sXl}, s{sW}, 10\ns_lshl_b32 s{sWlw1}, s{sWM}, 2\ns_add_u32 s{sWlw1}, s{sWlw1}, s{sWN}\ns_lshl_b32 s{sWlw1}, s{sWlw1}, 10\ns_mov_b32 s{sWls}, {WS0}")
    A(f"s_lshl_b32 s{sTb}, s{sP}, 1\ns_add_u32 s{sTb}, s{sTb}, s{sWN}")
    for r in (sC, sWk, sXx, sWq, sWb, sO, sG): A(f"s_mov_b32 s{r+3}, 0x00020000")
    A(f"s_mov_b32 s{sC+2}, {2048*2048}\ns_mov_b32 s{sWk+2}, {1024*8192}\ns_mov_b32 s{sXx+2}, {2048*896}\ns_mov_b32 s{sWq+2}, {448*8192}\ns_mov_b32 s{sWb+2}, {448*2688}\ns_mov_b32 s{sO+2}, {WS_SIZE}\ns_mov_b32 s{sG+2}, 896")
    A("s_waitcnt lgkmcnt(0)")
    A(f"s_mov_b64 s[{sC}:{sC+1}], s[6:7]\ns_mov_b64 s[{sXx}:{sXx+1}], s[4:5]\ns_mov_b64 s[{sWq}:{sWq+1}], s[8:9]\ns_mov_b64 s[{sWb}:{sWb+1}], s[18:19]\ns_mov_b64 s[{sO}:{sO+1}], s[24:25]\ns_mov_b64 s[{sG}:{sG+1}], s[22:23]")
    A(f"s_cmp_eq_u32 s{sP}, 0\ns_cselect_b64 s[{sWk}:{sWk+1}], s[10:11], s[12:13]")

    def dmaX(ph, tag='x'):
        srd, vo, run, st = (sC, vXd1, sXo1, 32*2048) if ph == 1 else (sXx, vXd2, sXo2, 32*896)
        out = []
        for p in range(8):
            t = [f"s_add_u32 m0, s{sXl}, {p*4096}\ns_add_u32 s{sT0}, s{run}, {p*st}"]
            t.append(f"buffer_load_dwordx4 v{vo}, s[{srd}:{srd+3}], s{sT0} offen lds ; vm:{tag}")
            if p == 7: t.append(f"s_add_u32 s{run}, s{run}, 128\ns_xor_b32 s{sXl}, s{sXl}, s{sC8}")
            out.append("\n".join(t))
        return out
    def dmaW(ph, tag='w'):
        out = []
        for g in range(2):
            for p in range(4):
                if ph == 1: srd, vo, run, go, lo, adv = sWk, vWd1, sWo1, (4*g + 16*p)*8192, g*2048 + p*8192, (64*8192 if g == 1 else 0)
                elif g == 0: srd, vo, run, go, lo, adv = sWq, vQd2, sQo2, 16*p*8192, p*4096, 64*8192
                else: srd, vo, run, go, lo, adv = sWb, vBd2, sBo2, 16*p*2688, 16384 + p*4096, 64*2688
                t = []
                if g == 0 and p == 0: t.append(f"s_add_u32 s{sWl}, s{sWls}, s{sWlw1 if ph == 1 else sWlw2}")
                t.append(f"s_add_u32 m0, s{sWl}, {lo}\ns_add_u32 s{sT1}, s{run}, {go}")
                t.append(f"buffer_load_dwordx4 v{vo}, s[{srd}:{srd+3}], s{sT1} offen lds ; vm:{tag}")
                if p == 3 and adv: t.append(f"s_add_u32 s{run}, s{run}, {adv}")
                if p == 3 and g == 1:
                    t.append(f"s_add_u32 s{sWls}, s{sWls}, s{sC8}\ns_cmp_eq_u32 s{sWls}, {WS0 + 3*0x8000}\ns_cselect_b32 s{sWls}, {WS0}, s{sWls}")
                out.append("\n".join(t))
        return out
    def reads1(st, ks):
        xs = [f"ds_read_b128 {a(X1[st]+4*i,4)}, v{vXr+ks} offset:{i*2048}" for i in range(8)]
        ws = [f"ds_read_b64_tr_b16 {a(W1[st]+4*j+2*t,2)}, v{vWr+j} offset:{ks*16384+t*2048}" for j in range(8) for t in range(2)]
        return [xs[0]] + ws + xs[1:]
    def reads2(b, ks):
        xs = [f"ds_read_b128 {a(b+4*i,4)}, v{vXr+2*(i>>1)+ks} offset:{(i&1)*2048}" for i in range(8)]
        ws = [f"ds_read_b64_tr_b16 {a(b+32+4*j+2*t,2)}, v{vWr+j} offset:{ks*8192+t*1024+(16384 if j >= 4 else 0)}" for j in range(10) for t in range(2)]
        return [xs[0]] + ws[:8] + xs[1:] + ws[8:]
    def mf1row(st, i, isV, first=False):
        out = []
        for jj in range(8):
            j = jj if i % 2 == 0 else 7 - jj
            x, w = a(X1[st]+4*i, 4), a(W1[st]+4*j, 4)
            c = acc1(i, j, isV); ci = 0 if first else c
            out.append(f"{MF} {c}, {x}, {w}, {ci}" if isV else f"{MF} {c}, {w}, {x}, {ci}")
        return out
    def mf1(st, isV, first=False):
        return [m for i in range(8) for m in mf1row(st, i, isV, first)]
    def acc2q(i, j, isV):
        if isV: return ("v", [160, 176, 32, 48, 192, 208, 64, 80][i] + 4 * j)
        return ("a", 72 + 4 * (i * 4 + j)) if i < 5 else ("v", 32 + 4 * ((i - 5) * 4 + j))
    def acc2b(e, u, isV):
        if not isV: return 80 + 4 * (e * 6 + u)
        return {0: 224, 1: 228, 2: 232, 3: 236}[u] + 16 * e if u < 4 else 96 + 8 * e + 4 * (u - 4)
    def mf2row(b, i, isV, first=False):
        out = []
        for jj in range(4):
            j = jj if i % 2 == 0 else 3 - jj
            k, r = acc2q(i, j, isV); c = rng(k, r, 4)
            out.append(f"{MF} {c}, {a(b+32+4*j,4)}, {a(b+4*i,4)}, {0 if first else c}")
        return out
    def mf2b(b, isV, first=False):
        out = []
        for e in range(2):
            for uu in range(6):
                u = uu if e == 0 else 5 - uu
                c = v(acc2b(e, u, isV), 4); x = a(b+4*e, 4); w = a(b+48+4*u, 4)
                out.append(f"{MF} {c}, {w}, {x}, {0 if first else c}" if u < 4 else f"{MF} {c}, {x}, {w}, {0 if first else c}")
        return out
    def mf2(b, isV, first=False):
        return [m for i in range(8) for m in mf2row(b, i, isV, first)] + mf2b(b, isV, first)
    def adv_rd(nx, nw):
        t = [f"s_add_u32 s{sWrs}, s{sWrs}, 1\ns_cmp_eq_u32 s{sWrs}, 3\ns_cselect_b32 s{sWrs}, 0, s{sWrs}\ns_cselect_b32 s{sWd}, {(-2*0x8000) & 0xffffffff}, s{sC8}"]
        t += [f"v_xor_b32 v{vXr+i}, 0x8000, v{vXr+i}" for i in range(nx)]
        t += [f"v_add_u32 v{vWr+j}, s{sWd}, v{vWr+j}" for j in range(nw)]
        return t
    def rd_setup1(stage):
        t = [f"v_add_u32 v{vXr}, {(stage % 2) * 0x8000}, v{vXb}\nv_xor_b32 v{vXr+1}, 64, v{vXr}", f"v_add_u32 v{vWr}, {(stage % 3) * 0x8000}, v{vWb1}\ns_mov_b32 s{sWrs}, {stage % 3}"]
        t += [f"v_xor_b32 v{vWr+j}, {j << 5}, v{vWr}" for j in range(1, 8)]
        return t
    def rd_setup2(stage):
        t = [f"s_lshl_b32 s{sT2}, s{sTb}, 12\ns_add_u32 s{sT2}, s{sT2}, {(stage % 2) * 0x8000}\nv_add_u32 v{vXr}, s{sT2}, v{vXb}\nv_xor_b32 v{vXr+1}, 64, v{vXr}"]
        t.append(f"v_add_u32 v{vWr+4}, {WS0 + (stage % 3) * 0x8000}, v{vWb2}\ns_lshl_b32 s{sT2}, s{sWN}, 7\nv_xor_b32 v{vWr}, s{sT2}, v{vWr+4}\ns_mov_b32 s{sWrs}, {stage % 3}")
        t += [f"v_xor_b32 v{vWr+j}, {j << 5}, v{vWr}" for j in range(1, 4)]
        t += [f"v_xor_b32 v{vXr+2*sg}, {sg << 12}, v{vXr}\nv_xor_b32 v{vXr+2*sg+1}, {sg << 12}, v{vXr+1}" for sg in range(1, 4)]
        t += [f"v_xor_b32 v{vWr+4+u}, {u << 5}, v{vWr+4}" for u in range(1, 6)]
        return t
    def common_setup():
        A(f"v_and_b32 v{vT}, 15, v0\nv_lshrrev_b32 v{vT+1}, 4, v0\nv_lshrrev_b32 v{vT+2}, 1, v{vT}\nv_xor_b32 v{vT+2}, v{vT+2}, v{vT+1}")
        A(f"v_lshlrev_b32 v{vT+2}, 4, v{vT+2}\nv_lshl_add_u32 v{vXb}, v{vT}, 7, v{vT+2}\ns_lshl_b32 s{sT2}, s{sWM}, 14\nv_add_u32 v{vXb}, s{sT2}, v{vXb}")
        A(f"v_lshrrev_b32 v{vT+2}, 2, v{vT}\nv_and_b32 v{vT+3}, 1, v{vT+1}\nv_lshl_or_b32 v{vT+3}, v{vT+3}, 2, v{vT+2}\nv_lshl_add_u32 v{vT+2}, v{vT+1}, 3, v{vT+2}")
        A(f"v_and_b32 v{vT}, 3, v0\nv_lshlrev_b32 v{vT}, 3, v{vT}\nv_lshl_add_u32 v{vT}, v{vT+3}, 5, v{vT}")
        A(f"v_lshl_add_u32 v{vWb1}, v{vT+2}, 9, v{vT}\ns_lshl_b32 s{sT2}, s{sWN}, 8\ns_add_u32 s{sT2}, s{sT2}, {WS0}\nv_add_u32 v{vWb1}, s{sT2}, v{vWb1}")
        A(f"v_lshl_add_u32 v{vWb2}, v{vT+2}, 8, v{vT}")
        A(f"s_lshl_b32 s{sBb}, s{sH}, 7\ns_lshl_b32 s{sT3}, s{sT}, 4\ns_add_u32 s{sBb}, s{sBb}, s{sT3}\ns_lshl_b32 s{sT3}, s{sWM}, 3\ns_add_u32 s{sBb}, s{sBb}, s{sT3}")
        A(f"s_lshl_b32 s{sOb}, s{sBb}, 13")
        A(f"s_lshl_b32 s{sT3}, s{sTb}, 11\ns_add_u32 s{sQb}, s{sOb}, s{sT3}\ns_add_u32 s{sQb}, s{sQb}, {WS_Q}\ns_lshl_b32 s{sT3}, s{sTb}, 14\ns_add_u32 s{sQb}, s{sQb}, s{sT3}")
        A(f"s_lshl_b32 s{sT3}, s{sTb}, 1\ns_add_u32 s{sBb}, s{sBb}, s{sT3}\ns_lshl_b32 s{sBb}, s{sBb}, 10")
        A(f"v_cmp_gt_u32 vcc, 48, v0")

    XE = opti("xe", 63)
    scale_setup = f"v_mov_b32 v{vT}, 0x{f32bits(LOG2E/16.0):08x}\nv_mov_b32 v{vT+1}, v{vT}\nv_mov_b32 v{vT+2}, 0x{f32bits(LOG2E/math.sqrt(28.0)):08x}\nv_mov_b32 v{vT+3}, v{vT+2}"
    def qaddr(i): return f"s_xor_b32 s{sAo}, s{sQb}, {(i >> 1) << 14}\ns_add_u32 s{sAo}, s{sAo}, {(i & 1)*8192}"
    aG = 160; aWo = 232
    for t in dmaX(1) + dmaW(1): A(t)
    A(f"s_lshr_b32 s{sKs}, s2, 3\ns_lshl_b32 s{sKs}, s{sKs}, 2\ns_add_u32 s{sKs}, s{sKs}, s{sW}\ns_mov_b32 s{sT2}, s{sKs}")
    NCP = code_prefetch(A, name, "CODE_END", 16, sT2, 24, 25, 7)
    for t in dmaX(1) + dmaW(1): A(t)
    A(f"s_lshl_b32 s{sId}, s2, 2\ns_add_u32 s{sId}, s{sId}, s{sW}\nv_and_b32 v{vT+1}, 31, v0\nv_mul_u32_u24 v{vT+1}, 28, v{vT+1}")
    A(f"buffer_load_dwordx4 {a(aG+8,4)}, v{vT+1}, s[{sG}:{sG+3}], 0 offen\nbuffer_load_dwordx3 {a(aG+12,3)}, v{vT+1}, s[{sG}:{sG+3}], 0 offen offset:16")
    sWa, sWb_ = 18, 19
    A(f"s_mul_hi_u32 s7, s{sId}, {(2**32 + 6)//7}\ns_mul_i32 s{sNb}, s7, 7\ns_sub_u32 s{sNb}, s{sId}, s{sNb}")
    A(f"s_sub_u32 s{sT3}, s7, 128\ns_mul_i32 s{sT3}, s{sT3}, {28*896}\ns_mul_i32 s{sWa}, s7, {32*896}\ns_cmp_ge_u32 s7, 128\ns_cselect_b32 s{sWa}, s{sT3}, s{sWa}")
    A(f"s_cselect_b64 s[{sG}:{sG+1}], s[20:21], s[14:15]\ns_cselect_b32 s{sG+2}, {448*896}, s{sCwo}")
    A(f"s_lshl_b32 s{sT3}, s{sNb}, 7\ns_add_u32 s{sWa}, s{sWa}, s{sT3}\ns_add_u32 s{sWb_}, s{sWa}, {16*896}")
    A(f"s_mul_i32 s{sNb}, s{sNb}, {4*144}\ns_add_u32 s{sNb}, s{sNb}, s7\ns_lshl_b32 s{sNb}, s{sNb}, 10\ns_add_u32 s{sNb}, s{sNb}, {WS_WO}\ns_cmp_ge_u32 s{sId}, 1008\ns_cselect_b32 s{sNb}, {WS_SIZE}, s{sNb}")
    gx = [f"v_and_b32 v{vT+1}, 31, v0\nv_mul_u32_u24 v{vT+1}, 28, v{vT+1}\nv_lshrrev_b32 v{vT+2}, 5, v0\nv_mul_u32_u24 v{vT+2}, 896, v{vT+2}\nv_add_u32 v{vT+2}, v{vT+2}, v{vT+1}\ns_mul_i32 s{sT3}, s{sId}, {2*896}",
          f"buffer_load_dwordx4 {a(aG,4)}, v{vT+2}, s[{sXx}:{sXx+3}], s{sT3} offen", f"buffer_load_dwordx3 {a(aG+4,3)}, v{vT+2}, s[{sXx}:{sXx+3}], s{sT3} offen offset:16"]
    wl = [f"v_lshrrev_b32 v{vT}, 4, v0\nv_mul_u32_u24 v{vT}, {4*896}, v{vT}\nv_and_b32 v{vT+1}, 15, v0\nv_lshl_add_u32 v{vT}, v{vT+1}, 3, v{vT}"]
    wl += [f"buffer_load_dwordx2 {a(aWo+2*j,2)}, v{vT}, s[{sG}:{sG+3}], s{sWa if j < 4 else sWb_} offen offset:{(j&3)*896}" for j in range(8)]
    g = vT
    gf = [f"v_mov_b32 v{g}, 0"]
    for q in range(7): gf += [f"v_accvgpr_read_b32 v{g+1}, a{aG+q}", f"v_accvgpr_read_b32 v{g+2}, a{aG+8+q}", f"v_dot2_f32_bf16 v{g}, v{g+1}, v{g+2}, v{g}"]
    gf += [f"v_lshrrev_b32 v{g+2}, 5, v0\nv_lshlrev_b32 v{g+2}, 2, v{g+2}\ns_lshl_b32 s{sT3}, s{sId}, 3\ns_add_u32 s{sT3}, s{sT3}, {WS_G}",
        f"v_add_f32 v{g}, v{g}, v{g} quad_perm:[1,0,3,2] row_mask:0xf bank_mask:0xf\ns_nop 1",
        f"v_add_f32 v{g}, v{g}, v{g} quad_perm:[2,3,0,1] row_mask:0xf bank_mask:0xf\ns_nop 1",
        f"v_add_f32 v{g}, v{g}, v{g} row_half_mirror row_mask:0xf bank_mask:0xf\ns_nop 1",
        f"v_add_f32 v{g}, v{g}, v{g} row_mirror row_mask:0xf bank_mask:0xf\ns_nop 1",
        f"v_mov_b32 v{g+1}, v{g}\ns_nop 1", f"v_permlane16_swap_b32 v{g}, v{g+1}\ns_nop 1", f"v_add_f32 v{g}, v{g}, v{g+1}",
        f"v_mul_f32 v{g}, 0x{f32bits(-LOG2E):08x}, v{g}", f"v_exp_f32 v{g}, v{g}\ns_nop 0", f"v_add_f32 v{g}, 1.0, v{g}", f"v_rcp_f32 v{g}, v{g}\ns_nop 1"]
    gst = f"buffer_store_dword v{g}, v{g+2}, {so}, s{sT3} offen {flags('st2')}\nv_mov_b32 v{g+3}, 0\ns_lshl_b32 s{sT3}, s2, 7\ns_add_u32 s{sT3}, s{sT3}, {WS_FLAG}\nbuffer_store_dword v{g+3}, v{g+3}, {so}, s{sT3} offen {flags('st2')}"
    wo = [f"s_mov_b32 s{sT2}, 0x05040100\ns_mov_b32 s{sT3}, 0x07060302"]
    wo += [f"v_accvgpr_read_b32 v{144+q}, a{aWo+q}" for q in range(16)]
    for c in range(4):
        for m in range(4):
            wo.append(f"v_perm_b32 v{128+4*c+m}, v{144+2*(2*m+1)+(c>>1)}, v{144+2*(2*m)+(c>>1)}, s{sT2 if c % 2 == 0 else sT3}")
    wost = [f"buffer_store_dwordx4 {v(128+4*c,4)}, v{vLane16}, {so}, s{sNb} offen {flags('st2')} ; vm:st\ns_add_u32 s{sNb}, s{sNb}, {144*1024}" for c in range(4)]
    common_setup()
    for t in rd_setup1(0): A(t)
    vPx, vPq, vPb, vPo = 10, 11, 12, 13
    sPx, sPq, sPb, sPo = 4, 5, 6, 7
    sFx, sFq, sFb, sFo = 8, 12, 20, 52 if not stamps else 52
    PF = opti("pf", 6)
    PFM = opti("pfm", 6)
    streams = []
    if PF:
        A(f"s_lshl_b32 s{sT2}, s{sKs}, 2\nv_and_b32 v{vT}, 3, v0\nv_mul_u32_u24 v{vPo}, 896, v{vT}\nv_add_u32 v{vT}, s{sT2}, v{vT}\nv_min_u32 v{vT}, 447, v{vT}\nv_lshrrev_b32 v{vT+1}, 3, v{vT}\nv_and_b32 v{vT}, 7, v{vT}\nv_lshlrev_b32 v{vT}, 7, v{vT}\nv_lshl_add_u32 v{vPq}, v{vT+1}, 13, v{vT}")
        A(f"s_and_b32 s{sT3}, s2, 7\ns_lshl_b32 s{sPq}, s{sT3}, 10\ns_mul_i32 s{sPb}, s{sT3}, 112\ns_mov_b32 s{sPo}, s{sWa}\ns_mul_i32 s{sPx}, s{sId}, {2*896}\nv_and_b32 v{vPx}, 1, v0\nv_lshlrev_b32 v{vPx}, 7, v{vPx}")
        A(f"v_mul_u32_u24 v{vPb}, 2688, v{vT+1}\nv_lshrrev_b32 v{vT+1}, 8, v{vT}\nv_min_u32 v{vT+1}, 2, v{vT+1}\nv_mul_u32_u24 v{vT+1}, 896, v{vT+1}\nv_add_u32 v{vPb}, v{vPb}, v{vT+1}\nv_bfe_u32 v{vT+1}, v{vT}, 7, 1\nv_mul_u32_u24 v{vT+1}, 116, v{vT+1}\nv_add_u32 v{vPb}, v{vPb}, v{vT+1}")
        allst = [(sFx, sXx, vPx, sPx, 256), (sFq, sWq, vPq, sPq, 56*8192), (sFb, sWb, vPb, sPb, 56*2688), (sFx if not PFM & 1 else 96, sG, vPo, sPo, 4*896)]
        streams = [x for k, x in enumerate(allst) if PFM >> k & 1]
        for f, src, vo, run, step in streams:
            A(f"s_mov_b64 s[{f}:{f+1}], s[{src}:{src+1}]\ns_mov_b32 s{f+2}, 0\ns_mov_b32 s{f+3}, 0x00020000\ns_sub_u32 s{run}, s{run}, {PF*step}")
    NPF = len(streams)
    def pf():
        if not streams: return []
        out = [f"s_cmp_eq_u32 s{sCnt}, {PF}\n" + "\n".join(f"s_cselect_b32 s{f+2}, s{src+2}, s{f+2}" for f, src, vo, run, step in streams)]
        for f, src, vo, run, step in streams:
            out.append(f"buffer_load_dword v14, v{vo}, s[{f}:{f+3}], s{run} offen\ns_add_u32 s{run}, s{run}, {step}")
        return out
    sI0, sI1 = sEx, sMk
    A(f"s_cmp_eq_u32 s{sP}, 0\ns_cselect_b32 s{sT2}, 12, 13\ns_lshl_b32 s{sT3}, s{sWN}, s{sT2}\ns_add_u32 s{sOb}, s{sOb}, s{sT3}\ns_lshl_b32 s{sT3}, s{sP}, 24\ns_add_u32 s{sOb}, s{sOb}, s{sT3}")
    assert WS_K == 0 and WS_V == 1 << 24
    A(f"s_lshl_b32 s{sT3}, s{sP}, 12\ns_sub_u32 s{sI0}, 8192, s{sT3}\ns_add_u32 s{sI1}, 8192, s{sT3}\ns_mov_b32 s{sCnt}, 0")
    for i in range(32, 256, 2): A(f"v_mov_b64 {v(i,2)}, 0")
    for i in range(128, 160): A(f"v_accvgpr_write_b32 a{i}, 0")
    A(f"s_waitcnt vmcnt({18+NCP})\ns_barrier")
    stamp(1)
    for t in reads1(0, 0): A(t)
    for t in pf(): A(t)
    LVe = A.label("K1_Ve"); LKe = A.label("K1_Ke"); Lph2 = A.label("K1_ph2")
    A(f"s_cmp_eq_u32 s{sP}, 1\ns_cbranch_scc1 {LVe}\ns_branch {LKe}")
    S2 = [160, 0]
    def st1(n):
        t = f"buffer_store_dwordx4 {v(128+4*n,4)}, v{vLane16}, {so}, s{sOb} offen offset:{(n&3)*1024} {flags('st1')} ; vm:st"
        if n & 3 == 3: t += f"\ns_add_u32 s{sOb}, s{sOb}, s{sI0 if (n >> 2) % 2 == 0 else sI1}"
        return t
    NE = opti("ne", 8)
    for isV in (0, 1):
        Lloop = A.label("K1_loop")
        A(f".p2align 6\n{Lloop}:")
        RE = opti("re", 47)
        def partA(extra): interleave(A, mf1(1, isV), sched(64, [(reads1(0, 0), 0, RE)] + extra))
        def partB(dw):
            A("s_waitcnt lgkmcnt(0)")
            interleave(A, mf1(0, isV), sched(64, [(reads1(1, 1) + adv_rd(2, 8), 0, 63), (dw, 0, 60)]))
        if opti("itst"): A("s_memtime s[0:1]")
        partA([(dmaX(1) + pf(), 0, XE)])
        if opti("itst"): A(f"s_waitcnt lgkmcnt(0)\ns_mov_b32 m0, s{sCnt}\ns_nop 1\nv_writelane_b32 v25, s0, m0")
        A(f"{LVe if isV else LKe}:")
        partB(dmaW(1))
        A(f"s_add_u32 s{sCnt}, s{sCnt}, 1\ns_cmp_lt_u32 s{sCnt}, 14")
        A(f"s_waitcnt vmcnt({8+NPF}) lgkmcnt(0)\ns_barrier\ns_cbranch_scc1 {Lloop}")
        stamp(2)
        if opti("itst"): A(f"v_lshlrev_b32 v24, 2, v0\ns_lshl_b32 s{sT3}, s2, 8\ns_add_u32 s{sT3}, s{sT3}, {201*MB}\nbuffer_store_dword v25, v24, {so}, s{sT3} offen\ns_waitcnt vmcnt(0)")
        partA([(gx + dmaX(1) + wl, 0, 63)])
        partB(dmaW(2))
        A(f"s_waitcnt vmcnt(16) lgkmcnt(0)\ns_barrier")
        partA([(dmaX(2), 0, 50), (gf + [gst], 8, 63)])
        partB(dmaW(2))
        A(f"s_waitcnt vmcnt(10) lgkmcnt(0)\ns_barrier")
        stamp(3)
        packs = []
        for q in range(3):
            lst = [x for n in (range(8*q+7, 8*q-1, -1) if isV else range(8*q, 8*q+8)) for x in pack1(n)]
            packs += spread(lst, 16*q + 18, min(16*q + 33, 63))
        interleave(A, mf1(1, isV), spread(rd_setup2(16), 0, 7) + spread(reads2(S2[0], 0), 8, 50) + spread(dmaX(2), 1, 30) + packs + (spread([st1(n) for n in range(NE)], 35, 63) if NE else []))
        if not isV: A(f"s_branch {Lph2}")
    A(f"{Lph2}:")
    A(f"VMSEED w17*8 x17*8 st*{NE}")
    stamp(4)
    stq = [st1(n) for n in range(NE, 32)]
    per = [int(x) for x in opt("trk", "2/5/5/4/4/4").split("/")]
    A("s_waitcnt lgkmcnt(0)")
    lastp = [x for n in range(31, 23, -1) for x in pack1(n)]
    for t in range(16, 22):
        k = t - 16
        mine = [stq.pop(0) for _ in range(per[k])] if k < len(per) else []
        if t > 16:
            interleave(A, mf2(S2[1], 0), sched(44, [(reads2(S2[0], 0), 0, 33), (dmaX(2, f"x{t+1}") + mine, 0, 43)]))
            A("s_waitcnt lgkmcnt(0)")
        st = [(reads2(S2[1], 1), 0, 32), (adv_rd(8, 10), 33, 43)]
        if t == 16:
            st += [(lastp, 0, 24), (mine + dmaW(2, f"w{t+2}"), 0, 43)]
        elif t + 2 <= 22:
            st += [(dmaW(2, f"w{t+2}"), 0, 43)]
        if t == 21: st += [(wo + wost, 0, 43)]
        interleave(A, mf2(S2[0], 0, t == 16), sched(44, st))
        A(f"WAITVM x{t+1},w{t+1} lgkmcnt(0)\ns_barrier")
    assert not stq
    stamp(5)
    interleave(A, mf2(S2[1], 0), spread(reads2(S2[0], 0), 0, 30) + [(40, scale_setup)])
    A("s_waitcnt lgkmcnt(0)")
    def rowepi(i):
        out = []
        if i < 5:
            b = 160 + 16 * i
            out += [f"v_accvgpr_read_b32 v{b+q}, a{72+16*i+q}" for q in range(16)]
        else: b = 32 + 16 * (i - 5)
        out += [f"v_pk_mul_f32 {v(b+2*q,2)}, {v(b+2*q,2)}, {v(vT,2)}" for q in range(8)]
        out.append(qaddr(i))
        for g in range(2):
            out += pk4(b + 8*g, b + 8*g + 4)
            out.append(f"buffer_store_dwordx4 {v(b+8*g,4)}, v{vLane16}, {so}, s{sAo} offen offset:{g*1024} {flags('st2')}")
        return out
    ms = mf2row(S2[0], 0, 0) + mf2row(S2[0], 1, 0) + mf2row(S2[0], 2, 0)
    fl = spread(reads2(S2[1], 1), 0, 10) + [(11, "s_waitcnt lgkmcnt(0)")]
    b0 = mf2b(S2[0], 0)
    for i in range(8):
        ms += mf2row(S2[1], i, 0)
        done = len(ms)
        ms += mf2row(S2[0], i + 3, 0) if i + 3 < 8 else b0[4*(i-5):4*(i-5)+4]
        fl += spread(rowepi(i), done + 4, done + 11)
    ms += mf2b(S2[1], 0)
    interleave(A, ms, fl)
    A("s_nop 3")
    for db in (1, 0):
        r0, r1 = acc2b(0, 4+db, 0), acc2b(1, 4+db, 0)
        A(f"s_add_u32 s{sAo}, s{sBb}, {WS_VB}")
        for t in pk4(r0, r1): A(t)
        A(f"buffer_store_dwordx4 {v(r0,4)}, v{vLane16}, {so}, s{sAo} offen offset:{db*1024} {flags('st2')}")
    for e in range(2):
        r0, r1 = acc2b(e, 2, 0), acc2b(e, 3, 0)
        A(f"s_add_u32 s{sAo}, s{sBb}, {WS_KB}")
        for t in pk4(r0, r1): A(t)
        A(f"buffer_store_dwordx4 {v(r0,4)}, v{vLane16}, {so}, s{sAo} offen offset:{e*1024} {flags('st2')}")
    for e in range(2):
        r0, r1 = acc2b(e, 0, 0), acc2b(e, 1, 0)
        A(f"s_add_u32 s{sAo}, s{sBb}, {WS_QB}")
        for q in range(4): A(f"v_pk_mul_f32 {v(r0+2*q,2)}, {v(r0+2*q,2)}, {v(vT+2,2)}")
        for t in pk4(r0, r1): A(t)
        A(f"v_cndmask_b32 v{r0+2}, 0, v{r0+2}, vcc\nv_cndmask_b32 v{r0+3}, 0, v{r0+3}, vcc")
        A(f"buffer_store_dwordx4 {v(r0,4)}, v{vLane16}, {so}, s{sAo} offen offset:{e*1024} {flags('st2')}")
    A("VMEND")
    if stamps:
        stamp(6)
        A("s_waitcnt vmcnt(0)")
        stamp(7)
        A("s_waitcnt lgkmcnt(0)")
        for q, r in enumerate(SR): A(f"v_mov_b32 v{4+q}, s{r}")
        A(f"v_mov_b32 v12, 0\ns_lshl_b32 s{sT3}, s2, 5\ns_add_u32 s{sT3}, s{sT3}, {200*MB}")
        A(f"buffer_store_dwordx4 v[4:7], v12, {so}, s{sT3} offen\nbuffer_store_dwordx4 v[8:11], v12, {so}, s{sT3} offen offset:16")
    A(f"{Lend}:\ns_endpgm")
```

```python
from asmlib import *
from k1 import *

SPLIT = 18
R = opti("R", 12)
WG = opti("wg", 4)
NK0 = opti("nk0", 10)
MPOS = 24
PART_STRIDE = 17 * 1024

def gen_k2(A, name="k2_kernel", stamps=False):
    sK, sV, sWS, sD = 8, 12, 16, 20
    sW, sH, sI, sTy = 24, 25, 26, 27
    sKo, sVo, sWrap, sKrem, sVrem = 28, 29, 30, 31, 32
    sKl, sVl = 33, 34
    sVs, sVrs, sVd = 35, 36, 37
    sQ, sJ, sL, sMode = 38, 39, 40, 41
    sDiag = 42
    sT0, sT1, sT2, sT3 = 43, 44, 45, 46
    sC8 = 47
    sPub = 48
    sPair = 49
    sM = 52
    SR = [76, 78, 80, 82, 84, 86, 88, 90]
    vL16, vDm, vKr, vVr, vBase, vD, vNeg = 1, 2, 3, 4, 5, 6, 7
    vT = 8
    vG = 32
    vTs = 34
    vLs = 38
    vNm = 40
    vP = 48; vS = 64; vp = 96; vO = 128
    aQ = 0; aF = 64
    VS0 = 65536
    def stamp(i):
        if stamps: A(f"{'s_memtime' if opti('cyc') else 's_memrealtime'} s[{SR[i]}:{SR[i]+1}]")
    def Ob(db, qb): return vO + 4 * (2 * db + qb)
    def Sb(kb, qb): return vS + 4 * (2 * kb + qb)
    def pb(kb, qb): return vp + 4 * (2 * kb + qb)
    def Pf(ks, qb): return vP + 4 * (2 * ks + qb)
    def fr(f): return a(aF + 4 * (f % 16), 4)
    def rdK(f): return f"ds_read_b128 {fr(f)}, v{vKr} offset:{f*1024}"
    def rdV(f): return f"ds_read_b128 {fr(f)}, v{vVr} offset:{f*1024}"

    vDm2 = 27
    sVn, sVe, sVb = sVs, sVrs, sVd
    def dma(kind, so=sKo):
        srd, lb = (sK, sKl) if kind == "K" else (sV, sVl)
        out = []
        for p in range(8):
            if p == 0: out.append(f"s_mov_b32 m0, s{lb}\ns_nop 0" if kind == "K" else f"s_mov_b32 m0, s{lb}\ns_nop 0")
            if p == 4: out.append(f"s_add_u32 m0, s{lb}, 4096\ns_nop 0")
            out.append(f"buffer_load_dwordx4 v{vDm if p < 4 else vDm2}, s[{srd}:{srd+3}], s{so} offen offset:{(p&3)*1024} lds")
        out.append(f"s_xor_b32 s{lb}, s{lb}, s{sC8}" if kind == "K" else f"s_mov_b32 s{sVl}, s{sVn}")
        return out
    def nonop(l): return [x.replace("\ns_nop 0", "") for x in l]
    advO = f"s_add_u32 s{sKo}, s{sKo}, s{sC8}\ns_cmp_eq_u32 s{sKo}, s{sWrap}\ns_cselect_b32 s{sKo}, 0, s{sKo}"
    nextV = f"s_add_u32 s{sVn}, s{sVl}, s{sC8}\ns_cmp_eq_u32 s{sVn}, s{sVe}\ns_cselect_b32 s{sVn}, s{sVb}, s{sVn}"
    setVr = f"v_add_u32 v{vVr}, s{sVn}, v26"
    advK = f"v_xor_b32 v{vKr}, 0x8000, v{vKr}"

    ABL = [0]
    def phase(mf, events, pre):
        order = list(range(pre))
        done = -1
        def emit(lst):
            nonlocal done
            for kind, text in lst:
                ab = opt("abl", "") if ABL[0] else ""
                skip = ("e" in ab and text.startswith("v_exp")) or ("a" in ab and text.startswith("v_add_f32")) or ("c" in ab and text.startswith("v_cvt")) or ("d" in ab and text.startswith("buffer_load")) or ("r" in ab and text.startswith("ds_read")) or ("b" in ab and "s_barrier" in text)
                if not skip: A(text)
                if kind.startswith("rd:"): order.append(int(kind[3:]))
                elif kind == "rdx": order.append(-1)
                elif kind == "sync": done = len(order) - 1
        def need_wait(f):
            nonlocal done
            if f < 32 and order.index(f) > done:
                need = order.index(f)
                for g in range(f + 1, min(32, (f // WG + 1) * WG)):
                    if g in order: need = max(need, order.index(g))
                cnt = len(order) - 1 - need
                assert cnt <= 15
                A(f"s_waitcnt lgkmcnt({cnt})"); done = need
        emit(events.get(-1, []))
        need_wait(0)
        for f in range(32):
            m = mf(f)
            A(m[0]); emit(events.get(2 * f, []))
            A(m[1])
            lst = events.get(2 * f + 1, [])
            if not any(k == "sync" for k, t in lst): need_wait(f + 1)
            emit(lst)
    def add_ev(ev, items):
        for p, k, t in items: ev.setdefault(p, []).append((k, t))
    def mfQK(f):
        kb, ds = f >> 3, f & 7
        return [f"{MF} {v(Sb(kb,qb),4)}, {fr(f)}, {a(aQ+4*(8*qb+ds),4)}, {v(vNm+4*qb,4) if ds == 0 else v(Sb(kb,qb),4)}" for qb in range(2)]
    def mfPV(f):
        ks, db = f >> 4, f & 15
        return [f"{MF} {v(Ob(db,qb),4)}, {fr(f)}, {v(Pf(ks,qb),4)}, {v(Ob(db,qb),4)}" for qb in range(2)]
    def cvts():
        out = []
        for ks in range(2):
            for qb in range(2):
                for hh in range(2):
                    src = pb(2*ks+hh, qb)
                    out.append(f"v_cvt_pk_bf16_f32 v{Pf(ks,qb)+2*hh}, v{src}, v{src+1}")
                    out.append(f"v_cvt_pk_bf16_f32 v{Pf(ks,qb)+2*hh+1}, v{src+2}, v{src+3}")
        return out
    def xl_reduce(op, r, t):
        return (f"v_mov_b32 v{t}, v{r}\ns_nop 1\nv_permlane16_swap_b32 v{r}, v{t}\ns_nop 1\n{op} v{r}, v{r}, v{t}\n"
                f"v_mov_b32 v{t}, v{r}\ns_nop 1\nv_permlane32_swap_b32 v{r}, v{t}\ns_nop 1\n{op} v{r}, v{r}, v{t}")
    def mask_block():
        A(f"s_sub_u32 s{sT0}, s{sJ}, s{sDiag}\ns_lshl_b32 s{sT0}, s{sT0}, 6\nv_subrev_u32 v{vD}, s{sT0}, v{vBase}")
        for c in range(-1, 4):
            for i in range(4):
                A(f"v_cmp_gt_i32 s[{sM+2*i}:{sM+2*i+1}], {16*c+i}, v{vD}")
            A("s_nop 0")
            for i in range(4):
                for qb in range(2):
                    kb = c + qb
                    if 0 <= kb < 4:
                        r = Sb(kb, qb) + i
                        A(f"v_cndmask_b32 v{r}, v{r}, v{vNeg}, s[{sM+2*i}:{sM+2*i+1}]")
    def slow(first):
        for qb in range(2):
            m = vT + qb
            regs = [Sb(kb, qb) + i for kb in range(4) for i in range(4)]
            A(f"v_max3_f32 v{m}, v{regs[0]}, v{regs[1]}, v{regs[2]}")
            for x in range(3, 15, 2): A(f"v_max3_f32 v{m}, v{m}, v{regs[x]}, v{regs[x+1]}")
            A(f"v_max_f32 v{m}, v{m}, v{regs[15]}")
            A(xl_reduce("v_max_f32", m, vT + 2))
            if not first: A(f"v_max_f32 v{m}, 0, v{m}")
            for i in range(4): A(f"v_sub_f32 v{vNm+4*qb+i}, v{vNm+4*qb+i}, v{m}")
            if not first:
                A(f"v_sub_f32 v{vT+4+qb}, 0, v{m}\nv_exp_f32 v{vT+4+qb}, v{vT+4+qb}\ns_nop 0\nv_mul_f32 v{vLs+qb}, v{vLs+qb}, v{vT+4+qb}")
                for db in range(16):
                    for i in range(4): A(f"v_mul_f32 v{Ob(db,qb)+i}, v{Ob(db,qb)+i}, v{vT+4+qb}")
            for kb in range(4):
                for i in range(4): A(f"v_sub_f32 v{pb(kb,qb)+i}, v{Sb(kb,qb)+i}, v{m}")
            for kb in range(4):
                for i in range(4): A(f"v_exp_f32 v{pb(kb,qb)+i}, v{pb(kb,qb)+i}")
            A("s_nop 0")
            t = vTs + 2 * qb
            A(f"v_add_f32 v{t}, v{pb(0,qb)}, v{pb(0,qb)+1}")
            for x in range(2, 16): A(f"v_add_f32 v{t}, v{t}, v{pb(x>>2,qb)+(x&3)}")

    A(f".globl {name}\n.p2align 8\n.type {name},@function\n{name}:")
    Lend = A.label("K2_end")
    A(f"s_cmp_ge_u32 s2, 256\ns_cbranch_scc1 {Lend}")
    stamp(0)
    A("s_load_dwordx4 s[4:7], s[0:1], 88")
    A(f"v_lshrrev_b32 v{vT}, 6, v0\nv_and_b32 v0, 63, v0\nv_readfirstlane_b32 s{sW}, v{vT}\nv_lshlrev_b32 v{vL16}, 4, v0")
    A(f"s_lshr_b32 s{sTy}, s2, 7\ns_and_b32 s{sT0}, s2, 7\ns_bfe_u32 s{sT1}, s2, {(1 << 16) | 3}\ns_bfe_u32 s{sI}, s2, {(3 << 16) | 4}")
    A(f"s_lshl_b32 s{sH}, s{sT0}, 1\ns_add_u32 s{sH}, s{sH}, s{sT1}\ns_and_b32 s{sPair}, s2, 127\ns_mov_b32 s{sC8}, 0x8000\ns_mov_b32 s{sPub}, 0")
    A(f"s_lshl_b32 s{sKl}, s{sW}, 13\nv_add_u32 v{vDm}, s{sKl}, v{vL16}\ns_add_u32 s{sVl}, s{sKl}, {VS0}\ns_mov_b32 s{sVb}, s{sVl}\ns_add_u32 s{sVe}, s{sVl}, {3*0x8000}\nv_add_u32 v{vDm2}, 4096, v{vDm}\nv_subrev_u32 v26, s{sKl}, v{vL16}")
    A(f"v_mov_b32 v{vKr}, v{vL16}\nv_add_u32 v{vVr}, {VS0}, v{vL16}\nv_mov_b32 v{vNeg}, 0x{f32bits(-1e30):08x}")
    A(f"v_and_b32 v{vT}, 15, v0\nv_lshrrev_b32 v{vT+1}, 4, v0\nv_lshlrev_b32 v{vT+1}, 2, v{vT+1}\nv_sub_u32 v{vT+1}, v{vT}, v{vT+1}\ns_lshl_b32 s{sT0}, s{sW}, 5\nv_add_u32 v{vBase}, s{sT0}, v{vT+1}")
    A(f"v_lshlrev_b32 v{vT+2}, 2, v{vT}")
    A(f"v_mov_b32 v31, v{vT+2}")
    LB = A.label("K2_B"); LB2 = A.label("K2_Bs2"); Lgo = A.label("K2_go")
    A(f"s_lshl_b32 s{sT0}, s{sI}, 1\ns_sub_u32 s{sT1}, 32, s{sT0}")
    A(f"s_cmp_eq_u32 s{sTy}, 0\ns_cbranch_scc1 {LB}")
    A(f"s_sub_u32 s{sQ}, 15, s{sI}\ns_mov_b32 s{sJ}, 0\ns_mov_b32 s{sL}, {SPLIT-1}\ns_mov_b32 s{sWrap}, -1\ns_mov_b32 s{sKrem}, {SPLIT*0x8000}")
    A(f"s_cmp_eq_u32 s{sT1}, {SPLIT}\ns_cselect_b32 s{sMode}, 0, 2\ns_branch {Lgo}")
    A(f"{LB}:\ns_mov_b32 s{sKrem}, {MB}\ns_lshl_b32 s{sWrap}, s{sT1}, 15\ns_cmp_eq_u32 s{sT1}, {SPLIT}\ns_cbranch_scc1 {LB2}")
    A(f"s_sub_u32 s{sQ}, 15, s{sI}\ns_mov_b32 s{sJ}, {SPLIT}\ns_sub_u32 s{sL}, s{sT1}, 1\ns_mov_b32 s{sMode}, 1\ns_branch {Lgo}")
    A(f"{LB2}:\ns_mov_b32 s{sQ}, s{sI}\ns_mov_b32 s{sJ}, 0\ns_add_u32 s{sL}, s{sT0}, 1\ns_mov_b32 s{sMode}, 0\ns_add_u32 s{sKrem}, s{sT0}, 2\ns_lshl_b32 s{sKrem}, s{sKrem}, 15\ns_mov_b32 s{sWrap}, -1")
    A(f"{Lgo}:\ns_lshl_b32 s{sVo}, s{sJ}, 15\ns_add_u32 s{sKo}, s{sVo}, s{sC8}\ns_lshl_b32 s{sDiag}, s{sQ}, 1")
    A("s_waitcnt lgkmcnt(0)")
    A(f"s_lshl_b32 s{sT0}, s{sH}, 20\ns_add_u32 s{sK}, s6, s{sT0}\ns_addc_u32 s{sK+1}, s7, 0\ns_mov_b32 s{sK+2}, s{sKrem}\ns_mov_b32 s{sK+3}, 0x00020000")
    A(f"s_add_u32 s{sV}, s{sK}, {WS_V}\ns_addc_u32 s{sV+1}, s{sK+1}, 0\ns_mov_b32 s{sV+2}, s{sKrem}\ns_mov_b32 s{sV+3}, 0x00020000")
    A(f"s_mov_b32 s{sWS}, s6\ns_mov_b32 s{sWS+1}, s7\ns_mov_b32 s{sWS+2}, {WS_SIZE}\ns_mov_b32 s{sWS+3}, 0x00020000")
    ws = f"s[{sWS}:{sWS+3}]"
    vFlag, vZ = 30, 29
    A(f"v_mov_b32 v{vZ}, 0\nv_mov_b32 v{vFlag}, 0\nv_mov_b32 v28, v{vT+1}")
    sFo, sFb = 92, 93
    A(f"s_lshl_b32 s{sFo}, s{sPair}, 7\ns_add_u32 s{sFo}, s{sFo}, {WS_FLAG}")
    A(f"s_mov_b32 s{sD}, s6\ns_mov_b32 s{sD+1}, s7\ns_cmp_eq_u32 s{sMode}, 2\ns_cselect_b32 s{sD+2}, {WS_SIZE}, 0\ns_mov_b32 s{sD+3}, 0x00020000")
    sPo = 94
    A(f"s_mul_i32 s{sPo}, s{sPair}, {4*PART_STRIDE}\ns_mul_i32 s{sT2}, s{sW}, {PART_STRIDE}\ns_add_u32 s{sPo}, s{sPo}, s{sT2}\ns_add_u32 s{sPo}, s{sPo}, {WS_PART}")
    def loadQ():
        out = [f"s_lshl_b32 s{sT2}, s{sH}, 7\ns_lshl_b32 s{sT3}, s{sQ}, 3\ns_add_u32 s{sT2}, s{sT2}, s{sT3}\ns_lshl_b32 s{sT3}, s{sW}, 1\ns_add_u32 s{sT2}, s{sT2}, s{sT3}\ns_lshl_b32 s{sT2}, s{sT2}, 13\ns_add_u32 s{sT2}, s{sT2}, {WS_Q}"]
        for f in range(16):
            t = f"buffer_load_dwordx4 {a(aQ+4*f,4)}, v{vL16}, {ws}, s{sT2} offen offset:{(f&3)*1024}"
            if f & 3 == 3: t += f"\ns_add_u32 s{sT2}, s{sT2}, 4096"
            out.append(t)
        return out
    for t in dma("K", sVo) + loadQ(): A(t)
    A(f"s_lshr_b32 s{sT2}, s2, 3\ns_lshl_b32 s{sT2}, s{sT2}, 2\ns_add_u32 s{sT2}, s{sT2}, s{sW}")
    NCP = code_prefetch(A, name, "CODE_END", 96, sT2, vT, vT+1, 3)
    for t in dma("K") + [nextV] + dma("V", sVo) + [nextV] + dma("V") + [advO]: A(t)
    for i in range(vO, vO + 128): A(f"v_mov_b32 v{i}, 0")
    for i in range(vLs, vNm + 8): A(f"v_mov_b32 v{i}, 0")
    Lloop = A.label("K2_loop"); Lqk = A.label("K2_qk"); Ltail = A.label("K2_tail"); Lfirst = A.label("K2_first")
    Lslow = A.label("K2_slow"); Lback = A.label("K2_back"); Lnm0 = A.label("K2_nm0"); Lnm1 = A.label("K2_nm1"); Lnp = A.label("K2_np"); Lpub = A.label("K2_pub")
    def qk_first(fill):
        ev = {}
        add_ev(ev, [(-1, f"rd:{f}", rdK(f)) for f in range(R)])
        add_ev(ev, [(2*(f-R)+1, f"rd:{f}", rdK(f)) for f in range(R, 32)])
        add_ev(ev, [(2*(31-R)+2, "", advK)])
        add_ev(ev, [(p, "", t) for p, t in fill])
        phase(mfQK, ev, 0)
    A(f"s_waitcnt vmcnt({24+NCP})\ns_barrier")
    stamp(1)
    qk_first([])
    A("s_waitcnt vmcnt(8) lgkmcnt(0)\ns_barrier")
    bq, bk, bv, bm = 128, 144, 164, 180
    bg = 22
    A(f"s_cmp_lg_u32 s{sTy}, 0\ns_cbranch_scc1 {Lfirst}")
    A(f"s_lshl_b32 s50, s{sI}, 2\ns_add_u32 s50, s50, s{sW}\ns_lshl_b32 s50, s50, 1")
    A(f"s_lshl_b32 s{sT3}, s{sH}, 17\ns_lshl_b32 s{sT0}, s50, 11\ns_add_u32 s{sT3}, s{sT3}, s{sT0}")
    A(f"s_add_u32 s{sT0}, s{sT3}, {WS_QB}\ns_add_u32 s{sT1}, s{sT3}, {WS_KB - 1024}\ns_add_u32 s{sT2}, s{sT3}, {WS_KB + 3072}")
    for e in range(4): A(f"buffer_load_dwordx4 {a(bq+4*e,4)}, v{vL16}, {ws}, s{sT0} offen offset:{e*1024}")
    for e in range(4): A(f"buffer_load_dwordx4 {a(bk+4*e,4)}, v{vL16}, {ws}, s{sT1} offen offset:{e*1024}")
    A(f"buffer_load_dwordx4 {a(bk+16,4)}, v{vL16}, {ws}, s{sT2} offen")
    A(f"s_add_u32 s{sT0}, s{sT3}, {WS_VB - 2048}\ns_add_u32 s{sT2}, s{sT3}, {WS_VB}\ns_lshl_b32 s{sT1}, s50, 7\ns_add_u32 s{sT1}, s{sT1}, {WS_G}")
    for tk in range(2):
        for db in range(2):
            o = tk*2048 + db*1024
            A(f"buffer_load_dwordx4 {a(bv+8*tk+4*db,4)}, v{vL16}, {ws}, s{sT2} offen offset:{o}")
            A(f"buffer_load_dwordx2 {a(bm+8*tk+4*db,2)}, v{vL16}, {ws}, s{sT2} offen offset:{o}")
            A(f"buffer_load_dwordx2 {a(bm+8*tk+4*db+2,2)}, v{vL16}, {ws}, s{sT0} offen offset:{o+8}")
    for e in range(4): A(f"buffer_load_dword v{bg+e}, v31, {ws}, s{sT1} offen offset:{e*64}")
    A(f"{Lfirst}:")
    for f in range(NK0): A(rdK(f))
    A(f"s_cmp_lt_u32 s{sJ}, s{sDiag}\ns_cbranch_scc1 {Lnm0}")
    mask_block()
    A(f"{Lnm0}:")
    slow(True)
    A(f"v_mov_b32 v{vLs}, 0\nv_mov_b32 v{vLs+1}, 0\ns_cmp_eq_u32 s{sPub}, 0\ns_cbranch_scc1 {Lqk}")
    A(f"v_mov_b32 v{vT+1}, 1\ns_mov_b32 s{sPub}, 0\ns_waitcnt vmcnt(0)\ns_mov_b64 exec, 1\nbuffer_atomic_add v{vT+1}, v{vZ}, {ws}, s{sFo} offen sc1\ns_mov_b64 exec, -1\ns_branch {Lqk}")
    A(f"{Lslow}:")
    slow(False)
    A(f"s_branch {Lback}")
    A(f".p2align 6\n{Lloop}:")
    A(f"s_add_u32 s{sJ}, s{sJ}, 1\ns_cmp_lt_u32 s{sJ}, s{sDiag}\ns_cbranch_scc1 {Lnm1}")
    mask_block()
    A(f"{Lnm1}:")
    def wait_load(upto=32):
        return [(2*f-1, "ph", "s_waitcnt") for f in range(WG, upto, WG)]
    drop = lambda pl: [x for x in pl if x[1] != "ph"]
    own = lambda rd, f0: [(rd(f), max(0, 2*(f-16)+1), max(2*(f-R)+3, f - f0 + 2), max(2*(f-R)+1, f - f0), f"rd:{f}") for f in range(f0, 32)]
    PK = opti("pk", 0)
    els = [(kb, qb, i) for kb in range(4) for qb in range(2) for i in range(4)]
    sm = []; seen = set(); pend = []
    for x, (kb, qb, i) in enumerate(els):
        sm.append(f"v_exp_f32 v{pb(kb,qb)+i}, v{Sb(kb,qb)+i}")
        sm += pend; pend = []
        if PK:
            if i & 1:
                t = vTs + 2*qb; r = pb(kb, qb) + i - 1
                if t in seen: pend = [f"v_pk_add_f32 {v(t,2)}, {v(t,2)}, {v(r,2)}"]
                elif i == 3: pend = [f"v_pk_add_f32 {v(t,2)}, {v(r-2,2)}, {v(r,2)}"]; seen.add(t)
        else:
            t = vTs + 2*qb + (i & 1); r = pb(kb, qb) + i
            if t in seen: pend = [f"v_add_f32 v{t}, v{t}, v{r}"]
            elif i >= 2: pend = [f"v_add_f32 v{t}, v{r-2}, v{r}"]; seen.add(t)
    kx = [(rdK(f), max(2*MPOS, 2*(f+16)+1), 63, 2*MPOS + f * 15.0 / NK0, "rdx") for f in range(NK0)]
    pl = drop(sched3(64, [own(rdV, R), kx, even(sm, 0, 62)], wait_load(MPOS) + [(2*MPOS-1, "sync", "s_waitcnt vmcnt(9) lgkmcnt(0)\ns_barrier")]))
    ev = {}
    add_ev(ev, pl)
    assert max(p for p, k, t in pl if k.startswith("rd:")) < 2*MPOS - 4
    ABL[0] = 1
    phase(mfPV, ev, R)
    for t in pend: A(t)
    A(f"v_add_f32 v{vTs}, v{vTs}, v{vTs+1}\nv_add_f32 v{vTs+2}, v{vTs+2}, v{vTs+3}\nv_max_f32 v{vT}, v{vTs}, v{vTs+2}\nv_cmp_nge_f32 vcc, 0x44800000, v{vT}")
    A(f"s_cbranch_vccnz {Lslow}\n{Lback}:" if not opt("abl") else f"{Lback}:")
    A(f"s_cmp_eq_u32 s{sJ}, s{sL}\ns_cbranch_scc1 {Ltail}")
    A(f"{Lqk}:")
    ladd = [f"v_add_f32 v{vLs}, v{vLs}, v{vTs}", f"v_add_f32 v{vLs+1}, v{vLs+1}, v{vTs+2}"]
    ko = own(rdK, NK0)
    lastk = 2*(31-R)+3
    vx = [(advK, lastk, 63, lastk, "")] + [(rdV(f), max(lastk, 2*(f+16)+1), 63, 2*(32-R+f)+1, "rdx") for f in range(R)]
    dm = nonop(dma("K")) + nonop(dma("V")) + [advO, f"buffer_load_dword v{vFlag}, v{vZ}, s[{sD}:{sD+3}], s{sFo} offen sc1"]
    pl = drop(sched3(64, [ko + vx, even(dm, 0, 63), even(ladd + [nextV, setVr] + cvts(), 0, 44)], wait_load()))
    for x in range(len(pl) - 1):
        if "m0" in pl[x][2] and pl[x][0] == pl[x+1][0] and pl[x+1][2].startswith("buffer_load"):
            pl[x] = (pl[x][0], pl[x][1], pl[x][2] + "\ns_nop 0")
    ev = {}
    add_ev(ev, pl)
    phase(mfQK, ev, NK0)
    ABL[0] = 0
    A(f"s_branch {Lloop}")
    def pv_last(fill):
        ev = {}
        add_ev(ev, [(2*(f-R)+1, f"rd:{f}", rdV(f)) for f in range(R, 32)])
        add_ev(ev, [(p, "", t) for p, t in fill])
        phase(mfPV, ev, R)
    def pack(qb, g):
        r0, r1 = Ob(2*g, qb), Ob(2*g+1, qb)
        return [f"v_cvt_pk_bf16_f32 v{r0}, v{r0}, v{r0+1}", f"v_cvt_pk_bf16_f32 v{r0+1}, v{r0+2}, v{r0+3}", f"v_cvt_pk_bf16_f32 v{r0+2}, v{r1}, v{r1+1}", f"v_cvt_pk_bf16_f32 v{r0+3}, v{r1+2}, v{r1+3}"]
    def part_loads():
        out = [f"s_add_u32 s{sT2}, s{sPo}, 16384\nbuffer_load_dwordx4 {v(vT,4)}, v{vL16}, {ws}, s{sT2} offen sc1"]
        for n in range(16):
            t = f"s_add_u32 s{sT2}, s{sPo}, {(n>>2)*4096}\n" if n & 3 == 0 else ""
            out.append(t + f"buffer_load_dwordx4 {v(vS+4*n,4)}, v{vL16}, {ws}, s{sT2} offen offset:{(n&3)*1024} sc1")
        return out
    Lt1 = A.label("K2_t1"); Lt2 = A.label("K2_t2"); Lt0 = A.label("K2_t0"); Lmerge = A.label("K2_merge"); Lpoll = A.label("K2_poll"); Lst = A.label("K2_store"); Lfin = A.label("K2_fin")
    A(f"{Ltail}:")
    stamp(2)
    A(nextV); A(setVr)
    for f in range(R): A(rdV(f))
    for t in ladd: A(t)
    for t in cvts(): A(t)
    A(f"s_cmp_eq_u32 s{sMode}, 1\ns_cbranch_scc1 {Lt1}")
    A(f"s_waitcnt vmcnt(0)\nv_readfirstlane_b32 s95, v{vFlag}")
    A(f"s_lshl_b32 s{sT2}, s{sQ}, 9\ns_lshl_b32 s{sT3}, s{sW}, 7\ns_add_u32 s{sT2}, s{sT2}, s{sT3}\ns_add_u32 s{sT2}, s{sT2}, {WS_G}")
    for e in range(2): A(f"buffer_load_dword v{vG+e}, v31, {ws}, s{sT2} offen offset:{e*64}")
    A(f"s_cmp_lg_u32 s95, 4\ns_cbranch_scc1 {Lt0}")
    pv_last(spread(part_loads(), 0, 34))
    stamp(3)
    A(f"s_branch {Lmerge}")
    A(f"{Lt0}:")
    pv_last([])
    stamp(3)
    A(f"s_cmp_eq_u32 s{sMode}, 0\ns_cbranch_scc1 {Lfin}")
    A(f"{Lpoll}:\nbuffer_load_dword v{vFlag}, v{vZ}, s[{sD}:{sD+3}], s{sFo} offen sc1\ns_waitcnt vmcnt(0)\nv_readfirstlane_b32 s95, v{vFlag}\ns_nop 3\ns_cmp_lg_u32 s95, 4\ns_cbranch_scc1 {Lpoll}")
    for t in part_loads(): A(t)
    A(f"{Lmerge}:\ns_waitcnt vmcnt(16)")
    fA, fB = vT + 4, vT + 6
    for qb in range(2):
        A(f"v_min_f32 v{vT+8}, v{vNm+4*qb}, v{vT+qb}\nv_sub_f32 v{fA+qb}, v{vT+8}, v{vNm+4*qb}\nv_sub_f32 v{fB+qb}, v{vT+8}, v{vT+qb}\nv_exp_f32 v{fA+qb}, v{fA+qb}\nv_exp_f32 v{fB+qb}, v{fB+qb}\ns_nop 0")
        A(f"v_mul_f32 v{vLs+qb}, v{vLs+qb}, v{fA+qb}\nv_fmac_f32 v{vLs+qb}, v{vT+2+qb}, v{fB+qb}")
        A(xl_reduce("v_add_f32", vLs+qb, vT+8))
        A(f"v_rcp_f32 v{vLs+qb}, v{vLs+qb}\ns_nop 0\nv_mul_f32 v{vLs+qb}, v{vLs+qb}, v{vG+qb}\nv_mul_f32 v{fA+qb}, v{fA+qb}, v{vLs+qb}\nv_mul_f32 v{fB+qb}, v{fB+qb}, v{vLs+qb}")
    def ctx_base():
        A(f"s_lshl_b32 s{sT0}, s{sQ}, 3\ns_lshl_b32 s{sT1}, s{sW}, 1\ns_add_u32 s{sT0}, s{sT0}, s{sT1}\ns_mul_i32 s{sT0}, s{sT0}, 144\ns_lshl_b32 s{sT1}, s{sH}, 3\ns_add_u32 s{sT0}, s{sT0}, s{sT1}\ns_lshl_b32 s{sT0}, s{sT0}, 10\ns_add_u32 s{sT0}, s{sT0}, {WS_CTX}")
    def ctx_store(qb, g):
        for t in pack(qb, g): A(t)
        if g & 3 == 0: A(f"s_add_u32 s{sT1}, s{sT0}, {qb*144*1024 + (g>>2)*4096}")
        A(f"buffer_store_dwordx4 {v(Ob(2*g,qb),4)}, v{vL16}, {ws}, s{sT1} offen offset:{(g&3)*1024} {flags('st3')}")
    sel = lambda qb: f"op_sel:[0,{qb}] op_sel_hi:[1,{qb}]"
    sel3 = lambda qb: f"op_sel:[0,{qb},0] op_sel_hi:[1,{qb},1]"
    ctx_base()
    A(f"s_mov_b32 s{sT3}, 0xffff0000")
    nst = 0
    for qb in range(2):
        for g in range(8):
            n = qb * 8 + g
            if n % 4 == 0: A(f"s_waitcnt vmcnt({12 - n + nst})")
            for hh in range(4):
                o = Ob(2*g + (hh >> 1), qb) + 2 * (hh & 1); r = vS + 4*n + hh; t = vT + 10 + 2 * (hh & 1)
                A(f"v_lshlrev_b32 v{t}, 16, v{r}\nv_and_b32 v{t+1}, s{sT3}, v{r}\nv_pk_mul_f32 {v(o,2)}, {v(o,2)}, {v(fA,2)} {sel(qb)}\nv_pk_fma_f32 {v(o,2)}, {v(t,2)}, {v(fB,2)}, {v(o,2)} {sel3(qb)}")
            ctx_store(qb, g); nst += 1
    stamp(4)
    A(f"s_branch {Lst}")
    A(f"{Lt1}:")
    A(f"s_mov_b32 s{sQ}, s{sI}\ns_lshl_b32 s{sK+2}, s{sI}, 16\ns_add_u32 s{sK+2}, s{sK+2}, 0x10000\ns_mov_b32 s{sV+2}, s{sK+2}")
    pv_last(spread(loadQ() + dma("K") + dma("V") + [advO], 0, 62))
    A(f"v_mov_b32 v{vT}, v{vNm}\nv_mov_b32 v{vT+1}, v{vNm+4}\nv_mov_b32 v{vT+2}, v{vLs}\nv_mov_b32 v{vT+3}, v{vLs+1}")
    for i in range(vNm, vNm + 8): A(f"v_mov_b32 v{i}, 0")
    A(f"s_mov_b32 s{sPub}, 1\ns_mov_b32 s{sMode}, 0\ns_mov_b32 s{sJ}, 0\ns_lshl_b32 s{sDiag}, s{sQ}, 1\ns_add_u32 s{sL}, s{sDiag}, 1")
    A(f"s_add_u32 s{sT2}, s{sPo}, 16384\nbuffer_store_dwordx4 {v(vT,4)}, v{vL16}, {ws}, s{sT2} offen sc1")
    A("s_waitcnt vmcnt(17)\ns_barrier")
    stamp(1)
    fill = []
    prevz = []
    for qb in range(2):
        for g in range(8):
            n = qb * 8 + g
            fill += pack(qb, g)
            t = f"s_add_u32 s{sT2}, s{sPo}, {(n>>2)*4096}\n" if n & 3 == 0 else ""
            fill.append(t + f"buffer_store_dwordx4 {v(Ob(2*g,qb),4)}, v{vL16}, {ws}, s{sT2} offen offset:{(n&3)*1024} sc1")
            fill += prevz
            r0, r1 = Ob(2*g, qb), Ob(2*g+1, qb)
            prevz = [f"v_mov_b64 {v(r,2)}, 0" for r in (r1, r1+2, r0, r0+2)]
    fill += ["s_nop 1"] + prevz
    qk_first(spread(fill, 0, 63))
    A(f"s_waitcnt vmcnt(17) lgkmcnt(0)\ns_barrier\ns_branch {Lfirst}")
    A(f"{Lfin}:\ns_waitcnt vmcnt(0)")
    for qb in range(2):
        A(xl_reduce("v_add_f32", vLs+qb, vT+8))
        A(f"v_rcp_f32 v{vLs+qb}, v{vLs+qb}\ns_nop 0\nv_mul_f32 v{vLs+qb}, v{vLs+qb}, v{vG+qb}")
    ctx_base()
    for qb in range(2):
        for g in range(8):
            for hh in range(4):
                o = Ob(2*g + (hh >> 1), qb) + 2 * (hh & 1)
                A(f"v_pk_mul_f32 {v(o,2)}, {v(o,2)}, {v(vLs,2)} {sel(qb)}")
            ctx_store(qb, g)
    stamp(4)
    A(f"s_cmp_lg_u32 s{sTy}, 0\ns_cbranch_scc1 {Lst}")
    bS, bP, bO = 64, 96, 112
    for e in range(4):
        A(f"{MF} {v(bS+8*e,4)}, {a(bk+4*(e+1),4)}, {a(bq+4*e,4)}, 0")
        A(f"{MF} {v(bS+8*e+4,4)}, {a(bk+4*e,4)}, {a(bq+4*e,4)}, 0")
    for i in range(4):
        A(f"v_subrev_u32 v{vT+2}, {i}, v28\nv_and_b32 v{vT+2}, 0x80000001, v{vT+2}\nv_bfrev_b32 v{vT+2}, v{vT+2}")
        A(f"v_cmp_eq_u32 s[{sM+2*i}:{sM+2*i+1}], 0, v{vT+2}\nv_cmp_eq_u32 s[{sM+8+2*i}:{sM+8+2*i+1}], 1, v{vT+2}")
    A(f"s_cmp_eq_u32 s50, 0")
    for i in range(4): A(f"s_cselect_b64 s[{sM+16+2*i}:{sM+16+2*i+1}], 0, s[{sM+8+2*i}:{sM+8+2*i+1}]")
    A(f"v_cmp_gt_u32 vcc, 48, v0")
    def each(fn):
        for e in range(4): A(fn(e))
    m = lambda e: vT + e
    tt = lambda e: vT + 4 + e
    l = lambda e: vT + 8 + e
    for e in range(4):
        s0 = bS + 8 * e
        for i in range(4):
            A(f"v_cndmask_b32 v{s0+i}, v{vNeg}, v{s0+i}, s[{sM+2*i}:{sM+2*i+1}]")
            pm = sM + (16 if e == 0 else 8) + 2 * i
            A(f"v_cndmask_b32 v{s0+4+i}, v{vNeg}, v{s0+4+i}, s[{pm}:{pm+1}]")
        A(f"v_max3_f32 v{m(e)}, v{s0}, v{s0+1}, v{s0+2}\nv_max3_f32 v{m(e)}, v{m(e)}, v{s0+3}, v{s0+4}\nv_max3_f32 v{m(e)}, v{m(e)}, v{s0+5}, v{s0+6}\nv_max_f32 v{m(e)}, v{m(e)}, v{s0+7}")
    def xl4(op, r):
        for sw in ("v_permlane16_swap_b32", "v_permlane32_swap_b32"):
            each(lambda e: f"v_mov_b32 v{tt(e)}, v{r(e)}")
            A("s_nop 1")
            each(lambda e: f"{sw} v{r(e)}, v{tt(e)}")
            A("s_nop 1")
            each(lambda e: f"{op} v{r(e)}, v{r(e)}, v{tt(e)}")
    xl4("v_max_f32", m)
    for e in range(4):
        s0 = bS + 8 * e
        for i in range(8): A(f"v_sub_f32 v{s0+i}, v{s0+i}, v{m(e)}")
        for i in range(8): A(f"v_exp_f32 v{s0+i}, v{s0+i}")
    for e in range(4):
        s0 = bS + 8 * e
        lo, hi = (s0, s0 + 4) if e % 2 == 0 else (s0 + 4, s0)
        A(f"v_cvt_pk_bf16_f32 v{bP+4*e}, v{lo}, v{lo+1}\nv_cvt_pk_bf16_f32 v{bP+4*e+1}, v{lo+2}, v{lo+3}\nv_cvt_pk_bf16_f32 v{bP+4*e+2}, v{hi}, v{hi+1}\nv_cvt_pk_bf16_f32 v{bP+4*e+3}, v{hi+2}, v{hi+3}")
        A(f"v_add_f32 v{l(e)}, v{s0}, v{s0+1}")
        for i in range(2, 8): A(f"v_add_f32 v{l(e)}, v{l(e)}, v{s0+i}")
        for db in range(2):
            A(f"{MF} {v(s0+4*db,4)}, {a((bm if e % 2 == 0 else bv)+8*(e>>1)+4*db,4)}, {v(bP+4*e,4)}, 0")
    xl4("v_add_f32", l)
    each(lambda e: f"v_rcp_f32 v{l(e)}, v{l(e)}\nv_sub_f32 v{bg+e}, 1.0, v{bg+e}\nv_mul_f32 v{l(e)}, v{l(e)}, v{bg+e}")
    A(f"s_mul_i32 s{sT0}, s50, {2*144}\ns_add_u32 s{sT0}, s{sT0}, s{sH}\ns_lshl_b32 s{sT0}, s{sT0}, 10\ns_add_u32 s{sT0}, s{sT0}, {WS_CTX + 128*1024}")
    for e in range(4):
        o = bS + 8 * e
        for i in range(8): A(f"v_mul_f32 v{o+i}, v{o+i}, v{l(e)}")
        A(f"v_cvt_pk_bf16_f32 v{o}, v{o}, v{o+1}\nv_cvt_pk_bf16_f32 v{o+1}, v{o+2}, v{o+3}\nv_cvt_pk_bf16_f32 v{o+2}, v{o+4}, v{o+5}\nv_cvt_pk_bf16_f32 v{o+3}, v{o+6}, v{o+7}")
        A(f"v_cndmask_b32 v{o+2}, 0, v{o+2}, vcc\nv_cndmask_b32 v{o+3}, 0, v{o+3}, vcc")
        A(f"buffer_store_dwordx4 {v(o,4)}, v{vL16}, {ws}, s{sT0} offen {flags('st3')}\ns_add_u32 s{sT0}, s{sT0}, {144*1024}")
    A(f"{Lst}:")
    if stamps:
        stamp(5); stamp(6)
        A("s_waitcnt vmcnt(0)")
        stamp(7)
        A("s_waitcnt lgkmcnt(0)")
        for q, r in enumerate(SR): A(f"v_mov_b32 v{4+q}, s{r}")
        A(f"v_mov_b32 v12, 0\ns_lshl_b32 s{sT3}, s2, 5\ns_add_u32 s{sT3}, s{sT3}, {200*MB + 65536}")
        A(f"buffer_store_dwordx4 v[4:7], v12, {ws}, s{sT3} offen\nbuffer_store_dwordx4 v[8:11], v12, {ws}, s{sT3} offen offset:16")
    A(f"{Lend}:\ns_endpgm")
```

```python
from asmlib import *
from k1 import MB, WS_K, WS_V, WS_Q, WS_KB, WS_VB, WS_FLAG, WS_CTX, WS_PART, WS_WO, WS_SIZE, f32bits, LOG2E, MF
import math
SPLIT = opti("split", 19)

class R_:
    sC, sWk, sXx, sWq, sWb, sO, sG = 28, 32, 36, 40, 44, 48, 68
    sW, sWM, sWN, sI, sH, sP = 60, 61, 62, 63, 64, 65
    sT0, sT1, sT2, sT3 = 81, 82, 83, 84
    sC8 = 90
    sK, sV = 8, 12
    sQs = 20
    sQ, sJ, sL, sMode = 4, 5, 6, 7
    sOwn = 88
    sFo, sFh = 100, 101
    sKo, sVo, sWrap = 26, 27, 3
    SR = [52, 54, 56, 58, 92, 94, 96, 98]
    aQ, aF = 64, 0
    bq, bk, bv, bm = 192, 200, 212, 220
    aPark = 128
    sSp = 78
    @staticmethod
    def bound(exit_label): return f"s_add_u32 s78, s78, 1\ns_cmp_gt_u32 s78, 0x40000\ns_cbranch_scc1 {exit_label}\n"

def gen_part1(A, name, stamps, Lend):
    r = R_
    sC, sWk, sXx, sWq, sWb, sO, sG = r.sC, r.sWk, r.sXx, r.sWq, r.sWb, r.sO, r.sG
    sW, sWM, sWN, sT, sH, sP = r.sW, r.sWM, r.sWN, r.sI, r.sH, r.sP
    sT0, sT1, sT2, sT3, sC8 = r.sT0, r.sT1, r.sT2, r.sT3, r.sC8
    sXo1, sWo1, sXo2, sQo2, sBo2 = 66, 67, 72, 73, 74
    sXl, sWl = 76, 77
    sCnt, sWd, sWrs = 78, 79, 80
    sWlw1, sBl, sWls = 85, 89, 86
    sOb = 87
    sI0, sI1 = 16, 17
    sAo = 75; sBb = 91
    vLane16 = 1
    vXd1, vWd1, vXd2, vBd2 = 2, 3, 4, 6
    vWb1 = 7; vXr = 8; vWr = 16; vT = 26; vXb = 30; vWb2 = 31
    vOne0 = 24
    vPoll = 25
    WS0 = 65536
    so = f"s[{sO}:{sO+3}]"
    def stamp(i, p2=False):
        if stamps and (bool(opti("p2st")) == p2): A(f"{'s_memtime' if opti('cyc') else 's_memrealtime'} s[{r.SR[i]}:{r.SR[i]+1}]")
    def acc1(i, j, isV):
        n, sec = ((8 * (i >> 1) + j, i & 1) if isV else (4 * i + (j >> 1), j & 1))
        if not sec: return v(128 + 4 * n, 4)
        return a(128 + 4 * n, 4) if n < 8 else v(32 + 4 * (n - 8), 4)
    def pk4(r0, r1, d=None):
        d = r0 if d is None else d
        return [f"v_cvt_pk_bf16_f32 v{d}, v{r0}, v{r0+1}", f"v_cvt_pk_bf16_f32 v{d+1}, v{r0+2}, v{r0+3}", f"v_cvt_pk_bf16_f32 v{d+2}, v{r1}, v{r1+1}", f"v_cvt_pk_bf16_f32 v{d+3}, v{r1+2}, v{r1+3}"]
    def pack1(n):
        r0 = 128 + 4 * n
        if n >= 8: return pk4(r0, 32 + 4 * (n - 8))
        p = pk4(r0, vT)
        return p[:2] + [f"v_accvgpr_read_b32 v{vT+q}, a{128+4*n+q}" for q in range(4)] + p[2:]
    X1 = [0, 64]; W1 = [32, 96]

    A(f".globl {name}\n.p2align 8\n.type {name},@function\n{name}:")
    A(f"s_cmp_ge_u32 s2, 256\ns_cbranch_scc1 {Lend}")
    stamp(0)
    A("s_load_dwordx16 s[4:19], s[0:1], 0\ns_load_dwordx4 s[20:23], s[0:1], 64\ns_load_dwordx4 s[24:27], s[0:1], 88")
    A(f"v_lshrrev_b32 v{vT}, 6, v0\ns_nop 0\nv_readfirstlane_b32 s{sW}, v{vT}\nv_cmp_eq_u32 vcc, 0, v0\nv_and_b32 v0, 63, v0")
    A(f"s_and_b32 s{sT0}, s2, 7\ns_bfe_u32 s{sT}, s2, {(3 << 16) | 3}\ns_bfe_u32 s{sP}, s2, {(1 << 16) | 6}\ns_lshr_b32 s{sT1}, s2, 7\ns_lshl_b32 s{sH}, s{sT0}, 1\ns_add_u32 s{sH}, s{sH}, s{sT1}")
    A(f"v_mov_b32 v{vOne0}, 0x40000000\nv_cndmask_b32 v{vOne0}, v{vOne0}, 0, vcc".replace(", 0, vcc", ", 0, vcc"))
    A(f"s_lshr_b32 s{sWM}, s{sW}, 1\ns_and_b32 s{sWN}, s{sW}, 1")
    A(f"v_lshrrev_b32 v{vT}, 4, v0\ns_lshl_b32 s{sT0}, s{sWN}, 2\nv_add_u32 v{vT}, s{sT0}, v{vT}")
    A(f"v_and_b32 v{vT+1}, 7, v0\nv_xor_b32 v{vT}, v{vT}, v{vT+1}\nv_lshlrev_b32 v{vT}, 4, v{vT}")
    A(f"v_lshrrev_b32 v{vT+1}, 3, v0\ns_lshl_b32 s{sT0}, s{sW}, 3\nv_add_u32 v{vT+1}, s{sT0}, v{vT+1}")
    A(f"v_lshl_add_u32 v{vXd1}, v{vT+1}, 11, v{vT}")
    A(f"v_mul_u32_u24 v{vXd2}, 896, v{vT+1}\nv_add_u32 v{vXd2}, v{vXd2}, v{vT}")
    A(f"v_lshrrev_b32 v{vT}, 5, v0\ns_lshl_b32 s{sT0}, s{sWN}, 1\nv_add_u32 v{vT}, s{sT0}, v{vT}")
    A(f"s_lshl_b32 s{sT0}, s{sWM}, 2\nv_or_b32 v{vT+1}, s{sT0}, v{vT}\nv_lshlrev_b32 v{vT+1}, 1, v{vT+1}")
    A(f"v_and_b32 v{vT+2}, 31, v0\nv_xor_b32 v{vT+1}, v{vT+1}, v{vT+2}\nv_lshlrev_b32 v{vT+1}, 4, v{vT+1}")
    A(f"s_lshl_b32 s{sT0}, s{sWM}, 3\nv_add_u32 v{vT}, s{sT0}, v{vT}")
    A(f"v_lshl_add_u32 v{vWd1}, v{vT}, 13, v{vT+1}")
    A(f"s_lshl_b32 s{sXo1}, s{sT}, 19\ns_lshl_b32 s{sWo1}, s{sH}, 9\ns_mov_b32 s{sC8}, 0x8000")
    A(f"s_lshl_b32 s{sXl}, s{sW}, 10\ns_lshl_b32 s{sWlw1}, s{sWM}, 2\ns_add_u32 s{sWlw1}, s{sWlw1}, s{sWN}\ns_lshl_b32 s{sWlw1}, s{sWlw1}, 10\ns_mov_b32 s{sWls}, {WS0}")
    A(f"s_mov_b32 s{sC+3}, 0x00020000\ns_mov_b32 s{sWk+3}, 0x00020000\ns_mov_b32 s{sC+2}, {2048*2048}\ns_mov_b32 s{sWk+2}, {1024*8192}\ns_cmp_eq_u32 s{sP}, 0")
    A("s_waitcnt lgkmcnt(0)")
    A(f"s_mov_b64 s[{sC}:{sC+1}], s[6:7]\ns_cselect_b64 s[{sWk}:{sWk+1}], s[10:11], s[12:13]")

    def dmaX(ph, tag='x'):
        out = []
        if ph == 1:
            for p in range(8):
                out.append(f"s_add_u32 m0, s{sXl}, {p*4096}\ns_add_u32 s{sT0}, s{sXo1}, {p*32*2048}\nbuffer_load_dwordx4 v{vXd1}, s[{sC}:{sC+3}], s{sT0} offen lds ; vm:{tag}")
            out.append(f"s_add_u32 s{sXo1}, s{sXo1}, 128\ns_xor_b32 s{sXl}, s{sXl}, s{sC8}")
        else:
            for p in range(4):
                out.append(f"s_add_u32 m0, s{sXl}, {p*4096}\ns_add_u32 s{sT0}, s{sXo2}, {p*32*896}\nbuffer_load_dwordx4 v{vXd2}, s[{sXx}:{sXx+3}], s{sT0} offen lds ; vm:{tag}")
            for p in range(4):
                out.append(f"s_add_u32 m0, s{sBl}, {16384 + p*4096}\ns_add_u32 s{sT0}, s{sBo2}, {p*16*2688}\nbuffer_load_dwordx4 v{vBd2}, s[{sWb}:{sWb+3}], s{sT0} offen lds ; vm:{tag}")
            out.append(f"s_add_u32 s{sXo2}, s{sXo2}, 128\ns_add_u32 s{sBo2}, s{sBo2}, {64*2688}\ns_xor_b32 s{sXl}, s{sXl}, s{sC8}\ns_xor_b32 s{sBl}, s{sBl}, s{sC8}")
        return out
    def dmaW(ph, tag='w'):
        srd, run = (sWk, sWo1) if ph == 1 else (sWq, sQo2)
        out = [f"s_add_u32 s{sWl}, s{sWls}, s{sWlw1}"]
        for g in range(2):
            for p in range(4):
                out.append(f"s_add_u32 m0, s{sWl}, {g*2048 + p*8192}\ns_add_u32 s{sT1}, s{run}, {(4*g + 16*p)*8192}\nbuffer_load_dwordx4 v{vWd1}, s[{srd}:{srd+3}], s{sT1} offen lds ; vm:{tag}")
        out.append(f"s_add_u32 s{run}, s{run}, {64*8192}\ns_add_u32 s{sWls}, s{sWls}, s{sC8}\ns_cmp_eq_u32 s{sWls}, {WS0 + 3*0x8000}\ns_cselect_b32 s{sWls}, {WS0}, s{sWls}")
        return out
    def reads1(st, ks):
        xs = [f"ds_read_b128 {a(X1[st]+4*i,4)}, v{vXr+ks} offset:{i*2048}" for i in range(8)]
        ws = [f"ds_read_b64_tr_b16 {a(W1[st]+4*j+2*t,2)}, v{vWr+j} offset:{ks*16384+t*2048}" for j in range(8) for t in range(2)]
        return [xs[0]] + ws + xs[1:]
    def mf1(st, isV, first=False):
        out = []
        for i in range(8):
            for jj in range(8):
                j = jj if i % 2 == 0 else 7 - jj
                x, w = a(X1[st]+4*i, 4), a(W1[st]+4*j, 4); c = acc1(i, j, isV)
                ci = 0 if first else c
                out.append(f"{MF} {c}, {x}, {w}, {ci}" if isV else f"{MF} {c}, {w}, {x}, {ci}")
        return out
    def adv_rd(nx, nw):
        t = [f"s_add_u32 s{sWrs}, s{sWrs}, 1\ns_cmp_eq_u32 s{sWrs}, 3\ns_cselect_b32 s{sWrs}, 0, s{sWrs}\ns_cselect_b32 s{sWd}, {(-2*0x8000) & 0xffffffff}, s{sC8}"]
        t += [f"v_xor_b32 v{vXr+i}, 0x8000, v{vXr+i}" for i in range(nx)]
        t += [f"v_add_u32 v{vWr+j}, s{sWd}, v{vWr+j}" for j in range(nw)]
        return t

    for t in dmaX(1) + dmaW(1): A(t)
    sWi = sAo
    A(f"s_lshr_b32 s{sWi}, s2, 3\ns_lshl_b32 s{sWi}, s{sWi}, 2\ns_add_u32 s{sWi}, s{sWi}, s{sW}\ns_mov_b32 s{sT2}, s{sWi}")
    NCP = code_prefetch(A, name, "CODE_END", 16, sT2, 14, 15, 7)
    for t in dmaX(1) + dmaW(1): A(t)
    A(f"v_and_b32 v{vT}, 15, v0\nv_lshrrev_b32 v{vT+1}, 4, v0\nv_lshrrev_b32 v{vT+2}, 1, v{vT}\nv_xor_b32 v{vT+2}, v{vT+2}, v{vT+1}")
    A(f"v_lshlrev_b32 v{vT+2}, 4, v{vT+2}\nv_lshl_add_u32 v{vXb}, v{vT}, 7, v{vT+2}")
    A(f"v_lshrrev_b32 v{vT+2}, 2, v{vT}\nv_and_b32 v{vT+3}, 1, v{vT+1}\nv_lshl_or_b32 v{vT+3}, v{vT+3}, 2, v{vT+2}\nv_lshl_add_u32 v{vT+2}, v{vT+1}, 3, v{vT+2}")
    A(f"v_and_b32 v{vT}, 3, v0\nv_lshlrev_b32 v{vT}, 3, v{vT}\nv_lshl_add_u32 v{vT}, v{vT+3}, 5, v{vT}")
    A(f"v_lshl_add_u32 v{vWb1}, v{vT+2}, 9, v{vT}\nv_lshl_add_u32 v{vWb2}, v{vT+2}, 8, v{vT}")
    A(f"s_lshl_b32 s{sT2}, s{sWM}, 14\nv_add_u32 v{vXr}, s{sT2}, v{vXb}\nv_xor_b32 v{vXr+1}, 64, v{vXr}")
    A(f"s_lshl_b32 s{sT2}, s{sWN}, 8\ns_add_u32 s{sT2}, s{sT2}, {WS0}\nv_add_u32 v{vWr}, s{sT2}, v{vWb1}\ns_mov_b32 s{sWrs}, 0\ns_mov_b32 s{sCnt}, 1")
    for j in range(1, 8): A(f"v_xor_b32 v{vWr+j}, {j << 5}, v{vWr}")
    su0 = [f"s_mov_b32 s{q+3}, 0x00020000" for q in (sXx, sWq, sWb, sO, sG)]
    su0.append(f"s_mov_b32 s{sXx+2}, {2048*896}\ns_mov_b32 s{sWq+2}, {448*8192}\ns_mov_b32 s{sWb+2}, {448*2688}\ns_mov_b32 s{sO+2}, {WS_SIZE}\ns_mov_b32 s{sG+2}, 896")
    su0.append(f"s_mov_b64 s[{sXx}:{sXx+1}], s[4:5]\ns_mov_b64 s[{sWq}:{sWq+1}], s[8:9]\ns_mov_b64 s[{sWb}:{sWb+1}], s[18:19]\ns_mov_b64 s[{sO}:{sO+1}], s[26:27]\ns_mov_b64 s[{sG}:{sG+1}], s[22:23]")
    su0.append("s_mov_b64 s[18:19], s[14:15]\ns_mov_b64 s[0:1], s[20:21]")
    vPq, vPb, vPx = 11, 12, 10
    sPq, sPb, sPx = 5, 6, 4
    sFq, sFb, sFx = 12, 20, 8
    PF = opti("pf", 6); PFM = opti("pfm", 7)
    su0.append(f"s_lshl_b32 s{sT2}, s{sWi}, 2\nv_and_b32 v{vT}, 3, v0\nv_add_u32 v{vT}, s{sT2}, v{vT}\nv_min_u32 v{vT}, 447, v{vT}\nv_lshrrev_b32 v{vT+1}, 3, v{vT}\nv_and_b32 v{vT}, 7, v{vT}\nv_lshlrev_b32 v{vT}, 7, v{vT}\nv_lshl_add_u32 v{vPq}, v{vT+1}, 13, v{vT}")
    su0.append(f"s_and_b32 s{sT3}, s2, 7\ns_lshl_b32 s{sPq}, s{sT3}, 10\ns_mul_i32 s{sPb}, s{sT3}, 112\ns_lshl_b32 s{sPx}, s2, 2\ns_add_u32 s{sPx}, s{sPx}, s{sW}\ns_mul_i32 s{sPx}, s{sPx}, {2*896}\nv_and_b32 v{vPx}, 1, v0\nv_lshlrev_b32 v{vPx}, 7, v{vPx}")
    su0.append(f"v_mul_u32_u24 v{vPb}, 2688, v{vT+1}\nv_lshrrev_b32 v{vT+1}, 8, v{vT}\nv_min_u32 v{vT+1}, 2, v{vT+1}\nv_mul_u32_u24 v{vT+1}, 896, v{vT+1}\nv_add_u32 v{vPb}, v{vPb}, v{vT+1}\nv_bfe_u32 v{vT+1}, v{vT}, 7, 1\nv_mul_u32_u24 v{vT+1}, 116, v{vT+1}\nv_add_u32 v{vPb}, v{vPb}, v{vT+1}")
    allst = [(sFx, sXx, vPx, sPx, 256), (sFq, sWq, vPq, sPq, 56*8192), (sFb, sWb, vPb, sPb, 56*2688)]
    streams = [x for k, x in enumerate(allst) if PF and PFM >> k & 1]
    for f, src, vo, run, step in streams:
        su0.append(f"s_mov_b64 s[{f}:{f+1}], s[{src}:{src+1}]\ns_mov_b32 s{f+2}, 0\ns_mov_b32 s{f+3}, 0x00020000\ns_sub_u32 s{run}, s{run}, {(PF-1)*step}")
    su0.append(f"s_lshl_b32 s{r.sFo}, s2, 7\ns_add_u32 s{r.sFo}, s{r.sFo}, {WS_FLAG}\ns_and_b32 s{r.sFh}, s2, 0x87\ns_lshl_b32 s{r.sFh}, s{r.sFh}, 7\ns_add_u32 s{r.sFh}, s{r.sFh}, {WS_FLAG + 12}")
    su0.append(f"v_mov_b64 v[{vT}:{vT+1}], 0\nv_mov_b64 v[{vT+2}:{vT+3}], 0\nv_lshlrev_b32 v{vLane16}, 4, v0")
    zst = [f"buffer_store_dwordx4 v[{vT}:{vT+3}], v{vOne0}, {so}, s{r.sFo} offen sc1", f"buffer_load_dword v13, v{vLane16}, s[{sG}:{sG+3}], 0 offen"]
    NPF = len(streams)
    def pf():
        if not streams: return []
        out = [f"s_cmp_eq_u32 s{sCnt}, {PF}\n" + "\n".join(f"s_cselect_b32 s{f+2}, s{src+2}, s{f+2}" for f, src, vo, run, step in streams)]
        for f, src, vo, run, step in streams:
            out.append(f"buffer_load_dword v13, v{vo}, s[{f}:{f+3}], s{run} offen\ns_add_u32 s{run}, s{run}, {step}")
        return out
    su1 = [f"s_lshl_b32 s{sQo2}, s{sH}, 9",
           f"v_lshrrev_b32 v{vT}, 4, v0\ns_lshl_b32 s{sT2}, s{sWN}, 2\nv_or_b32 v{vT+1}, s{sT2}, v{vT}\nv_lshlrev_b32 v{vT+1}, 1, v{vT+1}",
           f"v_and_b32 v{vT+2}, 15, v0\nv_xor_b32 v{vT+1}, v{vT+1}, v{vT+2}",
           f"s_lshl_b32 s{sT2}, s{sWN}, 1\ns_add_u32 s{sT2}, s{sT2}, s{sWM}\ns_lshl_b32 s{sT3}, s{sT2}, 2\nv_add_u32 v{vT}, s{sT3}, v{vT}\ns_lshl_b32 s{sBl}, s{sT2}, 10",
           f"v_lshrrev_b32 v{vT+2}, 2, v{vT+1}\nv_add_u32 v{vT+3}, 1, v{vT+2}\nv_and_b32 v{vT+3}, 4, v{vT+3}\nv_mul_u32_u24 v{vT+2}, 896, v{vT+2}\nv_lshl_add_u32 v{vT+2}, v{vT+3}, 28, v{vT+2}",
           f"v_and_b32 v{vT+1}, 3, v{vT+1}\nv_lshl_add_u32 v{vT+2}, v{vT+1}, 4, v{vT+2}",
           f"v_mul_u32_u24 v{vBd2}, 2688, v{vT}\nv_add_u32 v{vBd2}, v{vBd2}, v{vT+2}",
           f"s_sub_u32 s{sT2}, 15, s{sT}\ns_cmp_eq_u32 s{sP}, 1\ns_cselect_b32 s{r.sOwn}, s{sT2}, s{sT}",
           f"s_mul_i32 s{sXo2}, s{r.sOwn}, {128*896}\ns_mul_i32 s{sBo2}, s{sH}, 56",
           f"s_lshl_b32 s{sOb}, s{sH}, 7\ns_lshl_b32 s{sT3}, s{sT}, 4\ns_add_u32 s{sOb}, s{sOb}, s{sT3}\ns_lshl_b32 s{sT3}, s{sWM}, 3\ns_add_u32 s{sOb}, s{sOb}, s{sT3}\ns_lshl_b32 s{sOb}, s{sOb}, 13",
           f"s_add_u32 s{sT2}, s{sP}, 12\ns_lshl_b32 s{sT3}, s{sWN}, s{sT2}\ns_add_u32 s{sOb}, s{sOb}, s{sT3}\ns_lshl_b32 s{sT3}, s{sP}, 24\ns_add_u32 s{sOb}, s{sOb}, s{sT3}",
           f"s_lshl_b32 s{sT3}, s{sP}, 12\ns_sub_u32 s{sI0}, 8192, s{sT3}\ns_add_u32 s{sI1}, 8192, s{sT3}",
           f"s_lshl_b32 s{sBb}, s{sH}, 7\ns_lshl_b32 s{sT3}, s{r.sOwn}, 3\ns_add_u32 s{sBb}, s{sBb}, s{sT3}\ns_lshl_b32 s{sT3}, s{sW}, 1\ns_add_u32 s{sBb}, s{sBb}, s{sT3}"]
    if opti("p2z") & 1: su1.append(f"s_mov_b32 s{sXx+2}, 0\ns_mov_b32 s{sWq+2}, 0\ns_mov_b32 s{sWb+2}, 0")
    if opti("p2z") & 4: su1.append(f"s_mov_b32 s{sWb+2}, 0")
    if opti("p2z") & 2: su1.append(f"s_add_u32 s{sOb}, s{sOb}, 0x40000000")
    gl = [f"v_and_b32 v{vPoll}, 48, v0"] + [f"buffer_load_dwordx4 {a(200+4*ks,4)}, v{vPoll}, s[{sG}:{sG+3}], 0 offen offset:{ks*64}" for ks in range(14)]
    A(f"s_waitcnt vmcnt({16+NCP})\ns_barrier")
    stamp(1)
    for t in reads1(0, 0): A(t)
    LVe = A.label("F_Ve"); Lph2 = A.label("F_ph2")
    A(f"s_cmp_eq_u32 s{sP}, 1\ns_cbranch_scc1 {LVe}")
    def st1(n):
        t = f"buffer_store_dwordx4 {v(128+4*n,4)}, v{vLane16}, {so}, s{sOb} offen offset:{(n&3)*1024} sc1 ; vm:st"
        if n & 3 == 3: t += f"\ns_add_u32 s{sOb}, s{sOb}, s{sI0 if (n >> 2) % 2 == 0 else sI1}"
        return t
    NE = opti("ne", 8)

    vBr = 10
    def setup2():
        t = [f"s_lshl_b32 s{sT2}, s{sW}, 12\nv_add_u32 v{vXr}, s{sT2}, v{vXb}\nv_xor_b32 v{vXr+1}, 64, v{vXr}", f"v_add_u32 v{vWr}, {WS0 + 0x8000}, v{vWb1}"]
        t += [f"v_xor_b32 v{vWr+j}, {j << 5}, v{vWr}" for j in range(1, 8)]
        t += [f"v_add_u32 v{vBr}, 16384, v{vWb2}"] + [f"v_xor_b32 v{vBr+u}, {u << 5}, v{vBr}" for u in range(1, 6)]
        return t
    def adv2(stage):
        d = 0x8000 if (stage + 1) % 3 else -2 * 0x8000
        return [f"v_xor_b32 v{vXr+i}, 0x8000, v{vXr+i}" for i in range(8)] + [f"v_add_u32 v{vWr+j}, 0x{d & 0xffffffff:x}, v{vWr+j}" for j in range(8)]
    def accq(j, e): return ("a", 64 + 4 * (2*j + e)) if j < 11 else ("v", 40 + 4 * (2*(j-11) + e))
    def accb(u, e): return 80 + 24 * e + 4 * u
    def xfrag(k, e): return a(160 + 8 * (k & 1) + 4 * e, 4)
    def ring(n): return 4 * (n % 16)
    def frag_reads(k, q):
        ks = k & 1; n = 22 * k + q; d = ring(n)
        if q < 16: return [f"ds_read_b64_tr_b16 {a(d+2*t,2)}, v{vWr+(q&7)} offset:{ks*16384 + t*2048 + (q>>3)*256}" for t in range(2)]
        return [f"ds_read_b64_tr_b16 {a(d+2*t,2)}, v{vBr+q-16} offset:{ks*8192 + t*1024}" for t in range(2)]
    def x_reads(k): return [f"ds_read_b128 {xfrag(k, e)}, v{vXr+(k&1)} offset:{e*2048}" for e in range(2)]
    def kstep_mf(k):
        first = k == 0; out = []
        for e in range(2):
            c = v(32 + 4*e, 4); out.append((f"{MF} {c}, {a(200+4*k,4)}, {xfrag(k,e)}, {0 if first else c}", [f"x{k}.1"]))
        for q in range(22):
            w = a(ring(22*k+q), 4)
            for e in range(2):
                if q < 16: kk, rr = accq(q, e); c = rng(kk, rr, 4)
                else: c = v(accb(q-16, e), 4)
                ci = 0 if first else c
                out.append((f"{MF} {c}, {xfrag(k,e)}, {w}, {ci}" if q >= 20 else f"{MF} {c}, {w}, {xfrag(k,e)}, {ci}", [f"f{k}.{q}.1"]))
        return out
    RA = opti("ra", 6); NPRE = opti("npre", 3); BP = 92 - 2 * opti("rb", 4) - 1
    def rd_items(k, q): return [(f"f{k}.{q}.{t}", x) for t, x in enumerate(frag_reads(k, q))]
    def xr_items(k): return [(f"x{k}.{e}", x) for e, x in enumerate(x_reads(k))]
    def pre_reads(st):
        k = 2 * st
        return xr_items(k) + [y for q in range(NPRE) for y in rd_items(k, q)]

    for isV in (0, 1):
        Lloop = A.label("F_loop")
        def partA(extra): interleave(A, mf1(1, isV), sched(64, [(reads1(0, 0), 0, 47)] + extra))
        def partB(dw, first=False, extra=[]):
            A("s_waitcnt lgkmcnt(0)")
            interleave(A, mf1(0, isV, first), sched(64, [(reads1(1, 1) + adv_rd(2, 8), 0, 63), (dw, 0, 60)] + extra))
        if isV: A(f"{LVe}:")
        partB(dmaW(1), True, [(su0, 0, 58), (zst, 61, 63)])
        A("s_waitcnt vmcnt(10) lgkmcnt(0)\ns_barrier")
        A(f".p2align 6\n{Lloop}:")
        partA([(dmaX(1) + pf(), 0, 63)])
        partB(dmaW(1))
        A(f"s_add_u32 s{sCnt}, s{sCnt}, 1\ns_cmp_lt_u32 s{sCnt}, 14")
        A(f"s_waitcnt vmcnt({8+NPF}) lgkmcnt(0)\ns_barrier\ns_cbranch_scc1 {Lloop}")
        partA([(dmaX(1) + gl, 0, 63), (su1, 0, 63)])
        partB(dmaW(2))
        A(f"s_waitcnt vmcnt(22) lgkmcnt(0)\ns_barrier")
        init = [f"s_mov_b64 s[{sG}:{sG+1}], s[24:25]", f"s_movk_i32 s{sG+2}, 256", f"s_lshl_b32 s{sT2}, s{sH}, 4", f"s_and_b32 s{sT3}, s2, 0x78", f"s_cmp_lg_u32 s{sT3}, 0\ns_cselect_b32 s{sT3}, 0x1000, s{sT2}", f"v_mov_b32 v{vT}, 1", f"buffer_store_dword v{vT}, v{vOne0}, s[{sG}:{sG+3}], s{sT3} offen sc1"]
        partA([(dmaX(2) + init, 0, 63)])
        partB(dmaW(2))
        A(f"s_waitcnt vmcnt(9) lgkmcnt(0)\ns_barrier")
        stamp(2); stamp(0, True)
        st = [even(setup2(), 0, 16), even(dmaX(2), 0, 32) + even([st1(n) for n in range(NE)], 36, 63), [(x, 50, 63, 52 + k, "") for k, (i_, x) in enumerate(pre_reads(0))]]
        for q in range(3):
            st.append(even([x for n in (range(8*q+7, 8*q-1, -1) if isV else range(8*q, 8*q+8)) for x in pack1(n)], 16*q + 18, min(16*q + 34, 63)))
        interleave(A, mf1(1, isV), [(p, t) for p, k, t in sched3(64, st)])
        if not isV: A(f"s_branch {Lph2}")
    A(f"{Lph2}:")
    A(f"VMSEED w17*8 x17*8 st*{NE}")
    stamp(1, True)
    stq = [st1(n) for n in range(NE, 32)]
    per = [int(x) for x in opt("trk", "6/6/6/6").split("/")]
    lastp = [x for n in range(31, 23, -1) for x in pack1(n)]
    sK, sV = r.sK, r.sV
    att = [f"s_lshl_b32 s{sT2}, s{sT}, 1", f"s_sub_u32 s{sT3}, 32, s{sT2}",
           f"s_min_u32 s{r.sL}, s{sT3}, {SPLIT}",
           f"s_lshl_b32 s{r.sWrap}, s{sT3}, 15",
           f"s_cmp_gt_u32 s{sT3}, {SPLIT}\ns_cselect_b32 s{r.sMode}, 1, 0",
           f"s_and_b32 s{r.sQs+2}, s{r.sMode}, s{sP}", f"s_mul_i32 s{r.sQs+2}, s{r.sQs+2}, {WS_SIZE}",
           f"s_mov_b64 s[{r.sQs}:{r.sQs+1}], s[{sO}:{sO+1}]", f"s_mov_b32 s{r.sQs+3}, 0x00020000",
           f"s_lshl_b32 s{r.sMode}, s{r.sMode}, s{sP}",
           f"s_sub_u32 s{r.sQ}, 15, s{sT}",
           f"s_cmp_eq_u32 s{r.sMode}, 1\ns_cselect_b32 s{r.sQ}, s{r.sQ}, s{r.sOwn}\ns_cselect_b32 s{r.sJ}, {SPLIT}, 0\ns_cselect_b32 s{r.sWrap}, s{r.sWrap}, -1",
           f"s_add_u32 s{sT2}, s{sT2}, 2",
           f"s_cmp_eq_u32 s{sP}, 1\ns_cselect_b32 s{r.sL}, s{r.sL}, s{sT2}",
           f"s_lshl_b32 s{sK+2}, s{r.sL}, 15",
           f"s_cmp_eq_u32 s{r.sMode}, 1\ns_cselect_b32 s{r.sL}, s{sT3}, s{r.sL}\ns_cselect_b32 s{sK+2}, {MB}, s{sK+2}",
           f"s_sub_u32 s{r.sL}, s{r.sL}, 1", f"s_mov_b32 s{sV+2}, s{sK+2}", f"s_mov_b32 s{sK+3}, 0x00020000", f"s_mov_b32 s{sV+3}, 0x00020000",
           f"s_lshl_b32 s{sT2}, s{sH}, 20",
           f"s_add_u32 s{sK}, s{sO}, s{sT2};@\ns_addc_u32 s{sK+1}, s{sO+1}, 0;@\ns_add_u32 s{sV}, s{sK}, {WS_V};@\ns_addc_u32 s{sV+1}, s{sK+1}, 0",
           f"s_lshl_b32 s{r.sVo}, s{r.sJ}, 15", f"s_add_u32 s{r.sKo}, s{r.sVo}, s{sC8}",
           f"s_cmp_eq_u32 s{r.sKo}, s{r.sWrap}\ns_cselect_b32 s{r.sKo}, 0, s{r.sKo}",
           f"s_lshl_b32 s{sT2}, s{sW}, 13", f"v_add_u32 v2, s{sT2}, v{vLane16}", f"v_add_u32 v5, 4096, v2", f"s_mov_b32 s{sXo1}, s{sT2}"]
    def atomic_items(l): return [(t.replace(";@", ""), ) for t in l]
    def evenk(items, lo, hi):
        n = len(items); return [(t.replace(";@", ""), lo, hi, lo + (k + 0.5) * (hi - lo + 1) / n - 0.5, "") for k, t in enumerate(items)]
    def kv(srd, sof, lds, tag):
        out = []
        for p in range(8):
            if p % 4 == 0: out.append(f"s_add_u32 m0, s{sXo1}, {lds + p*1024}\ns_nop 0")
            out.append(f"buffer_load_dwordx4 v{2 if p < 4 else 5}, s[{srd}:{srd+3}], s{sof} offen offset:{(p&3)*1024} {flags('kvld', 'sc1')} lds ; vm:{tag}")
        return out
    scale_setup = [f"v_mov_b32 v{vT}, 0x{f32bits(LOG2E/16.0):08x}", f"v_mov_b32 v{vT+1}, v{vT}", f"v_mov_b32 v{vT+2}, 0x{f32bits(LOG2E/math.sqrt(28.0)):08x}", f"v_mov_b32 v{vT+3}, v{vT+2}", "v_cmp_gt_u32 vcc, 48, v0",
                   f"s_lshl_b32 s{sAo}, s{sBb}, 13", f"s_add_u32 s{sAo}, s{sAo}, {WS_Q}", f"s_add_u32 s{sWd}, s{sAo}, 8192", f"s_lshl_b32 s{sBb}, s{sBb}, 10"]
    def qepi(ds):
        out = []
        for e in range(2):
            regs = []
            for j in (2*ds, 2*ds+1):
                kk, rr = accq(j, e)
                if kk == "a":
                    tb = 128 + 16 * (ds % 4) + 8 * e + 4 * (j & 1)
                    out += [f"v_accvgpr_read_b32 v{tb+q}, a{rr+q}" for q in range(4)]; rr = tb
                regs.append(rr)
            for rr in regs: out += [f"v_pk_mul_f32 {v(rr+2*q,2)}, {v(rr+2*q,2)}, {v(vT,2)}" for q in range(2)]
            out.append(("R", regs))
        res = [x for x in out if not isinstance(x, tuple)]
        for e, regs in enumerate([x[1] for x in out if isinstance(x, tuple)]):
            res += pk4(regs[0], regs[1])
            res += [f"v_accvgpr_write_b32 a{r.aQ+4*(2*ds+e)+q}, v{regs[0]+q}" for q in range(4)]
            if ds == 4: res.append(f"s_add_u32 s{sAo if e == 0 else sWd}, s{sAo if e == 0 else sWd}, 4096")
            res.append(f"buffer_store_dwordx4 {v(regs[0],4)}, v{vLane16}, s[{r.sQs}:{r.sQs+3}], s{sAo if e == 0 else sWd} offen offset:{(ds&3)*1024} sc1 ; vm:q")
        return res

    order = [i_ for i_, x in pre_reads(0)]; done = -1
    Lsp1 = A.label("F_sp1"); Lsp1r = A.label("F_sp1r"); Lsp2 = A.label("F_sp2"); Lsp2r = A.label("F_sp2r")
    for st in range(7):
        t = 16 + st
        ms = kstep_mf(2*st) + kstep_mf(2*st+1)
        pos = lambda k, q: 46 * (k & 1) + 2 + 2 * q
        rd = []
        for k in (2*st, 2*st+1):
            for q in range(22):
                if k == 2*st and q < NPRE: continue
                if k & 1 and q == 0:
                    for i_, x in xr_items(k): rd.append((x, 2, 40, pos(k, 0) - 2*RA - 2, "rd:" + i_))
                n = 22 * (k & 1) + q
                lo = 0 if n < 16 else pos(k if q >= 16 else k - 1, (n - 16) % 22) + 1
                d = min(max(pos(k, q) - 2*RA, (n - NPRE) + 0.0), BP - 5 - (43 - n) * 1.0)
                for tt, (i_, x) in enumerate(rd_items(k, q)): rd.append((x, lo, min(pos(k, q) - 3, BP - 4), max(lo, d + 0.5 * tt), "rd:" + i_))
        nxt = []
        if st < 6:
            nxt = even(adv2(t), BP - 3, BP + 1) + [(x, BP + 1, 91, BP + 1.5 + k * 0.8, "rd:" + i_) for k, (i_, x) in enumerate(pre_reads(st + 1))]
        mine = [stq.pop(0) for _ in range(per[st])] if st < len(per) else []
        strs = [rd + nxt]
        vm = []
        if st >= 1 and t + 1 <= 22: vm += dmaX(2, f"x{t+1}")
        vm += mine
        if st == 2: vm += [f"s_lshl_b32 s{sT2}, s{sH}, 4", f"buffer_load_dword v{vPoll}, v{vOne0}, s[{sG}:{sG+3}], s{sT2} offen sc1 ; vm:pi"]
        if t + 2 <= 22: vm += dmaW(2, f"w{t+2}")
        if st == 5: vm += [f"v_mov_b32 v{vPoll}, 0", f"buffer_load_dword v{vPoll}, v{vPoll}, {so}, s{r.sFh} offen sc1 ; vm:pk"]
        if st == 6: vm += kv(sK, r.sVo, 0x8000, "k0") + kv(sV, r.sVo, WS0 + 2*0x8000, "v0") + kv(sV, r.sKo, WS0, "v1")
        if vm: strs.append(even(vm, 0, BP - 2 if st != 6 else 60))
        if st == 0: strs.append(even(lastp, 0, 26))
        if st == 1: strs.append(evenk(att, 2, 88))
        sync = {4: f"WAITVM x21,w21,st lgkmcnt(0)\ns_barrier", 5: "WAITVM x22,w22,pk lgkmcnt(0)\ns_barrier", 6: "WAITVM k0 lgkmcnt(0)\ns_barrier"}.get(st, f"WAITVM x{t+1},w{t+1} lgkmcnt(0)\ns_barrier")
        fixed = [(BP, "sync", sync)]
        if st == 4:
            fixed.append((BP + 2, "", f"v_readfirstlane_b32 s{sT2}, v{vPoll}\nv_mov_b32 v{vT}, 1\ns_or_b32 s{sT2}, s{sT2}, s{sW}\ns_cbranch_scc0 {Lsp1}\n{Lsp1r}:\nbuffer_atomic_add v{vT}, v{vOne0}, {so}, s{r.sFh} offen sc1 ; vm:at"))
        if st == 5:
            fixed.append((BP + 4, "", f"v_readfirstlane_b32 s{sT2}, v{vPoll}\ns_nop 0\ns_cmp_lg_u32 s{sT2}, 16\ns_cbranch_scc1 {Lsp2}\n{Lsp2r}:"))
        if st == 6:
            strs.append(even(scale_setup, 30, 44))
            ep = []
            for ds in range(8):
                dn = 46 + 2 + 4 * ds + 4 + 7
                l = qepi(ds)
                ep += [(x, min(dn, 91), 91, min(91, dn + 4.0 * k / len(l) + ds * 1.0), "") for k, x in enumerate(l)]
            strs.append(ep)
            strs.append(even(kv(sK, r.sKo, 0, "k1"), BP + 1, 91))
        pl = sched3(92, strs, fixed)
        ev = {}
        for p, k, x in pl: ev.setdefault(p, []).append((k, x))
        def need(g):
            nonlocal done
            if g >= 92: return
            idx = max(order.index(x) for x in ms[g][1])
            if idx > done:
                if g + 2 < 92 and all(x in order for x in ms[g+2][1]): idx = max(idx, max(order.index(x) for x in ms[g+2][1]))
                cnt = len(order) - 1 - idx
                assert cnt <= 15, cnt
                A(f"s_waitcnt lgkmcnt({cnt})"); done = idx
        need(0)
        for g in range(92):
            A(ms[g][0])
            lst = ev.get(g, [])
            if not any(k == "sync" for k, x in lst): need(g + 1)
            for k, x in lst:
                A(x)
                if k.startswith("rd:"): order.append(k[3:])
                elif k == "sync": done = len(order) - 1
        if st == 5: stamp(3)
        if st < 6: stamp(2 + st, True)
    assert not stq
    A(f"v_mul_f32 v32, 0x{f32bits(-LOG2E):08x}, v32\nv_mul_f32 v33, 0x{f32bits(-LOG2E):08x}, v36\nv_exp_f32 v32, v32\nv_exp_f32 v33, v33\ns_add_u32 s{sT2}, s{sBb}, {WS_KB}\nv_add_f32 v32, 1.0, v32\nv_add_f32 v33, 1.0, v33\nv_rcp_f32 v32, v32\nv_rcp_f32 v33, v33\ns_add_u32 s{sT3}, s{sBb}, {WS_VB}")
    for e in range(2):
        r0, r1 = accb(0, e), accb(1, e)
        for q in range(4): A(f"v_pk_mul_f32 {v(r0+2*q,2)}, {v(r0+2*q,2)}, {v(vT+2,2)}")
        for x in pk4(r0, r1): A(x)
        A(f"v_cndmask_b32 v{r0+2}, 0, v{r0+2}, vcc\nv_cndmask_b32 v{r0+3}, 0, v{r0+3}, vcc")
        for q in range(4): A(f"v_accvgpr_write_b32 a{r.bq+4*e+q}, v{r0+q}")
        r0, r1 = accb(2, e), accb(3, e)
        for x in pk4(r0, r1): A(x)
        for q in range(4): A(f"v_accvgpr_write_b32 a{r.bk+4+4*e+q}, v{r0+q}")
        if e == 1: A(f"buffer_store_dwordx4 {v(r0,4)}, v{vLane16}, {so}, s{sT2} offen offset:1024 sc1 ; vm:q")
    for db in range(2):
        r0, r1 = accb(4+db, 0), accb(4+db, 1)
        for x in pk4(r0, r1): A(x)
        for q in range(4): A(f"v_accvgpr_write_b32 a{r.bv+4*db+q}, v{r0+q}")
        for q in range(2): A(f"v_accvgpr_write_b32 a{r.bm+4*db+q}, v{r0+q}")
        A(f"buffer_store_dwordx4 {v(r0,4)}, v{vLane16}, {so}, s{sT3} offen offset:{db*1024} sc1 ; vm:q")
    A("VMEND")
    def spins():
        A(f"{Lsp1}:\n" + r.bound(Lsp1r) + f"s_lshl_b32 s{sT3}, s{sH}, 4\nbuffer_load_dword v{vPoll}, v{vOne0}, s[{sG}:{sG+3}], s{sT3} offen sc1\ns_waitcnt vmcnt(0)\nv_readfirstlane_b32 s{sT2}, v{vPoll}\ns_nop 3\ns_cmp_eq_u32 s{sT2}, 0\ns_cbranch_scc1 {Lsp1}\ns_branch {Lsp1r}")
        A(f"{Lsp2}:\n" + r.bound(Lsp2r) + f"v_mov_b32 v{vPoll}, 0\nbuffer_load_dword v{vPoll}, v{vPoll}, {so}, s{r.sFh} offen sc1\ns_waitcnt vmcnt(0)\nv_readfirstlane_b32 s{sT2}, v{vPoll}\ns_nop 3\ns_cmp_lg_u32 s{sT2}, 16\ns_cbranch_scc1 {Lsp2}\ns_branch {Lsp2r}")
    return dict(spins=spins, sBb=sBb)
```

```python
from asmlib import *
from k1 import MB, WS_K, WS_V, WS_Q, WS_KB, WS_VB, WS_FLAG, WS_CTX, WS_PART, WS_WO, WS_SIZE, f32bits, LOG2E, MF
from f1a import R_, gen_part1, SPLIT

R = opti("R", 12)
WG = opti("wg", 4)
NK0 = opti("nk0", 10)
MPOS = 24
PART_STRIDE = 17 * 1024

def gen_f1(A, name="f1_kernel", stamps=False):
    Lend = A.label("F_end")
    p1 = gen_part1(A, name, stamps, Lend)
    r = R_
    sK, sV, sWS = r.sK, r.sV, r.sO
    sW, sH, sI, sTy = r.sW, r.sH, r.sI, r.sP
    sKo, sWrap = r.sKo, r.sWrap
    sKl, sVl = 28, 29
    sVs, sVrs, sVd = 30, 31, 32
    sQ, sJ, sL, sMode = r.sQ, r.sJ, r.sL, r.sMode
    sDiag, sPub, sPo, sFp, sFn = 33, 34, 35, 44, 45
    sFo = r.sFo
    sT0, sT1, sT2, sT3 = r.sT0, r.sT1, r.sT2, r.sT3
    sC8 = r.sC8
    sM = 36; sM1 = 66
    sBb = p1["sBb"]
    SR = r.SR
    vL16, vDm, vKr, vVr, vBase, vD, vNeg = 1, 2, 3, 4, 27, 6, 7
    vT = 8
    vG = 32; vTs = 34; vLs = 38; vNm = 40
    vP = 48; vS = 64; vp = 96; vO = 128
    aQ = r.aQ; aF = r.aF
    VS0 = 65536
    BIG = 0x40000000
    def stamp(i):
        if stamps and not opti("p2st"): A(f"{'s_memtime' if opti('cyc') else 's_memrealtime'} s[{SR[i]}:{SR[i]+1}]")
    def Ob(db, qb): return vO + 4 * (2 * db + qb)
    def Sb(kb, qb): return vS + 4 * (2 * kb + qb)
    def pb(kb, qb): return vp + 4 * (2 * kb + qb)
    def Pf(ks, qb): return vP + 4 * (2 * ks + qb)
    def fr(f): return a(aF + 4 * (f % 16), 4)
    def rdK(f): return f"ds_read_b128 {fr(f)}, v{vKr} offset:{f*1024}"
    def rdV(f): return f"ds_read_b128 {fr(f)}, v{vVr} offset:{f*1024}"

    vDm2 = 5
    sVn, sVe, sVb = sVs, sVrs, sVd
    def dma(kind, so=sKo):
        srd, lb = (sK, sKl) if kind == "K" else (sV, sVl)
        out = []
        for p in range(8):
            if p == 0: out.append(f"s_mov_b32 m0, s{lb}\ns_nop 0" if kind == "K" else f"s_mov_b32 m0, s{lb}\ns_nop 0")
            if p == 4: out.append(f"s_add_u32 m0, s{lb}, 4096\ns_nop 0")
            out.append(f"buffer_load_dwordx4 v{vDm if p < 4 else vDm2}, s[{srd}:{srd+3}], s{so} offen offset:{(p&3)*1024} {flags('kvld', 'sc1')} lds")
        out.append(f"s_xor_b32 s{lb}, s{lb}, s{sC8}" if kind == "K" else f"s_mov_b32 s{sVl}, s{sVn}")
        return out
    def nonop(l): return [x.replace("\ns_nop 0", "") for x in l]
    advO = f"s_add_u32 s{sKo}, s{sKo}, s{sC8}\ns_cmp_eq_u32 s{sKo}, s{sWrap}\ns_cselect_b32 s{sKo}, 0, s{sKo}"
    nextV = f"s_add_u32 s{sVn}, s{sVl}, s{sC8}\ns_cmp_eq_u32 s{sVn}, s{sVe}\ns_cselect_b32 s{sVn}, s{sVb}, s{sVn}"
    setVr = f"v_add_u32 v{vVr}, s{sVn}, v26"
    advK = f"v_xor_b32 v{vKr}, 0x8000, v{vKr}"

    ABL = [0]
    def phase(mf, events, pre):
        order = list(range(pre))
        done = -1
        def emit(lst):
            nonlocal done
            for kind, text in lst:
                ab = opt("abl", "") if ABL[0] else ""
                skip = ("e" in ab and text.startswith("v_exp")) or ("a" in ab and text.startswith("v_add_f32")) or ("c" in ab and text.startswith("v_cvt")) or ("d" in ab and text.startswith("buffer_load")) or ("r" in ab and text.startswith("ds_read")) or ("b" in ab and "s_barrier" in text)
                if not skip: A(text)
                if kind.startswith("rd:"): order.append(int(kind[3:]))
                elif kind == "rdx": order.append(-1)
                elif kind == "sync": done = len(order) - 1
        def need_wait(f):
            nonlocal done
            if f < 32 and order.index(f) > done:
                need = order.index(f)
                for g in range(f + 1, min(32, (f // WG + 1) * WG)):
                    if g in order: need = max(need, order.index(g))
                cnt = len(order) - 1 - need
                assert cnt <= 15
                A(f"s_waitcnt lgkmcnt({cnt})"); done = need
        emit(events.get(-1, []))
        need_wait(0)
        for f in range(32):
            m = mf(f)
            A(m[0]); emit(events.get(2 * f, []))
            A(m[1])
            lst = events.get(2 * f + 1, [])
            if not any(k == "sync" for k, t in lst): need_wait(f + 1)
            emit(lst)
    def add_ev(ev, items):
        for p, k, t in items: ev.setdefault(p, []).append((k, t))
    def mfQK(f):
        kb, ds = f >> 3, f & 7
        return [f"{MF} {v(Sb(kb,qb),4)}, {fr(f)}, {a(aQ+4*(2*ds+qb),4)}, {v(vNm+4*qb,4) if ds == 0 else v(Sb(kb,qb),4)}" for qb in range(2)]
    def mfPV(f):
        ks, db = f >> 4, f & 15
        return [f"{MF} {v(Ob(db,qb),4)}, {fr(f)}, {v(Pf(ks,qb),4)}, {v(Ob(db,qb),4)}" for qb in range(2)]
    def cvts():
        out = []
        for ks in range(2):
            for qb in range(2):
                for hh in range(2):
                    src = pb(2*ks+hh, qb)
                    out.append(f"v_cvt_pk_bf16_f32 v{Pf(ks,qb)+2*hh}, v{src}, v{src+1}")
                    out.append(f"v_cvt_pk_bf16_f32 v{Pf(ks,qb)+2*hh+1}, v{src+2}, v{src+3}")
        return out
    def xl_reduce(op, r, t):
        return (f"v_mov_b32 v{t}, v{r}\ns_nop 1\nv_permlane16_swap_b32 v{r}, v{t}\ns_nop 1\n{op} v{r}, v{r}, v{t}\n"
                f"v_mov_b32 v{t}, v{r}\ns_nop 1\nv_permlane32_swap_b32 v{r}, v{t}\ns_nop 1\n{op} v{r}, v{r}, v{t}")
    def mask_block():
        A(f"s_sub_u32 s{sT0}, s{sJ}, s{sDiag}\ns_lshl_b32 s{sT0}, s{sT0}, 6\nv_subrev_u32 v{vD}, s{sT0}, v{vBase}")
        for c in range(-1, 4):
            for i in range(4):
                A(f"v_cmp_gt_i32 s[{sM+2*i}:{sM+2*i+1}], {16*c+i}, v{vD}")
            A("s_nop 0")
            for i in range(4):
                for qb in range(2):
                    kb = c + qb
                    if 0 <= kb < 4:
                        x = Sb(kb, qb) + i
                        A(f"v_cndmask_b32 v{x}, v{x}, v{vNeg}, s[{sM+2*i}:{sM+2*i+1}]")
    def slow(first):
        for qb in range(2):
            m = vT + qb
            regs = [Sb(kb, qb) + i for kb in range(4) for i in range(4)]
            A(f"v_max3_f32 v{m}, v{regs[0]}, v{regs[1]}, v{regs[2]}")
            for x in range(3, 15, 2): A(f"v_max3_f32 v{m}, v{m}, v{regs[x]}, v{regs[x+1]}")
            A(f"v_max_f32 v{m}, v{m}, v{regs[15]}")
            A(xl_reduce("v_max_f32", m, vT + 2))
            if not first: A(f"v_max_f32 v{m}, 0, v{m}")
            for i in range(4): A(f"v_sub_f32 v{vNm+4*qb+i}, v{vNm+4*qb+i}, v{m}")
            if not first:
                A(f"v_sub_f32 v{vT+4+qb}, 0, v{m}\nv_exp_f32 v{vT+4+qb}, v{vT+4+qb}\ns_nop 0\nv_mul_f32 v{vLs+qb}, v{vLs+qb}, v{vT+4+qb}")
                for db in range(16):
                    for i in range(4): A(f"v_mul_f32 v{Ob(db,qb)+i}, v{Ob(db,qb)+i}, v{vT+4+qb}")
            for kb in range(4):
                for i in range(4): A(f"v_sub_f32 v{pb(kb,qb)+i}, v{Sb(kb,qb)+i}, v{m}")
            for kb in range(4):
                for i in range(4): A(f"v_exp_f32 v{pb(kb,qb)+i}, v{pb(kb,qb)+i}")
            A("s_nop 0")
            t = vTs + 2 * qb
            A(f"v_add_f32 v{t}, v{pb(0,qb)}, v{pb(0,qb)+1}")
            for x in range(2, 16): A(f"v_add_f32 v{t}, v{t}, v{pb(x>>2,qb)+(x&3)}")

    ws = f"s[{sWS}:{sWS+3}]"
    vFlag, vZ, vOneL = 30, 29, 24
    stamp(4)
    A(f"s_lshl_b32 s{sT0}, s{sW}, 13\ns_add_u32 s{sKl}, s{sT0}, 0x8000\ns_add_u32 s{sVb}, s{sT0}, {VS0}\ns_add_u32 s{sVl}, s{sVb}, 0x8000\ns_add_u32 s{sVe}, s{sVb}, {3*0x8000}\nv_subrev_u32 v26, s{sT0}, v{vL16}")
    A(f"v_add_u32 v{vKr}, 0x8000, v{vL16}\nv_mov_b32 v{vNeg}, 0x{f32bits(-1e30):08x}\nv_mov_b32 v{vZ}, 0\nv_mov_b64 v[{vFlag}:{vFlag+1}], 0\ns_mov_b32 s{sPub}, 0\ns_lshl_b32 s{sDiag}, s{sQ}, 1")
    A(advO)
    A(f"v_and_b32 v{vT}, 15, v0\nv_lshrrev_b32 v28, 4, v0\nv_lshlrev_b32 v28, 2, v28\nv_sub_u32 v28, v{vT}, v28\ns_lshl_b32 s{sT0}, s{sW}, 5\nv_add_u32 v{vBase}, s{sT0}, v28")
    A(f"v_cmp_eq_u32 vcc, 0, v0\nv_mov_b32 v{vOneL}, {BIG}\ns_xor_b32 s{sFp}, s{sFo}, {64 << 7}\nv_cndmask_b32 v{vOneL}, v{vOneL}, 0, vcc")
    A(f"s_and_b32 s{sT0}, s2, 63\ns_lshr_b32 s{sT1}, s2, 7\ns_lshl_b32 s{sT1}, s{sT1}, 6\ns_or_b32 s{sT0}, s{sT0}, s{sT1}\ns_lshl_b32 s{sT0}, s{sT0}, 2\ns_add_u32 s46, s{sT0}, s{sW}\ns_mul_i32 s{sPo}, s46, {PART_STRIDE}\ns_add_u32 s{sPo}, s{sPo}, {WS_PART}")
    A(f"s_add_u32 s{sT0}, s{r.sOwn}, 1\ns_sub_u32 s{sT1}, 23, s{sT0}\ns_cmp_ge_u32 s{sT0}, 8\ns_cselect_b32 s{sT1}, s{sT1}, s{sT0}\ns_lshl_b32 s{sT1}, s{sT1}, 10\ns_add_u32 s{sFn}, s{r.sFh}, s{sT1}\ns_sub_u32 s{sFn}, s{sFn}, 8")
    A(f"s_cmp_eq_u32 s{sT0}, 16\ns_cselect_b32 s{sFn}, {BIG}, s{sFn}\ns_cmp_lg_u32 s{sW}, 3\ns_cselect_b32 s{sFn}, {BIG}, s{sFn}")
    for i in range(vNm, vNm + 8, 2): A(f"v_mov_b64 {v(i,2)}, 0")
    Lloop = A.label("F2_loop"); Lqk = A.label("F2_qk"); Ltail = A.label("F2_tail"); Lfirst = A.label("F2_first")
    Lslow = A.label("F2_slow"); Lback = A.label("F2_back"); Lnm0 = A.label("F2_nm0"); Lnm1 = A.label("F2_nm1"); LA = A.label("F2_A"); Lnopark = A.label("F2_np"); Lpq = A.label("F2_pq"); Lnp2 = A.label("F2_np2")
    A(f"s_cmp_eq_u32 s{sTy}, 1\ns_cbranch_scc1 {LA}")
    sWo = r.sG
    A(f"v_lshrrev_b32 v{vT+2}, 4, v0\nv_mul_u32_u24 v{vT+2}, {4*896}, v{vT+2}\nv_lshl_add_u32 v{vT+2}, v{vT}, 3, v{vT+2}")
    for tk in range(2):
        so_ = 74 + tk
        if tk: A("s_add_u32 s46, s46, 512")
        A(f"s_mul_hi_u32 s47, s46, {(2**32 + 6)//7}\ns_mul_i32 s{sT0}, s47, 7\ns_sub_u32 s{sT0}, s46, s{sT0}")
        A(f"s_sub_u32 s{sT3}, s47, 128\ns_mul_i32 s{sT3}, s{sT3}, {28*896}\ns_mul_i32 s{sT2}, s47, {32*896}\ns_mov_b32 s{sWo+2}, {4096*896}\ns_cmp_ge_u32 s47, 128\ns_cselect_b32 s{sT2}, s{sT3}, s{sT2}")
        A(f"s_cselect_b64 s[{sWo}:{sWo+1}], s[0:1], s[18:19]\ns_cselect_b32 s{sWo+2}, {448*896}, s{sWo+2}")
        A(f"s_lshl_b32 s{sT3}, s{sT0}, 7\ns_add_u32 s{sT2}, s{sT2}, s{sT3}\ns_add_u32 s{sT3}, s{sT2}, {16*896}")
        for jj in range(8): A(f"buffer_load_dwordx2 {v(192+16*tk+2*jj,2)}, v{vT+2}, s[{sWo}:{sWo+3}], s{sT2 if jj < 4 else sT3} offen offset:{(jj&3)*896}")
        A(f"s_mul_i32 s{so_}, s{sT0}, {4*144}\ns_add_u32 s{so_}, s{so_}, s47\ns_lshl_b32 s{so_}, s{so_}, 10\ns_add_u32 s{so_}, s{so_}, {WS_WO}\ns_cmp_ge_u32 s46, 1008\ns_cselect_b32 s{so_}, {BIG}, s{so_}")
    A(f"s_cmp_lg_u32 s{sMode}, 1\ns_cbranch_scc1 {Lnopark}")
    for q in range(64): A(f"v_accvgpr_mov_b32 a{r.aPark+q}, a{aQ+q}")
    Lpqx = A.label("F2_pqx")
    A(f"{Lpq}:\n" + r.bound(Lpqx) + f"buffer_load_dword v{vFlag}, v{vZ}, {ws}, s{sFo} offen offset:8 sc1\ns_waitcnt vmcnt(0)\nv_readfirstlane_b32 s{sT0}, v{vFlag}\ns_nop 3\ns_cmp_lg_u32 s{sT0}, 4\ns_cbranch_scc1 {Lpq}\n{Lpqx}:")
    A(f"s_lshl_b32 s{sT2}, s{sH}, 7\ns_lshl_b32 s{sT3}, s{sQ}, 3\ns_add_u32 s{sT2}, s{sT2}, s{sT3}\ns_lshl_b32 s{sT3}, s{sW}, 1\ns_add_u32 s{sT2}, s{sT2}, s{sT3}\ns_lshl_b32 s{sT2}, s{sT2}, 13\ns_add_u32 s{sT2}, s{sT2}, {WS_Q}")
    for f in range(16):
        A(f"buffer_load_dwordx4 {a(aQ+4*(2*(f&7)+(f>>3)),4)}, v{vL16}, {ws}, s{sT2} offen offset:{(f&3)*1024} sc1")
        if f & 3 == 3: A(f"s_add_u32 s{sT2}, s{sT2}, 4096")
    A(f"s_branch {Lnp2}\n{Lnopark}:\ns_waitcnt vmcnt(0)\n{Lnp2}:")
    A(f"s_mov_b32 s{sT2}, 0x05040100\ns_mov_b32 s{sT3}, 0x07060302")
    for tk in range(2):
        for c in range(4):
            for m in range(4):
                A(f"v_perm_b32 v{96+16*tk+4*c+m}, v{192+16*tk+2*(2*m+1)+(c>>1)}, v{192+16*tk+2*(2*m)+(c>>1)}, s{sT2 if c % 2 == 0 else sT3}")
    for tk in range(2):
        for c in range(4): A(f"buffer_store_dwordx4 {v(96+16*tk+4*c,4)}, v{vL16}, {ws}, s{74+tk} offen sc1\ns_add_u32 s{74+tk}, s{74+tk}, {144*1024}")
    A("s_waitcnt vmcnt(8)")
    A(f"{LA}:")
    stamp(5)
    def qk_first(fill):
        pl = [x for x in sched3(64, [[(rdK(f), max(0, 2*(f-16)+1), 2*(f-R)+3, 2*(f-R)+1, f"rd:{f}") for f in range(R, 32)] + [(advK, 2*(31-R)+4, 63, 2*(31-R)+4, "")], even(fill, 0, 63)])]
        ev = {}
        add_ev(ev, [(-1, f"rd:{f}", rdK(f)) for f in range(R)])
        add_ev(ev, pl)
        phase(mfQK, ev, 0)
    qk_first([f"v_mov_b64 {v(i,2)}, 0" for i in range(vO, vO + 128, 2)])
    A(f"v_mov_b32 v{vT}, 1\ns_cmp_eq_u32 s{sMode}, 2\ns_cselect_b32 s{sT0}, s{sFp}, {BIG}\ns_waitcnt vmcnt(0) lgkmcnt(0)")
    A(f"buffer_atomic_add v{vT}, v{vOneL}, {ws}, s{sT0} offen offset:8 sc1\nbuffer_atomic_add v{vT}, v{vOneL}, {ws}, s{sFn} offen sc1\ns_barrier")
    bq, bk, bv, bm = r.bq, r.bk, r.bv, r.bm
    A(f"{Lfirst}:")
    for f in range(NK0): A(rdK(f))
    A(f"s_cmp_lt_u32 s{sJ}, s{sDiag}\ns_cbranch_scc1 {Lnm0}")
    mask_block()
    A(f"{Lnm0}:")
    slow(True)
    A(f"v_mov_b32 v{vLs}, 0\nv_mov_b32 v{vLs+1}, 0\ns_cmp_eq_u32 s{sPub}, 0\ns_cbranch_scc1 {Lback}")
    A(f"v_mov_b32 v{vT+1}, 1\ns_mov_b32 s{sPub}, 0\ns_waitcnt vmcnt(0)\nbuffer_atomic_add v{vT+1}, v{vOneL}, {ws}, s{sFp} offen sc1\ns_branch {Lback}")
    p1["spins"]()
    A(f"{Lslow}:")
    slow(False)
    A(f"s_branch {Lback}")
    A(f".p2align 6\n{Lloop}:")
    A(f"s_add_u32 s{sJ}, s{sJ}, 1\ns_cmp_lt_u32 s{sJ}, s{sDiag}\ns_cbranch_scc1 {Lnm1}")
    mask_block()
    A(f"{Lnm1}:")
    def wait_load(upto=32):
        return [(2*f-1, "ph", "s_waitcnt") for f in range(WG, upto, WG)]
    drop = lambda pl: [x for x in pl if x[1] != "ph"]
    own = lambda rd, f0: [(rd(f), max(0, 2*(f-16)+1), max(2*(f-R)+3, f - f0 + 2), max(2*(f-R)+1, f - f0), f"rd:{f}") for f in range(f0, 32)]
    PK = opti("pk", 0)
    els = [(kb, qb, i) for kb in range(4) for qb in range(2) for i in range(4)]
    sm = []; seen = set(); pend = []
    for x, (kb, qb, i) in enumerate(els):
        sm.append(f"v_exp_f32 v{pb(kb,qb)+i}, v{Sb(kb,qb)+i}")
        sm += pend; pend = []
        if PK:
            if i & 1:
                t = vTs + 2*qb; rr = pb(kb, qb) + i - 1
                if t in seen: pend = [f"v_pk_add_f32 {v(t,2)}, {v(t,2)}, {v(rr,2)}"]
                elif i == 3: pend = [f"v_pk_add_f32 {v(t,2)}, {v(rr-2,2)}, {v(rr,2)}"]; seen.add(t)
        else:
            t = vTs + 2*qb + (i & 1); rr = pb(kb, qb) + i
            if t in seen: pend = [f"v_add_f32 v{t}, v{t}, v{rr}"]
            elif i >= 2: pend = [f"v_add_f32 v{t}, v{rr-2}, v{rr}"]; seen.add(t)
    kx = [(rdK(f), max(2*MPOS, 2*(f+16)+1), 63, 2*MPOS + f * 15.0 / NK0, "rdx") for f in range(NK0)]
    pl = drop(sched3(64, [own(rdV, R), kx, even(sm, 0, 62)], wait_load(MPOS) + [(2*MPOS-1, "sync", "s_waitcnt vmcnt(9) lgkmcnt(0)\ns_barrier")]))
    ev = {}
    add_ev(ev, pl)
    assert max(p for p, k, t in pl if k.startswith("rd:")) < 2*MPOS - 4
    ABL[0] = 1
    phase(mfPV, ev, R)
    for t in pend: A(t)
    A(f"v_add_f32 v{vTs}, v{vTs}, v{vTs+1}\nv_add_f32 v{vTs+2}, v{vTs+2}, v{vTs+3}\nv_max_f32 v{vT}, v{vTs}, v{vTs+2}\nv_cmp_nge_f32 vcc, 0x44800000, v{vT}")
    A(f"s_cbranch_vccnz {Lslow}\n{Lback}:" if not opt("abl") else f"{Lback}:")
    A(f"s_cmp_eq_u32 s{sJ}, s{sL}\ns_cbranch_scc1 {Ltail}")
    A(f"{Lqk}:")
    ladd = [f"v_add_f32 v{vLs}, v{vLs}, v{vTs}", f"v_add_f32 v{vLs+1}, v{vLs+1}, v{vTs+2}"]
    ko = own(rdK, NK0)
    lastk = 2*(31-R)+3
    vx = [(advK, lastk, 63, lastk, "")] + [(rdV(f), max(lastk, 2*(f+16)+1), 63, 2*(32-R+f)+1, "rdx") for f in range(R)]
    dm = nonop(dma("K")) + nonop(dma("V")) + [advO, f"buffer_load_dwordx2 v[{vFlag}:{vFlag+1}], v{vZ}, {ws}, s{sFo} offen sc1"]
    pl = drop(sched3(64, [ko + vx, even(dm, 0, 63), even(ladd + [nextV, setVr] + cvts(), 0, 44)], wait_load()))
    for x in range(len(pl) - 1):
        if "m0" in pl[x][2] and pl[x][0] == pl[x+1][0] and pl[x+1][2].startswith("buffer_load"):
            pl[x] = (pl[x][0], pl[x][1], pl[x][2] + "\ns_nop 0")
    ev = {}
    add_ev(ev, pl)
    phase(mfQK, ev, NK0)
    ABL[0] = 0
    A(f"s_branch {Lloop}")
    def pv_last(fill):
        ev = {}
        add_ev(ev, [(2*(f-R)+1, f"rd:{f}", rdV(f)) for f in range(R, 32)])
        add_ev(ev, [(p, "", t) for p, t in fill])
        phase(mfPV, ev, R)
    def pack(qb, g):
        r0, r1 = Ob(2*g, qb), Ob(2*g+1, qb)
        return [f"v_cvt_pk_bf16_f32 v{r0}, v{r0}, v{r0+1}", f"v_cvt_pk_bf16_f32 v{r0+1}, v{r0+2}, v{r0+3}", f"v_cvt_pk_bf16_f32 v{r0+2}, v{r1}, v{r1+1}", f"v_cvt_pk_bf16_f32 v{r0+3}, v{r1+2}, v{r1+3}"]
    def part_loads():
        out = [f"s_add_u32 s{sT2}, s{sPo}, 16384\nbuffer_load_dwordx4 {v(vT,4)}, v{vL16}, {ws}, s{sT2} offen sc1"]
        for n in range(16):
            t = f"s_add_u32 s{sT2}, s{sPo}, {(n>>2)*4096}\n" if n & 3 == 0 else ""
            out.append(t + f"buffer_load_dwordx4 {v(vS+4*n,4)}, v{vL16}, {ws}, s{sT2} offen offset:{(n&3)*1024} sc1")
        return out
    Lt1 = A.label("K2_t1"); Lt2 = A.label("K2_t2"); Lt0 = A.label("K2_t0"); Lmerge = A.label("K2_merge"); Lpoll = A.label("K2_poll"); Lst = A.label("K2_store"); Lfin = A.label("K2_fin")
    A(f"{Ltail}:")
    stamp(6)
    A(nextV); A(setVr)
    for f in range(R): A(rdV(f))
    for t in ladd: A(t)
    for t in cvts(): A(t)
    A(f"s_cmp_eq_u32 s{sMode}, 1\ns_cbranch_scc1 {Lt1}")
    Lh = A.label("F2_h"); Lhs = A.label("F2_hs")
    A(f"{Lhs}:\ns_waitcnt vmcnt(0)\nv_readfirstlane_b32 s46, v{vFlag}\nv_readfirstlane_b32 s47, v{vFlag+1}\ns_cmp_eq_u32 s{r.sOwn}, 0\ns_cselect_b32 s{sT0}, 1, 0\ns_or_b32 s{sT0}, s{sT0}, s{sW}\ns_or_b32 s47, s47, s{sT0}\ns_cbranch_scc1 {Lh}")
    A(r.bound(Lh) + f"buffer_load_dwordx2 v[{vFlag}:{vFlag+1}], v{vZ}, {ws}, s{sFo} offen sc1\ns_branch {Lhs}\n{Lh}:")
    A(f"s_add_u32 s{sT2}, s{sBb}, {WS_KB - 1024}\ns_add_u32 s{sT3}, s{sBb}, {WS_VB - 2048}\ns_or_b32 s{sT0}, s{r.sOwn}, s{sW}\ns_cselect_b32 s{sT2}, s{sT2}, {BIG}\ns_cselect_b32 s{sT3}, s{sT3}, {BIG}")
    A(f"buffer_load_dwordx4 {a(bk,4)}, v{vL16}, {ws}, s{sT2} offen sc1")
    for db in range(2): A(f"buffer_load_dwordx2 {a(bm+4*db+2,2)}, v{vL16}, {ws}, s{sT3} offen offset:{db*1024+8} sc1")
    A(f"s_cmp_lg_u32 s46, 4\ns_cbranch_scc1 {Lt0}")
    pv_last(spread(part_loads(), 0, 34))
    A(f"s_branch {Lmerge}")
    A(f"{Lt0}:")
    pv_last([])
    A(f"s_cmp_eq_u32 s{sMode}, 0\ns_cbranch_scc1 {Lfin}")
    Lpx = A.label("F2_px")
    A(f"{Lpoll}:\n" + r.bound(Lpx) + f"buffer_load_dword v{vFlag}, v{vZ}, {ws}, s{sFo} offen sc1\ns_waitcnt vmcnt(0)\nv_readfirstlane_b32 s46, v{vFlag}\ns_nop 3\ns_cmp_lg_u32 s46, 4\ns_cbranch_scc1 {Lpoll}\n{Lpx}:")
    for t in part_loads(): A(t)
    A(f"{Lmerge}:\ns_waitcnt vmcnt(16)")
    fA, fB = vT + 4, vT + 6
    for qb in range(2):
        A(f"v_min_f32 v{vT+8}, v{vNm+4*qb}, v{vT+qb}\nv_sub_f32 v{fA+qb}, v{vT+8}, v{vNm+4*qb}\nv_sub_f32 v{fB+qb}, v{vT+8}, v{vT+qb}\nv_exp_f32 v{fA+qb}, v{fA+qb}\nv_exp_f32 v{fB+qb}, v{fB+qb}\ns_nop 0")
        A(f"v_mul_f32 v{vLs+qb}, v{vLs+qb}, v{fA+qb}\nv_fmac_f32 v{vLs+qb}, v{vT+2+qb}, v{fB+qb}")
        A(xl_reduce("v_add_f32", vLs+qb, vT+8))
        A(f"v_rcp_f32 v{vLs+qb}, v{vLs+qb}\ns_nop 0\nv_mul_f32 v{vLs+qb}, v{vLs+qb}, v{vG+qb}\nv_mul_f32 v{fA+qb}, v{fA+qb}, v{vLs+qb}\nv_mul_f32 v{fB+qb}, v{fB+qb}, v{vLs+qb}")
    def ctx_base():
        A(f"s_lshl_b32 s{sT0}, s{sQ}, 3\ns_lshl_b32 s{sT1}, s{sW}, 1\ns_add_u32 s{sT0}, s{sT0}, s{sT1}\ns_mul_i32 s{sT0}, s{sT0}, 144\ns_lshl_b32 s{sT1}, s{sH}, 3\ns_add_u32 s{sT0}, s{sT0}, s{sT1}\ns_lshl_b32 s{sT0}, s{sT0}, 10\ns_add_u32 s{sT0}, s{sT0}, {WS_CTX}")
    def ctx_store(qb, g):
        for t in pack(qb, g): A(t)
        if g & 3 == 0: A(f"s_add_u32 s{sT1}, s{sT0}, {qb*144*1024 + (g>>2)*4096}")
        A(f"buffer_store_dwordx4 {v(Ob(2*g,qb),4)}, v{vL16}, {ws}, s{sT1} offen offset:{(g&3)*1024} {flags('st3')}")
    sel = lambda qb: f"op_sel:[0,{qb}] op_sel_hi:[1,{qb}]"
    sel3 = lambda qb: f"op_sel:[0,{qb},0] op_sel_hi:[1,{qb},1]"
    ctx_base()
    A(f"s_mov_b32 s{sT3}, 0xffff0000")
    nst = 0
    for qb in range(2):
        for g in range(8):
            n = qb * 8 + g
            if n % 4 == 0: A(f"s_waitcnt vmcnt({12 - n + nst})")
            for hh in range(4):
                o = Ob(2*g + (hh >> 1), qb) + 2 * (hh & 1); rr = vS + 4*n + hh; t = vT + 10 + 2 * (hh & 1)
                A(f"v_lshlrev_b32 v{t}, 16, v{rr}\nv_and_b32 v{t+1}, s{sT3}, v{rr}\nv_pk_mul_f32 {v(o,2)}, {v(o,2)}, {v(fA,2)} {sel(qb)}\nv_pk_fma_f32 {v(o,2)}, {v(t,2)}, {v(fB,2)}, {v(o,2)} {sel3(qb)}")
            ctx_store(qb, g); nst += 1
    Lbt = A.label("F2_bt")
    A(f"s_branch {Lbt}")
    A(f"{Lt1}:")
    A(f"s_mov_b32 s{sQ}, s{sI}\ns_lshl_b32 s{sK+2}, s{sI}, 16\ns_add_u32 s{sK+2}, s{sK+2}, 0x10000\ns_mov_b32 s{sV+2}, s{sK+2}")
    pv_last(sched(64, [(dma("K") + dma("V") + [advO], 0, 62), ([f"v_accvgpr_mov_b32 a{aQ+q}, a{r.aPark+q}" for q in range(64)], 0, 63)], None))
    A(f"v_mov_b32 v{vT}, v{vNm}\nv_mov_b32 v{vT+1}, v{vNm+4}\nv_mov_b32 v{vT+2}, v{vLs}\nv_mov_b32 v{vT+3}, v{vLs+1}")
    for i in range(vNm, vNm + 8): A(f"v_mov_b32 v{i}, 0")
    A(f"s_mov_b32 s{sPub}, 1\ns_mov_b32 s{sMode}, 0\ns_mov_b32 s{sJ}, 0\ns_lshl_b32 s{sDiag}, s{sQ}, 1\ns_add_u32 s{sL}, s{sDiag}, 1")
    A(f"s_add_u32 s{sT2}, s{sPo}, 16384\nbuffer_store_dwordx4 {v(vT,4)}, v{vL16}, {ws}, s{sT2} offen sc1")
    A("s_waitcnt vmcnt(17)\ns_barrier")
    fill = []
    prevz = []
    for qb in range(2):
        for g in range(8):
            n = qb * 8 + g
            fill += pack(qb, g)
            t = f"s_add_u32 s{sT2}, s{sPo}, {(n>>2)*4096}\n" if n & 3 == 0 else ""
            fill.append(t + f"buffer_store_dwordx4 {v(Ob(2*g,qb),4)}, v{vL16}, {ws}, s{sT2} offen offset:{(n&3)*1024} sc1")
            fill += prevz
            r0, r1 = Ob(2*g, qb), Ob(2*g+1, qb)
            prevz = [f"v_mov_b64 {v(x,2)}, 0" for x in (r1, r1+2, r0, r0+2)]
    fill += ["s_nop 1"] + prevz
    qk_first(fill)
    A(f"s_waitcnt vmcnt(17) lgkmcnt(0)\ns_barrier\ns_branch {Lfirst}")
    A(f"{Lfin}:\ns_waitcnt vmcnt(0)")
    for qb in range(2):
        A(xl_reduce("v_add_f32", vLs+qb, vT+8))
        A(f"v_rcp_f32 v{vLs+qb}, v{vLs+qb}\ns_nop 0\nv_mul_f32 v{vLs+qb}, v{vLs+qb}, v{vG+qb}")
    ctx_base()
    for qb in range(2):
        for g in range(8):
            for hh in range(4):
                o = Ob(2*g + (hh >> 1), qb) + 2 * (hh & 1)
                A(f"v_pk_mul_f32 {v(o,2)}, {v(o,2)}, {v(vLs,2)} {sel(qb)}")
            ctx_store(qb, g)
    A(f"{Lbt}:")
    bS, bP = 64, 96
    for e in range(2):
        A(f"{MF} {v(bS+8*e,4)}, {a(bk+4*(e+1),4)}, {a(bq+4*e,4)}, 0")
        A(f"{MF} {v(bS+8*e+4,4)}, {a(bk+4*e,4)}, {a(bq+4*e,4)}, 0")
    for i in range(4):
        A(f"v_subrev_u32 v{vT+2}, {i}, v28\nv_and_b32 v{vT+2}, 0x80000001, v{vT+2}\nv_bfrev_b32 v{vT+2}, v{vT+2}")
        A(f"v_cmp_eq_u32 s[{sM+2*i}:{sM+2*i+1}], 0, v{vT+2}\nv_cmp_eq_u32 s[{sM1+2*i}:{sM1+2*i+1}], 1, v{vT+2}")
    A(f"v_cmp_gt_u32 vcc, 48, v0\ns_nop 0")
    def each(fn):
        for e in range(2): A(fn(e))
    m = lambda e: vT + e
    tt = lambda e: vT + 4 + e
    l = lambda e: vT + 8 + e
    for e in (1, 0):
        s0 = bS + 8 * e
        if e == 0:
            A(f"s_or_b32 s{sT0}, s{r.sOwn}, s{sW}")
            for i in range(4): A(f"s_cselect_b64 s[{sM1+2*i}:{sM1+2*i+1}], s[{sM1+2*i}:{sM1+2*i+1}], 0")
        for i in range(4):
            A(f"v_cndmask_b32 v{s0+i}, v{vNeg}, v{s0+i}, s[{sM+2*i}:{sM+2*i+1}]")
            A(f"v_cndmask_b32 v{s0+4+i}, v{vNeg}, v{s0+4+i}, s[{sM1+2*i}:{sM1+2*i+1}]")
        A(f"v_max3_f32 v{m(e)}, v{s0}, v{s0+1}, v{s0+2}\nv_max3_f32 v{m(e)}, v{m(e)}, v{s0+3}, v{s0+4}\nv_max3_f32 v{m(e)}, v{m(e)}, v{s0+5}, v{s0+6}\nv_max_f32 v{m(e)}, v{m(e)}, v{s0+7}")
    def xl4(op, rg):
        for sw in ("v_permlane16_swap_b32", "v_permlane32_swap_b32"):
            each(lambda e: f"v_mov_b32 v{tt(e)}, v{rg(e)}")
            A("s_nop 1")
            each(lambda e: f"{sw} v{rg(e)}, v{tt(e)}")
            A("s_nop 1")
            each(lambda e: f"{op} v{rg(e)}, v{rg(e)}, v{tt(e)}")
    xl4("v_max_f32", m)
    for e in range(2):
        s0 = bS + 8 * e
        for i in range(8): A(f"v_sub_f32 v{s0+i}, v{s0+i}, v{m(e)}")
        for i in range(8): A(f"v_exp_f32 v{s0+i}, v{s0+i}")
    for e in range(2):
        s0 = bS + 8 * e
        lo, hi = (s0, s0 + 4) if e == 0 else (s0 + 4, s0)
        A(f"v_cvt_pk_bf16_f32 v{bP+4*e}, v{lo}, v{lo+1}\nv_cvt_pk_bf16_f32 v{bP+4*e+1}, v{lo+2}, v{lo+3}\nv_cvt_pk_bf16_f32 v{bP+4*e+2}, v{hi}, v{hi+1}\nv_cvt_pk_bf16_f32 v{bP+4*e+3}, v{hi+2}, v{hi+3}")
        A(f"v_add_f32 v{l(e)}, v{s0}, v{s0+1}")
        for i in range(2, 8): A(f"v_add_f32 v{l(e)}, v{l(e)}, v{s0+i}")
        for db in range(2):
            A(f"{MF} {v(s0+4*db,4)}, {a((bm if e == 0 else bv)+4*db,4)}, {v(bP+4*e,4)}, 0")
    xl4("v_add_f32", l)
    each(lambda e: f"v_rcp_f32 v{l(e)}, v{l(e)}\nv_sub_f32 v{vG+e}, 1.0, v{vG+e}\nv_mul_f32 v{l(e)}, v{l(e)}, v{vG+e}")
    A(f"s_lshl_b32 s{sT0}, s{r.sOwn}, 3\ns_lshl_b32 s{sT1}, s{sW}, 1\ns_add_u32 s{sT0}, s{sT0}, s{sT1}\ns_mul_i32 s{sT0}, s{sT0}, 144\ns_add_u32 s{sT0}, s{sT0}, s{sH}\ns_lshl_b32 s{sT0}, s{sT0}, 10\ns_add_u32 s{sT0}, s{sT0}, {WS_CTX + 128*1024}")
    for e in range(2):
        o = bS + 8 * e
        for i in range(8): A(f"v_mul_f32 v{o+i}, v{o+i}, v{l(e)}")
        A(f"v_cvt_pk_bf16_f32 v{o}, v{o}, v{o+1}\nv_cvt_pk_bf16_f32 v{o+1}, v{o+2}, v{o+3}\nv_cvt_pk_bf16_f32 v{o+2}, v{o+4}, v{o+5}\nv_cvt_pk_bf16_f32 v{o+3}, v{o+6}, v{o+7}")
        A(f"v_cndmask_b32 v{o+2}, 0, v{o+2}, vcc\nv_cndmask_b32 v{o+3}, 0, v{o+3}, vcc")
        A(f"buffer_store_dwordx4 {v(o,4)}, v{vL16}, {ws}, s{sT0} offen sc1\ns_add_u32 s{sT0}, s{sT0}, {144*1024}")
    A(f"{Lst}:")
    if stamps:
        A("s_waitcnt vmcnt(0)")
        stamp(7)
        A("s_waitcnt lgkmcnt(0)")
        for q, x in enumerate(SR): A(f"v_mov_b32 v{4+q}, s{x}")
        A(f"v_mov_b32 v12, 0\ns_lshl_b32 s{sT3}, s2, 5\ns_add_u32 s{sT3}, s{sT3}, {200*MB}")
        A(f"buffer_store_dwordx4 v[4:7], v12, {ws}, s{sT3} offen\nbuffer_store_dwordx4 v[8:11], v12, {ws}, s{sT3} offen offset:16")
    A(f"{Lend}:\ns_endpgm")
```

```python
from asmlib import *
from k1 import *

def gen_k3(A, name="k3_kernel", stamps=False, sidx=2):
    sWS, sO = 8, 12
    sW, sT, sN = 16, 17, 18
    sB = 20
    sT0, sT1, sCnt = 28, 29, 30
    SR = [76, 78, 80, 82, 84, 86, 88, 90]
    vL16 = 1; vT = 2
    vAcc = 16; vR = 80
    def stamp(i):
        if stamps: A(f"{'s_memtime' if opti('cyc') else 's_memrealtime'} s[{SR[i]}:{SR[i]+1}]")
    A(f".globl {name}\n.p2align 8\n.type {name},@function\n{name}:")
    Lend = A.label("K3_end")
    A(f"s_cmp_ge_u32 s2, 224\ns_cbranch_scc1 {Lend}")
    stamp(0)
    A("s_load_dwordx2 s[4:5], s[0:1], 80\ns_load_dwordx2 s[6:7], s[0:1], 96")
    A(f"v_lshrrev_b32 v{vT}, 6, v0\nv_and_b32 v0, 63, v0\nv_readfirstlane_b32 s{sW}, v{vT}\nv_lshlrev_b32 v{vL16}, 4, v0")
    A(f"s_and_b32 s{sT0}, s2, 7\ns_lshl_b32 s{sT}, s{sT0}, 2\ns_bfe_u32 s{sT0}, s2, {(2 << 16) | 3}\ns_add_u32 s{sT}, s{sT}, s{sT0}\ns_lshr_b32 s{sN}, s2, 5")
    A(f"s_mul_i32 s{sT0}, s{sW}, {36*1024}")
    A(f"s_mul_i32 s{sB}, s{sT}, {4*144*1024}\ns_add_u32 s{sB}, s{sB}, s{sT0}\ns_add_u32 s{sB}, s{sB}, {WS_CTX}")
    A(f"s_mul_i32 s{sB+4}, s{sN}, {4*144*1024}\ns_add_u32 s{sB+4}, s{sB+4}, s{sT0}\ns_add_u32 s{sB+4}, s{sB+4}, {WS_WO}")
    for t in range(1, 4):
        A(f"s_add_u32 s{sB+t}, s{sB+t-1}, {144*1024}\ns_add_u32 s{sB+4+t}, s{sB+4+t-1}, {144*1024}")
    A("s_waitcnt lgkmcnt(0)")
    A(f"s_mov_b32 s{sWS}, s6\ns_mov_b32 s{sWS+1}, s7\ns_mov_b32 s{sWS+2}, {WS_SIZE}\ns_mov_b32 s{sWS+3}, 0x00020000")
    A(f"s_mov_b32 s{sO}, s4\ns_mov_b32 s{sO+1}, s5\ns_mov_b32 s{sO+2}, {2048*896}\ns_mov_b32 s{sO+3}, 0x00020000")
    ws = f"s[{sWS}:{sWS+3}]"
    def loads(k):
        return [f"buffer_load_dwordx4 {v(vR+32*k+4*f,4)}, v{vL16}, {ws}, s{sB+f} offen offset:{k*1024}" for f in range(8)]
    def adv(): return [f"s_add_u32 s{sB+f}, s{sB+f}, 4096" for f in range(8)]
    def mf(k):
        out = []
        for u in range(4):
            for tt in range(4):
                t = tt if u % 2 == 0 else 3 - tt
                c = v(vAcc + 4*(4*u+t), 4)
                out.append(f"{MF} {c}, {v(vR+32*k+16+4*u,4)}, {v(vR+32*k+4*t,4)}, {c}")
        return out
    PD = opti("k3pf", 0)
    vPf = 8; sPf = 31
    for k in range(4):
        for t in loads(k): A(t)
    if PD:
        A(f"s_lshr_b32 s{sT1}, s2, 3\ns_mul_i32 s{sT1}, s{sT1}, 51\nv_min_u32 v{vPf}, 50, v0\nv_add_u32 v{vPf}, s{sT1}, v{vPf}\nv_min_u32 v{vPf}, 1407, v{vPf}")
        A(f"v_lshrrev_b32 v{vPf+1}, 5, v{vPf}\nv_and_b32 v{vPf}, 31, v{vPf}\nv_lshlrev_b32 v{vPf}, 7, v{vPf}\ns_mov_b32 s{sT1}, {144*1024}\nv_mul_lo_u32 v{vPf+2}, v{vPf+1}, s{sT1}\nv_add_u32 v{vPf}, v{vPf}, v{vPf+2}")
        A(f"s_and_b32 s{sT1}, s2, 7\ns_mul_i32 s{sT1}, s{sT1}, {16*144*1024}\ns_add_u32 s{sT1}, s{sT1}, {WS_CTX}\nv_mov_b32 v{vPf+2}, s{sT1}\nv_mov_b32 v{vPf+3}, {WS_WO - 16*144*1024}\nv_cmp_gt_u32 vcc, 16, v{vPf+1}\ns_nop 1\nv_cndmask_b32 v{vPf+2}, v{vPf+3}, v{vPf+2}, vcc\nv_add_u32 v{vPf}, v{vPf}, v{vPf+2}")
        A(f"s_add_u32 s{sPf}, s{sT0}, 4096\ns_add_u32 s{sPf+1}, s{sT0}, {36*1024}\ns_mov_b64 s[36:37], s[6:7]\ns_mov_b32 s38, {WS_SIZE}\ns_mov_b32 s39, 0x00020000")
    def pf():
        return f"buffer_load_dword v{vPf+1}, v{vPf}, s[36:39], s{sPf} offen\ns_add_u32 s{sPf}, s{sPf}, 4096\ns_cmp_ge_u32 s{sPf}, s{sPf+1}\ns_cselect_b32 s38, 0, s38"
    for _ in range(PD): A(pf())
    for t in adv(): A(t)
    for i in range(64): A(f"v_mov_b32 v{vAcc+i}, 0")
    A(f"s_mov_b32 s{sCnt}, 0")
    Lloop = A.label("K3_loop")
    A(f".p2align 6\n{Lloop}:")
    for k in range(4):
        A(f"s_waitcnt vmcnt({24 + (1 if PD else 0)})")
        if k == 0 and stamps:
            Ls = A.label("K3_st"); A(f"s_cmp_lg_u32 s{sCnt}, 0\ns_cbranch_scc1 {Ls}"); stamp(1); A(f"{Ls}:")
        for m in mf(k): A(m)
        for t in loads(k): A(t)
    if PD: A(pf())
    for t in adv(): A(t)
    A(f"s_add_u32 s{sCnt}, s{sCnt}, 1\ns_cmp_lt_u32 s{sCnt}, 8\ns_cbranch_scc1 {Lloop}")
    for k in range(4):
        A(f"s_waitcnt vmcnt({24-8*k + (1 if PD else 0)})")
        for m in mf(k): A(m)
    stamp(2)
    A(f"v_and_b32 v{vT}, 15, v0\nv_mul_u32_u24 v{vT}, 272, v{vT}\nv_lshrrev_b32 v{vT+1}, 4, v0\nv_lshl_add_u32 v{vT}, v{vT+1}, 6, v{vT}\ns_mul_i32 s{sT0}, s{sW}, {64*272}\nv_add_u32 v{vT}, s{sT0}, v{vT}")
    A(f"v_lshrrev_b32 v{vT+1}, 2, v0\ns_lshl_b32 s{sT0}, s{sW}, 4\nv_add_u32 v{vT+1}, s{sT0}, v{vT+1}\nv_mul_u32_u24 v{vT+2}, 272, v{vT+1}\nv_and_b32 v{vT+3}, 3, v0\nv_lshl_add_u32 v{vT+2}, v{vT+3}, 6, v{vT+2}")
    A(f"v_mul_u32_u24 v{vT+4}, 896, v{vT+1}\nv_lshl_add_u32 v{vT+4}, v{vT+3}, 5, v{vT+4}")
    A(f"s_mul_i32 s{sT0}, s{sT}, {64*896}\ns_lshl_b32 s{sT1}, s{sN}, 7\ns_add_u32 s{sT0}, s{sT0}, s{sT1}")
    for u in range(4):
        for t in range(4):
            A(f"ds_write_b128 v{vT}, {v(vAcc+4*(4*u+t),4)} offset:{t*16*272 + u*16}")
    A("s_waitcnt lgkmcnt(0)\ns_barrier")
    for p in range(4):
        for c in range(4):
            A(f"ds_read_b128 {v(vR + 16*p + 4*c, 4)}, v{vT+2} offset:{p*64*272 + c*16}")
    A("s_waitcnt lgkmcnt(8)")
    for i in range(0, 16, 2): A(f"v_pk_add_f32 {v(vR+i,2)}, {v(vR+i,2)}, {v(vR+16+i,2)}")
    A("s_waitcnt lgkmcnt(0)")
    for i in range(0, 16, 2): A(f"v_pk_add_f32 {v(vR+32+i,2)}, {v(vR+32+i,2)}, {v(vR+48+i,2)}")
    for i in range(0, 16, 2): A(f"v_pk_add_f32 {v(vR+i,2)}, {v(vR+i,2)}, {v(vR+32+i,2)}")
    for i in range(4):
        A(f"v_cvt_pk_bf16_f32 v{vR+64+2*i}, v{vR+i}, v{vR+4+i}\nv_cvt_pk_bf16_f32 v{vR+64+2*i+1}, v{vR+8+i}, v{vR+12+i}")
    A(f"buffer_store_dwordx4 {v(vR+64,4)}, v{vT+4}, s[{sO}:{sO+3}], s{sT0} offen {flags('st4', '')}\nbuffer_store_dwordx4 {v(vR+68,4)}, v{vT+4}, s[{sO}:{sO+3}], s{sT0} offen offset:16 {flags('st4', '')}")
    if stamps:
        stamp(3); stamp(4); stamp(5); stamp(6)
        A("s_waitcnt vmcnt(0)")
        stamp(7)
        A("s_waitcnt lgkmcnt(0)")
        for q, r in enumerate(SR): A(f"v_mov_b32 v{4+q}, s{r}")
        A(f"v_mov_b32 v12, 0\ns_lshl_b32 s{sT0}, s2, 5\ns_add_u32 s{sT0}, s{sT0}, {200*MB + sidx*65536}")
        A(f"buffer_store_dwordx4 v[4:7], v12, {ws}, s{sT0} offen\nbuffer_store_dwordx4 v[8:11], v12, {ws}, s{sT0} offen offset:16")
    A(f"{Lend}:\ns_endpgm")
```

```python
import sys
from asmlib import *
import k1
NAME = "gated_mix__compressed_kv_cla__sliding_local_dilated__prompt"
def build(path, kernels=("k1",), stamps=False):
    A = Asm()
    hdr = open("cdna_kernels/" + NAME + ".s.ref").read().split("\n") if False else []
    if "k1" in kernels: A("; @launch kernel=k1_kernel grid=(256,1,1) block=(256,1,1) lds=163840")
    if "k2" in kernels: A("; @launch kernel=k2_kernel grid=(256,1,1) block=(256,1,1) lds=163840")
    if "f1" in kernels: A("; @launch kernel=f1_kernel grid=(256,1,1) block=(256,1,1) lds=163840")
    if "k3" in kernels: A("; @launch kernel=k3_kernel grid=(224,1,1) block=(256,1,1) lds=69632")
    A('.amdgcn_target "amdgcn-amd-amdhsa--gfx950"\n.text')
    if "k1" in kernels: k1.gen_k1(A, stamps=stamps)
    if "k2" in kernels:
        import k2; k2.gen_k2(A, stamps=stamps)
    if "f1" in kernels:
        import f1b; f1b.gen_f1(A, stamps=stamps)
    if "k3" in kernels:
        import k3; k3.gen_k3(A, stamps=stamps, sidx=len(kernels)-1)
    A("CODE_END:")
    A('.section .rodata,"a"\n.p2align 6')
    t = A.text()
    if "k1" in kernels: t += kd("k1_kernel")
    if "k2" in kernels: t += ".p2align 6\n" + kd("k2_kernel")
    if "f1" in kernels: t += ".p2align 6\n" + kd("f1_kernel")
    if "k3" in kernels: t += ".p2align 6\n" + kd("k3_kernel", 256, 256)
    open(path, "w").write(t)
if __name__ == "__main__":
    build(sys.argv[1], tuple(sys.argv[2].split(",")), stamps=len(sys.argv) > 3)
```

```python
class Asm:
    def __init__(self):
        self.L = []
        self.uid = 0
    def __call__(self, s):
        for ln in s.split("\n"):
            ln = ln.strip()
            if ln:
                self.L.append(("" if ln.endswith(":") or ln.startswith(".") or ln.startswith(";") else "    ") + ln)
    def label(self, base):
        self.uid += 1
        return f"{base}_{self.uid}"
    def text(self):
        out = []; q = None
        for ln in self.L:
            t = ln.strip()
            if t.startswith("VMSEED"):
                q = []
                for it in t.split()[1:]:
                    tag, n = it.split("*"); q += [tag] * int(n)
                continue
            if t.startswith("VMEND"):
                saved = q; q = None; continue
            if t.startswith("WAITVMS"):
                tags = t.split()[1].split(",")
                last = max(i for i, x in enumerate(saved) if x in tags)
                out.append(f"    s_waitcnt vmcnt({len(saved) - 1 - last})")
                continue
            if t.startswith("WAITVM"):
                parts = t.split()
                tags = parts[1].split(",")
                for tg in tags: assert tg in q, (tg, q)
                last = max(i for i, x in enumerate(q) if x in tags)
                cnt = len(q) - 1 - last
                assert cnt <= 63
                out.append(f"    s_waitcnt vmcnt({cnt}) " + " ".join(parts[2:]))
                continue
            if q is not None and (t.startswith("buffer_") or t.startswith("global_")):
                q.append(t.split("; vm:")[1].strip() if "; vm:" in t else "?")
            out.append(ln)
        return "\n".join(out) + "\n"

def rng(kind, base, n):
    return f"{kind}{base}" if n == 1 else f"{kind}[{base}:{base+n-1}]"
def v(b, n=1): return rng("v", b, n)
def a(b, n=1): return rng("a", b, n)
def s(b, n=1): return rng("s", b, n)

def interleave(A, mfmas, fillers):
    by = {}
    for p, t in fillers:
        by.setdefault(p, []).append(t)
    for t in by.get(-1, []): A(t)
    for i, m in enumerate(mfmas):
        A(m)
        for t in by.get(i, []): A(t)
    for p in by:
        assert -1 <= p < len(mfmas), p

def spread(items, lo, hi):
    n = len(items)
    out = []
    for k, t in enumerate(items):
        out.append((lo + (k * (hi - lo + 1)) // n, t))
    return out

def kd(name, vgpr=512, accum=256, sgpr=102):
    return f""".amdhsa_kernel {name}
  .amdhsa_next_free_vgpr {vgpr}
  .amdhsa_next_free_sgpr {sgpr}
  .amdhsa_accum_offset {accum}
  .amdhsa_group_segment_fixed_size 0
  .amdhsa_kernarg_size 104
  .amdhsa_user_sgpr_count 2
  .amdhsa_user_sgpr_kernarg_segment_ptr 1
  .amdhsa_system_sgpr_workgroup_id_x 1
.end_amdhsa_kernel
"""

import os
OPT = dict(kv.split("=") for kv in os.environ.get("OPT", "").split(",") if kv)
def opt(k, d=None):
    return OPT.get(k, d)
def opti(k, d=0):
    return int(OPT.get(k, d))
def flags(k, d="sc1"):
    return OPT.get(k, d).replace("+", " ")

def code_prefetch(A, start_label, end_label, s_pair, s_chunk, v_off, v_dst, nchunk_mask):
    if not opti("cpf", 1): return 0
    L = A.label("PC")
    A(f"s_getpc_b64 s[{s_pair}:{s_pair+1}]\n{L}:")
    A(f"s_sub_u32 s{s_pair}, s{s_pair}, {L} - {start_label}\ns_subb_u32 s{s_pair+1}, s{s_pair+1}, 0")
    A(f"s_and_b32 s{s_chunk}, s{s_chunk}, {nchunk_mask}\ns_lshl_b32 s{s_chunk}, s{s_chunk}, 13\nv_lshlrev_b32 v{v_off}, 7, v0\nv_add_u32 v{v_off}, s{s_chunk}, v{v_off}")
    A(f"v_min_u32 v{v_off}, {end_label} - {start_label} - 4, v{v_off}")
    A(f"global_load_dword v{v_dst}, v{v_off}, s[{s_pair}:{s_pair+1}]")
    return 1

def split_items(items):
    out = []
    for it in items:
        lines = [l for l in it.split("\n") if l.strip()]
        k = 0
        while k < len(lines):
            g = [lines[k]]
            if lines[k].startswith("s_cmp"):
                while k + 1 < len(lines) and lines[k+1].startswith("s_cselect"):
                    k += 1; g.append(lines[k])
            while k + 1 < len(lines) and lines[k+1].startswith("s_nop"):
                k += 1; g.append(lines[k])
            out.append("\n".join(g)); k += 1
    return out

def cost(t):
    c = 0.0
    for l in t.split("\n"):
        if l.startswith("buffer_") or l.startswith("global_"): c += 2
        elif l.startswith("v_exp") or l.startswith("v_rcp"): c += 2
        else: c += 1
    return c

def sched(nm, streams, base=None):
    load = [0.0] * nm
    for p, t in (base or []): load[p] += cost(t)
    todo = []
    for si, (items, lo, hi) in enumerate(streams):
        items = split_items(items)
        n = len(items)
        for k, t in enumerate(items):
            todo.append((lo + (k + 0.5) * (hi - lo + 1) / n - 0.5, si, k, t, lo, hi))
    todo.sort(key=lambda x: (x[0], x[1], x[2]))
    prev = {}
    out = list(base or [])
    for d, si, k, t, lo, hi in todo:
        a0 = max(lo, prev.get(si, lo), int(d) - 2); b0 = max(a0, min(hi, int(d) + 3))
        best = min(range(a0, b0 + 1), key=lambda p: (load[p], abs(p - d)))
        load[best] += cost(t); prev[si] = best
        out.append((best, t))
    return out

def sched2(nm, streams, load=None):
    load = list(load) if load else [0.0] * nm
    todo = []
    for si, items in enumerate(streams):
        for k, (t, lo, hi, d, kind) in enumerate(items):
            todo.append((d, si, k, t, lo, hi, kind))
    todo.sort(key=lambda x: (x[0], x[1], x[2]))
    prev = {}; out = []
    for d, si, k, t, lo, hi, kind in todo:
        a0 = max(lo, prev.get(si, 0), int(d) - 2); a0 = min(a0, hi); b0 = max(a0, min(hi, int(d) + 3))
        c = cost(t)
        best = min(range(a0, b0 + 1), key=lambda p: (max(0, load[p] + c - 2), load[p] > 0 and c >= 2, abs(p - d)))
        load[best] += c; prev[si] = best
        out.append((best, kind, t))
    return out, load
def even(items, lo, hi, kind=""):
    items = split_items(items); n = len(items)
    return [(t, lo, hi, lo + (k + 0.5) * (hi - lo + 1) / n - 0.5, kind) for k, t in enumerate(items)]

def cls(l):
    if l.startswith("s_") or l.startswith("WAITVM"): return 0
    if l.startswith("ds_") or l.startswith("buffer_") or l.startswith("global_"): return 1
    return 2
def gap_cost(items):
    lines = [l for t in items for l in t.split("\n") if not l.endswith(":")]
    c = 0.0; seen_valu = False
    vm = any(l.startswith("buffer_") or l.startswith("global_") for l in lines)
    for k, l in enumerate(lines):
        k0 = cls(l)
        if k0 == 0:
            if l.startswith("s_nop"): c += 1 + int(l.split()[1])
            elif not (k == 0 and not vm): c += 1
        elif k0 == 1:
            c += 2 if not l.startswith("ds_") else 1
            if seen_valu: c += 2
        else:
            c += 2 if (l.startswith("v_exp") or l.startswith("v_rcp") or l.startswith("v_pk_")) else 1
            seen_valu = True
    return c
def order_gap(entries):
    out = []; rest = list(entries)
    while rest:
        heads = {}
        for e in rest:
            if e[0] not in heads or e[1] < heads[e[0]][1]: heads[e[0]] = e
        b = min(heads.values(), key=lambda e: (cls(e[3].split("\n")[0]), e[0]))
        out.append(b); rest.remove(b)
    return out
def sched3(nm, streams, fixed=None, slack=3):
    gaps = [[] for _ in range(nm)]
    for k, (p, kind, t) in enumerate(fixed or []): gaps[p].append((-1, k, kind, t))
    todo = []
    for si, items in enumerate(streams):
        for k, (t, lo, hi, d, kind) in enumerate(items): todo.append((d, si, k, t, lo, hi, kind))
    todo.sort(key=lambda x: (x[0], x[1], x[2]))
    prev = {}
    for d, si, k, t, lo, hi, kind in todo:
        a0 = min(max(lo, prev.get(si, 0), int(d) - slack), hi); b0 = max(a0, min(hi, int(d) + slack + 1))
        def pen(p):
            old = gap_cost([e[3] for e in order_gap(gaps[p])])
            new = gap_cost([e[3] for e in order_gap(gaps[p] + [(si, k, kind, t)])])
            return (max(0, new - 2) - max(0, old - 2), abs(p - d))
        best = min(range(a0, b0 + 1), key=pen)
        gaps[best].append((si, k, kind, t)); prev[si] = best
    out = []; over = 0
    for p in range(nm):
        o = order_gap(gaps[p]); over += max(0, gap_cost([e[3] for e in o]) - 2)
        out += [(p, e[2], e[3]) for e in o]
    if opti("verbose"): print("sched3 overflow slots", over)
    return out
def sched(nm, streams, base=None):
    r = sched3(nm, [even(i, lo, hi) for i, lo, hi in streams if i], [(p, "", t) for p, t in (base or [])])
    return [(p, t) for p, k, t in r]
```

```python
from asmlib import *
from k1 import MB, WS_K, WS_V, WS_Q, WS_KB, WS_VB, WS_FLAG, WS_CTX, WS_PART, WS_WO, WS_SIZE, f32bits, LOG2E, MF
import math
SPLIT = opti("split", 19)

class R_:
    sC, sWk, sXx, sWq, sWb, sO, sG = 28, 32, 36, 40, 44, 48, 68
    sW, sWM, sWN, sI, sH, sP = 60, 61, 62, 63, 64, 65
    sT0, sT1, sT2, sT3 = 81, 82, 83, 84
    sC8 = 90
    sK, sV = 8, 12
    sQs = 20
    sQ, sJ, sL, sMode = 4, 5, 6, 7
    sOwn = 88
    sFo, sFh = 100, 101
    sKo, sVo, sWrap = 26, 27, 3
    SR = [52, 54, 56, 58, 92, 94, 96, 0]
    sOut = 98
    aQ, aF = 64, 0
    bq, bk, bv, bm = 192, 200, 212, 220
    aPark = 128
    sSp = 78
    @staticmethod
    def bound(exit_label): return f"s_add_u32 s78, s78, 1\ns_cmp_gt_u32 s78, 0x40000\ns_cbranch_scc1 {exit_label}\n"

def gen_part1(A, name, stamps, Lend):
    r = R_
    sC, sWk, sXx, sWq, sWb, sO, sG = r.sC, r.sWk, r.sXx, r.sWq, r.sWb, r.sO, r.sG
    sW, sWM, sWN, sT, sH, sP = r.sW, r.sWM, r.sWN, r.sI, r.sH, r.sP
    sT0, sT1, sT2, sT3, sC8 = r.sT0, r.sT1, r.sT2, r.sT3, r.sC8
    sXo1, sWo1, sXo2, sQo2, sBo2 = 66, 67, 72, 73, 74
    sXl, sWl = 76, 77
    sCnt, sWd, sWrs = 78, 79, 80
    sWlw1, sBl, sWls = 85, 89, 86
    sOb = 87
    sI0, sI1 = 16, 17
    sAo = 75; sBb = 91
    vLane16 = 1
    vXd1, vWd1, vXd2, vBd2 = 2, 3, 4, 6
    vWb1 = 7; vXr = 8; vWr = 16; vT = 26; vXb = 30; vWb2 = 31
    vOne0 = 24
    vPoll = 25
    WS0 = 65536
    so = f"s[{sO}:{sO+3}]"
    def stamp(i, p2=False):
        if stamps and (bool(opti("p2st")) == p2): A(f"{'s_memtime' if opti('cyc') else 's_memrealtime'} s[{r.SR[i]}:{r.SR[i]+1}]")
    def acc1(i, j, isV):
        n, sec = ((8 * (i >> 1) + j, i & 1) if isV else (4 * i + (j >> 1), j & 1))
        if not sec: return v(128 + 4 * n, 4)
        return a(128 + 4 * n, 4) if n < 8 else v(32 + 4 * (n - 8), 4)
    def pk4(r0, r1, d=None):
        d = r0 if d is None else d
        return [f"v_cvt_pk_bf16_f32 v{d}, v{r0}, v{r0+1}", f"v_cvt_pk_bf16_f32 v{d+1}, v{r0+2}, v{r0+3}", f"v_cvt_pk_bf16_f32 v{d+2}, v{r1}, v{r1+1}", f"v_cvt_pk_bf16_f32 v{d+3}, v{r1+2}, v{r1+3}"]
    def pack1(n):
        r0 = 128 + 4 * n
        if n >= 8: return pk4(r0, 32 + 4 * (n - 8))
        p = pk4(r0, vT)
        return p[:2] + [f"v_accvgpr_read_b32 v{vT+q}, a{128+4*n+q}" for q in range(4)] + p[2:]
    X1 = [0, 64]; W1 = [32, 96]

    A(f".globl {name}\n.p2align 8\n.type {name},@function\n{name}:")
    A(f"s_cmp_ge_u32 s2, 256\ns_cbranch_scc1 {Lend}")
    stamp(0)
    A("s_load_dwordx16 s[4:19], s[0:1], 0\ns_load_dwordx4 s[20:23], s[0:1], 64\ns_load_dwordx4 s[24:27], s[0:1], 88\ns_load_dwordx2 s[98:99], s[0:1], 80")
    A(f"v_lshrrev_b32 v{vT}, 6, v0\ns_nop 0\nv_readfirstlane_b32 s{sW}, v{vT}\nv_cmp_eq_u32 vcc, 0, v0\nv_and_b32 v0, 63, v0")
    A(f"s_and_b32 s{sT0}, s2, 7\ns_bfe_u32 s{sT}, s2, {(3 << 16) | 3}\ns_bfe_u32 s{sP}, s2, {(1 << 16) | 6}\ns_lshr_b32 s{sT1}, s2, 7\ns_lshl_b32 s{sH}, s{sT0}, 1\ns_add_u32 s{sH}, s{sH}, s{sT1}")
    A(f"v_mov_b32 v{vOne0}, 0x40000000\nv_cndmask_b32 v{vOne0}, v{vOne0}, 0, vcc".replace(", 0, vcc", ", 0, vcc"))
    A(f"s_lshr_b32 s{sWM}, s{sW}, 1\ns_and_b32 s{sWN}, s{sW}, 1")
    A(f"v_lshrrev_b32 v{vT}, 4, v0\ns_lshl_b32 s{sT0}, s{sWN}, 2\nv_add_u32 v{vT}, s{sT0}, v{vT}")
    A(f"v_and_b32 v{vT+1}, 7, v0\nv_xor_b32 v{vT}, v{vT}, v{vT+1}\nv_lshlrev_b32 v{vT}, 4, v{vT}")
    A(f"v_lshrrev_b32 v{vT+1}, 3, v0\ns_lshl_b32 s{sT0}, s{sW}, 3\nv_add_u32 v{vT+1}, s{sT0}, v{vT+1}")
    A(f"v_lshl_add_u32 v{vXd1}, v{vT+1}, 11, v{vT}")
    A(f"v_mul_u32_u24 v{vXd2}, 896, v{vT+1}\nv_add_u32 v{vXd2}, v{vXd2}, v{vT}")
    A(f"v_lshrrev_b32 v{vT}, 5, v0\ns_lshl_b32 s{sT0}, s{sWN}, 1\nv_add_u32 v{vT}, s{sT0}, v{vT}")
    A(f"s_lshl_b32 s{sT0}, s{sWM}, 2\nv_or_b32 v{vT+1}, s{sT0}, v{vT}\nv_lshlrev_b32 v{vT+1}, 1, v{vT+1}")
    A(f"v_and_b32 v{vT+2}, 31, v0\nv_xor_b32 v{vT+1}, v{vT+1}, v{vT+2}\nv_lshlrev_b32 v{vT+1}, 4, v{vT+1}")
    A(f"s_lshl_b32 s{sT0}, s{sWM}, 3\nv_add_u32 v{vT}, s{sT0}, v{vT}")
    A(f"v_lshl_add_u32 v{vWd1}, v{vT}, 13, v{vT+1}")
    A(f"s_lshl_b32 s{sXo1}, s{sT}, 19\ns_lshl_b32 s{sWo1}, s{sH}, 9\ns_mov_b32 s{sC8}, 0x8000")
    A(f"s_lshl_b32 s{sXl}, s{sW}, 10\ns_lshl_b32 s{sWlw1}, s{sWM}, 2\ns_add_u32 s{sWlw1}, s{sWlw1}, s{sWN}\ns_lshl_b32 s{sWlw1}, s{sWlw1}, 10\ns_mov_b32 s{sWls}, {WS0}")
    A(f"s_mov_b32 s{sC+3}, 0x00020000\ns_mov_b32 s{sWk+3}, 0x00020000\ns_mov_b32 s{sC+2}, {2048*2048}\ns_mov_b32 s{sWk+2}, {1024*8192}\ns_cmp_eq_u32 s{sP}, 0")
    A("s_waitcnt lgkmcnt(0)")
    A(f"s_mov_b64 s[{sC}:{sC+1}], s[6:7]\ns_cselect_b64 s[{sWk}:{sWk+1}], s[10:11], s[12:13]")

    def dmaX(ph, tag='x'):
        out = []
        if ph == 1:
            for p in range(8):
                out.append(f"s_add_u32 m0, s{sXl}, {p*4096}\ns_add_u32 s{sT0}, s{sXo1}, {p*32*2048}\nbuffer_load_dwordx4 v{vXd1}, s[{sC}:{sC+3}], s{sT0} offen lds ; vm:{tag}")
            out.append(f"s_add_u32 s{sXo1}, s{sXo1}, 128\ns_xor_b32 s{sXl}, s{sXl}, s{sC8}")
        else:
            for p in range(4):
                out.append(f"s_add_u32 m0, s{sXl}, {p*4096}\ns_add_u32 s{sT0}, s{sXo2}, {p*32*896}\nbuffer_load_dwordx4 v{vXd2}, s[{sXx}:{sXx+3}], s{sT0} offen lds ; vm:{tag}")
            for p in range(4):
                out.append(f"s_add_u32 m0, s{sBl}, {16384 + p*4096}\ns_add_u32 s{sT0}, s{sBo2}, {p*16*2688}\nbuffer_load_dwordx4 v{vBd2}, s[{sWb}:{sWb+3}], s{sT0} offen lds ; vm:{tag}")
            out.append(f"s_add_u32 s{sXo2}, s{sXo2}, 128\ns_add_u32 s{sBo2}, s{sBo2}, {64*2688}\ns_xor_b32 s{sXl}, s{sXl}, s{sC8}\ns_xor_b32 s{sBl}, s{sBl}, s{sC8}")
        return out
    def dmaW(ph, tag='w'):
        srd, run = (sWk, sWo1) if ph == 1 else (sWq, sQo2)
        out = [f"s_add_u32 s{sWl}, s{sWls}, s{sWlw1}"]
        for g in range(2):
            for p in range(4):
                out.append(f"s_add_u32 m0, s{sWl}, {g*2048 + p*8192}\ns_add_u32 s{sT1}, s{run}, {(4*g + 16*p)*8192}\nbuffer_load_dwordx4 v{vWd1}, s[{srd}:{srd+3}], s{sT1} offen lds ; vm:{tag}")
        out.append(f"s_add_u32 s{run}, s{run}, {64*8192}\ns_add_u32 s{sWls}, s{sWls}, s{sC8}\ns_cmp_eq_u32 s{sWls}, {WS0 + 3*0x8000}\ns_cselect_b32 s{sWls}, {WS0}, s{sWls}")
        return out
    def reads1(st, ks):
        xs = [f"ds_read_b128 {a(X1[st]+4*i,4)}, v{vXr+ks} offset:{i*2048}" for i in range(8)]
        ws = [f"ds_read_b64_tr_b16 {a(W1[st]+4*j+2*t,2)}, v{vWr+j} offset:{ks*16384+t*2048}" for j in range(8) for t in range(2)]
        return [xs[0]] + ws + xs[1:]
    def mf1(st, isV, first=False):
        out = []
        for i in range(8):
            for jj in range(8):
                j = jj if i % 2 == 0 else 7 - jj
                x, w = a(X1[st]+4*i, 4), a(W1[st]+4*j, 4); c = acc1(i, j, isV)
                ci = 0 if first else c
                out.append(f"{MF} {c}, {x}, {w}, {ci}" if isV else f"{MF} {c}, {w}, {x}, {ci}")
        return out
    def adv_rd(nx, nw):
        t = [f"s_add_u32 s{sWrs}, s{sWrs}, 1\ns_cmp_eq_u32 s{sWrs}, 3\ns_cselect_b32 s{sWrs}, 0, s{sWrs}\ns_cselect_b32 s{sWd}, {(-2*0x8000) & 0xffffffff}, s{sC8}"]
        t += [f"v_xor_b32 v{vXr+i}, 0x8000, v{vXr+i}" for i in range(nx)]
        t += [f"v_add_u32 v{vWr+j}, s{sWd}, v{vWr+j}" for j in range(nw)]
        return t

    for t in dmaX(1) + dmaW(1): A(t)
    sWi = sAo
    A(f"s_lshr_b32 s{sWi}, s2, 3\ns_lshl_b32 s{sWi}, s{sWi}, 2\ns_add_u32 s{sWi}, s{sWi}, s{sW}\ns_mov_b32 s{sT2}, s{sWi}")
    NCP = code_prefetch(A, name, "CODE_END", 16, sT2, 14, 15, 15)
    for t in dmaX(1) + dmaW(1): A(t)
    A(f"v_and_b32 v{vT}, 15, v0\nv_lshrrev_b32 v{vT+1}, 4, v0\nv_lshrrev_b32 v{vT+2}, 1, v{vT}\nv_xor_b32 v{vT+2}, v{vT+2}, v{vT+1}")
    A(f"v_lshlrev_b32 v{vT+2}, 4, v{vT+2}\nv_lshl_add_u32 v{vXb}, v{vT}, 7, v{vT+2}")
    A(f"v_lshrrev_b32 v{vT+2}, 2, v{vT}\nv_and_b32 v{vT+3}, 1, v{vT+1}\nv_lshl_or_b32 v{vT+3}, v{vT+3}, 2, v{vT+2}\nv_lshl_add_u32 v{vT+2}, v{vT+1}, 3, v{vT+2}")
    A(f"v_and_b32 v{vT}, 3, v0\nv_lshlrev_b32 v{vT}, 3, v{vT}\nv_lshl_add_u32 v{vT}, v{vT+3}, 5, v{vT}")
    A(f"v_lshl_add_u32 v{vWb1}, v{vT+2}, 9, v{vT}\nv_lshl_add_u32 v{vWb2}, v{vT+2}, 8, v{vT}")
    A(f"s_lshl_b32 s{sT2}, s{sWM}, 14\nv_add_u32 v{vXr}, s{sT2}, v{vXb}\nv_xor_b32 v{vXr+1}, 64, v{vXr}")
    A(f"s_lshl_b32 s{sT2}, s{sWN}, 8\ns_add_u32 s{sT2}, s{sT2}, {WS0}\nv_add_u32 v{vWr}, s{sT2}, v{vWb1}\ns_mov_b32 s{sWrs}, 0\ns_mov_b32 s{sCnt}, 1")
    for j in range(1, 8): A(f"v_xor_b32 v{vWr+j}, {j << 5}, v{vWr}")
    su0 = [f"s_mov_b32 s{q+3}, 0x00020000" for q in (sXx, sWq, sWb, sO, sG)]
    su0.append(f"s_mov_b32 s{sXx+2}, {2048*896}\ns_mov_b32 s{sWq+2}, {448*8192}\ns_mov_b32 s{sWb+2}, {448*2688}\ns_mov_b32 s{sO+2}, {WS_SIZE}\ns_mov_b32 s{sG+2}, 896")
    su0.append(f"s_mov_b64 s[{sXx}:{sXx+1}], s[4:5]\ns_mov_b64 s[{sWq}:{sWq+1}], s[8:9]\ns_mov_b64 s[{sWb}:{sWb+1}], s[18:19]\ns_mov_b64 s[{sO}:{sO+1}], s[26:27]\ns_mov_b64 s[{sG}:{sG+1}], s[22:23]")
    su0.append("s_mov_b64 s[18:19], s[14:15]\ns_mov_b64 s[0:1], s[20:21]")
    vPq, vPb, vPx = 11, 12, 10
    sPq, sPb, sPx = 5, 6, 4
    sFq, sFb, sFx = 12, 20, 8
    PF = opti("pf", 6); PFM = opti("pfm", 7)
    su0.append(f"s_lshl_b32 s{sT2}, s{sWi}, 2\nv_and_b32 v{vT}, 3, v0\nv_add_u32 v{vT}, s{sT2}, v{vT}\nv_min_u32 v{vT}, 447, v{vT}\nv_lshrrev_b32 v{vT+1}, 3, v{vT}\nv_and_b32 v{vT}, 7, v{vT}\nv_lshlrev_b32 v{vT}, 7, v{vT}\nv_lshl_add_u32 v{vPq}, v{vT+1}, 13, v{vT}")
    su0.append(f"s_and_b32 s{sT3}, s2, 7\ns_lshl_b32 s{sPq}, s{sT3}, 10\ns_mul_i32 s{sPb}, s{sT3}, 112\ns_lshl_b32 s{sPx}, s2, 2\ns_add_u32 s{sPx}, s{sPx}, s{sW}\ns_mul_i32 s{sPx}, s{sPx}, {2*896}\nv_and_b32 v{vPx}, 1, v0\nv_lshlrev_b32 v{vPx}, 7, v{vPx}")
    su0.append(f"v_mul_u32_u24 v{vPb}, 2688, v{vT+1}\nv_lshrrev_b32 v{vT+1}, 8, v{vT}\nv_min_u32 v{vT+1}, 2, v{vT+1}\nv_mul_u32_u24 v{vT+1}, 896, v{vT+1}\nv_add_u32 v{vPb}, v{vPb}, v{vT+1}\nv_bfe_u32 v{vT+1}, v{vT}, 7, 1\nv_mul_u32_u24 v{vT+1}, 116, v{vT+1}\nv_add_u32 v{vPb}, v{vPb}, v{vT+1}")
    allst = [(sFx, sXx, vPx, sPx, 256), (sFq, sWq, vPq, sPq, 56*8192), (sFb, sWb, vPb, sPb, 56*2688)]
    streams = [x for k, x in enumerate(allst) if PF and PFM >> k & 1]
    for f, src, vo, run, step in streams:
        su0.append(f"s_mov_b64 s[{f}:{f+1}], s[{src}:{src+1}]\ns_mov_b32 s{f+2}, 0\ns_mov_b32 s{f+3}, 0x00020000\ns_sub_u32 s{run}, s{run}, {(PF-1)*step}")
    su0.append(f"s_lshl_b32 s{r.sFo}, s2, 7\ns_add_u32 s{r.sFo}, s{r.sFo}, {WS_FLAG}\ns_and_b32 s{r.sFh}, s2, 0x87\ns_lshl_b32 s{r.sFh}, s{r.sFh}, 7\ns_add_u32 s{r.sFh}, s{r.sFh}, {WS_FLAG + 12}")
    su0.append(f"v_mov_b64 v[{vT}:{vT+1}], 0\nv_mov_b64 v[{vT+2}:{vT+3}], 0\nv_lshlrev_b32 v{vLane16}, 4, v0")
    zst = [f"buffer_store_dwordx4 v[{vT}:{vT+3}], v{vOne0}, {so}, s{r.sFo} offen sc1", f"buffer_store_dwordx4 v[{vT}:{vT+3}], v{vOne0}, {so}, s{r.sFo} offen offset:16 sc1", f"buffer_load_dword v13, v{vLane16}, s[{sG}:{sG+3}], 0 offen"]
    NPF = len(streams)
    def pf():
        if not streams: return []
        out = [f"s_cmp_eq_u32 s{sCnt}, {PF}\n" + "\n".join(f"s_cselect_b32 s{f+2}, s{src+2}, s{f+2}" for f, src, vo, run, step in streams)]
        for f, src, vo, run, step in streams:
            out.append(f"buffer_load_dword v13, v{vo}, s[{f}:{f+3}], s{run} offen\ns_add_u32 s{run}, s{run}, {step}")
        return out
    su1 = [f"s_lshl_b32 s{sQo2}, s{sH}, 9",
           f"v_lshrrev_b32 v{vT}, 4, v0\ns_lshl_b32 s{sT2}, s{sWN}, 2\nv_or_b32 v{vT+1}, s{sT2}, v{vT}\nv_lshlrev_b32 v{vT+1}, 1, v{vT+1}",
           f"v_and_b32 v{vT+2}, 15, v0\nv_xor_b32 v{vT+1}, v{vT+1}, v{vT+2}",
           f"s_lshl_b32 s{sT2}, s{sWN}, 1\ns_add_u32 s{sT2}, s{sT2}, s{sWM}\ns_lshl_b32 s{sT3}, s{sT2}, 2\nv_add_u32 v{vT}, s{sT3}, v{vT}\ns_lshl_b32 s{sBl}, s{sT2}, 10",
           f"v_lshrrev_b32 v{vT+2}, 2, v{vT+1}\nv_add_u32 v{vT+3}, 1, v{vT+2}\nv_and_b32 v{vT+3}, 4, v{vT+3}\nv_mul_u32_u24 v{vT+2}, 896, v{vT+2}\nv_lshl_add_u32 v{vT+2}, v{vT+3}, 28, v{vT+2}",
           f"v_and_b32 v{vT+1}, 3, v{vT+1}\nv_lshl_add_u32 v{vT+2}, v{vT+1}, 4, v{vT+2}",
           f"v_mul_u32_u24 v{vBd2}, 2688, v{vT}\nv_add_u32 v{vBd2}, v{vBd2}, v{vT+2}",
           f"s_sub_u32 s{sT2}, 15, s{sT}\ns_cmp_eq_u32 s{sP}, 1\ns_cselect_b32 s{r.sOwn}, s{sT2}, s{sT}",
           f"s_mul_i32 s{sXo2}, s{r.sOwn}, {128*896}\ns_mul_i32 s{sBo2}, s{sH}, 56",
           f"s_lshl_b32 s{sOb}, s{sH}, 7\ns_lshl_b32 s{sT3}, s{sT}, 4\ns_add_u32 s{sOb}, s{sOb}, s{sT3}\ns_lshl_b32 s{sT3}, s{sWM}, 3\ns_add_u32 s{sOb}, s{sOb}, s{sT3}\ns_lshl_b32 s{sOb}, s{sOb}, 13",
           f"s_add_u32 s{sT2}, s{sP}, 12\ns_lshl_b32 s{sT3}, s{sWN}, s{sT2}\ns_add_u32 s{sOb}, s{sOb}, s{sT3}\ns_lshl_b32 s{sT3}, s{sP}, 24\ns_add_u32 s{sOb}, s{sOb}, s{sT3}",
           f"s_lshl_b32 s{sT3}, s{sP}, 12\ns_sub_u32 s{sI0}, 8192, s{sT3}\ns_add_u32 s{sI1}, 8192, s{sT3}",
           f"s_lshl_b32 s{sBb}, s{sH}, 7\ns_lshl_b32 s{sT3}, s{r.sOwn}, 3\ns_add_u32 s{sBb}, s{sBb}, s{sT3}\ns_lshl_b32 s{sT3}, s{sW}, 1\ns_add_u32 s{sBb}, s{sBb}, s{sT3}"]
    if opti("p2z") & 1: su1.append(f"s_mov_b32 s{sXx+2}, 0\ns_mov_b32 s{sWq+2}, 0\ns_mov_b32 s{sWb+2}, 0")
    if opti("p2z") & 4: su1.append(f"s_mov_b32 s{sWb+2}, 0")
    if opti("p2z") & 2: su1.append(f"s_add_u32 s{sOb}, s{sOb}, 0x40000000")
    gl = [f"v_and_b32 v{vPoll}, 48, v0"] + [f"buffer_load_dwordx4 {a(200+4*ks,4)}, v{vPoll}, s[{sG}:{sG+3}], 0 offen offset:{ks*64}" for ks in range(14)]
    A(f"s_waitcnt vmcnt({16+NCP})\ns_barrier")
    stamp(1)
    for t in reads1(0, 0): A(t)
    LVe = A.label("F_Ve"); Lph2 = A.label("F_ph2")
    A(f"s_cmp_eq_u32 s{sP}, 1\ns_cbranch_scc1 {LVe}")
    def st1(n):
        t = f"buffer_store_dwordx4 {v(128+4*n,4)}, v{vLane16}, {so}, s{sOb} offen offset:{(n&3)*1024} sc1 ; vm:st"
        if n & 3 == 3: t += f"\ns_add_u32 s{sOb}, s{sOb}, s{sI0 if (n >> 2) % 2 == 0 else sI1}"
        return t
    NE = opti("ne", 8)

    vBr = 10
    def setup2():
        t = [f"s_lshl_b32 s{sT2}, s{sW}, 12\nv_add_u32 v{vXr}, s{sT2}, v{vXb}\nv_xor_b32 v{vXr+1}, 64, v{vXr}", f"v_add_u32 v{vWr}, {WS0 + 0x8000}, v{vWb1}"]
        t += [f"v_xor_b32 v{vWr+j}, {j << 5}, v{vWr}" for j in range(1, 8)]
        t += [f"v_add_u32 v{vBr}, 16384, v{vWb2}"] + [f"v_xor_b32 v{vBr+u}, {u << 5}, v{vBr}" for u in range(1, 6)]
        return t
    def adv2(stage):
        d = 0x8000 if (stage + 1) % 3 else -2 * 0x8000
        return [f"v_xor_b32 v{vXr+i}, 0x8000, v{vXr+i}" for i in range(8)] + [f"v_add_u32 v{vWr+j}, 0x{d & 0xffffffff:x}, v{vWr+j}" for j in range(8)]
    MIGK = opti("migk", 8)
    def mig_k(j): return MIGK - 2 + (j % 4)
    def accq(j, e, k=99):
        if j >= 11:
            n = 2*(j-11) + e
            return ("v", 40 + 4*n if n < 2 else 64 + 4*(n-2))
        return ("a", 64 + 4 * (2*j + e)) if k <= mig_k(j) else ("v", 128 + 4 * (2*j + e))
    def accb(u, e): return (96 + 16 * e + 4 * u) if u < 4 else (48 + 8 * e + 4 * (u - 4))
    def xfrag(k, e): return a((160 + 8 * (k & 1) if k < 13 else 176) + 4 * e, 4)
    def ring(n): return 4 * (n % 16)
    def frag_reads(k, q, n):
        ks = k & 1; d = ring(n)
        if q < 16: return [f"ds_read_b64_tr_b16 {a(d+2*t,2)}, v{vWr+(q&7)} offset:{ks*16384 + t*2048 + (q>>3)*256}" for t in range(2)]
        return [f"ds_read_b64_tr_b16 {a(d+2*t,2)}, v{vBr+q-16} offset:{ks*8192 + t*1024}" for t in range(2)]
    def x_reads(k): return [f"ds_read_b128 {xfrag(k, e)}, v{vXr+(k&1)} offset:{e*2048}" for e in range(2)]
    def step_mf(k, q, n):
        first = k == 0; out = []
        for e in range(2):
            if q < 0:
                c = v(32 + 4*e, 4); out.append((f"{MF} {c}, {a(200+4*k,4)}, {xfrag(k,e)}, {0 if first else c}", [f"x{k}.1"]))
                continue
            w = a(ring(n), 4)
            if q < 16: kk, rr = accq(q, e, k); c = rng(kk, rr, 4)
            else: c = v(accb(q-16, e), 4)
            ci = 0 if first else c
            out.append((f"{MF} {c}, {xfrag(k,e)}, {w}, {ci}" if q >= 20 else f"{MF} {c}, {w}, {xfrag(k,e)}, {ci}", [f"f{k}.{q}.1"]))
        return out
    RA = opti("ra", 6); NPRE = opti("npre", 3); BP = 92 - 2 * opti("rb", 4) - 1
    def rd_items(k, q, n): return [(f"f{k}.{q}.{t}", x) for t, x in enumerate(frag_reads(k, q, n))]
    def xr_items(k): return [(f"x{k}.{e}", x) for e, x in enumerate(x_reads(k))]
    def pre_reads(st):
        k = 2 * st
        if st < 6: return xr_items(k) + [y for q in range(NPRE) for y in rd_items(k, q, 44*st + q)]
        return xr_items(k) + xr_items(k + 1) + [y for n in range(NPRE) for y in rd_items(k + (n & 1), n >> 1, 44*st + n)]

    for isV in (0, 1):
        Lloop = A.label("F_loop")
        def partA(extra): interleave(A, mf1(1, isV), sched(64, [(reads1(0, 0), 0, 47)] + extra))
        def partB(dw, first=False, extra=[]):
            A("s_waitcnt lgkmcnt(0)")
            interleave(A, mf1(0, isV, first), sched(64, [(reads1(1, 1) + adv_rd(2, 8), 0, 63), (dw, 0, 60)] + extra))
        if isV: A(f"{LVe}:")
        partB(dmaW(1), True, [(su0, 0, 58), (zst, 61, 63)])
        A("s_waitcnt vmcnt(11) lgkmcnt(0)\ns_barrier")
        A(f".p2align 6\n{Lloop}:")
        partA([(dmaX(1) + pf(), 0, 63)])
        partB(dmaW(1))
        A(f"s_add_u32 s{sCnt}, s{sCnt}, 1\ns_cmp_lt_u32 s{sCnt}, 14")
        A(f"s_waitcnt vmcnt({8+NPF}) lgkmcnt(0)\ns_barrier\ns_cbranch_scc1 {Lloop}")
        partA([(dmaX(1) + gl, 0, 63), (su1, 0, 63)])
        partB(dmaW(2))
        A(f"s_waitcnt vmcnt(22) lgkmcnt(0)\ns_barrier")
        init = [f"s_mov_b64 s[{sG}:{sG+1}], s[24:25]", f"s_movk_i32 s{sG+2}, 256", f"s_lshl_b32 s{sT3}, s{sT}, 12", f"v_mov_b32 v{vT}, 1", f"buffer_atomic_add v{vT}, v{vOne0}, s[{sG}:{sG+3}], s{sT3} offen sc1"]
        partA([(dmaX(2) + init, 0, 63)])
        partB(dmaW(2))
        A(f"s_waitcnt vmcnt(9) lgkmcnt(0)\ns_barrier")
        stamp(2); stamp(0, True)
        st = [even(setup2(), 0, 16), even(dmaX(2), 0, 32) + even([st1(n) for n in range(NE)], 36, 63), [(x, 50, 63, 52 + k, "") for k, (i_, x) in enumerate(pre_reads(0))]]
        for q in range(3):
            st.append(even([x for n in (range(8*q+7, 8*q-1, -1) if isV else range(8*q, 8*q+8)) for x in pack1(n)], 16*q + 18, min(16*q + 34, 63)))
        interleave(A, mf1(1, isV), [(p, t) for p, k, t in sched3(64, st)])
        if not isV: A(f"s_branch {Lph2}")
    A(f"{Lph2}:")
    A(f"VMSEED w17*8 x17*8 st*{NE}")
    stamp(1, True)
    stq = [st1(n) for n in range(NE, 32)]
    per = [int(x) for x in opt("trk", "8/8/8").split("/")]
    lastp = [x for n in range(31, 23, -1) for x in pack1(n)]
    sK, sV = r.sK, r.sV
    att = [f"s_lshl_b32 s{sT2}, s{sT}, 1", f"s_sub_u32 s{sT3}, 32, s{sT2}",
           f"s_min_u32 s{r.sL}, s{sT3}, {SPLIT}",
           f"s_lshl_b32 s{r.sWrap}, s{sT3}, 15",
           f"s_cmp_gt_u32 s{sT3}, {SPLIT}\ns_cselect_b32 s{r.sMode}, 1, 0",
           f"s_and_b32 s{r.sQs+2}, s{r.sMode}, s{sP}", f"s_mul_i32 s{r.sQs+2}, s{r.sQs+2}, {WS_SIZE}",
           f"s_mov_b64 s[{r.sQs}:{r.sQs+1}], s[{sO}:{sO+1}]", f"s_mov_b32 s{r.sQs+3}, 0x00020000",
           f"s_lshl_b32 s{r.sMode}, s{r.sMode}, s{sP}",
           f"s_sub_u32 s{r.sQ}, 15, s{sT}",
           f"s_cmp_eq_u32 s{r.sMode}, 1\ns_cselect_b32 s{r.sQ}, s{r.sQ}, s{r.sOwn}\ns_cselect_b32 s{r.sJ}, {SPLIT}, 0\ns_cselect_b32 s{r.sWrap}, s{r.sWrap}, -1",
           f"s_add_u32 s{sT2}, s{sT2}, 2",
           f"s_cmp_eq_u32 s{sP}, 1\ns_cselect_b32 s{r.sL}, s{r.sL}, s{sT2}",
           f"s_lshl_b32 s{sK+2}, s{r.sL}, 15",
           f"s_cmp_eq_u32 s{r.sMode}, 1\ns_cselect_b32 s{r.sL}, s{sT3}, s{r.sL}\ns_cselect_b32 s{sK+2}, {MB}, s{sK+2}",
           f"s_sub_u32 s{r.sL}, s{r.sL}, 1", f"s_mov_b32 s{sV+2}, s{sK+2}", f"s_mov_b32 s{sK+3}, 0x00020000", f"s_mov_b32 s{sV+3}, 0x00020000",
           f"s_lshl_b32 s{sT2}, s{sH}, 20",
           f"s_add_u32 s{sK}, s{sO}, s{sT2};@\ns_addc_u32 s{sK+1}, s{sO+1}, 0;@\ns_add_u32 s{sV}, s{sK}, {WS_V};@\ns_addc_u32 s{sV+1}, s{sK+1}, 0",
           f"s_lshl_b32 s{r.sVo}, s{r.sJ}, 15", f"s_add_u32 s{r.sKo}, s{r.sVo}, s{sC8}",
           f"s_cmp_eq_u32 s{r.sKo}, s{r.sWrap}\ns_cselect_b32 s{r.sKo}, 0, s{r.sKo}",
           f"s_lshl_b32 s{sT2}, s{sW}, 13", f"v_add_u32 v2, s{sT2}, v{vLane16}", f"v_add_u32 v5, 4096, v2", f"s_mov_b32 s{sXo1}, s{sT2}"]
    def atomic_items(l): return [(t.replace(";@", ""), ) for t in l]
    def evenk(items, lo, hi):
        n = len(items); return [(t.replace(";@", ""), lo, hi, lo + (k + 0.5) * (hi - lo + 1) / n - 0.5, "") for k, t in enumerate(items)]
    def kv(srd, sof, lds, tag):
        out = []
        for p in range(8):
            if p % 4 == 0: out.append(f"s_add_u32 m0, s{sXo1}, {lds + p*1024}\ns_nop 0")
            out.append(f"buffer_load_dwordx4 v{2 if p < 4 else 5}, s[{srd}:{srd+3}], s{sof} offen offset:{(p&3)*1024} {flags('kvld', 'sc1')} lds ; vm:{tag}")
        return out
    scale_setup = [f"v_mov_b32 v{vT}, 0x{f32bits(LOG2E/16.0):08x}", f"v_mov_b32 v{vT+1}, v{vT}", f"v_mov_b32 v{vT+2}, 0x{f32bits(LOG2E/math.sqrt(28.0)):08x}", f"v_mov_b32 v{vT+3}, v{vT+2}", "v_cmp_gt_u32 vcc, 48, v0",
                   f"s_lshl_b32 s{sAo}, s{sBb}, 13", f"s_add_u32 s{sAo}, s{sAo}, {WS_Q}", f"s_add_u32 s{sWd}, s{sAo}, 8192", f"s_lshl_b32 s{sBb}, s{sBb}, 10"]
    def qepi(ds):
        out = []
        for e in range(2):
            regs = []
            for j in (2*ds, 2*ds+1):
                kk, rr = accq(j, e)
                if kk == "a":
                    tb = 128 + 16 * (ds % 4) + 8 * e + 4 * (j & 1)
                    out += [f"v_accvgpr_read_b32 v{tb+q}, a{rr+q}" for q in range(4)]; rr = tb
                regs.append(rr)
            for rr in regs: out += [f"v_pk_mul_f32 {v(rr+2*q,2)}, {v(rr+2*q,2)}, {v(vT,2)}" for q in range(2)]
            out.append(("R", regs))
        res = [x for x in out if not isinstance(x, tuple)]
        for e, regs in enumerate([x[1] for x in out if isinstance(x, tuple)]):
            res += pk4(regs[0], regs[1])
            res += [f"v_accvgpr_write_b32 a{r.aQ+4*(2*ds+e)+q}, v{regs[0]+q}" for q in range(4)]
            if ds == 4: res.append(f"s_add_u32 s{sAo if e == 0 else sWd}, s{sAo if e == 0 else sWd}, 4096")
            res.append(f"buffer_store_dwordx4 {v(regs[0],4)}, v{vLane16}, s[{r.sQs}:{r.sQs+3}], s{sAo if e == 0 else sWd} offen offset:{(ds&3)*1024} sc1 ; vm:q")
        return res

    sW1, sW2 = sC, sWk
    sWoS = (22 + 52, 23 + 52)
    wos = [f"s_and_b32 s{sT2}, s2, 63", f"s_lshr_b32 s{sT3}, s2, 7", f"s_lshl_b32 s{sT3}, s{sT3}, 6", f"s_or_b32 s{sT2}, s{sT2}, s{sT3}", f"s_lshl_b32 s{sT2}, s{sT2}, 2", f"s_add_u32 s{sT2}, s{sT2}, s{sW}",
           f"s_mul_hi_u32 s{sT3}, s{sT2}, {(2**32 + 6)//7}", f"s_mul_i32 s16, s{sT3}, {32*896 - 7*128}", f"s_lshl_b32 s{sT3}, s{sT2}, 7", f"s_add_u32 s16, s16, s{sT3}", f"s_add_u32 s17, s16, {16*896}",
           f"s_add_u32 s{sT2}, s{sT2}, 512", f"s_mul_hi_u32 s{sT3}, s{sT2}, {(2**32 + 6)//7}", f"s_mul_i32 s24, s{sT3}, {32*896 - 7*128}", f"s_mul_i32 s25, s{sT3}, {28*896 - 7*128}", f"s_sub_u32 s25, s25, {128*28*896}",
           f"s_mov_b64 s[{sW1}:{sW1+1}], s[18:19]", f"s_mov_b32 s{sW1+2}, {4096*896}",
           f"s_cmp_ge_u32 s{sT3}, 128\ns_cselect_b32 s24, s25, s24\ns_cselect_b64 s[{sW2}:{sW2+1}], s[0:1], s[18:19]\ns_cselect_b32 s{sW2+2}, {448*896}, s{sW1+2}",
           f"s_lshl_b32 s{sT3}, s{sT2}, 7", f"s_add_u32 s24, s24, s{sT3}", f"s_add_u32 s25, s24, {16*896}",
           f"s_cmp_eq_u32 s{sP}, 1\ns_cselect_b32 s{sW1+2}, 0, s{sW1+2}\ns_cselect_b32 s{sW2+2}, 0, s{sW2+2}",
           f"v_lshrrev_b32 v{vT+2}, 4, v0", f"v_mul_u32_u24 v{vT+2}, {4*896}, v{vT+2}", f"v_and_b32 v{vT+3}, 15, v0", f"v_lshl_add_u32 v{vT+2}, v{vT+3}, 3, v{vT+2}"]
    wol = [f"buffer_load_dwordx2 {v(216+16*tk+2*jj,2)}, v{vT+2}, s[{(sW1, sW2)[tk]}:{(sW1, sW2)[tk]+3}], s{(16, 24)[tk] + (jj >> 2)} offen offset:{(jj&3)*896} ; vm:wo" for tk in range(2) for jj in range(8)]
    SG = len(per)
    order = [i_ for i_, x in pre_reads(0)]; done = -1
    Lsp1 = A.label("F_sp1"); Lsp1r = A.label("F_sp1r"); Lsp2 = A.label("F_sp2"); Lsp2r = A.label("F_sp2r")
    for st in range(7):
        t = 16 + st
        k0 = 2 * st
        if st < 6:
            seq = [(k, q) for k in (k0, k0 + 1) for q in range(-1, 22)]
        else:
            seq = [(k0, -1), (k0 + 1, -1)] + [(k, q) for q in range(22) for k in (k0, k0 + 1)]
        frs = [x for x in seq if x[1] >= 0]
        slot = {x: 44 * st + n for n, x in enumerate(frs)}
        posd = {x: 2 * n for n, x in enumerate(seq)}
        ms = []
        for (k, q) in seq: ms += step_mf(k, q, slot.get((k, q)))
        rd = []
        for n, (k, q) in enumerate(frs):
            if n < NPRE: continue
            if st < 6 and k & 1 and q == 0:
                for i_, x in xr_items(k): rd.append((x, 2, 40, posd[(k, q)] - 2*RA - 2, "rd:" + i_))
            lo = 0 if n < 16 else posd[frs[n - 16]] + 1
            d = min(max(posd[(k, q)] - 2*RA, (n - NPRE) + 0.0), BP - 5 - (43 - n) * 1.0)
            for tt, (i_, x) in enumerate(rd_items(k, q, slot[(k, q)])): rd.append((x, lo, min(posd[(k, q)] - 3, BP - 4), max(lo, d + 0.5 * tt), "rd:" + i_))
        nxt = []
        if st < 6:
            nxt = even(adv2(t), BP - 3, BP + 1) + [(x, BP + 1, 91, BP + 1.5 + k * 0.7, "rd:" + i_) for k, (i_, x) in enumerate(pre_reads(st + 1))]
        mine = [stq.pop(0) for _ in range(per[st])] if st < len(per) else []
        strs = [rd + nxt]
        vm = []
        if st == 5: vm += [f"v_mov_b32 v{vPoll}, 0", f"buffer_load_dword v{vPoll}, v{vPoll}, {so}, s{r.sFh} offen sc1 ; vm:pk"] * (opti('pkl') == 0)
        if st >= 1 and t + 1 <= 22: vm += dmaX(2, f"x{t+1}")
        vm += mine
        if st == 2: vm += [f"v_mov_b32 v{vPoll}, 0", f"buffer_load_dword v{vPoll}, v{vPoll}, s[{sG}:{sG+3}], 0 offen sc1 ; vm:pi"]
        if t + 2 <= 22: vm += dmaW(2, f"w{t+2}")
        if st == 5: vm += [f"v_mov_b32 v{vPoll}, 0", f"buffer_load_dword v{vPoll}, v{vPoll}, {so}, s{r.sFh} offen sc1 ; vm:pk"] * (opti('pkl') == 1) + wol
        if st == 6: vm += kv(sK, r.sVo, 0x8000, "k0")
        if vm: strs.append(even(vm, 0, BP - 2 if st < 6 else 24))
        mg = []
        for (k, q) in frs:
            if q < 11 and k == mig_k(q):
                p0 = posd[(k, q)] + 1 + 8
                mg += [(f"v_accvgpr_read_b32 v{128+8*q+x}, a{64+8*q+x}", p0, min(91, p0 + 30), p0 + x, "") for x in range(8)]
        if mg: strs.append(mg)
        if st == 0: strs.append(even(lastp, 0, 26))
        if st == 1: strs.append(evenk(att, 2, 88))
        if st == 4: strs.append(evenk(wos, 2, BP - 2))
        if st == 5: strs.append(even(scale_setup, BP + 5, 91))
        sync = {5: "WAITVM x22,w22,pk lgkmcnt(0)\ns_barrier", 6: "WAITVM k0 lgkmcnt(0)\ns_barrier"}.get(st, f"WAITVM x{t+1},w{t+1} lgkmcnt(0)\ns_barrier")
        fixed = [(BP, "sync", sync)] + [(g, "ph", "s_waitcnt") for g in range(3, BP - 2, 4)]
        if st == SG:
            fixed.append((BP + 2, "", f"v_readfirstlane_b32 s{sT2}, v{vPoll}\nv_mov_b32 v{vT}, 1\ns_cmp_lg_u32 s{sT2}, 32\ns_cbranch_scc1 {Lsp1}\n{Lsp1r}:\nbuffer_atomic_add v{vT}, v{vOne0}, {so}, s{r.sFh} offen sc1 ; vm:at"))
        if st == 5:
            fixed.append((BP + 4, "", f"v_readfirstlane_b32 s{sT2}, v{vPoll}\ns_nop 0\ns_cmp_lg_u32 s{sT2}, 16\ns_cbranch_scc1 {Lsp2}\n{Lsp2r}:"))
        if st == 6:
            ep = []
            for ds in range(8):
                dn = posd[(k0 + 1, 2*ds + 1)] + 1 + 8
                l = qepi(ds)
                ep += [(x, dn, 91, min(91, dn + ds * 0.8 + 9.0 * k / len(l)), "") for k, x in enumerate(l)]
            strs.append(ep)
            strs.append(even(kv(sK, r.sKo, 0, "k1"), BP + 1, 91))
        pl = sched3(92, strs, fixed)
        ev = {}
        for p, k, x in pl:
            if k != "ph": ev.setdefault(p, []).append((k, x))
        def need(g):
            nonlocal done
            if g >= 92: return
            idx = max(order.index(x) for x in ms[g][1])
            if idx > done:
                if g % 4 == 0 and g + 2 < 92 and all(x in order for x in ms[g+2][1]): idx = max(idx, max(order.index(x) for x in ms[g+2][1]))
                cnt = len(order) - 1 - idx
                assert cnt <= 15, cnt
                A(f"s_waitcnt lgkmcnt({cnt})"); done = idx
        need(0)
        for g in range(92):
            A(ms[g][0])
            lst = ev.get(g, [])
            if not any(k == "sync" for k, x in lst): need(g + 1)
            for k, x in lst:
                A(x)
                if k.startswith("rd:"): order.append(k[3:])
                elif k == "sync": done = len(order) - 1
        if st == 5: stamp(3)
        if st < 6: stamp(2 + st, True)
    assert not stq
    A(f"v_mul_f32 v32, 0x{f32bits(-LOG2E):08x}, v32\nv_mul_f32 v33, 0x{f32bits(-LOG2E):08x}, v36\nv_exp_f32 v32, v32\nv_exp_f32 v33, v33\nv_mov_b32 v34, v{vT+2}\nv_add_f32 v32, 1.0, v32\nv_add_f32 v33, 1.0, v33\nv_rcp_f32 v32, v32\nv_rcp_f32 v33, v33")
    be = [f"s_add_u32 s{sT2}, s{sBb}, {WS_KB}", f"s_add_u32 s{sT3}, s{sBb}, {WS_VB}", "v_cmp_gt_u32 vcc, 48, v0"]
    r0, r1 = accb(2, 1), accb(3, 1)
    be += pk4(r0, r1) + [f"buffer_store_dwordx4 {v(r0,4)}, v{vLane16}, {so}, s{sT2} offen offset:1024 sc1"] + [f"v_accvgpr_write_b32 a{r.bk+8+q}, v{r0+q}" for q in range(4)]
    for db in range(2):
        r0, r1 = accb(4+db, 0), accb(4+db, 1)
        be += pk4(r0, r1) + [f"buffer_store_dwordx4 {v(r0,4)}, v{vLane16}, {so}, s{sT3} offen offset:{db*1024} sc1"]
        be += [f"v_accvgpr_write_b32 a{r.bv+4*db+q}, v{r0+q}" for q in range(4)] + [f"v_accvgpr_write_b32 a{r.bm+4*db+q}, v{r0+q}" for q in range(2)]
    r0, r1 = accb(2, 0), accb(3, 0)
    be += pk4(r0, r1) + [f"v_accvgpr_write_b32 a{r.bk+4+q}, v{r0+q}" for q in range(4)]
    for e in range(2):
        r0, r1 = accb(0, e), accb(1, e)
        be += [f"v_mul_f32 v{r0+q}, v34, v{r0+q}" for q in range(8)] + pk4(r0, r1)
        be += [f"v_cndmask_b32 v{r0+2}, 0, v{r0+2}, vcc", f"v_cndmask_b32 v{r0+3}, 0, v{r0+3}, vcc"] + [f"v_accvgpr_write_b32 a{r.bq+4*e+q}, v{r0+q}" for q in range(4)]
    vdma = kv(sV, r.sVo, WS0 + 2*0x8000, "v0") + kv(sV, 72, WS0, "v1")
    A("VMEND")
    def spins():
        A(f"{Lsp1}:\n" + r.bound(Lsp1r) + f"v_mov_b32 v{vPoll}, 0\nbuffer_load_dword v{vPoll}, v{vPoll}, s[{sG}:{sG+3}], 0 offen sc1\ns_waitcnt vmcnt(0)\nv_readfirstlane_b32 s{sT2}, v{vPoll}\ns_nop 3\ns_cmp_lg_u32 s{sT2}, 32\ns_cbranch_scc1 {Lsp1}\ns_branch {Lsp1r}")
        A(f"{Lsp2}:\n" + r.bound(Lsp2r) + f"v_mov_b32 v{vPoll}, 0\nbuffer_load_dword v{vPoll}, v{vPoll}, {so}, s{r.sFh} offen sc1\ns_waitcnt vmcnt(0)\nv_readfirstlane_b32 s{sT2}, v{vPoll}\ns_nop 3\ns_cmp_lg_u32 s{sT2}, 16\ns_cbranch_scc1 {Lsp2}\ns_branch {Lsp2r}")
    return dict(spins=spins, sBb=sBb, be=be, vdma=vdma)
```

```python
from asmlib import *
from k1 import MB, WS_K, WS_V, WS_Q, WS_KB, WS_VB, WS_FLAG, WS_CTX, WS_PART, WS_WO, WS_SIZE, f32bits, LOG2E, MF
from f1a import R_, gen_part1, SPLIT

R = opti("R", 12)
WG = opti("wg", 4)
NK0 = opti("nk0", 10)
MPOS = 24
PART_STRIDE = 17 * 1024

def gen_f1(A, name="f1_kernel", stamps=False):
    Lend = A.label("F_end")
    p1 = gen_part1(A, name, stamps, Lend)
    r = R_
    sK, sV, sWS = r.sK, r.sV, r.sO
    sW, sH, sI, sTy = r.sW, r.sH, r.sI, r.sP
    sKo, sWrap = r.sKo, r.sWrap
    sKl, sVl = 28, 29
    sVs, sVrs, sVd = 30, 31, 32
    sQ, sJ, sL, sMode = r.sQ, r.sJ, r.sL, r.sMode
    sDiag, sPub, sPo, sFp, sFn = 33, 34, 35, 44, 45
    sFo = r.sFo
    sT0, sT1, sT2, sT3 = r.sT0, r.sT1, r.sT2, r.sT3
    sC8 = r.sC8
    sM = 36; sM1 = 66
    sBb = p1["sBb"]
    SR = r.SR
    vL16, vDm, vKr, vVr, vBase, vD, vNeg = 1, 2, 3, 4, 27, 6, 7
    vT = 8
    vG = 32; vTs = 34; vLs = 38; vNm = 40
    vP = 48; vS = 64; vp = 96; vO = 128
    aQ = r.aQ; aF = r.aF
    VS0 = 65536
    BIG = 0x40000000
    def stamp(i):
        if stamps and not opti("p2st"): A(f"{'s_memtime' if opti('cyc') else 's_memrealtime'} s[{SR[i]}:{SR[i]+1}]")
    def Ob(db, qb): return vO + 4 * (2 * db + qb)
    def Sb(kb, qb): return vS + 4 * (2 * kb + qb)
    def pb(kb, qb): return vp + 4 * (2 * kb + qb)
    def Pf(ks, qb): return vP + 4 * (2 * ks + qb)
    def fr(f): return a(aF + 4 * (f % 16), 4)
    def rdK(f): return f"ds_read_b128 {fr(f)}, v{vKr} offset:{f*1024}"
    def rdV(f): return f"ds_read_b128 {fr(f)}, v{vVr} offset:{f*1024}"

    vDm2 = 5
    sVn, sVe, sVb = sVs, sVrs, sVd
    def dma(kind, so=sKo):
        srd, lb = (sK, sKl) if kind == "K" else (sV, sVl)
        out = []
        for p in range(8):
            if p == 0: out.append(f"s_mov_b32 m0, s{lb}\ns_nop 0" if kind == "K" else f"s_mov_b32 m0, s{lb}\ns_nop 0")
            if p == 4: out.append(f"s_add_u32 m0, s{lb}, 4096\ns_nop 0")
            out.append(f"buffer_load_dwordx4 v{vDm if p < 4 else vDm2}, s[{srd}:{srd+3}], s{so} offen offset:{(p&3)*1024} {flags('kvld', 'sc1')} lds")
        out.append(f"s_xor_b32 s{lb}, s{lb}, s{sC8}" if kind == "K" else f"s_mov_b32 s{sVl}, s{sVn}")
        return out
    def nonop(l): return [x.replace("\ns_nop 0", "") for x in l]
    advO = f"s_add_u32 s{sKo}, s{sKo}, s{sC8}\ns_cmp_eq_u32 s{sKo}, s{sWrap}\ns_cselect_b32 s{sKo}, 0, s{sKo}"
    nextV = f"s_add_u32 s{sVn}, s{sVl}, s{sC8}\ns_cmp_eq_u32 s{sVn}, s{sVe}\ns_cselect_b32 s{sVn}, s{sVb}, s{sVn}"
    setVr = f"v_add_u32 v{vVr}, s{sVn}, v26"
    advK = f"v_xor_b32 v{vKr}, 0x8000, v{vKr}"

    ABL = [0]
    def phase(mf, events, pre):
        order = list(range(pre))
        done = -1
        def emit(lst):
            nonlocal done
            for kind, text in lst:
                ab = opt("abl", "") if ABL[0] else ""
                skip = ("e" in ab and text.startswith("v_exp")) or ("a" in ab and text.startswith("v_add_f32")) or ("c" in ab and text.startswith("v_cvt")) or ("d" in ab and text.startswith("buffer_load")) or ("r" in ab and text.startswith("ds_read")) or ("b" in ab and "s_barrier" in text)
                if not skip: A(text)
                if kind.startswith("rd:"): order.append(int(kind[3:]))
                elif kind == "rdx": order.append(-1)
                elif kind == "sync": done = len(order) - 1
        def need_wait(f):
            nonlocal done
            if f < 32 and order.index(f) > done:
                need = order.index(f)
                for g in range(f + 1, min(32, (f // WG + 1) * WG)):
                    if g in order: need = max(need, order.index(g))
                cnt = len(order) - 1 - need
                assert cnt <= 15
                A(f"s_waitcnt lgkmcnt({cnt})"); done = need
        emit(events.get(-1, []))
        need_wait(0)
        for f in range(32):
            m = mf(f)
            A(m[0]); emit(events.get(2 * f, []))
            A(m[1])
            lst = events.get(2 * f + 1, [])
            if not any(k == "sync" for k, t in lst): need_wait(f + 1)
            emit(lst)
    def add_ev(ev, items):
        for p, k, t in items: ev.setdefault(p, []).append((k, t))
    def mfQK(f):
        kb, ds = f >> 3, f & 7
        return [f"{MF} {v(Sb(kb,qb),4)}, {fr(f)}, {a(aQ+4*(2*ds+qb),4)}, {v(vNm+4*qb,4) if ds == 0 else v(Sb(kb,qb),4)}" for qb in range(2)]
    def mfPV(f):
        ks, db = f >> 4, f & 15
        return [f"{MF} {v(Ob(db,qb),4)}, {fr(f)}, {v(Pf(ks,qb),4)}, {v(Ob(db,qb),4)}" for qb in range(2)]
    def cvts():
        out = []
        for ks in range(2):
            for qb in range(2):
                for hh in range(2):
                    src = pb(2*ks+hh, qb)
                    out.append(f"v_cvt_pk_bf16_f32 v{Pf(ks,qb)+2*hh}, v{src}, v{src+1}")
                    out.append(f"v_cvt_pk_bf16_f32 v{Pf(ks,qb)+2*hh+1}, v{src+2}, v{src+3}")
        return out
    def xl_reduce(op, r, t):
        return (f"v_mov_b32 v{t}, v{r}\ns_nop 1\nv_permlane16_swap_b32 v{r}, v{t}\ns_nop 1\n{op} v{r}, v{r}, v{t}\n"
                f"v_mov_b32 v{t}, v{r}\ns_nop 1\nv_permlane32_swap_b32 v{r}, v{t}\ns_nop 1\n{op} v{r}, v{r}, v{t}")
    def mask_block():
        A(f"s_sub_u32 s{sT0}, s{sJ}, s{sDiag}\ns_lshl_b32 s{sT0}, s{sT0}, 6\nv_subrev_u32 v{vD}, s{sT0}, v{vBase}")
        for c in range(-1, 4):
            for i in range(4):
                A(f"v_cmp_gt_i32 s[{sM+2*i}:{sM+2*i+1}], {16*c+i}, v{vD}")
            A("s_nop 0")
            for i in range(4):
                for qb in range(2):
                    kb = c + qb
                    if 0 <= kb < 4:
                        x = Sb(kb, qb) + i
                        A(f"v_cndmask_b32 v{x}, v{x}, v{vNeg}, s[{sM+2*i}:{sM+2*i+1}]")
    def slow(first):
        for qb in range(2):
            m = vT + qb
            regs = [Sb(kb, qb) + i for kb in range(4) for i in range(4)]
            A(f"v_max3_f32 v{m}, v{regs[0]}, v{regs[1]}, v{regs[2]}")
            for x in range(3, 15, 2): A(f"v_max3_f32 v{m}, v{m}, v{regs[x]}, v{regs[x+1]}")
            A(f"v_max_f32 v{m}, v{m}, v{regs[15]}")
            A(xl_reduce("v_max_f32", m, vT + 2))
            if not first: A(f"v_max_f32 v{m}, 0, v{m}")
            for i in range(4): A(f"v_sub_f32 v{vNm+4*qb+i}, v{vNm+4*qb+i}, v{m}")
            if not first:
                A(f"v_sub_f32 v{vT+4+qb}, 0, v{m}\nv_exp_f32 v{vT+4+qb}, v{vT+4+qb}\ns_nop 0\nv_mul_f32 v{vLs+qb}, v{vLs+qb}, v{vT+4+qb}")
                for db in range(16):
                    for i in range(4): A(f"v_mul_f32 v{Ob(db,qb)+i}, v{Ob(db,qb)+i}, v{vT+4+qb}")
            for kb in range(4):
                for i in range(4): A(f"v_sub_f32 v{pb(kb,qb)+i}, v{Sb(kb,qb)+i}, v{m}")
            for kb in range(4):
                for i in range(4): A(f"v_exp_f32 v{pb(kb,qb)+i}, v{pb(kb,qb)+i}")
            A("s_nop 0")
            t = vTs + 2 * qb
            A(f"v_add_f32 v{t}, v{pb(0,qb)}, v{pb(0,qb)+1}")
            for x in range(2, 16): A(f"v_add_f32 v{t}, v{t}, v{pb(x>>2,qb)+(x&3)}")

    ws = f"s[{sWS}:{sWS+3}]"
    vFlag, vZ, vOneL = 30, 29, 24
    A(f"s_lshl_b32 s{sT0}, s{sW}, 13\ns_add_u32 s{sKl}, s{sT0}, 0x8000\ns_add_u32 s{sVb}, s{sT0}, {VS0}\ns_add_u32 s{sVl}, s{sVb}, 0x8000\ns_add_u32 s{sVe}, s{sVb}, {3*0x8000}\nv_subrev_u32 v26, s{sT0}, v{vL16}")
    A(f"v_add_u32 v{vKr}, 0x8000, v{vL16}\nv_mov_b32 v{vNeg}, 0x{f32bits(-1e30):08x}\nv_mov_b32 v{vZ}, 0\nv_mov_b64 v[{vFlag}:{vFlag+1}], 0\ns_mov_b32 s{sPub}, 0\ns_lshl_b32 s{sDiag}, s{sQ}, 1")
    A(f"s_mov_b32 s72, s{sKo}")
    A(advO)
    A(f"v_and_b32 v{vT}, 15, v0\nv_lshrrev_b32 v28, 4, v0\nv_lshlrev_b32 v28, 2, v28\nv_sub_u32 v28, v{vT}, v28\ns_lshl_b32 s{sT0}, s{sW}, 5\nv_add_u32 v{vBase}, s{sT0}, v28")
    A(f"v_cmp_eq_u32 vcc, 0, v0\nv_mov_b32 v{vOneL}, {BIG}\ns_xor_b32 s{sFp}, s{sFo}, {64 << 7}\nv_cndmask_b32 v{vOneL}, v{vOneL}, 0, vcc")
    A(f"s_and_b32 s{sT0}, s2, 63\ns_lshr_b32 s{sT1}, s2, 7\ns_lshl_b32 s{sT1}, s{sT1}, 6\ns_or_b32 s{sT0}, s{sT0}, s{sT1}\ns_lshl_b32 s{sT0}, s{sT0}, 2\ns_add_u32 s46, s{sT0}, s{sW}\ns_mul_i32 s{sPo}, s46, {PART_STRIDE}\ns_add_u32 s{sPo}, s{sPo}, {WS_PART}")
    A(f"s_add_u32 s{sT0}, s{r.sOwn}, 1\ns_sub_u32 s{sT1}, 23, s{sT0}\ns_cmp_ge_u32 s{sT0}, 8\ns_cselect_b32 s{sT1}, s{sT1}, s{sT0}\ns_lshl_b32 s{sT1}, s{sT1}, 10\ns_add_u32 s{sFn}, s{r.sFh}, s{sT1}\ns_sub_u32 s{sFn}, s{sFn}, 8")
    A(f"s_cmp_eq_u32 s{sT0}, 16\ns_cselect_b32 s{sFn}, {BIG}, s{sFn}\ns_cmp_lg_u32 s{sW}, 3\ns_cselect_b32 s{sFn}, {BIG}, s{sFn}")
    A(f"s_or_b32 s{sT0}, s{sTy}, s{sW}\ns_cselect_b32 s79, {BIG}, 0\ns_add_u32 s79, s79, {WS_FLAG + 20}\ns_mov_b32 s80, {WS_FLAG + 20}")
    sTt, sN, sWb3, sCb3, sL3, sSp = 16, 17, 18, 19, 20, 24
    k3s = [f"s_and_b32 s{sN}, s2, 7", f"s_lshl_b32 s{sTt}, s{sN}, 2", f"s_bfe_u32 s{sN}, s2, {(2 << 16) | 3}", f"s_add_u32 s{sTt}, s{sTt}, s{sN}", f"s_lshr_b32 s{sN}, s2, 5", f"s_mul_i32 s25, s{sW}, {36*4096}",
           f"s_mul_i32 s{sWb3}, s{sN}, {144*4096}", f"s_add_u32 s{sWb3}, s{sWb3}, s25", f"s_add_u32 s{sWb3}, s{sWb3}, {WS_WO}", f"s_mul_i32 s{sCb3}, s{sTt}, {144*4096}", f"s_add_u32 s{sCb3}, s{sCb3}, s25", f"s_add_u32 s{sCb3}, s{sCb3}, {WS_CTX}",
           f"s_cmp_ge_u32 s2, 224\ns_cselect_b32 s{sWb3}, {BIG}, s{sWb3}",
           f"s_sub_u32 s{sSp}, s{sL}, 1", f"s_cmp_eq_u32 s{sMode}, 1\ns_cselect_b32 s{sSp}, s{sL}, s{sSp}", f"s_cmp_eq_u32 s{sTy}, 1\ns_cselect_b32 s{sSp}, 8, s{sSp}",
           f"s_lshl_b32 s75, s{r.sOwn}, 1", f"s_add_u32 s75, s75, s{r.sWM}", f"s_mul_i32 s74, s75, {144*4096}", f"s_lshl_b32 s25, s{r.sWN}, 11", f"s_add_u32 s74, s74, s25", f"s_add_u32 s74, s74, {WS_CTX}"]
    vAcc, vR, vW = 16, 80, 176
    ND = 6
    AB = [128, 144, 160, 176, 240, 64, 80, 96, 112, 0, 16, 32, 48, 192, 208, 224]
    def wreg(k, u):
        if k < 16: return a(AB[k] + 4*u, 4)
        if k < 21: return v(vW + 16*(k-16) + 4*u, 4)
        if k < 29: return a(AB[7 + k - 21] + 4*u, 4)
        return a(AB[k - 29] + 4*u, 4)
    def wload(k, tmp=25): return [f"s_add_u32 s{tmp}, s{sWb3}, {k*4096}"] + [f"buffer_load_dwordx4 {wreg(k,u)}, v{vL16}, {ws}, s{tmp} offen offset:{u*1024} {flags('wld', 'sc1')} ; vm:w{k}" for u in range(4)]
    def wdma(k): return [f"s_add_u32 m0, s{sL3 + (k-21)//2}, {((k-21)&1)*4096}", f"s_add_u32 s25, s{sWb3}, {k*4096}"] + [f"buffer_load_dwordx4 v{vL16}, {ws}, s25 offen offset:{u*1024} {flags('wld', 'sc1')} lds" for u in range(4)]
    for i in range(vNm, vNm + 8, 2): A(f"v_mov_b64 {v(i,2)}, 0")
    Lloop = A.label("F2_loop"); Lqk = A.label("F2_qk"); Ltail = A.label("F2_tail"); Lfirst = A.label("F2_first")
    Lslow = A.label("F2_slow"); Lback = A.label("F2_back"); Lnm0 = A.label("F2_nm0"); Lnm1 = A.label("F2_nm1"); LA = A.label("F2_A"); Lnopark = A.label("F2_np"); Lpq = A.label("F2_pq"); Lnp2 = A.label("F2_np2")
    A(f"s_cmp_eq_u32 s{sTy}, 1\ns_cbranch_scc1 {LA}")
    for tk in range(2):
        so_ = 74 + tk
        if tk: A("s_add_u32 s46, s46, 512")
        A(f"s_mul_hi_u32 s47, s46, {(2**32 + 6)//7}\ns_mul_i32 s{sT0}, s47, 7\ns_sub_u32 s{sT0}, s46, s{sT0}")
        A(f"s_mul_i32 s{so_}, s{sT0}, 144\ns_add_u32 s{so_}, s{so_}, s47\ns_lshl_b32 s{so_}, s{so_}, 12\ns_add_u32 s{so_}, s{so_}, {WS_WO}\ns_cmp_ge_u32 s46, 1008\ns_cselect_b32 s{so_}, {BIG}, s{so_}")
    A(f"s_mov_b32 s{sT2}, 0x05040100\ns_mov_b32 s{sT3}, 0x07060302")
    for tk in range(2):
        for c in range(4):
            for m in range(4):
                A(f"v_perm_b32 v{184+16*tk+4*c+m}, v{216+16*tk+2*(2*m+1)+(c>>1)}, v{216+16*tk+2*(2*m)+(c>>1)}, s{sT2 if c % 2 == 0 else sT3}")
    A(f"s_cmp_lg_u32 s{sMode}, 1\ns_cbranch_scc1 {Lnopark}")
    for q in range(64): A(f"v_accvgpr_mov_b32 a{r.aPark+q}, a{aQ+q}")
    Lpqx = A.label("F2_pqx")
    A(f"{Lpq}:\n" + r.bound(Lpqx) + f"buffer_load_dword v{vFlag}, v{vZ}, {ws}, s{sFo} offen offset:8 sc1\ns_waitcnt vmcnt(0)\nv_readfirstlane_b32 s{sT0}, v{vFlag}\ns_nop 3\ns_cmp_lg_u32 s{sT0}, 4\ns_cbranch_scc1 {Lpq}\n{Lpqx}:")
    A(f"s_lshl_b32 s{sT2}, s{sH}, 7\ns_lshl_b32 s{sT3}, s{sQ}, 3\ns_add_u32 s{sT2}, s{sT2}, s{sT3}\ns_lshl_b32 s{sT3}, s{sW}, 1\ns_add_u32 s{sT2}, s{sT2}, s{sT3}\ns_lshl_b32 s{sT2}, s{sT2}, 13\ns_add_u32 s{sT2}, s{sT2}, {WS_Q}")
    for f in range(16):
        A(f"buffer_load_dwordx4 {a(aQ+4*(2*(f&7)+(f>>3)),4)}, v{vL16}, {ws}, s{sT2} offen offset:{(f&3)*1024} sc1")
        if f & 3 == 3: A(f"s_add_u32 s{sT2}, s{sT2}, 4096")
    A(f"{Lnopark}:")
    for tk in range(2):
        for c in range(4): A(f"buffer_store_dwordx4 {v(184+16*tk+4*c,4)}, v{vL16}, {ws}, s{74+tk} offen offset:{c*1024} sc1")
    A("s_waitcnt vmcnt(8)")
    A(f"{LA}:")
    stamp(1)
    def qk_first(fill, more=[]):
        pl = [x for x in sched3(64, [[(rdK(f), max(0, 2*(f-16)+1), 2*(f-R)+3, 2*(f-R)+1, f"rd:{f}") for f in range(R, 32)] + [(advK, 2*(31-R)+4, 63, 2*(31-R)+4, "")], even(fill, 0, 63)] + more)]
        ev = {}
        add_ev(ev, [(-1, f"rd:{f}", rdK(f)) for f in range(R)])
        add_ev(ev, pl)
        phase(mfQK, ev, 0)
    zf = [f"v_mov_b64 {v(i,2)}, 0" for i in range(vO, vO + 128, 2)]
    A(f"v_mov_b32 v{vT}, 1\ns_cmp_eq_u32 s{sMode}, 2\ns_cselect_b32 s{sT0}, s{sFp}, {BIG}")
    QS = opti("qs", 8)
    be = p1["be"]; nb = max(k for k, x in enumerate(be) if x.startswith("buffer_store")) + 1
    qk_first(zf, [[("WAITVMS q", QS, QS, QS, ""), (f"buffer_atomic_add v{vT}, v{vOneL}, {ws}, s{sT0} offen offset:8 sc1", QS + 1, QS + 1, QS + 1, "")] + even(be[:nb], QS + 2, 30) + even(p1["vdma"], 31, 63), even(be[nb:], 31, 63), even(k3s, 0, 63)])
    A(f"s_waitcnt vmcnt(16) lgkmcnt(0)")
    A(f"buffer_atomic_add v{vT}, v{vOneL}, {ws}, s{sFn} offen sc1\ns_barrier")
    bq, bk, bv, bm = r.bq, r.bk, r.bv, r.bm
    A(f"{Lfirst}:")
    for f in range(NK0): A(rdK(f))
    A(f"s_cmp_lt_u32 s{sJ}, s{sDiag}\ns_cbranch_scc1 {Lnm0}")
    mask_block()
    A(f"{Lnm0}:")
    slow(True)
    A(f"v_mov_b32 v{vLs}, 0\nv_mov_b32 v{vLs+1}, 0\nv_mov_b32 v{vT+1}, 1\ns_cmp_eq_u32 s{sPub}, 0\ns_waitcnt vmcnt(9)\ns_barrier\nbuffer_atomic_add v{vT+1}, v{vOneL}, {ws}, s79 offen sc1\ns_mov_b32 s79, {BIG}\ns_cbranch_scc1 {Lback}")
    A(f"s_mov_b32 s{sPub}, 0\ns_waitcnt vmcnt(0)\nbuffer_atomic_add v{vT+1}, v{vOneL}, {ws}, s{sFp} offen sc1\ns_branch {Lback}")
    p1["spins"]()
    A(f"{Lslow}:")
    slow(False)
    A(f"s_branch {Lback}")
    A(f".p2align 6\n{Lloop}:")
    A(f"s_add_u32 s{sJ}, s{sJ}, 1\ns_cmp_lt_u32 s{sJ}, s{sDiag}\ns_cbranch_scc1 {Lnm1}")
    mask_block()
    A(f"{Lnm1}:")
    def wait_load(upto=32):
        return [(2*f-1, "ph", "s_waitcnt") for f in range(WG, upto, WG)]
    drop = lambda pl: [x for x in pl if x[1] != "ph"]
    own = lambda rd, f0: [(rd(f), max(0, 2*(f-16)+1), max(2*(f-R)+3, f - f0 + 2), max(2*(f-R)+1, f - f0), f"rd:{f}") for f in range(f0, 32)]
    PK = opti("pk", 0)
    els = [(kb, qb, i) for kb in range(4) for qb in range(2) for i in range(4)]
    sm = []; seen = set(); pend = []
    for x, (kb, qb, i) in enumerate(els):
        sm.append(f"v_exp_f32 v{pb(kb,qb)+i}, v{Sb(kb,qb)+i}")
        sm += pend; pend = []
        if PK:
            if i & 1:
                t = vTs + 2*qb; rr = pb(kb, qb) + i - 1
                if t in seen: pend = [f"v_pk_add_f32 {v(t,2)}, {v(t,2)}, {v(rr,2)}"]
                elif i == 3: pend = [f"v_pk_add_f32 {v(t,2)}, {v(rr-2,2)}, {v(rr,2)}"]; seen.add(t)
        else:
            t = vTs + 2*qb + (i & 1); rr = pb(kb, qb) + i
            if t in seen: pend = [f"v_add_f32 v{t}, v{t}, v{rr}"]
            elif i >= 2: pend = [f"v_add_f32 v{t}, v{rr-2}, v{rr}"]; seen.add(t)
    kx = [(rdK(f), max(2*MPOS, 2*(f+16)+1), 63, 2*MPOS + f * 15.0 / NK0, "rdx") for f in range(NK0)]
    pl = drop(sched3(64, [own(rdV, R), kx, even(sm, 0, 62)], wait_load(MPOS) + [(2*MPOS-1, "sync", "s_waitcnt vmcnt(9) lgkmcnt(0)\ns_barrier")]))
    ev = {}
    add_ev(ev, pl)
    assert max(p for p, k, t in pl if k.startswith("rd:")) < 2*MPOS - 4
    ABL[0] = 1
    phase(mfPV, ev, R)
    for t in pend: A(t)
    A(f"v_add_f32 v{vTs}, v{vTs}, v{vTs+1}\nv_add_f32 v{vTs+2}, v{vTs+2}, v{vTs+3}\nv_max_f32 v{vT}, v{vTs}, v{vTs+2}\nv_cmp_nge_f32 vcc, 0x44800000, v{vT}")
    A(f"s_cbranch_vccnz {Lslow}\n{Lback}:" if not opt("abl") else f"{Lback}:")
    Ldis = A.label("F2_dis")
    A(f"s_cmp_eq_u32 s{sJ}, s{sSp}\ns_cbranch_scc1 {Ldis}")
    A(f"{Lqk}:")
    ladd = [f"v_add_f32 v{vLs}, v{vLs}, v{vTs}", f"v_add_f32 v{vLs+1}, v{vLs+1}, v{vTs+2}"]
    poll = f"buffer_load_dwordx2 v[{vFlag}:{vFlag+1}], v{vZ}, {ws}, s{sFo} offen sc1"
    def qk_phase(dm):
        ko = own(rdK, NK0)
        lastk = 2*(31-R)+3
        vx = [(advK, lastk, 63, lastk, "")] + [(rdV(f), max(lastk, 2*(f+16)+1), 63, 2*(32-R+f)+1, "rdx") for f in range(R)]
        pl = drop(sched3(64, [ko + vx, even(dm, 0, 63), even(ladd + [nextV, setVr] + cvts(), 0, 44)], wait_load()))
        for x in range(len(pl) - 1):
            if "m0" in pl[x][2] and pl[x][0] == pl[x+1][0] and pl[x+1][2].startswith("buffer_load"):
                pl[x] = (pl[x][0], pl[x][1], pl[x][2] + "\ns_nop 0")
        ev = {}
        add_ev(ev, pl)
        phase(mfQK, ev, NK0)
        A(f"s_branch {Lloop}")
    qk_phase(nonop(dma("K")) + nonop(dma("V")) + [advO, poll])
    ABL[0] = 0
    Lend1 = A.label("F2_e1"); Lw1 = A.label("F2_w1"); Lw2 = A.label("F2_w2"); Lwc = A.label("F2_wc"); Lwd = A.label("F2_wd")
    wpoll = f"buffer_load_dword v23, v{vZ}, {ws}, s80 offen sc1"
    def wcheck(L0, L1): A(f"{L0}:\nv_readfirstlane_b32 s{sT0}, v23\ns_nop 3\ns_cmp_eq_u32 s{sT0}, 128\ns_cbranch_scc1 {L1}\n" + r.bound(L1) + wpoll + f"\ns_waitcnt vmcnt(0)\ns_branch {L0}\n{L1}:")
    A(f"{Ldis}:\ns_cmp_eq_u32 s{sJ}, s{sL}\ns_cbranch_scc1 {Ltail}\ns_add_u32 s{sT0}, s{sJ}, 1\ns_cmp_eq_u32 s{sT0}, s{sL}\ns_cbranch_scc1 {Lend1}")
    A(f"s_cmp_eq_u32 s{sJ}, 10\ns_cbranch_scc1 {Lw1}\ns_cmp_eq_u32 s{sJ}, 11\ns_cbranch_scc1 {Lw2}\n{wpoll}\ns_mov_b32 s{sSp}, 10\ns_branch {Lqk}")
    A(f"{Lw1}:\ns_mov_b32 s{sSp}, 11")
    wcheck(Lwc, Lwd)
    wl = wload(0) + wload(1) + wload(2) + wload(3) + wload(4)
    qk_phase(nonop(dma("K")) + wl[:13] + nonop(dma("V")) + [advO, poll])
    A(f"{Lw2}:\ns_sub_u32 s{sSp}, s{sL}, 1")
    qk_phase(nonop(dma("K")) + wl[13:] + nonop(dma("V")) + [advO, poll])
    Lh = A.label("F2_h"); Lhs = A.label("F2_hs")
    A(f"{Lend1}:\ns_mov_b32 s{sSp}, s{sL}\ns_cmp_eq_u32 s{r.sOwn}, 0\ns_cselect_b32 s{sT1}, 1, 0\ns_or_b32 s{sT1}, s{sT1}, s{sW}\ns_lshl_b32 s{sT2}, s{sMode}, 1")
    A(f"{Lhs}:\ns_waitcnt vmcnt(0)\nv_readfirstlane_b32 s46, v{vFlag}\nv_readfirstlane_b32 s47, v{vFlag+1}\ns_nop 1\ns_or_b32 s47, s47, s{sT1}\ns_cmp_eq_u32 s46, s{sT2}\ns_cselect_b32 s47, s47, 0\ns_cmp_lg_u32 s47, 0\ns_cbranch_scc1 {Lh}")
    A(r.bound(Lh) + poll + f"\ns_branch {Lhs}\n{Lh}:")
    A(f"s_add_u32 s{sT2}, s{sBb}, {WS_KB - 1024}\ns_add_u32 s{sT3}, s{sBb}, {WS_VB - 2048}\ns_or_b32 s{sT0}, s{r.sOwn}, s{sW}\ns_cselect_b32 s{sT2}, s{sT2}, {BIG}\ns_cselect_b32 s{sT3}, s{sT3}, {BIG}")
    A(f"s_cmp_eq_u32 s{sMode}, 2\ns_cselect_b32 s{sPo}, s{sPo}, {BIG}\ns_mov_b32 s{sL3+2}, s{sKl}\ns_mov_b32 s{sL3+3}, s{sVl}\ns_xor_b32 s{sL3}, s{sKl}, s{sC8}")
    dm = [wpoll, f"s_add_u32 s{sT0}, s{sPo}, 16384", f"buffer_load_dwordx4 v[14:17], v{vL16}, {ws}, s{sT0} offen sc1"]
    for n in range(16):
        if n % 4 == 0: dm += [f"s_add_u32 m0, s{sL3 + 2 + (n >> 3)}, {(n & 4) * 1024}", f"s_add_u32 s{sT0}, s{sPo}, {n * 1024}"]
        dm.append(f"buffer_load_dwordx4 v{vL16}, {ws}, s{sT0} offen offset:{(n&3)*1024} sc1 lds")
    dm += [f"buffer_load_dwordx4 {a(bk,4)}, v{vL16}, {ws}, s{sT2} offen sc1"] + [f"buffer_load_dwordx2 {a(bm+4*db+2,2)}, v{vL16}, {ws}, s{sT3} offen offset:{db*1024+8} sc1" for db in range(2)]
    dm += [f"s_mov_b32 s{sVl}, s{sVn}", f"s_mov_b32 s{sL3+1}, s{sVn}"]
    qk_phase(dm)
    def pv_last(fill):
        ev = {}
        add_ev(ev, [(2*(f-R)+1, f"rd:{f}", rdV(f)) for f in range(R, 32)])
        add_ev(ev, [(p, "", t) for p, t in fill])
        phase(mfPV, ev, R)
    def pack(qb, g):
        r0, r1 = Ob(2*g, qb), Ob(2*g+1, qb)
        return [f"v_cvt_pk_bf16_f32 v{r0}, v{r0}, v{r0+1}", f"v_cvt_pk_bf16_f32 v{r0+1}, v{r0+2}, v{r0+3}", f"v_cvt_pk_bf16_f32 v{r0+2}, v{r1}, v{r1+1}", f"v_cvt_pk_bf16_f32 v{r0+3}, v{r1+2}, v{r1+3}"]
    Lt1 = A.label("K2_t1"); Lt0 = A.label("K2_t0"); Lst = A.label("K2_store"); Lbt = A.label("F2_bt")
    perm = [(ks, 2*g + d) for g in range(8) for ks in range(2) for d in range(2)]
    def rdV2(f): return f"ds_read_b128 {fr(f)}, v{vVr} offset:{(16*perm[f][0] + perm[f][1])*1024}"
    def mfPV2(f):
        ks, db = perm[f]
        return [f"{MF} {v(Ob(db,qb),4)}, {fr(f)}, {v(Pf(ks,qb),4)}, {v(Ob(db,qb),4)}" for qb in range(2)]
    A(f"{Ltail}:")
    stamp(2)
    A(nextV); A(setVr)
    A(f"s_cmp_eq_u32 s{sMode}, 1\ns_cbranch_scc1 {Lt1}")
    for f in range(R): A(rdV2(f))
    for t in ladd: A(t)
    for t in cvts(): A(t)
    A("s_waitcnt vmcnt(0)")
    wcheck(A.label("F2_wc2"), A.label("F2_wd2"))
    A(f"s_lshl_b32 s{sT0}, s{sH}, 15\ns_add_u32 s{sT0}, s{sT0}, s74\ns_mov_b32 s{sT3}, 0xffff0000\ns_cmp_eq_u32 s{sMode}, 0\ns_cbranch_scc1 {Lt0}")
    fA, fB = (10, 12), (18, 20)
    LATE = []
    def final(merge):
        fac = []
        for qb in range(2):
            if merge:
                fac += [f"v_min_f32 v8, v{vNm+4*qb}, v{14+qb}", f"v_sub_f32 v{fA[qb]}, v8, v{vNm+4*qb}", f"v_sub_f32 v{fB[qb]}, v8, v{14+qb}", f"v_exp_f32 v{fA[qb]}, v{fA[qb]}", f"v_exp_f32 v{fB[qb]}, v{fB[qb]}\ns_nop 0",
                        f"v_mul_f32 v{vLs+qb}, v{vLs+qb}, v{fA[qb]}", f"v_fmac_f32 v{vLs+qb}, v{16+qb}, v{fB[qb]}"]
            fac += split_items([xl_reduce("v_add_f32", vLs+qb, 8)])
            fac += [f"v_rcp_f32 v{vLs+qb}, v{vLs+qb}\ns_nop 0", f"v_mul_f32 v{vLs+qb}, v{vLs+qb}, v{vG+qb}"]
            if merge: fac += [f"v_mul_f32 v{fA[qb]}, v{fA[qb]}, v{vLs+qb}", f"v_mul_f32 v{fB[qb]}, v{fB[qb]}, v{vLs+qb}", f"v_mov_b32 v{fA[qb]+1}, v{fA[qb]}", f"v_mov_b32 v{fB[qb]+1}, v{fB[qb]}"]
            else: fac += [f"v_mov_b32 v{fA[qb]}, v{vLs+qb}", f"v_mov_b32 v{fA[qb]+1}, v{vLs+qb}"]
        items = [(x, 0) for x in fac]
        for g in range(8):
            rdy = max(8*g + 7 + 8, 16 if merge else 0)
            for qb in range(2):
                n = qb * 8 + g
                for hh in range(4):
                    o = Ob(2*g + (hh >> 1), qb) + 2 * (hh & 1); rr = vS + 4*n + hh; t = (8, 14)[hh & 1]
                    if merge: l = [f"v_lshlrev_b32 v{t}, 16, v{rr}", f"v_and_b32 v{t+1}, s{sT3}, v{rr}", f"v_pk_mul_f32 {v(o,2)}, {v(o,2)}, {v(fA[qb],2)}", f"v_pk_fma_f32 {v(o,2)}, {v(t,2)}, {v(fB[qb],2)}, {v(o,2)}"]
                    else: l = [f"v_pk_mul_f32 {v(o,2)}, {v(o,2)}, {v(fA[qb],2)}"]
                    items += [(x, rdy) for x in l]
                items += [(x, rdy) for x in pack(qb, g)]
                if qb == 0: items.append((f"s_add_u32 s{sT1}, s{sT0}, {g*4096}", rdy))
                items.append((f"buffer_store_dwordx4 {v(Ob(2*g,qb),4)}, v{vL16}, {ws}, s{sT1} offen offset:{qb*1024} sc1", rdy))
        clock = 0.0; inph = []; rest = []
        RATE = float(opt("erate", "2.0"))
        for x, rdy in items:
            clock = max(clock + cost(x) / RATE, rdy)
            if clock < 63.5 and not rest: inph.append((x, rdy, 63, clock, ""))
            else: rest.append(x)
        strs = [[(rdV2(f), max(0, 2*(f-16)+1), 2*(f-R)+3, 2*(f-R)+1, f"rd:{f}") for f in range(R, 32)], inph, even(wload(5) + wload(6) + wload(7) + wload(8), 0, 63)]
        fixed = wait_load()
        if merge:
            A(f"v_add_u32 v22, s{sL3+2}, v{vL16}\nv_add_u32 v23, s{sL3+3}, v{vL16}")
            strs.append([(f"ds_read_b128 {v(vS + 4*(8*(x&1) + (x>>1)), 4)}, v{22 + (x&1)} offset:{(x>>1)*1024}", 0, 11, x * 0.7, "rdx") for x in range(16)])
            fixed = [x for x in fixed if x[0] != 15] + [(15, "sync", "s_waitcnt lgkmcnt(0)")]
        ev = {}
        add_ev(ev, drop(sched3(64, strs, fixed)))
        phase(mfPV2, ev, R)
        A("s_nop 7")
        more = wdma(21) + wdma(22) + wdma(23) + wdma(24) + ["s_waitcnt vmcnt(36)"] + wload(9) + wload(10) + wload(11) + wload(12)
        if opti("late", 0):
            for x in rest: A(x)
            LATE[:] = more
            return
        step = max(1, len(rest) // len(more)) if merge else 2
        for k, x in enumerate(rest):
            A(x)
            if k % step == step - 1 and more: A(more.pop(0))
        for x in more: A(x)
    final(True)
    A(f"s_branch {Lbt}\n{Lt0}:")
    final(False)
    A(f"s_branch {Lbt}")
    A(f"{Lt1}:")
    for f in range(R): A(rdV(f))
    for t in ladd: A(t)
    for t in cvts(): A(t)
    A(f"s_mov_b32 s{sQ}, s{sI}\ns_lshl_b32 s{sK+2}, s{sI}, 16\ns_add_u32 s{sK+2}, s{sK+2}, 0x10000\ns_mov_b32 s{sV+2}, s{sK+2}")
    pv_last(sched(64, [(dma("K") + dma("V") + [advO], 0, 62), ([f"v_accvgpr_mov_b32 a{aQ+q}, a{r.aPark+q}" for q in range(64)], 0, 63)], None))
    A(f"v_mov_b32 v{vT}, v{vNm}\nv_mov_b32 v{vT+1}, v{vNm+4}\nv_mov_b32 v{vT+2}, v{vLs}\nv_mov_b32 v{vT+3}, v{vLs+1}")
    for i in range(vNm, vNm + 8): A(f"v_mov_b32 v{i}, 0")
    A(f"s_mov_b32 s{sPub}, 1\ns_mov_b32 s{sMode}, 0\ns_mov_b32 s{sJ}, 0\ns_lshl_b32 s{sDiag}, s{sQ}, 1\ns_add_u32 s{sL}, s{sDiag}, 1\ns_mov_b32 s{sSp}, s{sDiag}")
    A(f"s_add_u32 s{sT2}, s{sPo}, 16384\nbuffer_store_dwordx4 {v(vT,4)}, v{vL16}, {ws}, s{sT2} offen sc1")
    A("s_waitcnt vmcnt(17)\ns_barrier")
    fill = []
    prevz = []
    for qb in range(2):
        for g in range(8):
            n = qb * 8 + g
            fill += pack(qb, g)
            t = f"s_add_u32 s{sT2}, s{sPo}, {(n>>2)*4096}\n" if n & 3 == 0 else ""
            fill.append(t + f"buffer_store_dwordx4 {v(Ob(2*g,qb),4)}, v{vL16}, {ws}, s{sT2} offen offset:{(n&3)*1024} sc1")
            fill += prevz
            r0, r1 = Ob(2*g, qb), Ob(2*g+1, qb)
            prevz = [f"v_mov_b64 {v(x,2)}, 0" for x in (r1, r1+2, r0, r0+2)]
    fill += ["s_nop 1"] + prevz
    qk_first(fill)
    A(f"s_waitcnt vmcnt(17) lgkmcnt(0)\ns_barrier\ns_branch {Lfirst}")
    A(f"{Lbt}:")
    bS, bP = 64, 96
    for e in range(2):
        A(f"{MF} {v(bS+8*e,4)}, {a(bk+4*(e+1),4)}, {a(bq+4*e,4)}, 0")
        A(f"{MF} {v(bS+8*e+4,4)}, {a(bk+4*e,4)}, {a(bq+4*e,4)}, 0")
    for i in range(4):
        A(f"v_subrev_u32 v{vT+2}, {i}, v28\nv_and_b32 v{vT+2}, 0x80000001, v{vT+2}\nv_bfrev_b32 v{vT+2}, v{vT+2}")
        A(f"v_cmp_eq_u32 s[{sM+2*i}:{sM+2*i+1}], 0, v{vT+2}\nv_cmp_eq_u32 s[{sM1+2*i}:{sM1+2*i+1}], 1, v{vT+2}")
    A(f"v_cmp_gt_u32 vcc, 48, v0\ns_nop 0")
    def each(fn):
        for e in range(2): A(fn(e))
    m = lambda e: vT + e
    tt = lambda e: vT + 4 + e
    l = lambda e: vT + 8 + e
    for e in (1, 0):
        s0 = bS + 8 * e
        if e == 0:
            A(f"s_or_b32 s{sT0}, s{r.sOwn}, s{sW}")
            for i in range(4): A(f"s_cselect_b64 s[{sM1+2*i}:{sM1+2*i+1}], s[{sM1+2*i}:{sM1+2*i+1}], 0")
        for i in range(4):
            A(f"v_cndmask_b32 v{s0+i}, v{vNeg}, v{s0+i}, s[{sM+2*i}:{sM+2*i+1}]")
            A(f"v_cndmask_b32 v{s0+4+i}, v{vNeg}, v{s0+4+i}, s[{sM1+2*i}:{sM1+2*i+1}]")
        A(f"v_max3_f32 v{m(e)}, v{s0}, v{s0+1}, v{s0+2}\nv_max3_f32 v{m(e)}, v{m(e)}, v{s0+3}, v{s0+4}\nv_max3_f32 v{m(e)}, v{m(e)}, v{s0+5}, v{s0+6}\nv_max_f32 v{m(e)}, v{m(e)}, v{s0+7}")
    def xl4(op, rg):
        for sw in ("v_permlane16_swap_b32", "v_permlane32_swap_b32"):
            each(lambda e: f"v_mov_b32 v{tt(e)}, v{rg(e)}")
            A("s_nop 1")
            each(lambda e: f"{sw} v{rg(e)}, v{tt(e)}")
            A("s_nop 1")
            each(lambda e: f"{op} v{rg(e)}, v{rg(e)}, v{tt(e)}")
    xl4("v_max_f32", m)
    for e in range(2):
        s0 = bS + 8 * e
        for i in range(8): A(f"v_sub_f32 v{s0+i}, v{s0+i}, v{m(e)}")
        for i in range(8): A(f"v_exp_f32 v{s0+i}, v{s0+i}")
    for e in range(2):
        s0 = bS + 8 * e
        lo, hi = (s0, s0 + 4) if e == 0 else (s0 + 4, s0)
        A(f"v_cvt_pk_bf16_f32 v{bP+4*e}, v{lo}, v{lo+1}\nv_cvt_pk_bf16_f32 v{bP+4*e+1}, v{lo+2}, v{lo+3}\nv_cvt_pk_bf16_f32 v{bP+4*e+2}, v{hi}, v{hi+1}\nv_cvt_pk_bf16_f32 v{bP+4*e+3}, v{hi+2}, v{hi+3}")
        A(f"v_add_f32 v{l(e)}, v{s0}, v{s0+1}")
        for i in range(2, 8): A(f"v_add_f32 v{l(e)}, v{l(e)}, v{s0+i}")
        for db in range(2):
            A(f"{MF} {v(s0+4*db,4)}, {a((bm if e == 0 else bv)+4*db,4)}, {v(bP+4*e,4)}, 0")
    xl4("v_add_f32", l)
    each(lambda e: f"v_rcp_f32 v{l(e)}, v{l(e)}\nv_sub_f32 v{vG+e}, 1.0, v{vG+e}\nv_mul_f32 v{l(e)}, v{l(e)}, v{vG+e}")
    A(f"s_lshl_b32 s{sT0}, s{sH}, 12\ns_add_u32 s{sT0}, s{sT0}, s74\ns_add_u32 s{sT0}, s{sT0}, {128*4096}")
    for e in range(2):
        o = bS + 8 * e
        for i in range(8): A(f"v_mul_f32 v{o+i}, v{o+i}, v{l(e)}")
        A(f"v_cvt_pk_bf16_f32 v{o}, v{o}, v{o+1}\nv_cvt_pk_bf16_f32 v{o+1}, v{o+2}, v{o+3}\nv_cvt_pk_bf16_f32 v{o+2}, v{o+4}, v{o+5}\nv_cvt_pk_bf16_f32 v{o+3}, v{o+6}, v{o+7}")
        A(f"v_cndmask_b32 v{o+2}, 0, v{o+2}, vcc\nv_cndmask_b32 v{o+3}, 0, v{o+3}, vcc")
        A(f"buffer_store_dwordx4 {v(o,4)}, v{vL16}, {ws}, s{sT0} offen offset:{e*1024} sc1")
    stamp(3)
    Lsig = A.label("F3_sig"); Lw = A.label("F3_w"); Lwx = A.label("F3_wx"); Lc = A.label("F3_c"); Lcx = A.label("F3_cx")
    def line_of(dst, tile): return f"s_and_b32 s{dst}, s{tile}, 7\ns_lshr_b32 s{sT3}, s{tile}, 3\ns_lshl_b32 s{sT3}, s{sT3}, 6\ns_or_b32 s{dst}, s{dst}, s{sT3}\ns_lshl_b32 s{dst}, s{dst}, 7\ns_add_u32 s{dst}, s{dst}, {WS_FLAG + 16}"
    A(line_of(sT2, 75))
    A(f"v_mov_b32 v{vT}, 1\ns_cmp_lt_u32 s2, 224\ns_cbranch_scc1 {Lw}\ns_waitcnt vmcnt(0)\nbuffer_atomic_add v{vT}, v{vOneL}, {ws}, s{sT2} offen sc1\ns_branch {Lst}")
    A(f"{Lw}:")
    def cload(k): return [f"s_add_u32 s{sT0}, s{sCb3}, {k*4096}"] + [f"buffer_load_dwordx4 {v(vR + 16*(k % ND) + 4*t, 4)}, v{vL16}, {ws}, s{sT0} offen offset:{t*1024} {flags('cld', 'sc1')} ; vm:c{k}" for t in range(4)]
    A("s_waitcnt vmcnt(40)")
    for k in (13, 14):
        for t in wload(k): A(t)
    A(f"v_mov_b32 v15, v{vZ}\ns_waitcnt vmcnt(8)\nbuffer_atomic_add v{vT}, v{vOneL}, {ws}, s{sT2} offen sc1")
    for t in LATE: A(t)
    A("s_waitcnt vmcnt(30)")
    for k in range(15, 21):
        for t in wload(k): A(t)
    A("s_waitcnt vmcnt(24)")
    for k in range(25, 29):
        for t in wdma(k): A(t)
    A(f"s_cmp_eq_u32 s{sTy}, 1\ns_cbranch_scc1 {Lwx}\ns_waitcnt vmcnt(32)")
    for k in range(5):
        for t in wload(k): A(t)
    A(f"{Lwx}:")
    for q in range(4): A(f"v_add_u32 v{9+q}, s{sL3+q}, v{vL16}")
    A(line_of(sT2, sTt))
    stamp(4)
    A(f"{Lc}:\n" + r.bound(Lcx) + f"buffer_load_dword v14, v15, {ws}, s{sT2} offen sc1\ns_waitcnt vmcnt(0)\nv_readfirstlane_b32 s{sT0}, v14\ns_nop 3\ns_cmp_lg_u32 s{sT0}, 32\ns_cbranch_scc1 {Lc}\n{Lcx}:")
    stamp(5)
    A("VMSEED")
    for k in range(ND):
        for t in cload(k): A(t)
    for k in range(36):
        A(f"WAITVM c{k}" + (f",w{k}" if k >= 29 else "") + (" lgkmcnt(0)" if k == 21 else ""))
        for u in range(4):
            for tt in range(4):
                t = tt if u % 2 == 0 else 3 - tt
                c = v(vAcc + 4*(4*u+t), 4)
                A(f"{MF} {c}, {wreg(k,u)}, {v(vR + 16*(k % ND) + 4*t, 4)}, {c if k else 0}")
        if k + ND < 36:
            for t in cload(k + ND): A(t)
        if k % 3 == 2 and 29 + k // 3 < 36:
            for t in wload(29 + k // 3): A(t)
        if 10 <= k < 18:
            kk = 21 + k - 10
            for u in range(4): A(f"ds_read_b128 {wreg(kk,u)}, v{9 + (kk-21)//2} offset:{((kk-21)&1)*4096 + u*1024}")
    A("VMEND")
    stamp(6)
    vt = 2
    A(f"v_and_b32 v{vt}, 15, v0\nv_mul_u32_u24 v{vt}, 272, v{vt}\nv_lshrrev_b32 v{vt+1}, 4, v0\nv_lshl_add_u32 v{vt}, v{vt+1}, 6, v{vt}\ns_mul_i32 s{sT0}, s{sW}, {64*272}\nv_add_u32 v{vt}, s{sT0}, v{vt}")
    A(f"v_lshrrev_b32 v{vt+1}, 2, v0\ns_lshl_b32 s{sT0}, s{sW}, 4\nv_add_u32 v{vt+1}, s{sT0}, v{vt+1}\nv_mul_u32_u24 v{vt+2}, 272, v{vt+1}\nv_and_b32 v{vt+3}, 3, v0\nv_lshl_add_u32 v{vt+2}, v{vt+3}, 6, v{vt+2}")
    A(f"v_mul_u32_u24 v{vt+4}, 896, v{vt+1}\nv_lshl_add_u32 v{vt+4}, v{vt+3}, 5, v{vt+4}")
    A(f"s_mul_i32 s{sT0}, s{sTt}, {64*896}\ns_lshl_b32 s{sT1}, s{sN}, 7\ns_add_u32 s{sT0}, s{sT0}, s{sT1}")
    A(f"s_mov_b64 s[{sK}:{sK+1}], s[{r.sOut}:{r.sOut+1}]\ns_mov_b32 s{sK+2}, {2048*896}\ns_barrier")
    for u in range(4):
        for t in range(4):
            A(f"ds_write_b128 v{vt}, {v(vAcc+4*(4*u+t),4)} offset:{t*16*272 + u*16}")
    A("s_waitcnt lgkmcnt(0)\ns_barrier")
    for p in range(4):
        for c in range(4):
            A(f"ds_read_b128 {v(vR + 16*p + 4*c, 4)}, v{vt+2} offset:{p*64*272 + c*16}")
    A("s_waitcnt lgkmcnt(8)")
    for i in range(0, 16, 2): A(f"v_pk_add_f32 {v(vR+i,2)}, {v(vR+i,2)}, {v(vR+16+i,2)}")
    A("s_waitcnt lgkmcnt(0)")
    for i in range(0, 16, 2): A(f"v_pk_add_f32 {v(vR+32+i,2)}, {v(vR+32+i,2)}, {v(vR+48+i,2)}")
    for i in range(0, 16, 2): A(f"v_pk_add_f32 {v(vR+i,2)}, {v(vR+i,2)}, {v(vR+32+i,2)}")
    for i in range(4):
        A(f"v_cvt_pk_bf16_f32 v{vR+64+2*i}, v{vR+i}, v{vR+4+i}\nv_cvt_pk_bf16_f32 v{vR+64+2*i+1}, v{vR+8+i}, v{vR+12+i}")
    A(f"buffer_store_dwordx4 {v(vR+64,4)}, v{vt+4}, s[{sK}:{sK+3}], s{sT0} offen\nbuffer_store_dwordx4 {v(vR+68,4)}, v{vt+4}, s[{sK}:{sK+3}], s{sT0} offen offset:16")
    A(f"{Lst}:")
    if stamps:
        A("s_waitcnt vmcnt(0)")
        stamp(7)
        A("s_waitcnt lgkmcnt(0)")
        for q, x in enumerate(SR): A(f"v_mov_b32 v{4+q}, s{x}")
        A(f"v_mov_b32 v12, 0\ns_lshl_b32 s{sT3}, s2, 5\ns_add_u32 s{sT3}, s{sT3}, {200*MB}")
        A(f"buffer_store_dwordx4 v[4:7], v12, {ws}, s{sT3} offen\nbuffer_store_dwordx4 v[8:11], v12, {ws}, s{sT3} offen offset:16")
    A(f"{Lend}:\ns_endpgm")
```

```python
import sys
from asmlib import *
import k1
NAME = "gated_mix__compressed_kv_cla__sliding_local_dilated__prompt"
def build(path, kernels=("k1",), stamps=False):
    A = Asm()
    hdr = open("cdna_kernels/" + NAME + ".s.ref").read().split("\n") if False else []
    if "k1" in kernels: A("; @launch kernel=k1_kernel grid=(256,1,1) block=(256,1,1) lds=163840")
    if "k2" in kernels: A("; @launch kernel=k2_kernel grid=(256,1,1) block=(256,1,1) lds=163840")
    if "f1" in kernels: A("; @launch kernel=f1_kernel grid=(256,1,1) block=(256,1,1) lds=163840")
    if "k3" in kernels: A("; @launch kernel=k3_kernel grid=(224,1,1) block=(256,1,1) lds=69632")
    A('.amdgcn_target "amdgcn-amd-amdhsa--gfx950"\n.text')
    if "k1" in kernels: k1.gen_k1(A, stamps=stamps)
    if "k2" in kernels:
        import k2; k2.gen_k2(A, stamps=stamps)
    if "f1" in kernels:
        import f1b; f1b.gen_f1(A, stamps=stamps)
    if "k3" in kernels:
        import k3; k3.gen_k3(A, stamps=stamps, sidx=len(kernels)-1)
    A("CODE_END:")
    A('.section .rodata,"a"\n.p2align 6')
    t = A.text()
    if "k1" in kernels: t += kd("k1_kernel")
    if "k2" in kernels: t += ".p2align 6\n" + kd("k2_kernel")
    if "f1" in kernels: t += ".p2align 6\n" + kd("f1_kernel")
    if "k3" in kernels: t += ".p2align 6\n" + kd("k3_kernel", 256, 256)
    if opti("single"):
        hdr = [l for l in open("cdna_kernels/" + NAME + ".s.ref").read().split("\n") if l.startswith(";") and "@launch" not in l and "Override" not in l and "grid=ceil" not in l]
        t = t.replace("; @launch kernel=f1_kernel grid", "; @launch grid").replace("f1_kernel", NAME + "_kernel")
        t = "\n".join(hdr) + "\n" + t
    open(path, "w").write(t)
if __name__ == "__main__":
    build(sys.argv[1], tuple(sys.argv[2].split(",")), stamps=len(sys.argv) > 3)
```

```python
class Asm:
    def __init__(self):
        self.L = []
        self.uid = 0
    def __call__(self, s):
        for ln in s.split("\n"):
            ln = ln.strip()
            if ln:
                self.L.append(("" if ln.endswith(":") or ln.startswith(".") or ln.startswith(";") else "    ") + ln)
    def label(self, base):
        self.uid += 1
        return f"{base}_{self.uid}"
    def text(self):
        out = []; q = None
        for ln in self.L:
            t = ln.strip()
            if t.startswith("VMSEED"):
                q = []
                for it in t.split()[1:]:
                    tag, n = it.split("*"); q += [tag] * int(n)
                continue
            if t.startswith("VMEND"):
                saved = q; q = None; continue
            if t.startswith("WAITVMS"):
                tags = t.split()[1].split(",")
                last = max(i for i, x in enumerate(saved) if x in tags)
                out.append(f"    s_waitcnt vmcnt({len(saved) - 1 - last})")
                continue
            if t.startswith("WAITVM"):
                parts = t.split()
                tags = parts[1].split(",")
                for tg in tags: assert tg in q, (tg, q)
                last = max(i for i, x in enumerate(q) if x in tags)
                cnt = len(q) - 1 - last
                assert cnt <= 63
                out.append(f"    s_waitcnt vmcnt({cnt}) " + " ".join(parts[2:]))
                continue
            if q is not None and (t.startswith("buffer_") or t.startswith("global_")):
                q.append(t.split("; vm:")[1].strip() if "; vm:" in t else "?")
            out.append(ln)
        return "\n".join(out) + "\n"

def rng(kind, base, n):
    return f"{kind}{base}" if n == 1 else f"{kind}[{base}:{base+n-1}]"
def v(b, n=1): return rng("v", b, n)
def a(b, n=1): return rng("a", b, n)
def s(b, n=1): return rng("s", b, n)

def interleave(A, mfmas, fillers):
    by = {}
    for p, t in fillers:
        by.setdefault(p, []).append(t)
    for t in by.get(-1, []): A(t)
    for i, m in enumerate(mfmas):
        A(m)
        for t in by.get(i, []): A(t)
    for p in by:
        assert -1 <= p < len(mfmas), p

def spread(items, lo, hi):
    n = len(items)
    out = []
    for k, t in enumerate(items):
        out.append((lo + (k * (hi - lo + 1)) // n, t))
    return out

def kd(name, vgpr=512, accum=256, sgpr=102):
    return f""".amdhsa_kernel {name}
  .amdhsa_next_free_vgpr {vgpr}
  .amdhsa_next_free_sgpr {sgpr}
  .amdhsa_accum_offset {accum}
  .amdhsa_group_segment_fixed_size 0
  .amdhsa_kernarg_size 104
  .amdhsa_user_sgpr_count 2
  .amdhsa_user_sgpr_kernarg_segment_ptr 1
  .amdhsa_system_sgpr_workgroup_id_x 1
.end_amdhsa_kernel
"""

import os
OPT = dict(kv.split("=") for kv in os.environ.get("OPT", "").split(",") if kv)
def opt(k, d=None):
    return OPT.get(k, d)
def opti(k, d=0):
    return int(OPT.get(k, d))
def flags(k, d="sc1"):
    return OPT.get(k, d).replace("+", " ")

def code_prefetch(A, start_label, end_label, s_pair, s_chunk, v_off, v_dst, nchunk_mask):
    if not opti("cpf", 1): return 0
    L = A.label("PC")
    A(f"s_getpc_b64 s[{s_pair}:{s_pair+1}]\n{L}:")
    A(f"s_sub_u32 s{s_pair}, s{s_pair}, {L} - {start_label}\ns_subb_u32 s{s_pair+1}, s{s_pair+1}, 0")
    A(f"s_and_b32 s{s_chunk}, s{s_chunk}, {nchunk_mask}\ns_lshl_b32 s{s_chunk}, s{s_chunk}, 13\nv_lshlrev_b32 v{v_off}, 7, v0\nv_add_u32 v{v_off}, s{s_chunk}, v{v_off}")
    A(f"v_min_u32 v{v_off}, {end_label} - {start_label} - 4, v{v_off}")
    A(f"global_load_dword v{v_dst}, v{v_off}, s[{s_pair}:{s_pair+1}]")
    return 1

def split_items(items):
    out = []
    for it in items:
        lines = [l for l in it.split("\n") if l.strip()]
        k = 0
        while k < len(lines):
            g = [lines[k]]
            if lines[k].startswith("s_cmp"):
                while k + 1 < len(lines) and lines[k+1].startswith("s_cselect"):
                    k += 1; g.append(lines[k])
            while k + 1 < len(lines) and lines[k+1].startswith("s_nop"):
                k += 1; g.append(lines[k])
            out.append("\n".join(g)); k += 1
    return out

def cost(t):
    c = 0.0
    for l in t.split("\n"):
        if l.startswith("buffer_") or l.startswith("global_"): c += 2
        elif l.startswith("v_exp") or l.startswith("v_rcp"): c += 2
        else: c += 1
    return c

def sched(nm, streams, base=None):
    load = [0.0] * nm
    for p, t in (base or []): load[p] += cost(t)
    todo = []
    for si, (items, lo, hi) in enumerate(streams):
        items = split_items(items)
        n = len(items)
        for k, t in enumerate(items):
            todo.append((lo + (k + 0.5) * (hi - lo + 1) / n - 0.5, si, k, t, lo, hi))
    todo.sort(key=lambda x: (x[0], x[1], x[2]))
    prev = {}
    out = list(base or [])
    for d, si, k, t, lo, hi in todo:
        a0 = max(lo, prev.get(si, lo), int(d) - 2); b0 = max(a0, min(hi, int(d) + 3))
        best = min(range(a0, b0 + 1), key=lambda p: (load[p], abs(p - d)))
        load[best] += cost(t); prev[si] = best
        out.append((best, t))
    return out

def sched2(nm, streams, load=None):
    load = list(load) if load else [0.0] * nm
    todo = []
    for si, items in enumerate(streams):
        for k, (t, lo, hi, d, kind) in enumerate(items):
            todo.append((d, si, k, t, lo, hi, kind))
    todo.sort(key=lambda x: (x[0], x[1], x[2]))
    prev = {}; out = []
    for d, si, k, t, lo, hi, kind in todo:
        a0 = max(lo, prev.get(si, 0), int(d) - 2); a0 = min(a0, hi); b0 = max(a0, min(hi, int(d) + 3))
        c = cost(t)
        best = min(range(a0, b0 + 1), key=lambda p: (max(0, load[p] + c - 2), load[p] > 0 and c >= 2, abs(p - d)))
        load[best] += c; prev[si] = best
        out.append((best, kind, t))
    return out, load
def even(items, lo, hi, kind=""):
    items = split_items(items); n = len(items)
    return [(t, lo, hi, lo + (k + 0.5) * (hi - lo + 1) / n - 0.5, kind) for k, t in enumerate(items)]

def cls(l):
    if l.startswith("s_") or l.startswith("WAITVM"): return 0
    if l.startswith("ds_") or l.startswith("buffer_") or l.startswith("global_"): return 1
    return 2
def gap_cost(items):
    lines = [l for t in items for l in t.split("\n") if not l.endswith(":")]
    c = 0.0; seen_valu = False
    vm = any(l.startswith("buffer_") or l.startswith("global_") for l in lines)
    for k, l in enumerate(lines):
        k0 = cls(l)
        if k0 == 0:
            if l.startswith("s_nop"): c += 1 + int(l.split()[1])
            elif not (k == 0 and not vm): c += 1
        elif k0 == 1:
            c += 2 if not l.startswith("ds_") else 1
            if seen_valu: c += 2
        else:
            c += 2 if (l.startswith("v_exp") or l.startswith("v_rcp") or l.startswith("v_pk_")) else 1
            seen_valu = True
    return c
def order_gap(entries):
    out = []; rest = list(entries)
    while rest:
        heads = {}
        for e in rest:
            if e[0] not in heads or e[1] < heads[e[0]][1]: heads[e[0]] = e
        b = min(heads.values(), key=lambda e: (cls(e[3].split("\n")[0]), e[0]))
        out.append(b); rest.remove(b)
    return out
def sched3(nm, streams, fixed=None, slack=3):
    gaps = [[] for _ in range(nm)]
    for k, (p, kind, t) in enumerate(fixed or []): gaps[p].append((-1, k, kind, t))
    todo = []
    for si, items in enumerate(streams):
        for k, (t, lo, hi, d, kind) in enumerate(items): todo.append((d, si, k, t, lo, hi, kind))
    todo.sort(key=lambda x: (x[0], x[1], x[2]))
    prev = {}
    for d, si, k, t, lo, hi, kind in todo:
        a0 = min(max(lo, prev.get(si, 0), int(d) - slack), hi); b0 = max(a0, min(hi, int(d) + slack + 1))
        def pen(p):
            old = gap_cost([e[3] for e in order_gap(gaps[p])])
            new = gap_cost([e[3] for e in order_gap(gaps[p] + [(si, k, kind, t)])])
            return (max(0, new - 2) - max(0, old - 2), abs(p - d))
        best = min(range(a0, b0 + 1), key=pen)
        gaps[best].append((si, k, kind, t)); prev[si] = best
    out = []; over = 0
    for p in range(nm):
        o = order_gap(gaps[p]); over += max(0, gap_cost([e[3] for e in o]) - 2)
        out += [(p, e[2], e[3]) for e in o]
    if opti("verbose"): print("sched3 overflow slots", over)
    return out
def sched(nm, streams, base=None):
    r = sched3(nm, [even(i, lo, hi) for i, lo, hi in streams if i], [(p, "", t) for p, t in (base or [])])
    return [(p, t) for p, k, t in r]

def code_pf_items(A, start_label, end_label, s_pair, s_tmp, s_wave_idx_expr, v_off, v_dst, mask):
    L = A.label("PC")
    return (f"s_getpc_b64 s[{s_pair}:{s_pair+1}]\n{L}:\ns_add_u32 s{s_pair}, s{s_pair}, {start_label} - {L}\ns_addc_u32 s{s_pair+1}, s{s_pair+1}, 0\n" + s_wave_idx_expr +
            f"\ns_and_b32 s{s_tmp}, s{s_tmp}, {mask}\ns_lshl_b32 s{s_tmp}, s{s_tmp}, 13\nv_lshlrev_b32 v{v_off}, 7, v0\nv_add_u32 v{v_off}, s{s_tmp}, v{v_off}\nv_min_u32 v{v_off}, {end_label} - {start_label} - 4, v{v_off}\nglobal_load_dword v{v_dst}, v{v_off}, s[{s_pair}:{s_pair+1}]")
```

```python
from asmlib import *
from k1 import MB, WS_K, WS_V, WS_Q, WS_KB, WS_VB, WS_FLAG, WS_CTX, WS_PART, WS_WO, WS_SIZE, f32bits, LOG2E, MF
import math
SPLIT = opti("split", 19)

class R_:
    sC, sWk, sXx, sWq, sWb, sO, sG = 28, 32, 36, 40, 44, 48, 68
    sW, sWM, sWN, sI, sH, sP = 60, 61, 62, 63, 64, 65
    sT0, sT1, sT2, sT3 = 81, 82, 83, 84
    sC8 = 90
    sK, sV = 8, 12
    sQs = 20
    sQ, sJ, sL, sMode = 4, 5, 6, 7
    sOwn = 88
    sFo, sFh = 100, 101
    sKo, sVo, sWrap = 26, 27, 3
    SR = [52, 54, 56, 58, 92, 94, 96, 0]
    sOut = 98
    aQ, aF = 64, 0
    bq, bk, bv, bm = 192, 200, 212, 220
    aPark = 128
    sSp = 78
    @staticmethod
    def bound(exit_label): return f"s_add_u32 s78, s78, 1\ns_cmp_gt_u32 s78, 0x40000\ns_cbranch_scc1 {exit_label}\n"

def gen_part1(A, name, stamps, Lend):
    r = R_
    sC, sWk, sXx, sWq, sWb, sO, sG = r.sC, r.sWk, r.sXx, r.sWq, r.sWb, r.sO, r.sG
    sW, sWM, sWN, sT, sH, sP = r.sW, r.sWM, r.sWN, r.sI, r.sH, r.sP
    sT0, sT1, sT2, sT3, sC8 = r.sT0, r.sT1, r.sT2, r.sT3, r.sC8
    sXo1, sWo1, sXo2, sQo2, sBo2 = 66, 67, 72, 73, 74
    sXl, sWl = 76, 77
    sCnt, sWd, sWrs = 78, 79, 80
    sWlw1, sBl, sWls = 85, 89, 86
    sOb = 87
    sI0, sI1 = 16, 17
    sAo = 75; sBb = 91
    vLane16 = 1
    vXd1, vWd1, vXd2, vBd2 = 2, 3, 4, 6
    vWb1 = 7; vXr = 8; vWr = 16; vT = 26; vXb = 30; vWb2 = 31
    vOne0 = 24
    vPoll = 25
    WS0 = 65536
    so = f"s[{sO}:{sO+3}]"
    def stamp(i, p2=False):
        if stamps and (bool(opti("p2st")) == p2): A(f"{'s_memtime' if opti('cyc') else 's_memrealtime'} s[{r.SR[i]}:{r.SR[i]+1}]")
    def acc1(i, j, isV):
        n, sec = ((8 * (i >> 1) + j, i & 1) if isV else (4 * i + (j >> 1), j & 1))
        if not sec: return v(128 + 4 * n, 4)
        return a(128 + 4 * n, 4) if n < 8 else v(32 + 4 * (n - 8), 4)
    def pk4(r0, r1, d=None):
        d = r0 if d is None else d
        return [f"v_cvt_pk_bf16_f32 v{d}, v{r0}, v{r0+1}", f"v_cvt_pk_bf16_f32 v{d+1}, v{r0+2}, v{r0+3}", f"v_cvt_pk_bf16_f32 v{d+2}, v{r1}, v{r1+1}", f"v_cvt_pk_bf16_f32 v{d+3}, v{r1+2}, v{r1+3}"]
    def pack1(n):
        r0 = 128 + 4 * n
        if n >= 8: return pk4(r0, 32 + 4 * (n - 8))
        p = pk4(r0, vT)
        return p[:2] + [f"v_accvgpr_read_b32 v{vT+q}, a{128+4*n+q}" for q in range(4)] + p[2:]
    X1 = [0, 64]; W1 = [32, 96]

    A(f".globl {name}\n.p2align 8\n.type {name},@function\n{name}:")
    A(f"s_cmp_ge_u32 s2, 256\ns_cbranch_scc1 {Lend}")
    stamp(0)
    A("s_load_dwordx16 s[4:19], s[0:1], 0\ns_load_dwordx4 s[20:23], s[0:1], 64\ns_load_dwordx4 s[24:27], s[0:1], 88\ns_load_dwordx2 s[98:99], s[0:1], 80")
    A(f"v_lshrrev_b32 v{vT}, 6, v0\ns_nop 0\nv_readfirstlane_b32 s{sW}, v{vT}\nv_cmp_eq_u32 vcc, 0, v0\nv_and_b32 v0, 63, v0")
    A(f"s_and_b32 s{sT0}, s2, 7\ns_bfe_u32 s{sT}, s2, {(3 << 16) | 3}\ns_bfe_u32 s{sP}, s2, {(1 << 16) | 6}\ns_lshr_b32 s{sT1}, s2, 7\ns_lshl_b32 s{sH}, s{sT0}, 1\ns_add_u32 s{sH}, s{sH}, s{sT1}")
    A(f"v_mov_b32 v{vOne0}, 0x40000000\nv_cndmask_b32 v{vOne0}, v{vOne0}, 0, vcc".replace(", 0, vcc", ", 0, vcc"))
    A(f"s_lshr_b32 s{sWM}, s{sW}, 1\ns_and_b32 s{sWN}, s{sW}, 1")
    A(f"v_lshrrev_b32 v{vT}, 4, v0\ns_lshl_b32 s{sT0}, s{sWN}, 2\nv_add_u32 v{vT}, s{sT0}, v{vT}")
    A(f"v_and_b32 v{vT+1}, 7, v0\nv_xor_b32 v{vT}, v{vT}, v{vT+1}\nv_lshlrev_b32 v{vT}, 4, v{vT}")
    A(f"v_lshrrev_b32 v{vT+1}, 3, v0\ns_lshl_b32 s{sT0}, s{sW}, 3\nv_add_u32 v{vT+1}, s{sT0}, v{vT+1}")
    A(f"v_lshl_add_u32 v{vXd1}, v{vT+1}, 11, v{vT}")
    A(f"v_mul_u32_u24 v{vXd2}, 896, v{vT+1}\nv_add_u32 v{vXd2}, v{vXd2}, v{vT}")
    A(f"v_lshrrev_b32 v{vT}, 5, v0\ns_lshl_b32 s{sT0}, s{sWN}, 1\nv_add_u32 v{vT}, s{sT0}, v{vT}")
    A(f"s_lshl_b32 s{sT0}, s{sWM}, 2\nv_or_b32 v{vT+1}, s{sT0}, v{vT}\nv_lshlrev_b32 v{vT+1}, 1, v{vT+1}")
    A(f"v_and_b32 v{vT+2}, 31, v0\nv_xor_b32 v{vT+1}, v{vT+1}, v{vT+2}\nv_lshlrev_b32 v{vT+1}, 4, v{vT+1}")
    A(f"s_lshl_b32 s{sT0}, s{sWM}, 3\nv_add_u32 v{vT}, s{sT0}, v{vT}")
    A(f"v_lshl_add_u32 v{vWd1}, v{vT}, 13, v{vT+1}")
    A(f"s_lshl_b32 s{sXo1}, s{sT}, 19\ns_lshl_b32 s{sWo1}, s{sH}, 9\ns_mov_b32 s{sC8}, 0x8000")
    A(f"s_lshl_b32 s{sXl}, s{sW}, 10\ns_lshl_b32 s{sWlw1}, s{sWM}, 2\ns_add_u32 s{sWlw1}, s{sWlw1}, s{sWN}\ns_lshl_b32 s{sWlw1}, s{sWlw1}, 10\ns_mov_b32 s{sWls}, {WS0}")
    A(f"s_mov_b32 s{sC+3}, 0x00020000\ns_mov_b32 s{sWk+3}, 0x00020000\ns_mov_b32 s{sC+2}, {2048*2048}\ns_mov_b32 s{sWk+2}, {1024*8192}\ns_cmp_eq_u32 s{sP}, 0")
    A("s_waitcnt lgkmcnt(0)")
    A(f"s_mov_b64 s[{sC}:{sC+1}], s[6:7]\ns_cselect_b64 s[{sWk}:{sWk+1}], s[10:11], s[12:13]")

    def dmaX(ph, tag='x'):
        out = []
        if ph == 1:
            for p in range(8):
                out.append(f"s_add_u32 m0, s{sXl}, {p*4096}\ns_add_u32 s{sT0}, s{sXo1}, {p*32*2048}\nbuffer_load_dwordx4 v{vXd1}, s[{sC}:{sC+3}], s{sT0} offen lds ; vm:{tag}")
            out.append(f"s_add_u32 s{sXo1}, s{sXo1}, 128\ns_xor_b32 s{sXl}, s{sXl}, s{sC8}")
        else:
            for p in range(4):
                out.append(f"s_add_u32 m0, s{sXl}, {p*4096}\ns_add_u32 s{sT0}, s{sXo2}, {p*32*896}\nbuffer_load_dwordx4 v{vXd2}, s[{sXx}:{sXx+3}], s{sT0} offen lds ; vm:{tag}")
            for p in range(4):
                out.append(f"s_add_u32 m0, s{sBl}, {16384 + p*4096}\ns_add_u32 s{sT0}, s{sBo2}, {p*16*2688}\nbuffer_load_dwordx4 v{vBd2}, s[{sWb}:{sWb+3}], s{sT0} offen lds ; vm:{tag}")
            out.append(f"s_add_u32 s{sXo2}, s{sXo2}, 128\ns_add_u32 s{sBo2}, s{sBo2}, {64*2688}\ns_xor_b32 s{sXl}, s{sXl}, s{sC8}\ns_xor_b32 s{sBl}, s{sBl}, s{sC8}")
        return out
    def dmaW(ph, tag='w'):
        srd, run = (sWk, sWo1) if ph == 1 else (sWq, sQo2)
        out = [f"s_add_u32 s{sWl}, s{sWls}, s{sWlw1}"]
        for g in range(2):
            for p in range(4):
                out.append(f"s_add_u32 m0, s{sWl}, {g*2048 + p*8192}\ns_add_u32 s{sT1}, s{run}, {(4*g + 16*p)*8192}\nbuffer_load_dwordx4 v{vWd1}, s[{srd}:{srd+3}], s{sT1} offen lds ; vm:{tag}")
        out.append(f"s_add_u32 s{run}, s{run}, {64*8192}\ns_add_u32 s{sWls}, s{sWls}, s{sC8}\ns_cmp_eq_u32 s{sWls}, {WS0 + 3*0x8000}\ns_cselect_b32 s{sWls}, {WS0}, s{sWls}")
        return out
    def reads1(st, ks):
        xs = [f"ds_read_b128 {a(X1[st]+4*i,4)}, v{vXr+ks} offset:{i*2048}" for i in range(8)]
        ws = [f"ds_read_b64_tr_b16 {a(W1[st]+4*j+2*t,2)}, v{vWr+j} offset:{ks*16384+t*2048}" for j in range(8) for t in range(2)]
        return [xs[0]] + ws + xs[1:]
    def mf1(st, isV, first=False):
        out = []
        for i in range(8):
            for jj in range(8):
                j = jj if i % 2 == 0 else 7 - jj
                x, w = a(X1[st]+4*i, 4), a(W1[st]+4*j, 4); c = acc1(i, j, isV)
                ci = 0 if first else c
                out.append(f"{MF} {c}, {x}, {w}, {ci}" if isV else f"{MF} {c}, {w}, {x}, {ci}")
        return out
    def adv_rd(nx, nw):
        t = [f"s_add_u32 s{sWrs}, s{sWrs}, 1\ns_cmp_eq_u32 s{sWrs}, 3\ns_cselect_b32 s{sWrs}, 0, s{sWrs}\ns_cselect_b32 s{sWd}, {(-2*0x8000) & 0xffffffff}, s{sC8}"]
        t += [f"v_xor_b32 v{vXr+i}, 0x8000, v{vXr+i}" for i in range(nx)]
        t += [f"v_add_u32 v{vWr+j}, s{sWd}, v{vWr+j}" for j in range(nw)]
        return t

    for t in dmaX(1) + dmaW(1): A(t)
    sWi = sAo
    A(f"s_lshr_b32 s{sWi}, s2, 3\ns_lshl_b32 s{sWi}, s{sWi}, 2\ns_add_u32 s{sWi}, s{sWi}, s{sW}\ns_mov_b32 s{sT2}, s{sWi}")
    NCP = code_prefetch(A, name, "CODE_END", 16, sT2, 14, 15, 15)
    for t in dmaX(1) + dmaW(1): A(t)
    A(f"v_and_b32 v{vT}, 15, v0\nv_lshrrev_b32 v{vT+1}, 4, v0\nv_lshrrev_b32 v{vT+2}, 1, v{vT}\nv_xor_b32 v{vT+2}, v{vT+2}, v{vT+1}")
    A(f"v_lshlrev_b32 v{vT+2}, 4, v{vT+2}\nv_lshl_add_u32 v{vXb}, v{vT}, 7, v{vT+2}")
    A(f"v_lshrrev_b32 v{vT+2}, 2, v{vT}\nv_and_b32 v{vT+3}, 1, v{vT+1}\nv_lshl_or_b32 v{vT+3}, v{vT+3}, 2, v{vT+2}\nv_lshl_add_u32 v{vT+2}, v{vT+1}, 3, v{vT+2}")
    A(f"v_and_b32 v{vT}, 3, v0\nv_lshlrev_b32 v{vT}, 3, v{vT}\nv_lshl_add_u32 v{vT}, v{vT+3}, 5, v{vT}")
    A(f"v_lshl_add_u32 v{vWb1}, v{vT+2}, 9, v{vT}\nv_lshl_add_u32 v{vWb2}, v{vT+2}, 8, v{vT}")
    A(f"s_lshl_b32 s{sT2}, s{sWM}, 14\nv_add_u32 v{vXr}, s{sT2}, v{vXb}\nv_xor_b32 v{vXr+1}, 64, v{vXr}")
    A(f"s_lshl_b32 s{sT2}, s{sWN}, 8\ns_add_u32 s{sT2}, s{sT2}, {WS0}\nv_add_u32 v{vWr}, s{sT2}, v{vWb1}\ns_mov_b32 s{sWrs}, 0\ns_mov_b32 s{sCnt}, 1")
    for j in range(1, 8): A(f"v_xor_b32 v{vWr+j}, {j << 5}, v{vWr}")
    su0 = [f"s_mov_b32 s{q+3}, 0x00020000" for q in (sXx, sWq, sWb, sO, sG)]
    su0.append(f"s_mov_b32 s{sXx+2}, {2048*896}\ns_mov_b32 s{sWq+2}, {448*8192}\ns_mov_b32 s{sWb+2}, {448*2688}\ns_mov_b32 s{sO+2}, {WS_SIZE}\ns_mov_b32 s{sG+2}, 896")
    su0.append(f"s_mov_b64 s[{sXx}:{sXx+1}], s[4:5]\ns_mov_b64 s[{sWq}:{sWq+1}], s[8:9]\ns_mov_b64 s[{sWb}:{sWb+1}], s[18:19]\ns_mov_b64 s[{sO}:{sO+1}], s[26:27]\ns_mov_b64 s[{sG}:{sG+1}], s[22:23]")
    su0.append("s_mov_b64 s[18:19], s[14:15]\ns_mov_b64 s[0:1], s[20:21]")
    vPq, vPb, vPx = 11, 12, 10
    sPq, sPb, sPx = 5, 6, 4
    sFq, sFb, sFx = 12, 20, 8
    PF = opti("pf", 6); PFM = opti("pfm", 7)
    su0.append(f"s_lshl_b32 s{sT2}, s{sWi}, 2\nv_and_b32 v{vT}, 3, v0\nv_add_u32 v{vT}, s{sT2}, v{vT}\nv_min_u32 v{vT}, 447, v{vT}\nv_lshrrev_b32 v{vT+1}, 3, v{vT}\nv_and_b32 v{vT}, 7, v{vT}\nv_lshlrev_b32 v{vT}, 7, v{vT}\nv_lshl_add_u32 v{vPq}, v{vT+1}, 13, v{vT}")
    su0.append(f"s_and_b32 s{sT3}, s2, 7\ns_lshl_b32 s{sPq}, s{sT3}, 10\ns_mul_i32 s{sPb}, s{sT3}, 112\ns_lshl_b32 s{sPx}, s2, 2\ns_add_u32 s{sPx}, s{sPx}, s{sW}\ns_mul_i32 s{sPx}, s{sPx}, {2*896}\nv_and_b32 v{vPx}, 1, v0\nv_lshlrev_b32 v{vPx}, 7, v{vPx}")
    su0.append(f"v_mul_u32_u24 v{vPb}, 2688, v{vT+1}\nv_lshrrev_b32 v{vT+1}, 8, v{vT}\nv_min_u32 v{vT+1}, 2, v{vT+1}\nv_mul_u32_u24 v{vT+1}, 896, v{vT+1}\nv_add_u32 v{vPb}, v{vPb}, v{vT+1}\nv_bfe_u32 v{vT+1}, v{vT}, 7, 1\nv_mul_u32_u24 v{vT+1}, 116, v{vT+1}\nv_add_u32 v{vPb}, v{vPb}, v{vT+1}")
    allst = [(sFx, sXx, vPx, sPx, 256), (sFq, sWq, vPq, sPq, 56*8192), (sFb, sWb, vPb, sPb, 56*2688)]
    streams = [x for k, x in enumerate(allst) if PF and PFM >> k & 1]
    for f, src, vo, run, step in streams:
        su0.append(f"s_mov_b64 s[{f}:{f+1}], s[{src}:{src+1}]\ns_mov_b32 s{f+2}, 0\ns_mov_b32 s{f+3}, 0x00020000\ns_sub_u32 s{run}, s{run}, {(PF-1)*step}")
    su0.append(f"s_lshl_b32 s{r.sFo}, s2, 7\ns_add_u32 s{r.sFo}, s{r.sFo}, {WS_FLAG}\ns_and_b32 s{r.sFh}, s2, 0x87\ns_lshl_b32 s{r.sFh}, s{r.sFh}, 7\ns_add_u32 s{r.sFh}, s{r.sFh}, {WS_FLAG + 12}")
    su0.append(f"v_mov_b64 v[{vT}:{vT+1}], 0\nv_mov_b64 v[{vT+2}:{vT+3}], 0\nv_lshlrev_b32 v{vLane16}, 4, v0")
    zst = [f"buffer_store_dwordx4 v[{vT}:{vT+3}], v{vOne0}, {so}, s{r.sFo} offen sc1", f"buffer_store_dwordx4 v[{vT}:{vT+3}], v{vOne0}, {so}, s{r.sFo} offen offset:16 sc1", f"buffer_load_dword v13, v{vLane16}, s[{sG}:{sG+3}], 0 offen"]
    NPF = len(streams)
    def pf():
        if not streams: return []
        out = [f"s_cmp_eq_u32 s{sCnt}, {PF}\n" + "\n".join(f"s_cselect_b32 s{f+2}, s{src+2}, s{f+2}" for f, src, vo, run, step in streams)]
        for f, src, vo, run, step in streams:
            out.append(f"buffer_load_dword v13, v{vo}, s[{f}:{f+3}], s{run} offen\ns_add_u32 s{run}, s{run}, {step}")
        return out
    su1 = [f"s_lshl_b32 s{sQo2}, s{sH}, 9",
           f"v_lshrrev_b32 v{vT}, 4, v0\ns_lshl_b32 s{sT2}, s{sWN}, 2\nv_or_b32 v{vT+1}, s{sT2}, v{vT}\nv_lshlrev_b32 v{vT+1}, 1, v{vT+1}",
           f"v_and_b32 v{vT+2}, 15, v0\nv_xor_b32 v{vT+1}, v{vT+1}, v{vT+2}",
           f"s_lshl_b32 s{sT2}, s{sWN}, 1\ns_add_u32 s{sT2}, s{sT2}, s{sWM}\ns_lshl_b32 s{sT3}, s{sT2}, 2\nv_add_u32 v{vT}, s{sT3}, v{vT}\ns_lshl_b32 s{sBl}, s{sT2}, 10",
           f"v_lshrrev_b32 v{vT+2}, 2, v{vT+1}\nv_add_u32 v{vT+3}, 1, v{vT+2}\nv_and_b32 v{vT+3}, 4, v{vT+3}\nv_mul_u32_u24 v{vT+2}, 896, v{vT+2}\nv_lshl_add_u32 v{vT+2}, v{vT+3}, 28, v{vT+2}",
           f"v_and_b32 v{vT+1}, 3, v{vT+1}\nv_lshl_add_u32 v{vT+2}, v{vT+1}, 4, v{vT+2}",
           f"v_mul_u32_u24 v{vBd2}, 2688, v{vT}\nv_add_u32 v{vBd2}, v{vBd2}, v{vT+2}",
           f"s_sub_u32 s{sT2}, 15, s{sT}\ns_cmp_eq_u32 s{sP}, 1\ns_cselect_b32 s{r.sOwn}, s{sT2}, s{sT}",
           f"s_mul_i32 s{sXo2}, s{r.sOwn}, {128*896}\ns_mul_i32 s{sBo2}, s{sH}, 56",
           f"s_lshl_b32 s{sOb}, s{sH}, 7\ns_lshl_b32 s{sT3}, s{sT}, 4\ns_add_u32 s{sOb}, s{sOb}, s{sT3}\ns_lshl_b32 s{sT3}, s{sWM}, 3\ns_add_u32 s{sOb}, s{sOb}, s{sT3}\ns_lshl_b32 s{sOb}, s{sOb}, 13",
           f"s_add_u32 s{sT2}, s{sP}, 12\ns_lshl_b32 s{sT3}, s{sWN}, s{sT2}\ns_add_u32 s{sOb}, s{sOb}, s{sT3}\ns_lshl_b32 s{sT3}, s{sP}, 24\ns_add_u32 s{sOb}, s{sOb}, s{sT3}",
           f"s_lshl_b32 s{sT3}, s{sP}, 12\ns_sub_u32 s{sI0}, 8192, s{sT3}\ns_add_u32 s{sI1}, 8192, s{sT3}",
           f"s_lshl_b32 s{sBb}, s{sH}, 7\ns_lshl_b32 s{sT3}, s{r.sOwn}, 3\ns_add_u32 s{sBb}, s{sBb}, s{sT3}\ns_lshl_b32 s{sT3}, s{sW}, 1\ns_add_u32 s{sBb}, s{sBb}, s{sT3}"]
    if opti("p2z") & 1: su1.append(f"s_mov_b32 s{sXx+2}, 0\ns_mov_b32 s{sWq+2}, 0\ns_mov_b32 s{sWb+2}, 0")
    if opti("p2z") & 4: su1.append(f"s_mov_b32 s{sWb+2}, 0")
    if opti("p2z") & 2: su1.append(f"s_add_u32 s{sOb}, s{sOb}, 0x40000000")
    gl = [f"v_and_b32 v{vPoll}, 48, v0"] + [f"buffer_load_dwordx4 {a(200+4*ks,4)}, v{vPoll}, s[{sG}:{sG+3}], 0 offen offset:{ks*64}" for ks in range(14)]
    A(f"s_waitcnt vmcnt({16+NCP})\ns_barrier")
    stamp(1)
    for t in reads1(0, 0): A(t)
    LVe = A.label("F_Ve"); Lph2 = A.label("F_ph2")
    A(f"s_cmp_eq_u32 s{sP}, 1\ns_cbranch_scc1 {LVe}")
    def st1(n):
        t = f"buffer_store_dwordx4 {v(128+4*n,4)}, v{vLane16}, {so}, s{sOb} offen offset:{(n&3)*1024} sc1 ; vm:st"
        if n & 3 == 3: t += f"\ns_add_u32 s{sOb}, s{sOb}, s{sI0 if (n >> 2) % 2 == 0 else sI1}"
        return t
    NE = opti("ne", 8)

    vBr = 10
    def setup2():
        t = [f"s_lshl_b32 s{sT2}, s{sW}, 12\nv_add_u32 v{vXr}, s{sT2}, v{vXb}\nv_xor_b32 v{vXr+1}, 64, v{vXr}", f"v_add_u32 v{vWr}, {WS0 + 0x8000}, v{vWb1}"]
        t += [f"v_xor_b32 v{vWr+j}, {j << 5}, v{vWr}" for j in range(1, 8)]
        t += [f"v_add_u32 v{vBr}, 16384, v{vWb2}"] + [f"v_xor_b32 v{vBr+u}, {u << 5}, v{vBr}" for u in range(1, 6)]
        return t
    def adv2(stage):
        d = 0x8000 if (stage + 1) % 3 else -2 * 0x8000
        return [f"v_xor_b32 v{vXr+i}, 0x8000, v{vXr+i}" for i in range(8)] + [f"v_add_u32 v{vWr+j}, 0x{d & 0xffffffff:x}, v{vWr+j}" for j in range(8)]
    MIGK = opti("migk", 8)
    def mig_k(j): return MIGK - 2 + (j % 4)
    def accq(j, e, k=99):
        if j >= 11:
            n = 2*(j-11) + e
            return ("v", 40 + 4*n if n < 2 else 64 + 4*(n-2))
        return ("a", 64 + 4 * (2*j + e)) if k <= mig_k(j) else ("v", 128 + 4 * (2*j + e))
    def accb(u, e): return (96 + 16 * e + 4 * u) if u < 4 else (48 + 8 * e + 4 * (u - 4))
    def xfrag(k, e): return a((160 + 8 * (k & 1) if k < 13 else 176) + 4 * e, 4)
    def ring(n): return 4 * (n % 16)
    def frag_reads(k, q, n):
        ks = k & 1; d = ring(n)
        if q < 16: return [f"ds_read_b64_tr_b16 {a(d+2*t,2)}, v{vWr+(q&7)} offset:{ks*16384 + t*2048 + (q>>3)*256}" for t in range(2)]
        return [f"ds_read_b64_tr_b16 {a(d+2*t,2)}, v{vBr+q-16} offset:{ks*8192 + t*1024}" for t in range(2)]
    def x_reads(k): return [f"ds_read_b128 {xfrag(k, e)}, v{vXr+(k&1)} offset:{e*2048}" for e in range(2)]
    def step_mf(k, q, n):
        first = k == 0; out = []
        for e in ((1, 0) if (opti("sn", 1) and q & 1 == 0) else (0, 1)):
            if q < 0:
                c = v(32 + 4*e, 4); out.append((f"{MF} {c}, {a(200+4*k,4)}, {xfrag(k,e)}, {0 if first else c}", [f"x{k}.1"]))
                continue
            w = a(ring(n), 4)
            if q < 16: kk, rr = accq(q, e, k); c = rng(kk, rr, 4)
            else: c = v(accb(q-16, e), 4)
            ci = 0 if first else c
            out.append((f"{MF} {c}, {xfrag(k,e)}, {w}, {ci}" if q >= 20 else f"{MF} {c}, {w}, {xfrag(k,e)}, {ci}", [f"f{k}.{q}.1"]))
        return out
    RA = opti("ra", 6); NPRE = opti("npre", 3); BP = 92 - 2 * opti("rb", 4) - 1
    def rd_items(k, q, n): return [(f"f{k}.{q}.{t}", x) for t, x in enumerate(frag_reads(k, q, n))]
    def xr_items(k): return [(f"x{k}.{e}", x) for e, x in enumerate(x_reads(k))]
    def pre_reads(st):
        k = 2 * st
        if st < 6: return xr_items(k) + [y for q in range(NPRE) for y in rd_items(k, q, 44*st + q)]
        return xr_items(k) + xr_items(k + 1) + [y for n in range(NPRE) for y in rd_items(k + (n & 1), n >> 1, 44*st + n)]

    for isV in (0, 1):
        Lloop = A.label("F_loop")
        def partA(extra): interleave(A, mf1(1, isV), sched(64, [(reads1(0, 0), 0, 47)] + extra))
        def partB(dw, first=False, extra=[]):
            A("s_waitcnt lgkmcnt(0)")
            interleave(A, mf1(0, isV, first), sched(64, [(reads1(1, 1) + adv_rd(2, 8), 0, 63), (dw, 0, 60)] + extra))
        if isV: A(f"{LVe}:")
        partB(dmaW(1), True, [(su0, 0, 58), (zst, 61, 63)])
        A("s_waitcnt vmcnt(11) lgkmcnt(0)\ns_barrier")
        A(f".p2align 6\n{Lloop}:")
        partA([(dmaX(1) + pf(), 0, 63)])
        partB(dmaW(1))
        A(f"s_add_u32 s{sCnt}, s{sCnt}, 1\ns_cmp_lt_u32 s{sCnt}, 14")
        A(f"s_waitcnt vmcnt({8+NPF}) lgkmcnt(0)\ns_barrier\ns_cbranch_scc1 {Lloop}")
        if opti("cp2", 0): A(code_pf_items(A, Lph2, "CODE_END", 4, 6, f"s_lshr_b32 s6, s2, 1\ns_and_b32 s6, s6, 4\ns_add_u32 s6, s6, s{sW}", 10, 11, 7))
        partA([(dmaX(1) + gl, 0, 63), (su1, 0, 63)])
        partB(dmaW(2))
        A(f"s_waitcnt vmcnt(22) lgkmcnt(0)\ns_barrier")
        init = [f"s_mov_b64 s[{sG}:{sG+1}], s[24:25]", f"s_movk_i32 s{sG+2}, 256", f"s_lshl_b32 s{sT3}, s{sT}, 12", f"v_mov_b32 v{vT}, 1", f"buffer_atomic_add v{vT}, v{vOne0}, s[{sG}:{sG+3}], s{sT3} offen sc1"]
        partA([(dmaX(2) + init, 0, 63)])
        partB(dmaW(2))
        A(f"s_waitcnt vmcnt(9) lgkmcnt(0)\ns_barrier")
        stamp(2); stamp(0, True)
        st = [even(setup2(), 0, 16), even(dmaX(2), 0, 32) + even([st1(n) for n in range(NE)], 36, 63), [(x, 50, 63, 52 + k, "") for k, (i_, x) in enumerate(pre_reads(0))]]
        for q in range(3):
            st.append(even([x for n in (range(8*q+7, 8*q-1, -1) if isV else range(8*q, 8*q+8)) for x in pack1(n)], 16*q + 18, min(16*q + 34, 63)))
        interleave(A, mf1(1, isV), [(p, t) for p, k, t in sched3(64, st)])
        if not isV: A(f"s_branch {Lph2}")
    A(f"{Lph2}:")
    A(f"VMSEED w17*8 x17*8 st*{NE}")
    stamp(1, True)
    stq = [st1(n) for n in range(NE, 32)]
    per = [int(x) for x in opt("trk", "8/8/8").split("/")]
    lastp = [x for n in range(31, 23, -1) for x in pack1(n)]
    sK, sV = r.sK, r.sV
    att = [f"s_lshl_b32 s{sT2}, s{sT}, 1", f"s_sub_u32 s{sT3}, 32, s{sT2}",
           f"s_min_u32 s{r.sL}, s{sT3}, {SPLIT}",
           f"s_lshl_b32 s{r.sWrap}, s{sT3}, 15",
           f"s_cmp_gt_u32 s{sT3}, {SPLIT}\ns_cselect_b32 s{r.sMode}, 1, 0",
           f"s_and_b32 s{r.sQs+2}, s{r.sMode}, s{sP}", f"s_mul_i32 s{r.sQs+2}, s{r.sQs+2}, {WS_SIZE}",
           f"s_mov_b64 s[{r.sQs}:{r.sQs+1}], s[{sO}:{sO+1}]", f"s_mov_b32 s{r.sQs+3}, 0x00020000",
           f"s_lshl_b32 s{r.sMode}, s{r.sMode}, s{sP}",
           f"s_sub_u32 s{r.sQ}, 15, s{sT}",
           f"s_cmp_eq_u32 s{r.sMode}, 1\ns_cselect_b32 s{r.sQ}, s{r.sQ}, s{r.sOwn}\ns_cselect_b32 s{r.sJ}, {SPLIT}, 0\ns_cselect_b32 s{r.sWrap}, s{r.sWrap}, -1",
           f"s_add_u32 s{sT2}, s{sT2}, 2",
           f"s_cmp_eq_u32 s{sP}, 1\ns_cselect_b32 s{r.sL}, s{r.sL}, s{sT2}",
           f"s_lshl_b32 s{sK+2}, s{r.sL}, 15",
           f"s_cmp_eq_u32 s{r.sMode}, 1\ns_cselect_b32 s{r.sL}, s{sT3}, s{r.sL}\ns_cselect_b32 s{sK+2}, {MB}, s{sK+2}",
           f"s_sub_u32 s{r.sL}, s{r.sL}, 1", f"s_mov_b32 s{sV+2}, s{sK+2}", f"s_mov_b32 s{sK+3}, 0x00020000", f"s_mov_b32 s{sV+3}, 0x00020000",
           f"s_lshl_b32 s{sT2}, s{sH}, 20",
           f"s_add_u32 s{sK}, s{sO}, s{sT2};@\ns_addc_u32 s{sK+1}, s{sO+1}, 0;@\ns_add_u32 s{sV}, s{sK}, {WS_V};@\ns_addc_u32 s{sV+1}, s{sK+1}, 0",
           f"s_lshl_b32 s{r.sVo}, s{r.sJ}, 15", f"s_add_u32 s{r.sKo}, s{r.sVo}, s{sC8}",
           f"s_cmp_eq_u32 s{r.sKo}, s{r.sWrap}\ns_cselect_b32 s{r.sKo}, 0, s{r.sKo}",
           f"s_lshl_b32 s{sT2}, s{sW}, 13", f"v_add_u32 v2, s{sT2}, v{vLane16}", f"v_add_u32 v5, 4096, v2", f"s_mov_b32 s{sXo1}, s{sT2}"]
    def atomic_items(l): return [(t.replace(";@", ""), ) for t in l]
    def evenk(items, lo, hi):
        n = len(items); return [(t.replace(";@", ""), lo, hi, lo + (k + 0.5) * (hi - lo + 1) / n - 0.5, "") for k, t in enumerate(items)]
    def kv(srd, sof, lds, tag):
        out = []
        for p in range(8):
            if p % 4 == 0: out.append(f"s_add_u32 m0, s{sXo1}, {lds + p*1024}\ns_nop 0")
            out.append(f"buffer_load_dwordx4 v{2 if p < 4 else 5}, s[{srd}:{srd+3}], s{sof} offen offset:{(p&3)*1024} {flags('kvld', 'sc1')} lds ; vm:{tag}")
        return out
    scale_setup = [f"v_mov_b32 v{vT}, 0x{f32bits(LOG2E/16.0):08x}", f"v_mov_b32 v{vT+1}, v{vT}", f"v_mov_b32 v{vT+2}, 0x{f32bits(LOG2E/math.sqrt(28.0)):08x}", f"v_mov_b32 v{vT+3}, v{vT+2}", "v_cmp_gt_u32 vcc, 48, v0",
                   f"s_lshl_b32 s{sAo}, s{sBb}, 13", f"s_add_u32 s{sAo}, s{sAo}, {WS_Q}", f"s_add_u32 s{sWd}, s{sAo}, 8192", f"s_lshl_b32 s{sBb}, s{sBb}, 10"]
    def qepi(ds):
        out = []
        for e in range(2):
            regs = []
            for j in (2*ds, 2*ds+1):
                kk, rr = accq(j, e)
                if kk == "a":
                    tb = 128 + 16 * (ds % 4) + 8 * e + 4 * (j & 1)
                    out += [f"v_accvgpr_read_b32 v{tb+q}, a{rr+q}" for q in range(4)]; rr = tb
                regs.append(rr)
            for rr in regs: out += [f"v_pk_mul_f32 {v(rr+2*q,2)}, {v(rr+2*q,2)}, {v(vT,2)}" for q in range(2)]
            out.append(("R", regs))
        res = [x for x in out if not isinstance(x, tuple)]
        for e, regs in enumerate([x[1] for x in out if isinstance(x, tuple)]):
            res += pk4(regs[0], regs[1])
            res += [f"v_accvgpr_write_b32 a{r.aQ+4*(2*ds+e)+q}, v{regs[0]+q}" for q in range(4)]
            if ds == 4: res.append(f"s_add_u32 s{sAo if e == 0 else sWd}, s{sAo if e == 0 else sWd}, 4096")
            res.append(f"buffer_store_dwordx4 {v(regs[0],4)}, v{vLane16}, s[{r.sQs}:{r.sQs+3}], s{sAo if e == 0 else sWd} offen offset:{(ds&3)*1024} sc1 ; vm:q")
        return res

    sW1, sW2 = sC, sWk
    sWoS = (22 + 52, 23 + 52)
    wos = [f"s_and_b32 s{sT2}, s2, 63", f"s_lshr_b32 s{sT3}, s2, 7", f"s_lshl_b32 s{sT3}, s{sT3}, 6", f"s_or_b32 s{sT2}, s{sT2}, s{sT3}", f"s_lshl_b32 s{sT2}, s{sT2}, 2", f"s_add_u32 s{sT2}, s{sT2}, s{sW}",
           f"s_mul_hi_u32 s{sT3}, s{sT2}, {(2**32 + 6)//7}", f"s_mul_i32 s16, s{sT3}, {32*896 - 7*128}", f"s_lshl_b32 s{sT3}, s{sT2}, 7", f"s_add_u32 s16, s16, s{sT3}", f"s_add_u32 s17, s16, {16*896}",
           f"s_add_u32 s{sT2}, s{sT2}, 512", f"s_mul_hi_u32 s{sT3}, s{sT2}, {(2**32 + 6)//7}", f"s_mul_i32 s24, s{sT3}, {32*896 - 7*128}", f"s_mul_i32 s25, s{sT3}, {28*896 - 7*128}", f"s_sub_u32 s25, s25, {128*28*896}",
           f"s_mov_b64 s[{sW1}:{sW1+1}], s[18:19]", f"s_mov_b32 s{sW1+2}, {4096*896}",
           f"s_cmp_ge_u32 s{sT3}, 128\ns_cselect_b32 s24, s25, s24\ns_cselect_b64 s[{sW2}:{sW2+1}], s[0:1], s[18:19]\ns_cselect_b32 s{sW2+2}, {448*896}, s{sW1+2}",
           f"s_lshl_b32 s{sT3}, s{sT2}, 7", f"s_add_u32 s24, s24, s{sT3}", f"s_add_u32 s25, s24, {16*896}",
           f"s_cmp_eq_u32 s{sP}, 1\ns_cselect_b32 s{sW1+2}, 0, s{sW1+2}\ns_cselect_b32 s{sW2+2}, 0, s{sW2+2}",
           f"v_lshrrev_b32 v{vXb}, 4, v0", f"v_mul_u32_u24 v{vXb}, {4*896}, v{vXb}", f"v_and_b32 v{vT+3}, 15, v0", f"v_lshl_add_u32 v{vXb}, v{vT+3}, 3, v{vXb}"]
    wol = [f"buffer_load_dwordx2 {v(216+16*tk+2*jj,2)}, v{vXb}, s[{(sW1, sW2)[tk]}:{(sW1, sW2)[tk]+3}], s{(16, 24)[tk] + (jj >> 2)} offen offset:{(jj&3)*896} ; vm:wo" for tk in range(2) for jj in range(8)]
    SG = len(per)
    order = [i_ for i_, x in pre_reads(0)]; done = -1
    Lsp1 = A.label("F_sp1"); Lsp1r = A.label("F_sp1r"); Lsp2 = A.label("F_sp2"); Lsp2r = A.label("F_sp2r")
    for st in range(7):
        t = 16 + st
        k0 = 2 * st
        if st < 6:
            seq = [(k, q) for k in (k0, k0 + 1) for q in range(-1, 22)]
        else:
            seq = [(k0, -1), (k0 + 1, -1)] + [(k, q) for q in range(22) for k in (k0, k0 + 1)]
        frs = [x for x in seq if x[1] >= 0]
        slot = {x: 44 * st + n for n, x in enumerate(frs)}
        posd = {x: 2 * n for n, x in enumerate(seq)}
        ms = []
        for (k, q) in seq: ms += step_mf(k, q, slot.get((k, q)))
        rd = []
        for n, (k, q) in enumerate(frs):
            if n < NPRE: continue
            if st < 6 and k & 1 and q == 0:
                for i_, x in xr_items(k): rd.append((x, 2, 40, posd[(k, q)] - 2*RA - 2, "rd:" + i_))
            lo = 0 if n < 16 else posd[frs[n - 16]] + 1
            d = min(max(posd[(k, q)] - 2*RA, (n - NPRE) + 0.0), BP - 5 - (43 - n) * 1.0)
            for tt, (i_, x) in enumerate(rd_items(k, q, slot[(k, q)])): rd.append((x, lo, min(posd[(k, q)] - 3, BP - 4), max(lo, d + 0.5 * tt), "rd:" + i_))
        nxt = []
        if st < 6:
            nxt = even(adv2(t), BP - 3, BP + 1) + [(x, BP + 1, 91, BP + 1.5 + k * 0.7, "rd:" + i_) for k, (i_, x) in enumerate(pre_reads(st + 1))]
        mine = [stq.pop(0) for _ in range(per[st])] if st < len(per) else []
        strs = [rd + nxt]
        vm = []
        if st >= 1 and t + 1 <= 22: vm += dmaX(2, f"x{t+1}")
        vm += mine
        if st == 2: vm += [f"v_mov_b32 v{vPoll}, 0", f"buffer_load_dword v{vPoll}, v{vPoll}, s[{sG}:{sG+3}], 0 offen sc1 ; vm:pi"]
        if t + 2 <= 22: vm += dmaW(2, f"w{t+2}")
        PKP = opti("pkp", 75); CK = opti("ck", 16)
        if st == 5:
            strs.append([(f"v_mov_b32 v{vPoll}, 0", PKP, PKP, PKP, ""), (f"buffer_load_dword v{vPoll}, v{vPoll}, {so}, s{r.sFh} offen sc1 ; vm:pk", PKP + 1, PKP + 1, PKP + 1, "")])
        if st == 6: strs.append(even(kv(sK, r.sVo, 0x8000, "k0"), CK + 1, CK + 20) + even(wol, CK + 22, BP - 2))
        if vm: strs.append(even(vm, 0, BP - 2 if st != 5 else PKP - 2))
        mg = []
        for (k, q) in frs:
            if q < 11 and k == mig_k(q):
                p0 = posd[(k, q)] + 1 + 8
                mg += [(f"v_accvgpr_read_b32 v{128+8*q+x}, a{64+8*q+x}", p0, min(91, p0 + 30), p0 + x, "") for x in range(8)]
        if mg: strs.append(mg)
        if st == 0: strs.append(even(lastp, 0, 26))
        if st == 1: strs.append(evenk(att, 2, 88))
        if st == 4: strs.append(evenk(wos, 2, BP - 2))
        if st == 5: strs.append(even(scale_setup, BP + 5, 91))
        sync = {6: "WAITVM k0 lgkmcnt(0)\ns_barrier"}.get(st, f"WAITVM x{t+1},w{t+1} lgkmcnt(0)\ns_barrier")
        fixed = [(BP, "sync", sync)] + [(g, "ph", "s_waitcnt") for g in range(3, BP - 2, 4)]
        if st == SG:
            fixed.append((BP + 2, "", f"v_readfirstlane_b32 s{sT2}, v{vPoll}\nv_mov_b32 v{vT}, 1\ns_cmp_lt_u32 s{sT2}, 32\ns_cbranch_scc1 {Lsp1}\n{Lsp1r}:\nbuffer_atomic_add v{vT}, v{vOne0}, {so}, s{r.sFh} offen sc1 ; vm:at"))
        if st == 6:
            fixed.append((CK, "", f"WAITVM pk\nv_readfirstlane_b32 s{sT2}, v{vPoll}\ns_nop 0\ns_cmp_lg_u32 s{sT2}, 16\ns_cbranch_scc1 {Lsp2}\n{Lsp2r}:"))
        if st == 6:
            ep = []
            for ds in range(8):
                dn = posd[(k0 + 1, 2*ds + 1)] + 1 + 8
                l = qepi(ds)
                ep += [(x, dn, 91, min(91, dn + ds * 0.8 + 9.0 * k / len(l)), "") for k, x in enumerate(l)]
            strs.append(ep)
            strs.append(even(kv(sK, r.sKo, 0, "k1"), BP + 1, 91))
        pl = sched3(92, strs, fixed)
        ev = {}
        for p, k, x in pl:
            if k != "ph": ev.setdefault(p, []).append((k, x))
        def need(g):
            nonlocal done
            if g >= 92: return
            idx = max(order.index(x) for x in ms[g][1])
            if idx > done:
                if g % 4 == 0 and g + 2 < 92 and all(x in order for x in ms[g+2][1]): idx = max(idx, max(order.index(x) for x in ms[g+2][1]))
                cnt = len(order) - 1 - idx
                assert cnt <= 15, cnt
                A(f"s_waitcnt lgkmcnt({cnt})"); done = idx
        need(0)
        for g in range(92):
            A(ms[g][0])
            lst = ev.get(g, [])
            if not any(k == "sync" for k, x in lst): need(g + 1)
            for k, x in lst:
                A(x)
                if k.startswith("rd:"): order.append(k[3:])
                elif k == "sync": done = len(order) - 1
        if st == 5: stamp(3)
        if st < 6: stamp(2 + st, True)
    assert not stq
    A(f"v_mul_f32 v32, 0x{f32bits(-LOG2E):08x}, v32\nv_mul_f32 v33, 0x{f32bits(-LOG2E):08x}, v36\nv_exp_f32 v32, v32\nv_exp_f32 v33, v33\nv_mov_b32 v34, v{vT+2}\nv_add_f32 v32, 1.0, v32\nv_add_f32 v33, 1.0, v33\nv_rcp_f32 v32, v32\nv_rcp_f32 v33, v33")
    be = [f"s_add_u32 s{sT2}, s{sBb}, {WS_KB}", f"s_add_u32 s{sT3}, s{sBb}, {WS_VB}", "v_cmp_gt_u32 vcc, 48, v0"]
    r0, r1 = accb(2, 1), accb(3, 1)
    be += pk4(r0, r1) + [f"buffer_store_dwordx4 {v(r0,4)}, v{vLane16}, {so}, s{sT2} offen offset:1024 sc1"] + [f"v_accvgpr_write_b32 a{r.bk+8+q}, v{r0+q}" for q in range(4)]
    for db in range(2):
        r0, r1 = accb(4+db, 0), accb(4+db, 1)
        be += pk4(r0, r1) + [f"buffer_store_dwordx4 {v(r0,4)}, v{vLane16}, {so}, s{sT3} offen offset:{db*1024} sc1"]
        be += [f"v_accvgpr_write_b32 a{r.bv+4*db+q}, v{r0+q}" for q in range(4)] + [f"v_accvgpr_write_b32 a{r.bm+4*db+q}, v{r0+q}" for q in range(2)]
    r0, r1 = accb(2, 0), accb(3, 0)
    be += pk4(r0, r1) + [f"v_accvgpr_write_b32 a{r.bk+4+q}, v{r0+q}" for q in range(4)]
    for e in range(2):
        r0, r1 = accb(0, e), accb(1, e)
        be += [f"v_mul_f32 v{r0+q}, v34, v{r0+q}" for q in range(8)] + pk4(r0, r1)
        be += [f"v_cndmask_b32 v{r0+2}, 0, v{r0+2}, vcc", f"v_cndmask_b32 v{r0+3}, 0, v{r0+3}, vcc"] + [f"v_accvgpr_write_b32 a{r.bq+4*e+q}, v{r0+q}" for q in range(4)]
    vdma = kv(sV, r.sVo, WS0 + 2*0x8000, "v0") + kv(sV, 72, WS0, "v1")
    A("VMEND")
    def spins():
        A(f"{Lsp1}:\n" + r.bound(Lsp1r) + f"v_mov_b32 v{vPoll}, 0\nbuffer_load_dword v{vPoll}, v{vPoll}, s[{sG}:{sG+3}], 0 offen sc1\ns_waitcnt vmcnt(0)\nv_readfirstlane_b32 s{sT2}, v{vPoll}\ns_nop 3\ns_cmp_lt_u32 s{sT2}, 32\ns_cbranch_scc1 {Lsp1}\ns_branch {Lsp1r}")
        A(f"{Lsp2}:\n" + r.bound(Lsp2r) + f"v_mov_b32 v{vPoll}, 0\nbuffer_load_dword v{vPoll}, v{vPoll}, {so}, s{r.sFh} offen sc1\ns_waitcnt vmcnt(0)\nv_readfirstlane_b32 s{sT2}, v{vPoll}\ns_nop 3\ns_cmp_lg_u32 s{sT2}, 16\ns_cbranch_scc1 {Lsp2}\ns_branch {Lsp2r}")
    return dict(spins=spins, sBb=sBb, be=be, vdma=vdma)
```

```python
from asmlib import *
from k1 import MB, WS_K, WS_V, WS_Q, WS_KB, WS_VB, WS_FLAG, WS_CTX, WS_PART, WS_WO, WS_SIZE, f32bits, LOG2E, MF
from f1a import R_, gen_part1, SPLIT

R = opti("R", 12)
WG = opti("wg", 4)
NK0 = opti("nk0", 8)
SN = opti("sn", 1)
MPOS = 24
PART_STRIDE = 17 * 1024

def gen_f1(A, name="f1_kernel", stamps=False):
    Lend = A.label("F_end")
    p1 = gen_part1(A, name, stamps, Lend)
    r = R_
    sK, sV, sWS = r.sK, r.sV, r.sO
    sW, sH, sI, sTy = r.sW, r.sH, r.sI, r.sP
    sKo, sWrap = r.sKo, r.sWrap
    sKl, sVl = 28, 29
    sVs, sVrs, sVd = 30, 31, 32
    sQ, sJ, sL, sMode = r.sQ, r.sJ, r.sL, r.sMode
    sDiag, sPub, sPo, sFp, sFn = 33, 34, 35, 44, 45
    sFo = r.sFo
    sT0, sT1, sT2, sT3 = r.sT0, r.sT1, r.sT2, r.sT3
    sC8 = r.sC8
    sM = 36; sM1 = 66
    sBb = p1["sBb"]
    SR = r.SR
    vL16, vDm, vKr, vVr, vBase, vD, vNeg = 1, 2, 3, 4, 27, 6, 7
    vT = 8
    vG = 32; vTs = 34; vLs = 38; vNm = 40
    vP = 48; vS = 64; vp = 96; vO = 128
    aQ = r.aQ; aF = r.aF
    VS0 = 65536
    BIG = 0x40000000
    def stamp(i):
        if stamps and not opti("p2st"): A(f"{'s_memtime' if opti('cyc') else 's_memrealtime'} s[{SR[i]}:{SR[i]+1}]")
    def Ob(db, qb): return vO + 4 * (2 * db + qb)
    def Sb(kb, qb): return vS + 4 * (2 * kb + qb)
    def pb(kb, qb): return vp + 4 * (2 * kb + qb)
    def Pf(ks, qb): return vP + 4 * (2 * ks + qb)
    def fr(f): return a(aF + 4 * (f % 16), 4)
    def kmap(f): return (f & 3, f >> 2) if SN else (f >> 3, f & 7)
    def qo(f): return (1, 0) if (SN and f & 1) else (0, 1)
    def rdK(f): return f"ds_read_b128 {fr(f)}, v{vKr} offset:{(8*kmap(f)[0] + kmap(f)[1])*1024}"
    def rdV(f): return f"ds_read_b128 {fr(f)}, v{vVr} offset:{f*1024}"

    vDm2 = 5
    sVn, sVe, sVb = sVs, sVrs, sVd
    def dma(kind, so=sKo):
        srd, lb = (sK, sKl) if kind == "K" else (sV, sVl)
        out = []
        for p in range(8):
            if p == 0: out.append(f"s_mov_b32 m0, s{lb}\ns_nop 0" if kind == "K" else f"s_mov_b32 m0, s{lb}\ns_nop 0")
            if p == 4: out.append(f"s_add_u32 m0, s{lb}, 4096\ns_nop 0")
            out.append(f"buffer_load_dwordx4 v{vDm if p < 4 else vDm2}, s[{srd}:{srd+3}], s{so} offen offset:{(p&3)*1024} {flags('kvld', 'sc1')} lds")
        out.append(f"s_xor_b32 s{lb}, s{lb}, s{sC8}" if kind == "K" else f"s_mov_b32 s{sVl}, s{sVn}")
        return out
    def nonop(l): return [x.replace("\ns_nop 0", "") for x in l]
    advO = f"s_add_u32 s{sKo}, s{sKo}, s{sC8}\ns_cmp_eq_u32 s{sKo}, s{sWrap}\ns_cselect_b32 s{sKo}, 0, s{sKo}"
    nextV = f"s_add_u32 s{sVn}, s{sVl}, s{sC8}\ns_cmp_eq_u32 s{sVn}, s{sVe}\ns_cselect_b32 s{sVn}, s{sVb}, s{sVn}"
    setVr = f"v_add_u32 v{vVr}, s{sVn}, v26"
    advK = f"v_xor_b32 v{vKr}, 0x8000, v{vKr}"

    ABL = [0]
    def phase(mf, events, pre):
        order = list(range(pre))
        done = -1
        def emit(lst):
            nonlocal done
            for kind, text in lst:
                ab = opt("abl", "") if ABL[0] else ""
                skip = ("e" in ab and text.startswith("v_exp")) or ("a" in ab and text.startswith("v_add_f32")) or ("c" in ab and text.startswith("v_cvt")) or ("d" in ab and text.startswith("buffer_load")) or ("r" in ab and text.startswith("ds_read")) or ("b" in ab and "s_barrier" in text)
                if not skip: A(text)
                if kind.startswith("rd:"): order.append(int(kind[3:]))
                elif kind == "rdx": order.append(-1)
                elif kind == "sync": done = len(order) - 1
        def need_wait(f):
            nonlocal done
            if f < 32 and order.index(f) > done:
                need = order.index(f)
                for g in range(f + 1, min(32, (f // WG + 1) * WG)):
                    if g in order: need = max(need, order.index(g))
                cnt = len(order) - 1 - need
                assert cnt <= 15
                A(f"s_waitcnt lgkmcnt({cnt})"); done = need
        emit(events.get(-1, []))
        need_wait(0)
        for f in range(32):
            m = mf(f)
            A(m[0]); emit(events.get(2 * f, []))
            A(m[1])
            lst = events.get(2 * f + 1, [])
            if not any(k == "sync" for k, t in lst): need_wait(f + 1)
            emit(lst)
    def add_ev(ev, items):
        for p, k, t in items: ev.setdefault(p, []).append((k, t))
    def mfQK(f):
        kb, ds = kmap(f)
        return [f"{MF} {v(Sb(kb,qb),4)}, {fr(f)}, {a(aQ+4*(2*ds+qb),4)}, {v(vNm+4*qb,4) if ds == 0 else v(Sb(kb,qb),4)}" for qb in qo(f)]
    def mfPV(f):
        ks, db = f >> 4, f & 15
        return [f"{MF} {v(Ob(db,qb),4)}, {fr(f)}, {v(Pf(ks,qb),4)}, {v(Ob(db,qb),4)}" for qb in qo(f)]
    def cvts():
        out = []
        for ks in range(2):
            for qb in range(2):
                for hh in range(2):
                    src = pb(2*ks+hh, qb)
                    out.append(f"v_cvt_pk_bf16_f32 v{Pf(ks,qb)+2*hh}, v{src}, v{src+1}")
                    out.append(f"v_cvt_pk_bf16_f32 v{Pf(ks,qb)+2*hh+1}, v{src+2}, v{src+3}")
        return out
    def xl_reduce(op, r, t):
        return (f"v_mov_b32 v{t}, v{r}\ns_nop 1\nv_permlane16_swap_b32 v{r}, v{t}\ns_nop 1\n{op} v{r}, v{r}, v{t}\n"
                f"v_mov_b32 v{t}, v{r}\ns_nop 1\nv_permlane32_swap_b32 v{r}, v{t}\ns_nop 1\n{op} v{r}, v{r}, v{t}")
    def mask_block():
        A(f"s_sub_u32 s{sT0}, s{sJ}, s{sDiag}\ns_lshl_b32 s{sT0}, s{sT0}, 6\nv_subrev_u32 v{vD}, s{sT0}, v{vBase}")
        for c in range(-1, 4):
            for i in range(4):
                A(f"v_cmp_gt_i32 s[{sM+2*i}:{sM+2*i+1}], {16*c+i}, v{vD}")
            A("s_nop 0")
            for i in range(4):
                for qb in range(2):
                    kb = c + qb
                    if 0 <= kb < 4:
                        x = Sb(kb, qb) + i
                        A(f"v_cndmask_b32 v{x}, v{x}, v{vNeg}, s[{sM+2*i}:{sM+2*i+1}]")
    def slow(first):
        for qb in range(2):
            m = vT + qb
            regs = [Sb(kb, qb) + i for kb in range(4) for i in range(4)]
            A(f"v_max3_f32 v{m}, v{regs[0]}, v{regs[1]}, v{regs[2]}")
            for x in range(3, 15, 2): A(f"v_max3_f32 v{m}, v{m}, v{regs[x]}, v{regs[x+1]}")
            A(f"v_max_f32 v{m}, v{m}, v{regs[15]}")
            A(xl_reduce("v_max_f32", m, vT + 2))
            if not first: A(f"v_max_f32 v{m}, 0, v{m}")
            for i in range(4): A(f"v_sub_f32 v{vNm+4*qb+i}, v{vNm+4*qb+i}, v{m}")
            if not first:
                A(f"v_sub_f32 v{vT+4+qb}, 0, v{m}\nv_exp_f32 v{vT+4+qb}, v{vT+4+qb}\ns_nop 0\nv_mul_f32 v{vLs+qb}, v{vLs+qb}, v{vT+4+qb}")
                for db in range(16):
                    for i in range(4): A(f"v_mul_f32 v{Ob(db,qb)+i}, v{Ob(db,qb)+i}, v{vT+4+qb}")
            for kb in range(4):
                for i in range(4): A(f"v_sub_f32 v{pb(kb,qb)+i}, v{Sb(kb,qb)+i}, v{m}")
            for kb in range(4):
                for i in range(4): A(f"v_exp_f32 v{pb(kb,qb)+i}, v{pb(kb,qb)+i}")
            A("s_nop 0")
            t = vTs + 2 * qb
            A(f"v_add_f32 v{t}, v{pb(0,qb)}, v{pb(0,qb)+1}")
            for x in range(2, 16): A(f"v_add_f32 v{t}, v{t}, v{pb(x>>2,qb)+(x&3)}")

    ws = f"s[{sWS}:{sWS+3}]"
    vFlag, vZ, vOneL = 30, 29, 24
    A(f"s_lshl_b32 s{sT0}, s{sW}, 13\ns_add_u32 s{sKl}, s{sT0}, 0x8000\ns_add_u32 s{sVb}, s{sT0}, {VS0}\ns_add_u32 s{sVl}, s{sVb}, 0x8000\ns_add_u32 s{sVe}, s{sVb}, {3*0x8000}\nv_subrev_u32 v26, s{sT0}, v{vL16}")
    A(f"v_add_u32 v{vKr}, 0x8000, v{vL16}\nv_mov_b32 v{vNeg}, 0x{f32bits(-1e30):08x}\nv_mov_b32 v{vZ}, 0\nv_mov_b64 v[{vFlag}:{vFlag+1}], 0\ns_mov_b32 s{sPub}, 0\ns_lshl_b32 s{sDiag}, s{sQ}, 1")
    A(f"s_mov_b32 s72, s{sKo}")
    A(advO)
    A(f"v_and_b32 v{vT}, 15, v0\nv_lshrrev_b32 v28, 4, v0\nv_lshlrev_b32 v28, 2, v28\nv_sub_u32 v28, v{vT}, v28\ns_lshl_b32 s{sT0}, s{sW}, 5\nv_add_u32 v{vBase}, s{sT0}, v28")
    A(f"v_cmp_eq_u32 vcc, 0, v0\nv_mov_b32 v{vOneL}, {BIG}\ns_xor_b32 s{sFp}, s{sFo}, {64 << 7}\nv_cndmask_b32 v{vOneL}, v{vOneL}, 0, vcc")
    A(f"s_and_b32 s{sT0}, s2, 63\ns_lshr_b32 s{sT1}, s2, 7\ns_lshl_b32 s{sT1}, s{sT1}, 6\ns_or_b32 s{sT0}, s{sT0}, s{sT1}\ns_lshl_b32 s{sT0}, s{sT0}, 2\ns_add_u32 s46, s{sT0}, s{sW}\ns_mul_i32 s{sPo}, s46, {PART_STRIDE}\ns_add_u32 s{sPo}, s{sPo}, {WS_PART}")
    A(f"s_add_u32 s{sT0}, s{r.sOwn}, 1\ns_sub_u32 s{sT1}, 23, s{sT0}\ns_cmp_ge_u32 s{sT0}, 8\ns_cselect_b32 s{sT1}, s{sT1}, s{sT0}\ns_lshl_b32 s{sT1}, s{sT1}, 10\ns_add_u32 s{sFn}, s{r.sFh}, s{sT1}\ns_sub_u32 s{sFn}, s{sFn}, 8")
    A(f"s_cmp_eq_u32 s{sT0}, 16\ns_cselect_b32 s{sFn}, {BIG}, s{sFn}\ns_cmp_lg_u32 s{sW}, 3\ns_cselect_b32 s{sFn}, {BIG}, s{sFn}")
    A(f"s_or_b32 s{sT0}, s{sTy}, s{sW}\ns_cselect_b32 s79, {BIG}, 0\ns_add_u32 s79, s79, {WS_FLAG + 20}\ns_mov_b32 s80, {WS_FLAG + 20}")
    sTt, sN, sWb3, sCb3, sL3, sSp = 16, 17, 18, 19, 20, 24
    WT = opti('wt', 0)
    k3s = [f"s_and_b32 s{sN}, s2, 7", f"s_lshl_b32 s{sTt}, s{sN}, 2", f"s_bfe_u32 s{sN}, s2, {(2 << 16) | 3}", f"s_add_u32 s{sTt}, s{sTt}, s{sN}", f"s_lshr_b32 s{sN}, s2, 5", f"s_mul_i32 s25, s{sW}, {36*4096}",
           f"s_mul_i32 s{sWb3}, s{sN}, {144*4096}", f"s_add_u32 s{sWb3}, s{sWb3}, s25", f"s_add_u32 s{sWb3}, s{sWb3}, {WS_WO}", f"s_mul_i32 s{sCb3}, s{sTt}, {144*4096}", f"s_add_u32 s{sCb3}, s{sCb3}, s25", f"s_add_u32 s{sCb3}, s{sCb3}, {WS_CTX}",
           f"s_mov_b32 s85, {BIG}", f"v_lshlrev_b32 v25, 7, v0", f"s_lshr_b32 s86, s2, 7", f"s_lshl_b32 s86, s86, 3", f"s_add_u32 s86, s86, s{sI}", f"s_lshl_b32 s86, s86, 2", f"s_add_u32 s86, s86, s{sW}", f"s_lshl_b32 s86, s86, 13", f"s_add_u32 s86, s86, {WS_WO}",
           f"s_cmp_ge_u32 s2, 224\ns_cselect_b32 s{sWb3}, {BIG}, s{sWb3}",
           f"s_sub_u32 s{sSp}, s{sL}, 1", f"s_cmp_eq_u32 s{sMode}, 1\ns_cselect_b32 s{sSp}, s{sL}, s{sSp}", f"s_cmp_eq_u32 s{sTy}, {1 if WT else 5}\ns_cselect_b32 s{sSp}, {WT - 2}, s{sSp}",
           f"s_lshl_b32 s75, s{r.sOwn}, 1", f"s_add_u32 s75, s75, s{r.sWM}", f"s_mul_i32 s74, s75, {144*4096}", f"s_lshl_b32 s25, s{r.sWN}, 11", f"s_add_u32 s74, s74, s25", f"s_add_u32 s74, s74, {WS_CTX}"]
    vAcc, vR, vW = 16, 80, 176
    ND = 6
    AB = [128, 144, 160, 176, 240, 64, 80, 96, 112, 0, 16, 32, 48, 192, 208, 224]
    def wreg(k, u):
        if k < 16: return a(AB[k] + 4*u, 4)
        if k < 21: return v(vW + 16*(k-16) + 4*u, 4)
        if k < 29: return a(AB[7 + k - 21] + 4*u, 4)
        return a(AB[k - 29] + 4*u, 4)
    def wload(k, tmp=25): return [f"s_add_u32 s{tmp}, s{sWb3}, {k*4096}"] + [f"buffer_load_dwordx4 {wreg(k,u)}, v{vL16}, {ws}, s{tmp} offen offset:{u*1024} {flags('wld', 'sc1')} ; vm:w{k}" for u in range(4)]
    def wdma(k): return [f"s_add_u32 m0, s{sL3 + (k-21)//2}, {((k-21)&1)*4096}", f"s_add_u32 s25, s{sWb3}, {k*4096}"] + [f"buffer_load_dwordx4 v{vL16}, {ws}, s25 offen offset:{u*1024} {flags('wld', 'sc1')} lds" for u in range(4)]
    for i in range(vNm, vNm + 8, 2): A(f"v_mov_b64 {v(i,2)}, 0")
    Lloop = A.label("F2_loop"); Lqk = A.label("F2_qk"); Ltail = A.label("F2_tail"); Lfirst = A.label("F2_first")
    Lslow = A.label("F2_slow"); Lback = A.label("F2_back"); Lnm0 = A.label("F2_nm0"); Lnm1 = A.label("F2_nm1"); LA = A.label("F2_A"); Lnopark = A.label("F2_np"); Lpq = A.label("F2_pq"); Lnp2 = A.label("F2_np2")
    A(f"s_cmp_eq_u32 s{sTy}, 1\ns_cbranch_scc1 {LA}")
    for tk in range(2):
        so_ = 74 + tk
        if tk: A("s_add_u32 s46, s46, 512")
        A(f"s_mul_hi_u32 s47, s46, {(2**32 + 6)//7}\ns_mul_i32 s{sT0}, s47, 7\ns_sub_u32 s{sT0}, s46, s{sT0}")
        A(f"s_mul_i32 s{so_}, s{sT0}, 144\ns_add_u32 s{so_}, s{so_}, s47\ns_lshl_b32 s{so_}, s{so_}, 12\ns_add_u32 s{so_}, s{so_}, {WS_WO}\ns_cmp_ge_u32 s46, 1008\ns_cselect_b32 s{so_}, {BIG}, s{so_}")
    A(f"s_cmp_lg_u32 s{sMode}, 1\ns_cbranch_scc1 {Lnopark}")
    for q in range(64): A(f"v_accvgpr_mov_b32 a{r.aPark+q}, a{aQ+q}")
    Lpqx = A.label("F2_pqx")
    A(f"{Lpq}:\n" + r.bound(Lpqx) + f"buffer_load_dword v{vFlag}, v{vZ}, {ws}, s{sFo} offen offset:8 sc1\ns_waitcnt vmcnt(0)\nv_readfirstlane_b32 s{sT0}, v{vFlag}\ns_nop 3\ns_cmp_lg_u32 s{sT0}, 4\ns_cbranch_scc1 {Lpq}\n{Lpqx}:")
    A(f"s_lshl_b32 s{sT2}, s{sH}, 7\ns_lshl_b32 s{sT3}, s{sQ}, 3\ns_add_u32 s{sT2}, s{sT2}, s{sT3}\ns_lshl_b32 s{sT3}, s{sW}, 1\ns_add_u32 s{sT2}, s{sT2}, s{sT3}\ns_lshl_b32 s{sT2}, s{sT2}, 13\ns_add_u32 s{sT2}, s{sT2}, {WS_Q}")
    for f in range(16):
        A(f"buffer_load_dwordx4 {a(aQ+4*(2*(f&7)+(f>>3)),4)}, v{vL16}, {ws}, s{sT2} offen offset:{(f&3)*1024} sc1")
        if f & 3 == 3: A(f"s_add_u32 s{sT2}, s{sT2}, 4096")
    A(f"s_branch {Lnp2}\n{Lnopark}:\nWAITVMS wo\n{Lnp2}:")
    A(f"s_mov_b32 s{sT2}, 0x05040100\ns_mov_b32 s{sT3}, 0x07060302")
    for tk in range(2):
        for c in range(4):
            for m in range(4):
                A(f"v_perm_b32 v{184+16*tk+4*c+m}, v{216+16*tk+2*(2*m+1)+(c>>1)}, v{216+16*tk+2*(2*m)+(c>>1)}, s{sT2 if c % 2 == 0 else sT3}")
    for tk in range(2):
        for c in range(4): A(f"buffer_store_dwordx4 {v(184+16*tk+4*c,4)}, v{vL16}, {ws}, s{74+tk} offen offset:{c*1024} sc1")
    A("s_waitcnt vmcnt(8)")
    A(f"{LA}:")
    stamp(1)
    def qk_first(fill, more=[]):
        pl = [x for x in sched3(64, [[(rdK(f), max(0, 2*(f-16)+1), 2*(f-R)+3, 2*(f-R)+1, f"rd:{f}") for f in range(R, 32)] + [(advK, 2*(31-R)+4, 63, 2*(31-R)+4, "")], even(fill, 0, 63)] + more)]
        ev = {}
        add_ev(ev, [(-1, f"rd:{f}", rdK(f)) for f in range(R)])
        add_ev(ev, pl)
        phase(mfQK, ev, 0)
    zf = [f"v_mov_b64 {v(i,2)}, 0" for i in range(vO, vO + 128, 2)]
    A(f"v_mov_b32 v{vT}, 1\ns_cmp_eq_u32 s{sMode}, 2\ns_cselect_b32 s{sT0}, s{sFp}, {BIG}")
    QS = opti("qs", 8)
    be = p1["be"]; nb = max(k for k, x in enumerate(be) if x.startswith("buffer_store")) + 1
    qk_first(zf, [[("WAITVMS q", QS, QS, QS, ""), (f"buffer_atomic_add v{vT}, v{vOneL}, {ws}, s{sT0} offen offset:8 sc1", QS + 1, QS + 1, QS + 1, "")] + even(be[:nb], QS + 2, 30) + even(p1["vdma"], 31, 63), even(be[nb:], 31, 63), even(k3s, 0, 63)])
    A(f"s_waitcnt vmcnt(16) lgkmcnt(0)")
    A(f"buffer_atomic_add v{vT}, v{vOneL}, {ws}, s{sFn} offen sc1\ns_barrier")
    bq, bk, bv, bm = r.bq, r.bk, r.bv, r.bm
    A(f"{Lfirst}:")
    Ldis = A.label("F2_dis")
    if opti("cp3", 0): A(code_pf_items(A, Ldis, "CODE_END", 76, 25, f"s_mov_b32 s25, s{sW}", 22, 23, 3))
    for f in range(NK0): A(rdK(f))
    A(f"s_cmp_lt_u32 s{sJ}, s{sDiag}\ns_cbranch_scc1 {Lnm0}")
    mask_block()
    A(f"{Lnm0}:")
    slow(True)
    A(f"v_mov_b32 v{vLs}, 0\nv_mov_b32 v{vLs+1}, 0\nv_mov_b32 v{vT+1}, 1\ns_cmp_eq_u32 s{sPub}, 0\ns_waitcnt vmcnt({9 + opti('cp3', 0)})\ns_barrier\nbuffer_atomic_add v{vT+1}, v{vOneL}, {ws}, s79 offen sc1\ns_mov_b32 s79, {BIG}\ns_cbranch_scc1 {Lback}")
    A(f"s_mov_b32 s{sPub}, 0\ns_waitcnt vmcnt(0)\nbuffer_atomic_add v{vT+1}, v{vOneL}, {ws}, s{sFp} offen sc1\ns_branch {Lback}")
    p1["spins"]()
    A(f"{Lslow}:")
    slow(False)
    A(f"s_branch {Lback}")
    Lmask = A.label("F2_mask")
    A(f"{Lmask}:\ns_nop 7")
    mask_block()
    A(f".p2align 6\n{Lloop}:")
    if opti("itst"): A("s_memtime s[76:77]")
    def wait_load(upto=32):
        return [(2*f-1, "ph", "s_waitcnt") for f in range(WG, upto, WG)]
    drop = lambda pl: [x for x in pl if x[1] != "ph"]
    own = lambda rd, f0: [(rd(f), max(0, 2*(f-16)+1), max(2*(f-R)+3, f - f0 + 2), max(2*(f-R)+1, f - f0), f"rd:{f}") for f in range(f0, 32)]
    PK = opti("pk", 0)
    els = [(kb, qb, i) for kb in range(4) for qb in range(2) for i in range(4)]
    sm = []; seen = set(); pend = []
    for x, (kb, qb, i) in enumerate(els):
        sm.append(f"v_exp_f32 v{pb(kb,qb)+i}, v{Sb(kb,qb)+i}")
        sm += pend; pend = []
        if PK:
            if i & 1:
                t = vTs + 2*qb; rr = pb(kb, qb) + i - 1
                if t in seen: pend = [f"v_pk_add_f32 {v(t,2)}, {v(t,2)}, {v(rr,2)}"]
                elif i == 3: pend = [f"v_pk_add_f32 {v(t,2)}, {v(rr-2,2)}, {v(rr,2)}"]; seen.add(t)
        else:
            t = vTs + 2*qb + (i & 1); rr = pb(kb, qb) + i
            if t in seen: pend = [f"v_add_f32 v{t}, v{t}, v{rr}"]
            elif i >= 2: pend = [f"v_add_f32 v{t}, v{rr-2}, v{rr}"]; seen.add(t)
    VE = opti("ve", 57)
    chk = [f"v_add_f32 v{vTs}, v{vTs}, v{vTs+1}"] + pend + [f"v_add_f32 v{vTs+2}, v{vTs+2}, v{vTs+3}", f"v_max_f32 v{vT}, v{vTs}, v{vTs+2}", f"v_cmp_nge_f32 vcc, 0x44800000, v{vT}"]
    kd_ = [2*MPOS + 2*f if f < 4 else VE + 1 + (f - 4) * (62.0 - VE) / max(1, NK0 - 4) for f in range(NK0)]
    kx = [(rdK(f), max(2*MPOS, 2*(f+16)+1), 63, kd_[f], "rdx") for f in range(NK0)]
    pl = drop(sched3(64, [own(rdV, R), kx, even(sm, 0, VE) + even(chk, VE + 1, 61)], wait_load(MPOS) + [(2*MPOS-1, "sync", f"s_waitcnt vmcnt({10 if WT else 9}) lgkmcnt(0)\ns_barrier"),
              (61, "", f"s_cmp_eq_u32 s{sJ}, s{sSp}"), (62, "", f"s_cselect_b64 s[{sM}:{sM+1}], -1, vcc"), (63, "", f"s_cmp_lg_u64 s[{sM}:{sM+1}], 0")]))
    ev = {}
    add_ev(ev, pl)
    assert max(p for p, k, t in pl if k.startswith("rd:")) < 2*MPOS - 4
    assert max(p for p, k, t in pl if t.startswith("v_cmp_nge")) <= 61
    ABL[0] = 1
    phase(mfPV, ev, R)
    Lsp = A.label("F2_sp")
    if opti("itst"): A(f"s_mov_b32 m0, s{sJ}\ns_nop 1\nv_writelane_b32 v25, s76, m0")
    A(f"s_cbranch_scc1 {Lsp}")
    A(f"{Lqk}:")
    ladd = [f"v_add_f32 v{vLs}, v{vLs}, v{vTs}", f"v_add_f32 v{vLs+1}, v{vLs+1}, v{vTs+2}"]
    poll = f"buffer_load_dwordx2 v[{vFlag}:{vFlag+1}], v{vZ}, {ws}, s{sFo} offen sc1"
    def qk_phase(dm):
        ko = own(rdK, NK0)
        lastk = 2*(31-R)+3
        vx = [(advK, lastk, 63, lastk, "")] + [(rdV(f), max(lastk, 2*(f+16)+1), 63, 2*(32-R+f)+1, "rdx") for f in range(R)]
        pl = drop(sched3(64, [ko + vx, even(dm, 0, 61), even(ladd + [nextV, setVr] + cvts(), 0, 44)], wait_load() + [(50, "", f"s_add_u32 s{sJ}, s{sJ}, 1"), (63, "last", f"s_cmp_lt_u32 s{sJ}, s{sDiag}")]))
        assert not any(p == 63 and t.startswith("s_") and k != "last" for p, k, t in pl), [x for x in pl if x[0] == 63]
        for x in range(len(pl) - 1):
            if "m0" in pl[x][2] and pl[x][0] == pl[x+1][0] and pl[x+1][2].startswith("buffer_load"):
                pl[x] = (pl[x][0], pl[x][1], pl[x][2] + "\ns_nop 0")
        ev = {}
        add_ev(ev, pl)
        phase(mfQK, ev, NK0)
        A(f"s_cbranch_scc1 {Lloop}\ns_branch {Lmask}")
    qk_phase(nonop(dma("K")) + nonop(dma("V")) + [advO, poll] + ([f"buffer_load_dword v22, v25, {ws}, s85 offen", f"s_add_u32 s85, s85, {64*8192}"] if WT else []))
    ABL[0] = 0
    Lend1 = A.label("F2_e1"); Lw1 = A.label("F2_w1"); Lw2 = A.label("F2_w2"); Lwc = A.label("F2_wc"); Lwd = A.label("F2_wd")
    wpoll = f"buffer_load_dword v23, v{vZ}, {ws}, s80 offen sc1"
    def wcheck(L0, L1): A(f"{L0}:\nv_readfirstlane_b32 s{sT0}, v23\ns_nop 3\ns_cmp_eq_u32 s{sT0}, 128\ns_cbranch_scc1 {L1}\n" + r.bound(L1) + wpoll + f"\ns_waitcnt vmcnt(0)\ns_branch {L0}\n{L1}:")
    A(f"{Lsp}:\ns_cbranch_vccnz {Lslow}\n{Lback}:\ns_cmp_lg_u32 s{sJ}, s{sSp}\ns_cbranch_scc1 {Lqk}")
    A(f"{Ldis}:\ns_cmp_eq_u32 s{sJ}, s{sL}\ns_cbranch_scc1 {Ltail}\ns_add_u32 s{sT0}, s{sJ}, 1\ns_cmp_eq_u32 s{sT0}, s{sL}\ns_cbranch_scc1 {Lend1}")
    A(f"s_cmp_eq_u32 s{sJ}, {WT}\ns_cbranch_scc1 {Lw1}\n{wpoll}\ns_mov_b32 s{sSp}, {WT}\ns_branch {Lqk}")
    A(f"{Lw1}:\ns_sub_u32 s{sSp}, s{sL}, 1")
    wcheck(Lwc, Lwd)
    A(f"s_mov_b32 s85, s86\ns_branch {Lqk}")
    Lh = A.label("F2_h"); Lhs = A.label("F2_hs")
    A(f"{Lend1}:\ns_mov_b32 s{sSp}, s{sL}\ns_cmp_eq_u32 s{r.sOwn}, 0\ns_cselect_b32 s{sT1}, 1, 0\ns_or_b32 s{sT1}, s{sT1}, s{sW}\ns_lshl_b32 s{sT2}, s{sMode}, 1")
    A(f"{Lhs}:\ns_waitcnt vmcnt(0)\nv_readfirstlane_b32 s46, v{vFlag}\nv_readfirstlane_b32 s47, v{vFlag+1}\ns_nop 1\ns_or_b32 s47, s47, s{sT1}\ns_cmp_eq_u32 s46, s{sT2}\ns_cselect_b32 s47, s47, 0\ns_cmp_lg_u32 s47, 0\ns_cbranch_scc1 {Lh}")
    A(r.bound(Lh) + poll + f"\ns_branch {Lhs}\n{Lh}:")
    A(f"s_add_u32 s{sT2}, s{sBb}, {WS_KB - 1024}\ns_add_u32 s{sT3}, s{sBb}, {WS_VB - 2048}\ns_or_b32 s{sT0}, s{r.sOwn}, s{sW}\ns_cselect_b32 s{sT2}, s{sT2}, {BIG}\ns_cselect_b32 s{sT3}, s{sT3}, {BIG}")
    A(f"s_cmp_eq_u32 s{sMode}, 2\ns_cselect_b32 s{sPo}, s{sPo}, {BIG}\ns_mov_b32 s{sL3+2}, s{sKl}\ns_mov_b32 s{sL3+3}, s{sVl}\ns_xor_b32 s{sL3}, s{sKl}, s{sC8}")
    dm = [wpoll, f"s_add_u32 s{sT0}, s{sPo}, 16384", f"buffer_load_dwordx4 v[14:17], v{vL16}, {ws}, s{sT0} offen sc1"]
    for n in range(16):
        if n % 4 == 0: dm += [f"s_add_u32 m0, s{sL3 + 2 + (n >> 3)}, {(n & 4) * 1024}", f"s_add_u32 s{sT0}, s{sPo}, {n * 1024}"]
        dm.append(f"buffer_load_dwordx4 v{vL16}, {ws}, s{sT0} offen offset:{(n&3)*1024} sc1 lds")
    dm += [f"buffer_load_dwordx4 {a(bk,4)}, v{vL16}, {ws}, s{sT2} offen sc1"] + [f"buffer_load_dwordx2 {a(bm+4*db+2,2)}, v{vL16}, {ws}, s{sT3} offen offset:{db*1024+8} sc1" for db in range(2)]
    dm += [f"s_mov_b32 s{sVl}, s{sVn}", f"s_mov_b32 s{sL3+1}, s{sVn}"]
    qk_phase(dm)
    def pv_last(fill):
        ev = {}
        add_ev(ev, [(2*(f-R)+1, f"rd:{f}", rdV(f)) for f in range(R, 32)])
        add_ev(ev, [(p, "", t) for p, t in fill])
        phase(mfPV, ev, R)
    def pack(qb, g):
        r0, r1 = Ob(2*g, qb), Ob(2*g+1, qb)
        return [f"v_cvt_pk_bf16_f32 v{r0}, v{r0}, v{r0+1}", f"v_cvt_pk_bf16_f32 v{r0+1}, v{r0+2}, v{r0+3}", f"v_cvt_pk_bf16_f32 v{r0+2}, v{r1}, v{r1+1}", f"v_cvt_pk_bf16_f32 v{r0+3}, v{r1+2}, v{r1+3}"]
    Lt1 = A.label("K2_t1"); Lt0 = A.label("K2_t0"); Lst = A.label("K2_store"); Lbt = A.label("F2_bt")
    perm = [(ks, 2*g + d) for g in range(8) for ks in range(2) for d in range(2)]
    def rdV2(f): return f"ds_read_b128 {fr(f)}, v{vVr} offset:{(16*perm[f][0] + perm[f][1])*1024}"
    def mfPV2(f):
        ks, db = perm[f]
        return [f"{MF} {v(Ob(db,qb),4)}, {fr(f)}, {v(Pf(ks,qb),4)}, {v(Ob(db,qb),4)}" for qb in qo(f)]
    A(f"{Ltail}:")
    stamp(2)
    A(nextV); A(setVr)
    A(f"s_cmp_eq_u32 s{sMode}, 1\ns_cbranch_scc1 {Lt1}")
    for f in range(R): A(rdV2(f))
    for t in ladd: A(t)
    for t in cvts(): A(t)
    if opti("itst"): A(f"v_lshlrev_b32 v22, 2, v0\ns_lshl_b32 s{sT3}, s2, 8\ns_add_u32 s{sT3}, s{sT3}, {201*MB}\nbuffer_store_dword v25, v22, {ws}, s{sT3} offen")
    A("s_waitcnt vmcnt(0)")
    wcheck(A.label("F2_wc2"), A.label("F2_wd2"))
    A(f"s_lshl_b32 s{sT0}, s{sH}, 15\ns_add_u32 s{sT0}, s{sT0}, s74\ns_mov_b32 s{sT3}, 0xffff0000\ns_cmp_eq_u32 s{sMode}, 0\ns_cbranch_scc1 {Lt0}")
    fA, fB = (10, 12), (18, 20)
    LATE = []
    def final(merge):
        fac = []
        for qb in range(2):
            if merge:
                fac += [f"v_min_f32 v8, v{vNm+4*qb}, v{14+qb}", f"v_sub_f32 v{fA[qb]}, v8, v{vNm+4*qb}", f"v_sub_f32 v{fB[qb]}, v8, v{14+qb}", f"v_exp_f32 v{fA[qb]}, v{fA[qb]}", f"v_exp_f32 v{fB[qb]}, v{fB[qb]}\ns_nop 0",
                        f"v_mul_f32 v{vLs+qb}, v{vLs+qb}, v{fA[qb]}", f"v_fmac_f32 v{vLs+qb}, v{16+qb}, v{fB[qb]}"]
            fac += split_items([xl_reduce("v_add_f32", vLs+qb, 8)])
            fac += [f"v_rcp_f32 v{vLs+qb}, v{vLs+qb}\ns_nop 0", f"v_mul_f32 v{vLs+qb}, v{vLs+qb}, v{vG+qb}"]
            if merge: fac += [f"v_mul_f32 v{fA[qb]}, v{fA[qb]}, v{vLs+qb}", f"v_mul_f32 v{fB[qb]}, v{fB[qb]}, v{vLs+qb}", f"v_mov_b32 v{fA[qb]+1}, v{fA[qb]}", f"v_mov_b32 v{fB[qb]+1}, v{fB[qb]}"]
            else: fac += [f"v_mov_b32 v{fA[qb]}, v{vLs+qb}", f"v_mov_b32 v{fA[qb]+1}, v{vLs+qb}"]
        items = [(x, 0) for x in fac]
        for g in range(8):
            rdy = max(8*g + 7 + 8, 16 if merge else 0)
            for qb in range(2):
                n = qb * 8 + g
                for hh in range(4):
                    o = Ob(2*g + (hh >> 1), qb) + 2 * (hh & 1); rr = vS + 4*n + hh; t = (8, 14)[hh & 1]
                    if merge: l = [f"v_lshlrev_b32 v{t}, 16, v{rr}", f"v_and_b32 v{t+1}, s{sT3}, v{rr}", f"v_pk_mul_f32 {v(o,2)}, {v(o,2)}, {v(fA[qb],2)}", f"v_pk_fma_f32 {v(o,2)}, {v(t,2)}, {v(fB[qb],2)}, {v(o,2)}"]
                    else: l = [f"v_pk_mul_f32 {v(o,2)}, {v(o,2)}, {v(fA[qb],2)}"]
                    items += [(x, rdy) for x in l]
                items += [(x, rdy) for x in pack(qb, g)]
                if qb == 0: items.append((f"s_add_u32 s{sT1}, s{sT0}, {g*4096}", rdy))
                items.append((f"buffer_store_dwordx4 {v(Ob(2*g,qb),4)}, v{vL16}, {ws}, s{sT1} offen offset:{qb*1024} sc1", rdy))
        clock = 0.0; inph = []; rest = []
        RATE = float(opt("erate", "2.0"))
        for x, rdy in items:
            clock = max(clock + cost(x) / RATE, rdy)
            if clock < 63.5 and not rest: inph.append((x, rdy, 63, clock, ""))
            else: rest.append(x)
        strs = [[(rdV2(f), max(0, 2*(f-16)+1), 2*(f-R)+3, 2*(f-R)+1, f"rd:{f}") for f in range(R, 32)], inph, even(wload(5) + wload(6) + wload(7) + wload(8), 0, 63)]
        fixed = wait_load()
        if merge:
            A(f"v_add_u32 v22, s{sL3+2}, v{vL16}\nv_add_u32 v23, s{sL3+3}, v{vL16}")
            strs.append([(f"ds_read_b128 {v(vS + 4*(8*(x&1) + (x>>1)), 4)}, v{22 + (x&1)} offset:{(x>>1)*1024}", 0, 11, x * 0.7, "rdx") for x in range(16)])
            fixed = [x for x in fixed if x[0] != 15] + [(15, "sync", "s_waitcnt lgkmcnt(0)")]
        ev = {}
        add_ev(ev, drop(sched3(64, strs, fixed)))
        phase(mfPV2, ev, R)
        A("s_nop 7")
        more = wdma(21) + wdma(22) + wdma(23) + wdma(24) + ["s_waitcnt vmcnt(36)"] + wload(9) + wload(10) + wload(11) + wload(12)
        if opti("late", 0):
            for x in rest: A(x)
            LATE[:] = more
            return
        step = max(1, len(rest) // len(more)) if merge else 2
        for k, x in enumerate(rest):
            A(x)
            if k % step == step - 1 and more: A(more.pop(0))
        for x in more: A(x)
    final(True)
    A(f"s_branch {Lbt}\n{Lt0}:")
    final(False)
    A(f"s_branch {Lbt}")
    A(f"{Lt1}:")
    for f in range(R): A(rdV(f))
    for t in ladd: A(t)
    for t in cvts(): A(t)
    A(f"s_mov_b32 s{sQ}, s{sI}\ns_lshl_b32 s{sK+2}, s{sI}, 16\ns_add_u32 s{sK+2}, s{sK+2}, 0x10000\ns_mov_b32 s{sV+2}, s{sK+2}")
    pv_last(sched(64, [(dma("K") + dma("V") + [advO], 0, 62), ([f"v_accvgpr_mov_b32 a{aQ+q}, a{r.aPark+q}" for q in range(64)], 0, 63)], None))
    A(f"v_mov_b32 v{vT}, v{vNm}\nv_mov_b32 v{vT+1}, v{vNm+4}\nv_mov_b32 v{vT+2}, v{vLs}\nv_mov_b32 v{vT+3}, v{vLs+1}")
    for i in range(vNm, vNm + 8): A(f"v_mov_b32 v{i}, 0")
    A(f"s_mov_b32 s{sPub}, 1\ns_mov_b32 s{sMode}, 0\ns_mov_b32 s{sJ}, 0\ns_lshl_b32 s{sDiag}, s{sQ}, 1\ns_add_u32 s{sL}, s{sDiag}, 1\ns_mov_b32 s{sSp}, s{sDiag}")
    A(f"s_add_u32 s{sT2}, s{sPo}, 16384\nbuffer_store_dwordx4 {v(vT,4)}, v{vL16}, {ws}, s{sT2} offen sc1")
    A("s_waitcnt vmcnt(17)\ns_barrier")
    fill = []
    prevz = []
    for qb in range(2):
        for g in range(8):
            n = qb * 8 + g
            fill += pack(qb, g)
            t = f"s_add_u32 s{sT2}, s{sPo}, {(n>>2)*4096}\n" if n & 3 == 0 else ""
            fill.append(t + f"buffer_store_dwordx4 {v(Ob(2*g,qb),4)}, v{vL16}, {ws}, s{sT2} offen offset:{(n&3)*1024} sc1")
            fill += prevz
            r0, r1 = Ob(2*g, qb), Ob(2*g+1, qb)
            prevz = [f"v_mov_b64 {v(x,2)}, 0" for x in (r1, r1+2, r0, r0+2)]
    fill += ["s_nop 1"] + prevz
    qk_first(fill)
    A(f"s_waitcnt vmcnt(17) lgkmcnt(0)\ns_barrier\ns_branch {Lfirst}")
    A(f"{Lbt}:")
    bS, bP = 64, 96
    for e in range(2):
        A(f"{MF} {v(bS+8*e,4)}, {a(bk+4*(e+1),4)}, {a(bq+4*e,4)}, 0")
        A(f"{MF} {v(bS+8*e+4,4)}, {a(bk+4*e,4)}, {a(bq+4*e,4)}, 0")
    for i in range(4):
        A(f"v_subrev_u32 v{vT+2}, {i}, v28\nv_and_b32 v{vT+2}, 0x80000001, v{vT+2}\nv_bfrev_b32 v{vT+2}, v{vT+2}")
        A(f"v_cmp_eq_u32 s[{sM+2*i}:{sM+2*i+1}], 0, v{vT+2}\nv_cmp_eq_u32 s[{sM1+2*i}:{sM1+2*i+1}], 1, v{vT+2}")
    A(f"v_cmp_gt_u32 vcc, 48, v0\ns_nop 0")
    def each(fn):
        for e in range(2): A(fn(e))
    m = lambda e: vT + e
    tt = lambda e: vT + 4 + e
    l = lambda e: vT + 8 + e
    for e in (1, 0):
        s0 = bS + 8 * e
        if e == 0:
            A(f"s_or_b32 s{sT0}, s{r.sOwn}, s{sW}")
            for i in range(4): A(f"s_cselect_b64 s[{sM1+2*i}:{sM1+2*i+1}], s[{sM1+2*i}:{sM1+2*i+1}], 0")
        for i in range(4):
            A(f"v_cndmask_b32 v{s0+i}, v{vNeg}, v{s0+i}, s[{sM+2*i}:{sM+2*i+1}]")
            A(f"v_cndmask_b32 v{s0+4+i}, v{vNeg}, v{s0+4+i}, s[{sM1+2*i}:{sM1+2*i+1}]")
        A(f"v_max3_f32 v{m(e)}, v{s0}, v{s0+1}, v{s0+2}\nv_max3_f32 v{m(e)}, v{m(e)}, v{s0+3}, v{s0+4}\nv_max3_f32 v{m(e)}, v{m(e)}, v{s0+5}, v{s0+6}\nv_max_f32 v{m(e)}, v{m(e)}, v{s0+7}")
    def xl4(op, rg):
        for sw in ("v_permlane16_swap_b32", "v_permlane32_swap_b32"):
            each(lambda e: f"v_mov_b32 v{tt(e)}, v{rg(e)}")
            A("s_nop 1")
            each(lambda e: f"{sw} v{rg(e)}, v{tt(e)}")
            A("s_nop 1")
            each(lambda e: f"{op} v{rg(e)}, v{rg(e)}, v{tt(e)}")
    xl4("v_max_f32", m)
    for e in range(2):
        s0 = bS + 8 * e
        for i in range(8): A(f"v_sub_f32 v{s0+i}, v{s0+i}, v{m(e)}")
        for i in range(8): A(f"v_exp_f32 v{s0+i}, v{s0+i}")
    for e in range(2):
        s0 = bS + 8 * e
        lo, hi = (s0, s0 + 4) if e == 0 else (s0 + 4, s0)
        A(f"v_cvt_pk_bf16_f32 v{bP+4*e}, v{lo}, v{lo+1}\nv_cvt_pk_bf16_f32 v{bP+4*e+1}, v{lo+2}, v{lo+3}\nv_cvt_pk_bf16_f32 v{bP+4*e+2}, v{hi}, v{hi+1}\nv_cvt_pk_bf16_f32 v{bP+4*e+3}, v{hi+2}, v{hi+3}")
        A(f"v_add_f32 v{l(e)}, v{s0}, v{s0+1}")
        for i in range(2, 8): A(f"v_add_f32 v{l(e)}, v{l(e)}, v{s0+i}")
        for db in range(2):
            A(f"{MF} {v(s0+4*db,4)}, {a((bm if e == 0 else bv)+4*db,4)}, {v(bP+4*e,4)}, 0")
    xl4("v_add_f32", l)
    each(lambda e: f"v_rcp_f32 v{l(e)}, v{l(e)}\nv_sub_f32 v{vG+e}, 1.0, v{vG+e}\nv_mul_f32 v{l(e)}, v{l(e)}, v{vG+e}")
    A(f"s_lshl_b32 s{sT0}, s{sH}, 12\ns_add_u32 s{sT0}, s{sT0}, s74\ns_add_u32 s{sT0}, s{sT0}, {128*4096}")
    for e in range(2):
        o = bS + 8 * e
        for i in range(8): A(f"v_mul_f32 v{o+i}, v{o+i}, v{l(e)}")
        A(f"v_cvt_pk_bf16_f32 v{o}, v{o}, v{o+1}\nv_cvt_pk_bf16_f32 v{o+1}, v{o+2}, v{o+3}\nv_cvt_pk_bf16_f32 v{o+2}, v{o+4}, v{o+5}\nv_cvt_pk_bf16_f32 v{o+3}, v{o+6}, v{o+7}")
        A(f"v_cndmask_b32 v{o+2}, 0, v{o+2}, vcc\nv_cndmask_b32 v{o+3}, 0, v{o+3}, vcc")
        A(f"buffer_store_dwordx4 {v(o,4)}, v{vL16}, {ws}, s{sT0} offen offset:{e*1024} sc1")
    stamp(3)
    Lsig = A.label("F3_sig"); Lw = A.label("F3_w"); Lwx = A.label("F3_wx"); Lc = A.label("F3_c"); Lcx = A.label("F3_cx")
    def line_of(dst, tile): return f"s_and_b32 s{dst}, s{tile}, 7\ns_lshr_b32 s{sT3}, s{tile}, 3\ns_lshl_b32 s{sT3}, s{sT3}, 6\ns_or_b32 s{dst}, s{dst}, s{sT3}\ns_lshl_b32 s{dst}, s{dst}, 7\ns_add_u32 s{dst}, s{dst}, {WS_FLAG + 16}"
    A(line_of(sT2, 75))
    A(f"v_mov_b32 v{vT}, 1\ns_cmp_lt_u32 s2, 224\ns_cbranch_scc1 {Lw}\ns_waitcnt vmcnt(0)\nbuffer_atomic_add v{vT}, v{vOneL}, {ws}, s{sT2} offen sc1\ns_branch {Lst}")
    A(f"{Lw}:")
    def cload(k): return [f"s_add_u32 s{sT0}, s{sCb3}, {k*4096}"] + [f"buffer_load_dwordx4 {v(vR + 16*(k % ND) + 4*t, 4)}, v{vL16}, {ws}, s{sT0} offen offset:{t*1024} {flags('cld', 'sc1')} ; vm:c{k}" for t in range(4)]
    A("s_waitcnt vmcnt(40)")
    for k in (13, 14):
        for t in wload(k): A(t)
    A(f"v_mov_b32 v15, v{vZ}\ns_waitcnt vmcnt(8)\nbuffer_atomic_add v{vT}, v{vOneL}, {ws}, s{sT2} offen sc1")
    for t in LATE: A(t)
    A("s_waitcnt vmcnt(30)")
    for k in range(15, 21):
        for t in wload(k): A(t)
    A("s_waitcnt vmcnt(24)")
    for k in range(25, 29):
        for t in wdma(k): A(t)
    A(f"s_waitcnt vmcnt(32)")
    for k in range(5):
        for t in wload(k): A(t)
    A(f"{Lwx}:")
    for q in range(4): A(f"v_add_u32 v{9+q}, s{sL3+q}, v{vL16}")
    A(line_of(sT2, sTt))
    stamp(4)
    A(f"{Lc}:\n" + r.bound(Lcx) + f"buffer_load_dword v14, v15, {ws}, s{sT2} offen sc1\ns_waitcnt vmcnt(0)\nv_readfirstlane_b32 s{sT0}, v14\ns_nop 3\ns_cmp_lg_u32 s{sT0}, 32\ns_cbranch_scc1 {Lc}\n{Lcx}:")
    stamp(5)
    A("VMSEED")
    for k in range(ND):
        for t in cload(k): A(t)
    for k in range(36):
        A(f"WAITVM c{k}" + (f",w{k}" if k >= 29 else "") + (" lgkmcnt(0)" if k == 21 else ""))
        for u in range(4):
            for tt in range(4):
                t = tt if u % 2 == 0 else 3 - tt
                c = v(vAcc + 4*(4*u+t), 4)
                A(f"{MF} {c}, {wreg(k,u)}, {v(vR + 16*(k % ND) + 4*t, 4)}, {c if k else 0}")
        if k + ND < 36:
            for t in cload(k + ND): A(t)
        if k % 3 == 2 and 29 + k // 3 < 36:
            for t in wload(29 + k // 3): A(t)
        if 10 <= k < 18:
            kk = 21 + k - 10
            for u in range(4): A(f"ds_read_b128 {wreg(kk,u)}, v{9 + (kk-21)//2} offset:{((kk-21)&1)*4096 + u*1024}")
    A("VMEND")
    stamp(6)
    vt = 2
    A(f"v_and_b32 v{vt}, 15, v0\nv_mul_u32_u24 v{vt}, 272, v{vt}\nv_lshrrev_b32 v{vt+1}, 4, v0\nv_lshl_add_u32 v{vt}, v{vt+1}, 6, v{vt}\ns_mul_i32 s{sT0}, s{sW}, {64*272}\nv_add_u32 v{vt}, s{sT0}, v{vt}")
    A(f"v_lshrrev_b32 v{vt+1}, 2, v0\ns_lshl_b32 s{sT0}, s{sW}, 4\nv_add_u32 v{vt+1}, s{sT0}, v{vt+1}\nv_mul_u32_u24 v{vt+2}, 272, v{vt+1}\nv_and_b32 v{vt+3}, 3, v0\nv_lshl_add_u32 v{vt+2}, v{vt+3}, 6, v{vt+2}")
    A(f"v_mul_u32_u24 v{vt+4}, 896, v{vt+1}\nv_lshl_add_u32 v{vt+4}, v{vt+3}, 5, v{vt+4}")
    A(f"s_mul_i32 s{sT0}, s{sTt}, {64*896}\ns_lshl_b32 s{sT1}, s{sN}, 7\ns_add_u32 s{sT0}, s{sT0}, s{sT1}")
    A(f"s_mov_b64 s[{sK}:{sK+1}], s[{r.sOut}:{r.sOut+1}]\ns_mov_b32 s{sK+2}, {2048*896}\ns_barrier")
    for u in range(4):
        for t in range(4):
            A(f"ds_write_b128 v{vt}, {v(vAcc+4*(4*u+t),4)} offset:{t*16*272 + u*16}")
    A("s_waitcnt lgkmcnt(0)\ns_barrier")
    for p in range(4):
        for c in range(4):
            A(f"ds_read_b128 {v(vR + 16*p + 4*c, 4)}, v{vt+2} offset:{p*64*272 + c*16}")
    A("s_waitcnt lgkmcnt(8)")
    for i in range(0, 16, 2): A(f"v_pk_add_f32 {v(vR+i,2)}, {v(vR+i,2)}, {v(vR+16+i,2)}")
    A("s_waitcnt lgkmcnt(0)")
    for i in range(0, 16, 2): A(f"v_pk_add_f32 {v(vR+32+i,2)}, {v(vR+32+i,2)}, {v(vR+48+i,2)}")
    for i in range(0, 16, 2): A(f"v_pk_add_f32 {v(vR+i,2)}, {v(vR+i,2)}, {v(vR+32+i,2)}")
    for i in range(4):
        A(f"v_cvt_pk_bf16_f32 v{vR+64+2*i}, v{vR+i}, v{vR+4+i}\nv_cvt_pk_bf16_f32 v{vR+64+2*i+1}, v{vR+8+i}, v{vR+12+i}")
    A(f"buffer_store_dwordx4 {v(vR+64,4)}, v{vt+4}, s[{sK}:{sK+3}], s{sT0} offen\nbuffer_store_dwordx4 {v(vR+68,4)}, v{vt+4}, s[{sK}:{sK+3}], s{sT0} offen offset:16")
    A(f"{Lst}:")
    if stamps:
        A("s_waitcnt vmcnt(0)")
        stamp(7)
        A("s_waitcnt lgkmcnt(0)")
        for q, x in enumerate(SR): A(f"v_mov_b32 v{4+q}, s{x}")
        A(f"v_mov_b32 v12, 0\ns_lshl_b32 s{sT3}, s2, 5\ns_add_u32 s{sT3}, s{sT3}, {200*MB}")
        A(f"buffer_store_dwordx4 v[4:7], v12, {ws}, s{sT3} offen\nbuffer_store_dwordx4 v[8:11], v12, {ws}, s{sT3} offen offset:16")
    A(f"{Lend}:\ns_endpgm")
```

```python
from asmlib import *
from k1 import MB, WS_K, WS_V, WS_Q, WS_KB, WS_VB, WS_FLAG, WS_CTX, WS_PART, WS_WO, WS_SIZE, f32bits, LOG2E, MF
import math
SPLIT = opti("split", 19)

class R_:
    sC, sWk, sXx, sWq, sWb, sO, sG = 28, 32, 36, 40, 44, 48, 68
    sW, sWM, sWN, sI, sH, sP = 60, 61, 62, 63, 64, 65
    sT0, sT1, sT2, sT3 = 81, 82, 83, 84
    sC8 = 90
    sK, sV = 8, 12
    sQs = 20
    sQ, sJ, sL, sMode = 4, 5, 6, 7
    sOwn = 88
    sFo, sFh = 100, 101
    sKo, sVo, sWrap = 26, 27, 3
    SR = [52, 54, 56, 58, 92, 94, 96, 0]
    sOut = 98
    aQ, aF = 64, 0
    bq, bk, bv, bm = 192, 200, 212, 220
    aPark = 128
    sSp = 78
    @staticmethod
    def bound(exit_label): return f"s_add_u32 s78, s78, 1\ns_cmp_gt_u32 s78, 0x40000\ns_cbranch_scc1 {exit_label}\n"

def gen_part1(A, name, stamps, Lend):
    r = R_
    sC, sWk, sXx, sWq, sWb, sO, sG = r.sC, r.sWk, r.sXx, r.sWq, r.sWb, r.sO, r.sG
    sW, sWM, sWN, sT, sH, sP = r.sW, r.sWM, r.sWN, r.sI, r.sH, r.sP
    sT0, sT1, sT2, sT3, sC8 = r.sT0, r.sT1, r.sT2, r.sT3, r.sC8
    sXo1, sWo1, sXo2, sQo2, sBo2 = 66, 67, 72, 73, 74
    sXl, sWl = 76, 77
    sCnt, sWd, sWrs = 78, 79, 80
    sWlw1, sBl, sWls = 85, 89, 86
    sOb = 87
    sI0, sI1 = 16, 17
    sAo = 75; sBb = 91
    vLane16 = 1
    vXd1, vWd1, vXd2, vBd2 = 2, 3, 4, 6
    vWb1 = 7; vXr = 8; vWr = 16; vT = 26; vXb = 30; vWb2 = 31
    vOne0 = 24
    vPoll = 25
    WS0 = 65536
    so = f"s[{sO}:{sO+3}]"
    def stamp(i, p2=False):
        if stamps and (bool(opti("p2st")) == p2): A(f"{'s_memtime' if opti('cyc') else 's_memrealtime'} s[{r.SR[i]}:{r.SR[i]+1}]")
    def acc1(i, j, isV):
        n, sec = ((8 * (i >> 1) + j, i & 1) if isV else (4 * i + (j >> 1), j & 1))
        if not sec: return v(128 + 4 * n, 4)
        return a(128 + 4 * n, 4) if n < 8 else v(32 + 4 * (n - 8), 4)
    def pk4(r0, r1, d=None):
        d = r0 if d is None else d
        return [f"v_cvt_pk_bf16_f32 v{d}, v{r0}, v{r0+1}", f"v_cvt_pk_bf16_f32 v{d+1}, v{r0+2}, v{r0+3}", f"v_cvt_pk_bf16_f32 v{d+2}, v{r1}, v{r1+1}", f"v_cvt_pk_bf16_f32 v{d+3}, v{r1+2}, v{r1+3}"]
    def pack1(n):
        r0 = 128 + 4 * n
        if n >= 8: return pk4(r0, 32 + 4 * (n - 8))
        p = pk4(r0, vT)
        return p[:2] + [f"v_accvgpr_read_b32 v{vT+q}, a{128+4*n+q}" for q in range(4)] + p[2:]
    X1 = [0, 64]; W1 = [32, 96]

    A(f".globl {name}\n.p2align 8\n.type {name},@function\n{name}:")
    A(f"s_cmp_ge_u32 s2, 256\ns_cbranch_scc1 {Lend}")
    stamp(0)
    A("s_load_dwordx16 s[4:19], s[0:1], 0\ns_load_dwordx4 s[20:23], s[0:1], 64\ns_load_dwordx4 s[24:27], s[0:1], 88\ns_load_dwordx2 s[98:99], s[0:1], 80")
    CPE = opti("cpe", 1)
    if CPE:
        Lp = A.label("PC")
        A(f"s_getpc_b64 s[72:73]\n{Lp}:\ns_sub_u32 s72, s72, {Lp} - {name}\ns_subb_u32 s73, s73, 0\ns_bfe_u32 s74, s2, {(2 << 16) | 3}\ns_lshl_b32 s74, s74, 15\nv_lshlrev_b32 v14, 7, v0\nv_add_u32 v14, s74, v14\nv_min_u32 v14, CODE_END - {name} - 4, v14\nglobal_load_dword v15, v14, s[72:73]")
    A(f"v_lshrrev_b32 v{vT}, 6, v0\ns_nop 0\nv_readfirstlane_b32 s{sW}, v{vT}\nv_cmp_eq_u32 vcc, 0, v0\nv_and_b32 v0, 63, v0")
    A(f"s_and_b32 s{sT0}, s2, 7\ns_bfe_u32 s{sT}, s2, {(3 << 16) | 3}\ns_bfe_u32 s{sP}, s2, {(1 << 16) | 6}\ns_lshr_b32 s{sT1}, s2, 7\ns_lshl_b32 s{sH}, s{sT0}, 1\ns_add_u32 s{sH}, s{sH}, s{sT1}")
    A(f"v_mov_b32 v{vOne0}, 0x40000000\nv_cndmask_b32 v{vOne0}, v{vOne0}, 0, vcc".replace(", 0, vcc", ", 0, vcc"))
    A(f"s_lshr_b32 s{sWM}, s{sW}, 1\ns_and_b32 s{sWN}, s{sW}, 1")
    A(f"v_lshrrev_b32 v{vT}, 4, v0\ns_lshl_b32 s{sT0}, s{sWN}, 2\nv_add_u32 v{vT}, s{sT0}, v{vT}")
    A(f"v_and_b32 v{vT+1}, 7, v0\nv_xor_b32 v{vT}, v{vT}, v{vT+1}\nv_lshlrev_b32 v{vT}, 4, v{vT}")
    A(f"v_lshrrev_b32 v{vT+1}, 3, v0\ns_lshl_b32 s{sT0}, s{sW}, 3\nv_add_u32 v{vT+1}, s{sT0}, v{vT+1}")
    A(f"v_lshl_add_u32 v{vXd1}, v{vT+1}, 11, v{vT}")
    A(f"v_mul_u32_u24 v{vXd2}, 896, v{vT+1}\nv_add_u32 v{vXd2}, v{vXd2}, v{vT}")
    A(f"v_lshrrev_b32 v{vT}, 5, v0\ns_lshl_b32 s{sT0}, s{sWN}, 1\nv_add_u32 v{vT}, s{sT0}, v{vT}")
    A(f"s_lshl_b32 s{sT0}, s{sWM}, 2\nv_or_b32 v{vT+1}, s{sT0}, v{vT}\nv_lshlrev_b32 v{vT+1}, 1, v{vT+1}")
    A(f"v_and_b32 v{vT+2}, 31, v0\nv_xor_b32 v{vT+1}, v{vT+1}, v{vT+2}\nv_lshlrev_b32 v{vT+1}, 4, v{vT+1}")
    A(f"s_lshl_b32 s{sT0}, s{sWM}, 3\nv_add_u32 v{vT}, s{sT0}, v{vT}")
    A(f"v_lshl_add_u32 v{vWd1}, v{vT}, 13, v{vT+1}")
    A(f"s_lshl_b32 s{sXo1}, s{sT}, 19\ns_lshl_b32 s{sWo1}, s{sH}, 9\ns_mov_b32 s{sC8}, 0x8000")
    A(f"s_lshl_b32 s{sXl}, s{sW}, 10\ns_lshl_b32 s{sWlw1}, s{sWM}, 2\ns_add_u32 s{sWlw1}, s{sWlw1}, s{sWN}\ns_lshl_b32 s{sWlw1}, s{sWlw1}, 10\ns_mov_b32 s{sWls}, {WS0}")
    A(f"s_mov_b32 s{sC+3}, 0x00020000\ns_mov_b32 s{sWk+3}, 0x00020000\ns_mov_b32 s{sC+2}, {2048*2048}\ns_mov_b32 s{sWk+2}, {1024*8192}\ns_cmp_eq_u32 s{sP}, 0")
    A("s_waitcnt lgkmcnt(0)")
    A(f"s_mov_b64 s[{sC}:{sC+1}], s[6:7]\ns_cselect_b64 s[{sWk}:{sWk+1}], s[10:11], s[12:13]")

    def dmaX(ph, tag='x'):
        out = []
        if ph == 1:
            for p in range(8):
                out.append(f"s_add_u32 m0, s{sXl}, {p*4096}\ns_add_u32 s{sT0}, s{sXo1}, {p*32*2048}\nbuffer_load_dwordx4 v{vXd1}, s[{sC}:{sC+3}], s{sT0} offen lds ; vm:{tag}")
            out.append(f"s_add_u32 s{sXo1}, s{sXo1}, 128\ns_xor_b32 s{sXl}, s{sXl}, s{sC8}")
        else:
            for p in range(4):
                out.append(f"s_add_u32 m0, s{sXl}, {p*4096}\ns_add_u32 s{sT0}, s{sXo2}, {p*32*896}\nbuffer_load_dwordx4 v{vXd2}, s[{sXx}:{sXx+3}], s{sT0} offen lds ; vm:{tag}")
            for p in range(4):
                out.append(f"s_add_u32 m0, s{sBl}, {16384 + p*4096}\ns_add_u32 s{sT0}, s{sBo2}, {p*16*2688}\nbuffer_load_dwordx4 v{vBd2}, s[{sWb}:{sWb+3}], s{sT0} offen lds ; vm:{tag}")
            out.append(f"s_add_u32 s{sXo2}, s{sXo2}, 128\ns_add_u32 s{sBo2}, s{sBo2}, {64*2688}\ns_xor_b32 s{sXl}, s{sXl}, s{sC8}\ns_xor_b32 s{sBl}, s{sBl}, s{sC8}")
        return out
    def dmaW(ph, tag='w'):
        srd, run = (sWk, sWo1) if ph == 1 else (sWq, sQo2)
        out = [f"s_add_u32 s{sWl}, s{sWls}, s{sWlw1}"]
        for g in range(2):
            for p in range(4):
                out.append(f"s_add_u32 m0, s{sWl}, {g*2048 + p*8192}\ns_add_u32 s{sT1}, s{run}, {(4*g + 16*p)*8192}\nbuffer_load_dwordx4 v{vWd1}, s[{srd}:{srd+3}], s{sT1} offen lds ; vm:{tag}")
        out.append(f"s_add_u32 s{run}, s{run}, {64*8192}\ns_add_u32 s{sWls}, s{sWls}, s{sC8}\ns_cmp_eq_u32 s{sWls}, {WS0 + 3*0x8000}\ns_cselect_b32 s{sWls}, {WS0}, s{sWls}")
        return out
    def reads1(st, ks):
        xs = [f"ds_read_b128 {a(X1[st]+4*i,4)}, v{vXr+ks} offset:{i*2048}" for i in range(8)]
        ws = [f"ds_read_b64_tr_b16 {a(W1[st]+4*j+2*t,2)}, v{vWr+j} offset:{ks*16384+t*2048}" for j in range(8) for t in range(2)]
        return [xs[0]] + ws + xs[1:]
    def mf1(st, isV, first=False):
        out = []
        for i in range(8):
            for jj in range(8):
                j = jj if i % 2 == 0 else 7 - jj
                x, w = a(X1[st]+4*i, 4), a(W1[st]+4*j, 4); c = acc1(i, j, isV)
                ci = 0 if first else c
                out.append(f"{MF} {c}, {x}, {w}, {ci}" if isV else f"{MF} {c}, {w}, {x}, {ci}")
        return out
    def adv_rd(nx, nw):
        t = [f"s_add_u32 s{sWrs}, s{sWrs}, 1\ns_cmp_eq_u32 s{sWrs}, 3\ns_cselect_b32 s{sWrs}, 0, s{sWrs}\ns_cselect_b32 s{sWd}, {(-2*0x8000) & 0xffffffff}, s{sC8}"]
        t += [f"v_xor_b32 v{vXr+i}, 0x8000, v{vXr+i}" for i in range(nx)]
        t += [f"v_add_u32 v{vWr+j}, s{sWd}, v{vWr+j}" for j in range(nw)]
        return t

    for t in dmaX(1) + dmaW(1): A(t)
    sWi = sAo
    A(f"s_lshr_b32 s{sWi}, s2, 3\ns_lshl_b32 s{sWi}, s{sWi}, 2\ns_add_u32 s{sWi}, s{sWi}, s{sW}\ns_mov_b32 s{sT2}, s{sWi}")
    NCP = code_prefetch(A, name, "CODE_END", 16, sT2, 14, 15, 15) if not CPE else 0
    for t in dmaX(1) + dmaW(1): A(t)
    A(f"v_and_b32 v{vT}, 15, v0\nv_lshrrev_b32 v{vT+1}, 4, v0\nv_lshrrev_b32 v{vT+2}, 1, v{vT}\nv_xor_b32 v{vT+2}, v{vT+2}, v{vT+1}")
    A(f"v_lshlrev_b32 v{vT+2}, 4, v{vT+2}\nv_lshl_add_u32 v{vXb}, v{vT}, 7, v{vT+2}")
    A(f"v_lshrrev_b32 v{vT+2}, 2, v{vT}\nv_and_b32 v{vT+3}, 1, v{vT+1}\nv_lshl_or_b32 v{vT+3}, v{vT+3}, 2, v{vT+2}\nv_lshl_add_u32 v{vT+2}, v{vT+1}, 3, v{vT+2}")
    A(f"v_and_b32 v{vT}, 3, v0\nv_lshlrev_b32 v{vT}, 3, v{vT}\nv_lshl_add_u32 v{vT}, v{vT+3}, 5, v{vT}")
    A(f"v_lshl_add_u32 v{vWb1}, v{vT+2}, 9, v{vT}\nv_lshl_add_u32 v{vWb2}, v{vT+2}, 8, v{vT}")
    A(f"s_lshl_b32 s{sT2}, s{sWM}, 14\nv_add_u32 v{vXr}, s{sT2}, v{vXb}\nv_xor_b32 v{vXr+1}, 64, v{vXr}")
    A(f"s_lshl_b32 s{sT2}, s{sWN}, 8\ns_add_u32 s{sT2}, s{sT2}, {WS0}\nv_add_u32 v{vWr}, s{sT2}, v{vWb1}\ns_mov_b32 s{sWrs}, 0\ns_mov_b32 s{sCnt}, 1")
    for j in range(1, 8): A(f"v_xor_b32 v{vWr+j}, {j << 5}, v{vWr}")
    su0 = [f"s_mov_b32 s{q+3}, 0x00020000" for q in (sXx, sWq, sWb, sO, sG)]
    su0.append(f"s_mov_b32 s{sXx+2}, {2048*896}\ns_mov_b32 s{sWq+2}, {448*8192}\ns_mov_b32 s{sWb+2}, {448*2688}\ns_mov_b32 s{sO+2}, {WS_SIZE}\ns_mov_b32 s{sG+2}, 896")
    su0.append(f"s_mov_b64 s[{sXx}:{sXx+1}], s[4:5]\ns_mov_b64 s[{sWq}:{sWq+1}], s[8:9]\ns_mov_b64 s[{sWb}:{sWb+1}], s[18:19]\ns_mov_b64 s[{sO}:{sO+1}], s[26:27]\ns_mov_b64 s[{sG}:{sG+1}], s[22:23]")
    su0.append("s_mov_b64 s[18:19], s[14:15]\ns_mov_b64 s[0:1], s[20:21]")
    vPq, vPb, vPx = 11, 12, 10
    sPq, sPb, sPx = 5, 6, 4
    sFq, sFb, sFx = 12, 20, 8
    PF = opti("pf", 6); PFM = opti("pfm", 7)
    su0.append(f"s_lshl_b32 s{sT2}, s{sWi}, 2\nv_and_b32 v{vT}, 3, v0\nv_add_u32 v{vT}, s{sT2}, v{vT}\nv_min_u32 v{vT}, 447, v{vT}\nv_lshrrev_b32 v{vT+1}, 3, v{vT}\nv_and_b32 v{vT}, 7, v{vT}\nv_lshlrev_b32 v{vT}, 7, v{vT}\nv_lshl_add_u32 v{vPq}, v{vT+1}, 13, v{vT}")
    su0.append(f"s_and_b32 s{sT3}, s2, 7\ns_lshl_b32 s{sPq}, s{sT3}, 10\ns_mul_i32 s{sPb}, s{sT3}, 112\ns_lshl_b32 s{sPx}, s2, 2\ns_add_u32 s{sPx}, s{sPx}, s{sW}\ns_mul_i32 s{sPx}, s{sPx}, {2*896}\nv_and_b32 v{vPx}, 1, v0\nv_lshlrev_b32 v{vPx}, 7, v{vPx}")
    su0.append(f"v_mul_u32_u24 v{vPb}, 2688, v{vT+1}\nv_lshrrev_b32 v{vT+1}, 8, v{vT}\nv_min_u32 v{vT+1}, 2, v{vT+1}\nv_mul_u32_u24 v{vT+1}, 896, v{vT+1}\nv_add_u32 v{vPb}, v{vPb}, v{vT+1}\nv_bfe_u32 v{vT+1}, v{vT}, 7, 1\nv_mul_u32_u24 v{vT+1}, 116, v{vT+1}\nv_add_u32 v{vPb}, v{vPb}, v{vT+1}")
    allst = [(sFx, sXx, vPx, sPx, 256), (sFq, sWq, vPq, sPq, 56*8192), (sFb, sWb, vPb, sPb, 56*2688)]
    streams = [x for k, x in enumerate(allst) if PF and PFM >> k & 1]
    for f, src, vo, run, step in streams:
        su0.append(f"s_mov_b64 s[{f}:{f+1}], s[{src}:{src+1}]\ns_mov_b32 s{f+2}, 0\ns_mov_b32 s{f+3}, 0x00020000\ns_sub_u32 s{run}, s{run}, {(PF-1)*step}")
    su0.append(f"s_lshl_b32 s{r.sFo}, s2, 7\ns_add_u32 s{r.sFo}, s{r.sFo}, {WS_FLAG}\ns_and_b32 s{r.sFh}, s2, 0x87\ns_lshl_b32 s{r.sFh}, s{r.sFh}, 7\ns_add_u32 s{r.sFh}, s{r.sFh}, {WS_FLAG + 12}")
    su0.append(f"v_mov_b64 v[{vT}:{vT+1}], 0\nv_mov_b64 v[{vT+2}:{vT+3}], 0\nv_lshlrev_b32 v{vLane16}, 4, v0")
    zst = [f"buffer_store_dwordx4 v[{vT}:{vT+3}], v{vOne0}, {so}, s{r.sFo} offen sc1", f"buffer_store_dwordx4 v[{vT}:{vT+3}], v{vOne0}, {so}, s{r.sFo} offen offset:16 sc1", f"buffer_load_dword v13, v{vLane16}, s[{sG}:{sG+3}], 0 offen"]
    NPF = len(streams)
    def pf():
        if not streams: return []
        out = [f"s_cmp_eq_u32 s{sCnt}, {PF}\n" + "\n".join(f"s_cselect_b32 s{f+2}, s{src+2}, s{f+2}" for f, src, vo, run, step in streams)]
        for f, src, vo, run, step in streams:
            out.append(f"buffer_load_dword v13, v{vo}, s[{f}:{f+3}], s{run} offen\ns_add_u32 s{run}, s{run}, {step}")
        return out
    su1 = [f"s_lshl_b32 s{sQo2}, s{sH}, 9",
           f"v_lshrrev_b32 v{vT}, 4, v0\ns_lshl_b32 s{sT2}, s{sWN}, 2\nv_or_b32 v{vT+1}, s{sT2}, v{vT}\nv_lshlrev_b32 v{vT+1}, 1, v{vT+1}",
           f"v_and_b32 v{vT+2}, 15, v0\nv_xor_b32 v{vT+1}, v{vT+1}, v{vT+2}",
           f"s_lshl_b32 s{sT2}, s{sWN}, 1\ns_add_u32 s{sT2}, s{sT2}, s{sWM}\ns_lshl_b32 s{sT3}, s{sT2}, 2\nv_add_u32 v{vT}, s{sT3}, v{vT}\ns_lshl_b32 s{sBl}, s{sT2}, 10",
           f"v_lshrrev_b32 v{vT+2}, 2, v{vT+1}\nv_add_u32 v{vT+3}, 1, v{vT+2}\nv_and_b32 v{vT+3}, 4, v{vT+3}\nv_mul_u32_u24 v{vT+2}, 896, v{vT+2}\nv_lshl_add_u32 v{vT+2}, v{vT+3}, 28, v{vT+2}",
           f"v_and_b32 v{vT+1}, 3, v{vT+1}\nv_lshl_add_u32 v{vT+2}, v{vT+1}, 4, v{vT+2}",
           f"v_mul_u32_u24 v{vBd2}, 2688, v{vT}\nv_add_u32 v{vBd2}, v{vBd2}, v{vT+2}",
           f"s_sub_u32 s{sT2}, 15, s{sT}\ns_cmp_eq_u32 s{sP}, 1\ns_cselect_b32 s{r.sOwn}, s{sT2}, s{sT}",
           f"s_mul_i32 s{sXo2}, s{r.sOwn}, {128*896}\ns_mul_i32 s{sBo2}, s{sH}, 56",
           f"s_lshl_b32 s{sOb}, s{sH}, 7\ns_lshl_b32 s{sT3}, s{sT}, 4\ns_add_u32 s{sOb}, s{sOb}, s{sT3}\ns_lshl_b32 s{sT3}, s{sWM}, 3\ns_add_u32 s{sOb}, s{sOb}, s{sT3}\ns_lshl_b32 s{sOb}, s{sOb}, 13",
           f"s_add_u32 s{sT2}, s{sP}, 12\ns_lshl_b32 s{sT3}, s{sWN}, s{sT2}\ns_add_u32 s{sOb}, s{sOb}, s{sT3}\ns_lshl_b32 s{sT3}, s{sP}, 24\ns_add_u32 s{sOb}, s{sOb}, s{sT3}",
           f"s_lshl_b32 s{sT3}, s{sP}, 12\ns_sub_u32 s{sI0}, 8192, s{sT3}\ns_add_u32 s{sI1}, 8192, s{sT3}",
           f"s_lshl_b32 s{sBb}, s{sH}, 7\ns_lshl_b32 s{sT3}, s{r.sOwn}, 3\ns_add_u32 s{sBb}, s{sBb}, s{sT3}\ns_lshl_b32 s{sT3}, s{sW}, 1\ns_add_u32 s{sBb}, s{sBb}, s{sT3}"]
    if opti("p2z") & 1: su1.append(f"s_mov_b32 s{sXx+2}, 0\ns_mov_b32 s{sWq+2}, 0\ns_mov_b32 s{sWb+2}, 0")
    if opti("p2z") & 4: su1.append(f"s_mov_b32 s{sWb+2}, 0")
    if opti("p2z") & 2: su1.append(f"s_add_u32 s{sOb}, s{sOb}, 0x40000000")
    gl = [f"v_and_b32 v{vPoll}, 48, v0"] + [f"buffer_load_dwordx4 {a(200+4*ks,4)}, v{vPoll}, s[{sG}:{sG+3}], 0 offen offset:{ks*64}" for ks in range(14)]
    A(f"s_waitcnt vmcnt({16+NCP})\ns_barrier")
    stamp(1)
    for t in reads1(0, 0): A(t)
    LVe = A.label("F_Ve"); Lph2 = A.label("F_ph2")
    A(f"s_cmp_eq_u32 s{sP}, 1\ns_cbranch_scc1 {LVe}")
    def st1(n):
        t = f"buffer_store_dwordx4 {v(128+4*n,4)}, v{vLane16}, {so}, s{sOb} offen offset:{(n&3)*1024} sc1 ; vm:st"
        if n & 3 == 3: t += f"\ns_add_u32 s{sOb}, s{sOb}, s{sI0 if (n >> 2) % 2 == 0 else sI1}"
        return t
    NE = opti("ne", 8)

    vBr = 10
    def setup2():
        t = [f"s_lshl_b32 s{sT2}, s{sW}, 12\nv_add_u32 v{vXr}, s{sT2}, v{vXb}\nv_xor_b32 v{vXr+1}, 64, v{vXr}", f"v_add_u32 v{vWr}, {WS0 + 0x8000}, v{vWb1}"]
        t += [f"v_xor_b32 v{vWr+j}, {j << 5}, v{vWr}" for j in range(1, 8)]
        t += [f"v_add_u32 v{vBr}, 16384, v{vWb2}"] + [f"v_xor_b32 v{vBr+u}, {u << 5}, v{vBr}" for u in range(1, 6)]
        return t
    def adv2(stage):
        d = 0x8000 if (stage + 1) % 3 else -2 * 0x8000
        return [f"v_xor_b32 v{vXr+i}, 0x8000, v{vXr+i}" for i in range(8)] + [f"v_add_u32 v{vWr+j}, 0x{d & 0xffffffff:x}, v{vWr+j}" for j in range(8)]
    MIGK = opti("migk", 8)
    def mig_k(j): return MIGK - 2 + (j % 4)
    def accq(j, e, k=99):
        if j >= 11:
            n = 2*(j-11) + e
            return ("v", 40 + 4*n if n < 2 else 64 + 4*(n-2))
        return ("a", 64 + 4 * (2*j + e)) if k <= mig_k(j) else ("v", 128 + 4 * (2*j + e))
    def accb(u, e): return (96 + 16 * e + 4 * u) if u < 4 else (48 + 8 * e + 4 * (u - 4))
    def xfrag(k, e): return a((160 + 8 * (k & 1) if k < 13 else 176) + 4 * e, 4)
    def ring(n): return 4 * (n % 16)
    def frag_reads(k, q, n):
        ks = k & 1; d = ring(n)
        if q < 16: return [f"ds_read_b64_tr_b16 {a(d+2*t,2)}, v{vWr+(q&7)} offset:{ks*16384 + t*2048 + (q>>3)*256}" for t in range(2)]
        return [f"ds_read_b64_tr_b16 {a(d+2*t,2)}, v{vBr+q-16} offset:{ks*8192 + t*1024}" for t in range(2)]
    def x_reads(k): return [f"ds_read_b128 {xfrag(k, e)}, v{vXr+(k&1)} offset:{e*2048}" for e in range(2)]
    def step_mf(k, q, n):
        first = k == 0; out = []
        for e in ((1, 0) if (opti("sn", 1) and q & 1 == 0) else (0, 1)):
            if q < 0:
                c = v(32 + 4*e, 4); out.append((f"{MF} {c}, {a(200+4*k,4)}, {xfrag(k,e)}, {0 if first else c}", [f"x{k}.1"]))
                continue
            w = a(ring(n), 4)
            if q < 16: kk, rr = accq(q, e, k); c = rng(kk, rr, 4)
            else: c = v(accb(q-16, e), 4)
            ci = 0 if first else c
            out.append((f"{MF} {c}, {xfrag(k,e)}, {w}, {ci}" if q >= 20 else f"{MF} {c}, {w}, {xfrag(k,e)}, {ci}", [f"f{k}.{q}.1"]))
        return out
    RA = opti("ra", 6); NPRE = opti("npre", 3); BP = 92 - 2 * opti("rb", 4) - 1
    def rd_items(k, q, n): return [(f"f{k}.{q}.{t}", x) for t, x in enumerate(frag_reads(k, q, n))]
    def xr_items(k): return [(f"x{k}.{e}", x) for e, x in enumerate(x_reads(k))]
    def pre_reads(st):
        k = 2 * st
        if st < 6: return xr_items(k) + [y for q in range(NPRE) for y in rd_items(k, q, 44*st + q)]
        return xr_items(k) + xr_items(k + 1) + [y for n in range(NPRE) for y in rd_items(k + (n & 1), n >> 1, 44*st + n)]

    for isV in (0, 1):
        Lloop = A.label("F_loop")
        def partA(extra): interleave(A, mf1(1, isV), sched(64, [(reads1(0, 0), 0, 47)] + extra))
        def partB(dw, first=False, extra=[]):
            A("s_waitcnt lgkmcnt(0)")
            interleave(A, mf1(0, isV, first), sched(64, [(reads1(1, 1) + adv_rd(2, 8), 0, 63), (dw, 0, 60)] + extra))
        if isV: A(f"{LVe}:")
        partB(dmaW(1), True, [(su0, 0, 58), (zst, 61, 63)])
        A("s_waitcnt vmcnt(11) lgkmcnt(0)\ns_barrier")
        A(f".p2align 6\n{Lloop}:")
        partA([(dmaX(1) + pf(), 0, 63)])
        partB(dmaW(1))
        A(f"s_add_u32 s{sCnt}, s{sCnt}, 1\ns_cmp_lt_u32 s{sCnt}, 14")
        A(f"s_waitcnt vmcnt({8+NPF}) lgkmcnt(0)\ns_barrier\ns_cbranch_scc1 {Lloop}")
        if opti("cp2", 0): A(code_pf_items(A, Lph2, "CODE_END", 4, 6, f"s_lshr_b32 s6, s2, 1\ns_and_b32 s6, s6, 4\ns_add_u32 s6, s6, s{sW}", 10, 11, 7))
        partA([(dmaX(1) + gl, 0, 63), (su1, 0, 63)])
        partB(dmaW(2))
        A(f"s_waitcnt vmcnt(22) lgkmcnt(0)\ns_barrier")
        init = [f"s_mov_b64 s[{sG}:{sG+1}], s[24:25]", f"s_movk_i32 s{sG+2}, 256", f"s_lshl_b32 s{sT3}, s{sT}, 12", f"v_mov_b32 v{vT}, 1", f"buffer_atomic_add v{vT}, v{vOne0}, s[{sG}:{sG+3}], s{sT3} offen sc1"]
        partA([(dmaX(2) + init, 0, 63)])
        partB(dmaW(2))
        A(f"s_waitcnt vmcnt(9) lgkmcnt(0)\ns_barrier")
        stamp(2); stamp(0, True)
        st = [even(setup2(), 0, 16), even(dmaX(2), 0, 32) + even([st1(n) for n in range(NE)], 36, 63), [(x, 50, 63, 52 + k, "") for k, (i_, x) in enumerate(pre_reads(0))]]
        for q in range(3):
            st.append(even([x for n in (range(8*q+7, 8*q-1, -1) if isV else range(8*q, 8*q+8)) for x in pack1(n)], 16*q + 18, min(16*q + 34, 63)))
        interleave(A, mf1(1, isV), [(p, t) for p, k, t in sched3(64, st)])
        if not isV: A(f"s_branch {Lph2}")
    A(f"{Lph2}:")
    A(f"VMSEED w17*8 x17*8 st*{NE}")
    stamp(1, True)
    stq = [st1(n) for n in range(NE, 32)]
    per = [int(x) for x in opt("trk", "8/8/8").split("/")]
    lastp = [x for n in range(31, 23, -1) for x in pack1(n)]
    sK, sV = r.sK, r.sV
    att = [f"s_lshl_b32 s{sT2}, s{sT}, 1", f"s_sub_u32 s{sT3}, 32, s{sT2}",
           f"s_min_u32 s{r.sL}, s{sT3}, {SPLIT}",
           f"s_lshl_b32 s{r.sWrap}, s{sT3}, 15",
           f"s_cmp_gt_u32 s{sT3}, {SPLIT}\ns_cselect_b32 s{r.sMode}, 1, 0",
           f"s_and_b32 s{r.sQs+2}, s{r.sMode}, s{sP}", f"s_mul_i32 s{r.sQs+2}, s{r.sQs+2}, {WS_SIZE}",
           f"s_mov_b64 s[{r.sQs}:{r.sQs+1}], s[{sO}:{sO+1}]", f"s_mov_b32 s{r.sQs+3}, 0x00020000",
           f"s_lshl_b32 s{r.sMode}, s{r.sMode}, s{sP}",
           f"s_sub_u32 s{r.sQ}, 15, s{sT}",
           f"s_cmp_eq_u32 s{r.sMode}, 1\ns_cselect_b32 s{r.sQ}, s{r.sQ}, s{r.sOwn}\ns_cselect_b32 s{r.sJ}, {SPLIT}, 0\ns_cselect_b32 s{r.sWrap}, s{r.sWrap}, -1",
           f"s_add_u32 s{sT2}, s{sT2}, 2",
           f"s_cmp_eq_u32 s{sP}, 1\ns_cselect_b32 s{r.sL}, s{r.sL}, s{sT2}",
           f"s_lshl_b32 s{sK+2}, s{r.sL}, 15",
           f"s_cmp_eq_u32 s{r.sMode}, 1\ns_cselect_b32 s{r.sL}, s{sT3}, s{r.sL}\ns_cselect_b32 s{sK+2}, {MB}, s{sK+2}",
           f"s_sub_u32 s{r.sL}, s{r.sL}, 1", f"s_mov_b32 s{sV+2}, s{sK+2}", f"s_mov_b32 s{sK+3}, 0x00020000", f"s_mov_b32 s{sV+3}, 0x00020000",
           f"s_lshl_b32 s{sT2}, s{sH}, 20",
           f"s_add_u32 s{sK}, s{sO}, s{sT2};@\ns_addc_u32 s{sK+1}, s{sO+1}, 0;@\ns_add_u32 s{sV}, s{sK}, {WS_V};@\ns_addc_u32 s{sV+1}, s{sK+1}, 0",
           f"s_lshl_b32 s{r.sVo}, s{r.sJ}, 15", f"s_add_u32 s{r.sKo}, s{r.sVo}, s{sC8}",
           f"s_cmp_eq_u32 s{r.sKo}, s{r.sWrap}\ns_cselect_b32 s{r.sKo}, 0, s{r.sKo}",
           f"s_lshl_b32 s{sT2}, s{sW}, 13", f"v_add_u32 v2, s{sT2}, v{vLane16}", f"v_add_u32 v5, 4096, v2", f"s_mov_b32 s{sXo1}, s{sT2}"]
    def atomic_items(l): return [(t.replace(";@", ""), ) for t in l]
    def evenk(items, lo, hi):
        n = len(items); return [(t.replace(";@", ""), lo, hi, lo + (k + 0.5) * (hi - lo + 1) / n - 0.5, "") for k, t in enumerate(items)]
    def kv(srd, sof, lds, tag):
        out = []
        for p in range(8):
            if p % 4 == 0: out.append(f"s_add_u32 m0, s{sXo1}, {lds + p*1024}\ns_nop 0")
            out.append(f"buffer_load_dwordx4 v{2 if p < 4 else 5}, s[{srd}:{srd+3}], s{sof} offen offset:{(p&3)*1024} {flags('kvld', 'sc1')} lds ; vm:{tag}")
        return out
    scale_setup = [f"v_mov_b32 v{vT}, 0x{f32bits(LOG2E/16.0):08x}", f"v_mov_b32 v{vT+1}, v{vT}", f"v_mov_b32 v{vT+2}, 0x{f32bits(LOG2E/math.sqrt(28.0)):08x}", f"v_mov_b32 v{vT+3}, v{vT+2}", "v_cmp_gt_u32 vcc, 48, v0",
                   f"s_lshl_b32 s{sAo}, s{sBb}, 13", f"s_add_u32 s{sAo}, s{sAo}, {WS_Q}", f"s_add_u32 s{sWd}, s{sAo}, 8192", f"s_lshl_b32 s{sBb}, s{sBb}, 10"]
    def qepi(ds):
        out = []
        for e in range(2):
            regs = []
            for j in (2*ds, 2*ds+1):
                kk, rr = accq(j, e)
                if kk == "a":
                    tb = 128 + 16 * (ds % 4) + 8 * e + 4 * (j & 1)
                    out += [f"v_accvgpr_read_b32 v{tb+q}, a{rr+q}" for q in range(4)]; rr = tb
                regs.append(rr)
            for rr in regs: out += [f"v_pk_mul_f32 {v(rr+2*q,2)}, {v(rr+2*q,2)}, {v(vT,2)}" for q in range(2)]
            out.append(("R", regs))
        res = [x for x in out if not isinstance(x, tuple)]
        for e, regs in enumerate([x[1] for x in out if isinstance(x, tuple)]):
            res += pk4(regs[0], regs[1])
            res += [f"v_accvgpr_write_b32 a{r.aQ+4*(2*ds+e)+q}, v{regs[0]+q}" for q in range(4)]
            if ds == 4: res.append(f"s_add_u32 s{sAo if e == 0 else sWd}, s{sAo if e == 0 else sWd}, 4096")
            res.append(f"buffer_store_dwordx4 {v(regs[0],4)}, v{vLane16}, s[{r.sQs}:{r.sQs+3}], s{sAo if e == 0 else sWd} offen offset:{(ds&3)*1024} sc1 ; vm:q")
        return res

    sW1, sW2 = sC, sWk
    sWoS = (22 + 52, 23 + 52)
    wos = [f"s_and_b32 s{sT2}, s2, 63", f"s_lshr_b32 s{sT3}, s2, 7", f"s_lshl_b32 s{sT3}, s{sT3}, 6", f"s_or_b32 s{sT2}, s{sT2}, s{sT3}", f"s_lshl_b32 s{sT2}, s{sT2}, 2", f"s_add_u32 s{sT2}, s{sT2}, s{sW}",
           f"s_mul_hi_u32 s{sT3}, s{sT2}, {(2**32 + 6)//7}", f"s_mul_i32 s16, s{sT3}, {32*896 - 7*128}", f"s_lshl_b32 s{sT3}, s{sT2}, 7", f"s_add_u32 s16, s16, s{sT3}", f"s_add_u32 s17, s16, {16*896}",
           f"s_add_u32 s{sT2}, s{sT2}, 512", f"s_mul_hi_u32 s{sT3}, s{sT2}, {(2**32 + 6)//7}", f"s_mul_i32 s24, s{sT3}, {32*896 - 7*128}", f"s_mul_i32 s25, s{sT3}, {28*896 - 7*128}", f"s_sub_u32 s25, s25, {128*28*896}",
           f"s_mov_b64 s[{sW1}:{sW1+1}], s[18:19]", f"s_mov_b32 s{sW1+2}, {4096*896}",
           f"s_cmp_ge_u32 s{sT3}, 128\ns_cselect_b32 s24, s25, s24\ns_cselect_b64 s[{sW2}:{sW2+1}], s[0:1], s[18:19]\ns_cselect_b32 s{sW2+2}, {448*896}, s{sW1+2}",
           f"s_lshl_b32 s{sT3}, s{sT2}, 7", f"s_add_u32 s24, s24, s{sT3}", f"s_add_u32 s25, s24, {16*896}",
           f"s_cmp_eq_u32 s{sP}, 1\ns_cselect_b32 s{sW1+2}, 0, s{sW1+2}\ns_cselect_b32 s{sW2+2}, 0, s{sW2+2}",
           f"v_lshrrev_b32 v{vXb}, 4, v0", f"v_mul_u32_u24 v{vXb}, {4*896}, v{vXb}", f"v_and_b32 v{vT+3}, 15, v0", f"v_lshl_add_u32 v{vXb}, v{vT+3}, 3, v{vXb}"]
    wol = [f"buffer_load_dwordx2 {v(216+16*tk+2*jj,2)}, v{vXb}, s[{(sW1, sW2)[tk]}:{(sW1, sW2)[tk]+3}], s{(16, 24)[tk] + (jj >> 2)} offen offset:{(jj&3)*896} ; vm:wo" for tk in range(2) for jj in range(8)]
    SG = len(per)
    order = [i_ for i_, x in pre_reads(0)]; done = -1
    Lsp1 = A.label("F_sp1"); Lsp1r = A.label("F_sp1r"); Lsp2 = A.label("F_sp2"); Lsp2r = A.label("F_sp2r")
    for st in range(7):
        t = 16 + st
        k0 = 2 * st
        if st < 6:
            seq = [(k, q) for k in (k0, k0 + 1) for q in range(-1, 22)]
        else:
            seq = [(k0, -1), (k0 + 1, -1)] + [(k, q) for q in range(22) for k in (k0, k0 + 1)]
        frs = [x for x in seq if x[1] >= 0]
        slot = {x: 44 * st + n for n, x in enumerate(frs)}
        posd = {x: 2 * n for n, x in enumerate(seq)}
        ms = []
        for (k, q) in seq: ms += step_mf(k, q, slot.get((k, q)))
        rd = []
        for n, (k, q) in enumerate(frs):
            if n < NPRE: continue
            if st < 6 and k & 1 and q == 0:
                for i_, x in xr_items(k): rd.append((x, 2, 40, posd[(k, q)] - 2*RA - 2, "rd:" + i_))
            lo = 0 if n < 16 else posd[frs[n - 16]] + 1
            d = min(max(posd[(k, q)] - 2*RA, (n - NPRE) + 0.0), BP - 5 - (43 - n) * 1.0)
            for tt, (i_, x) in enumerate(rd_items(k, q, slot[(k, q)])): rd.append((x, lo, min(posd[(k, q)] - 3, BP - 4), max(lo, d + 0.5 * tt), "rd:" + i_))
        nxt = []
        if st < 6:
            nxt = even(adv2(t), BP - 3, BP + 1) + [(x, BP + 1, 91, BP + 1.5 + k * 0.7, "rd:" + i_) for k, (i_, x) in enumerate(pre_reads(st + 1))]
        mine = [stq.pop(0) for _ in range(per[st])] if st < len(per) else []
        strs = [rd + nxt]
        vm = []
        if st >= 1 and t + 1 <= 22: vm += dmaX(2, f"x{t+1}")
        vm += mine
        if st == 2: vm += [f"v_mov_b32 v{vPoll}, 0", f"buffer_load_dword v{vPoll}, v{vPoll}, s[{sG}:{sG+3}], 0 offen sc1 ; vm:pi"]
        if t + 2 <= 22: vm += dmaW(2, f"w{t+2}")
        PKP = opti("pkp", 75); CK = opti("ck", 16)
        if st == 5:
            strs.append([(f"v_mov_b32 v{vPoll}, 0", PKP, PKP, PKP, ""), (f"buffer_load_dword v{vPoll}, v{vPoll}, {so}, s{r.sFh} offen sc1 ; vm:pk", PKP + 1, PKP + 1, PKP + 1, "")])
        if st == 6: strs.append(even(kv(sK, r.sVo, 0x8000, "k0"), CK + 1, CK + 20) + even(wol, CK + 22, BP - 2))
        if vm: strs.append(even(vm, 0, BP - 2 if st != 5 else PKP - 2))
        mg = []
        for (k, q) in frs:
            if q < 11 and k == mig_k(q):
                p0 = posd[(k, q)] + 1 + 8
                mg += [(f"v_accvgpr_read_b32 v{128+8*q+x}, a{64+8*q+x}", p0, min(91, p0 + 30), p0 + x, "") for x in range(8)]
        if mg: strs.append(mg)
        if st == 0: strs.append(even(lastp, 0, 26))
        if st == 1: strs.append(evenk(att, 2, 88))
        if st == 4: strs.append(evenk(wos, 2, BP - 2))
        if st == 5: strs.append(even(scale_setup, BP + 5, 91))
        sync = {6: "WAITVM k0 lgkmcnt(0)\ns_barrier"}.get(st, f"WAITVM x{t+1},w{t+1} lgkmcnt(0)\ns_barrier")
        fixed = [(BP, "sync", sync)] + [(g, "ph", "s_waitcnt") for g in range(3, BP - 2, 4)]
        if st == SG:
            fixed.append((BP + 2, "", f"v_readfirstlane_b32 s{sT2}, v{vPoll}\nv_mov_b32 v{vT}, 1\ns_cmp_lt_u32 s{sT2}, 32\ns_cbranch_scc1 {Lsp1}\n{Lsp1r}:\nbuffer_atomic_add v{vT}, v{vOne0}, {so}, s{r.sFh} offen sc1 ; vm:at"))
        if st == 6:
            fixed.append((CK, "", f"WAITVM pk\nv_readfirstlane_b32 s{sT2}, v{vPoll}\ns_nop 0\ns_cmp_lg_u32 s{sT2}, 16\ns_cbranch_scc1 {Lsp2}\n{Lsp2r}:"))
        if st == 6:
            ep = []
            for ds in range(8):
                dn = posd[(k0 + 1, 2*ds + 1)] + 1 + 8
                l = qepi(ds)
                ep += [(x, dn, 91, min(91, dn + ds * 0.8 + 9.0 * k / len(l)), "") for k, x in enumerate(l)]
            strs.append(ep)
            strs.append(even(kv(sK, r.sKo, 0, "k1"), BP + 1, 91))
        pl = sched3(92, strs, fixed)
        ev = {}
        for p, k, x in pl:
            if k != "ph": ev.setdefault(p, []).append((k, x))
        def need(g):
            nonlocal done
            if g >= 92: return
            idx = max(order.index(x) for x in ms[g][1])
            if idx > done:
                if g % 4 == 0 and g + 2 < 92 and all(x in order for x in ms[g+2][1]): idx = max(idx, max(order.index(x) for x in ms[g+2][1]))
                cnt = len(order) - 1 - idx
                assert cnt <= 15, cnt
                A(f"s_waitcnt lgkmcnt({cnt})"); done = idx
        need(0)
        for g in range(92):
            A(ms[g][0])
            lst = ev.get(g, [])
            if not any(k == "sync" for k, x in lst): need(g + 1)
            for k, x in lst:
                A(x)
                if k.startswith("rd:"): order.append(k[3:])
                elif k == "sync": done = len(order) - 1
        if st == 5: stamp(3)
        if st < 6: stamp(2 + st, True)
    assert not stq
    A(f"v_mul_f32 v32, 0x{f32bits(-LOG2E):08x}, v32\nv_mul_f32 v33, 0x{f32bits(-LOG2E):08x}, v36\nv_exp_f32 v32, v32\nv_exp_f32 v33, v33\nv_mov_b32 v34, v{vT+2}\nv_add_f32 v32, 1.0, v32\nv_add_f32 v33, 1.0, v33\nv_rcp_f32 v32, v32\nv_rcp_f32 v33, v33")
    be = [f"s_add_u32 s{sT2}, s{sBb}, {WS_KB}", f"s_add_u32 s{sT3}, s{sBb}, {WS_VB}", "v_cmp_gt_u32 vcc, 48, v0"]
    r0, r1 = accb(2, 1), accb(3, 1)
    be += pk4(r0, r1) + [f"buffer_store_dwordx4 {v(r0,4)}, v{vLane16}, {so}, s{sT2} offen offset:1024 sc1"] + [f"v_accvgpr_write_b32 a{r.bk+8+q}, v{r0+q}" for q in range(4)]
    for db in range(2):
        r0, r1 = accb(4+db, 0), accb(4+db, 1)
        be += pk4(r0, r1) + [f"buffer_store_dwordx4 {v(r0,4)}, v{vLane16}, {so}, s{sT3} offen offset:{db*1024} sc1"]
        be += [f"v_accvgpr_write_b32 a{r.bv+4*db+q}, v{r0+q}" for q in range(4)] + [f"v_accvgpr_write_b32 a{r.bm+4*db+q}, v{r0+q}" for q in range(2)]
    r0, r1 = accb(2, 0), accb(3, 0)
    be += pk4(r0, r1) + [f"v_accvgpr_write_b32 a{r.bk+4+q}, v{r0+q}" for q in range(4)]
    for e in range(2):
        r0, r1 = accb(0, e), accb(1, e)
        be += [f"v_mul_f32 v{r0+q}, v34, v{r0+q}" for q in range(8)] + pk4(r0, r1)
        be += [f"v_cndmask_b32 v{r0+2}, 0, v{r0+2}, vcc", f"v_cndmask_b32 v{r0+3}, 0, v{r0+3}, vcc"] + [f"v_accvgpr_write_b32 a{r.bq+4*e+q}, v{r0+q}" for q in range(4)]
    vdma = kv(sV, r.sVo, WS0 + 2*0x8000, "v0") + kv(sV, 72, WS0, "v1")
    A("VMEND")
    def spins():
        A(f"{Lsp1}:\n" + r.bound(Lsp1r) + f"v_mov_b32 v{vPoll}, 0\nbuffer_load_dword v{vPoll}, v{vPoll}, s[{sG}:{sG+3}], 0 offen sc1\ns_waitcnt vmcnt(0)\nv_readfirstlane_b32 s{sT2}, v{vPoll}\ns_nop 3\ns_cmp_lt_u32 s{sT2}, 32\ns_cbranch_scc1 {Lsp1}\ns_branch {Lsp1r}")
        A(f"{Lsp2}:\n" + r.bound(Lsp2r) + f"v_mov_b32 v{vPoll}, 0\nbuffer_load_dword v{vPoll}, v{vPoll}, {so}, s{r.sFh} offen sc1\ns_waitcnt vmcnt(0)\nv_readfirstlane_b32 s{sT2}, v{vPoll}\ns_nop 3\ns_cmp_lg_u32 s{sT2}, 16\ns_cbranch_scc1 {Lsp2}\ns_branch {Lsp2r}")
    return dict(spins=spins, sBb=sBb, be=be, vdma=vdma)
```

```python
from asmlib import *
from k1 import MB, WS_K, WS_V, WS_Q, WS_KB, WS_VB, WS_FLAG, WS_CTX, WS_PART, WS_WO, WS_SIZE, f32bits, LOG2E, MF
from f1a import R_, gen_part1, SPLIT

R = opti("R", 12)
WG = opti("wg", 4)
NK0 = opti("nk0", 8)
SN = opti("sn", 1)
MPOS = 24
PART_STRIDE = 17 * 1024

def gen_f1(A, name="f1_kernel", stamps=False):
    Lend = A.label("F_end")
    p1 = gen_part1(A, name, stamps, Lend)
    r = R_
    sK, sV, sWS = r.sK, r.sV, r.sO
    sW, sH, sI, sTy = r.sW, r.sH, r.sI, r.sP
    sKo, sWrap = r.sKo, r.sWrap
    sKl, sVl = 28, 29
    sVs, sVrs, sVd = 30, 31, 32
    sQ, sJ, sL, sMode = r.sQ, r.sJ, r.sL, r.sMode
    sDiag, sPub, sPo, sFp, sFn = 33, 34, 35, 44, 45
    sFo = r.sFo
    sT0, sT1, sT2, sT3 = r.sT0, r.sT1, r.sT2, r.sT3
    sC8 = r.sC8
    sM = 36; sM1 = 66
    sBb = p1["sBb"]
    SR = r.SR
    vL16, vDm, vKr, vVr, vBase, vD, vNeg = 1, 2, 3, 4, 27, 6, 7
    vT = 8
    vG = 32; vTs = 34; vLs = 38; vNm = 40
    vP = 48; vS = 64; vp = 96; vO = 128
    aQ = r.aQ; aF = r.aF
    VS0 = 65536
    BIG = 0x40000000
    def stamp(i):
        if stamps and not opti("p2st"): A(f"{'s_memtime' if opti('cyc') else 's_memrealtime'} s[{SR[i]}:{SR[i]+1}]")
    def Ob(db, qb): return vO + 4 * (2 * db + qb)
    def Sb(kb, qb): return vS + 4 * (2 * kb + qb)
    def pb(kb, qb): return vp + 4 * (2 * kb + qb)
    def Pf(ks, qb): return vP + 4 * (2 * ks + qb)
    def fr(f): return a(aF + 4 * (f % 16), 4)
    def kmap(f): return (f & 3, f >> 2) if SN else (f >> 3, f & 7)
    def qo(f): return (1, 0) if (SN and f & 1) else (0, 1)
    def rdK(f): return f"ds_read_b128 {fr(f)}, v{vKr} offset:{(8*kmap(f)[0] + kmap(f)[1])*1024}"
    def rdV(f): return f"ds_read_b128 {fr(f)}, v{vVr} offset:{f*1024}"

    vDm2 = 5
    sVn, sVe, sVb = sVs, sVrs, sVd
    def dma(kind, so=sKo):
        srd, lb = (sK, sKl) if kind == "K" else (sV, sVl)
        out = []
        for p in range(8):
            if p == 0: out.append(f"s_mov_b32 m0, s{lb}\ns_nop 0" if kind == "K" else f"s_mov_b32 m0, s{lb}\ns_nop 0")
            if p == 4: out.append(f"s_add_u32 m0, s{lb}, 4096\ns_nop 0")
            out.append(f"buffer_load_dwordx4 v{vDm if p < 4 else vDm2}, s[{srd}:{srd+3}], s{so} offen offset:{(p&3)*1024} {flags('kvld', 'sc1')} lds")
        out.append(f"s_xor_b32 s{lb}, s{lb}, s{sC8}" if kind == "K" else f"s_mov_b32 s{sVl}, s{sVn}")
        return out
    def nonop(l): return [x.replace("\ns_nop 0", "") for x in l]
    advO = f"s_add_u32 s{sKo}, s{sKo}, s{sC8}\ns_cmp_eq_u32 s{sKo}, s{sWrap}\ns_cselect_b32 s{sKo}, 0, s{sKo}"
    nextV = f"s_add_u32 s{sVn}, s{sVl}, s{sC8}\ns_cmp_eq_u32 s{sVn}, s{sVe}\ns_cselect_b32 s{sVn}, s{sVb}, s{sVn}"
    setVr = f"v_add_u32 v{vVr}, s{sVn}, v26"
    advK = f"v_xor_b32 v{vKr}, 0x8000, v{vKr}"

    ABL = [0]
    def phase(mf, events, pre):
        order = list(range(pre))
        done = -1
        def emit(lst):
            nonlocal done
            for kind, text in lst:
                ab = opt("abl", "") if ABL[0] else ""
                skip = ("e" in ab and text.startswith("v_exp")) or ("a" in ab and text.startswith("v_add_f32")) or ("c" in ab and text.startswith("v_cvt")) or ("d" in ab and text.startswith("buffer_load")) or ("r" in ab and text.startswith("ds_read")) or ("b" in ab and "s_barrier" in text)
                if not skip: A(text)
                if kind.startswith("rd:"): order.append(int(kind[3:]))
                elif kind == "rdx": order.append(-1)
                elif kind == "sync": done = len(order) - 1
        def need_wait(f):
            nonlocal done
            if f < 32 and order.index(f) > done:
                need = order.index(f)
                for g in range(f + 1, min(32, (f // WG + 1) * WG)):
                    if g in order: need = max(need, order.index(g))
                cnt = len(order) - 1 - need
                assert cnt <= 15
                A(f"s_waitcnt lgkmcnt({cnt})"); done = need
        emit(events.get(-1, []))
        need_wait(0)
        for f in range(32):
            m = mf(f)
            A(m[0]); emit(events.get(2 * f, []))
            A(m[1])
            lst = events.get(2 * f + 1, [])
            if not any(k == "sync" for k, t in lst): need_wait(f + 1)
            emit(lst)
    def add_ev(ev, items):
        for p, k, t in items: ev.setdefault(p, []).append((k, t))
    def mfQK(f):
        kb, ds = kmap(f)
        return [f"{MF} {v(Sb(kb,qb),4)}, {fr(f)}, {a(aQ+4*(2*ds+qb),4)}, {v(vNm+4*qb,4) if ds == 0 else v(Sb(kb,qb),4)}" for qb in qo(f)]
    def mfPV(f):
        ks, db = f >> 4, f & 15
        return [f"{MF} {v(Ob(db,qb),4)}, {fr(f)}, {v(Pf(ks,qb),4)}, {v(Ob(db,qb),4)}" for qb in qo(f)]
    def cvts():
        out = []
        for ks in range(2):
            for qb in range(2):
                for hh in range(2):
                    src = pb(2*ks+hh, qb)
                    out.append(f"v_cvt_pk_bf16_f32 v{Pf(ks,qb)+2*hh}, v{src}, v{src+1}")
                    out.append(f"v_cvt_pk_bf16_f32 v{Pf(ks,qb)+2*hh+1}, v{src+2}, v{src+3}")
        return out
    def xl_reduce(op, r, t):
        return (f"v_mov_b32 v{t}, v{r}\ns_nop 1\nv_permlane16_swap_b32 v{r}, v{t}\ns_nop 1\n{op} v{r}, v{r}, v{t}\n"
                f"v_mov_b32 v{t}, v{r}\ns_nop 1\nv_permlane32_swap_b32 v{r}, v{t}\ns_nop 1\n{op} v{r}, v{r}, v{t}")
    def mask_block():
        A(f"s_sub_u32 s{sT0}, s{sJ}, s{sDiag}\ns_lshl_b32 s{sT0}, s{sT0}, 6\nv_subrev_u32 v{vD}, s{sT0}, v{vBase}")
        for c in range(-1, 4):
            for i in range(4):
                A(f"v_cmp_gt_i32 s[{sM+2*i}:{sM+2*i+1}], {16*c+i}, v{vD}")
            A("s_nop 0")
            for i in range(4):
                for qb in range(2):
                    kb = c + qb
                    if 0 <= kb < 4:
                        x = Sb(kb, qb) + i
                        A(f"v_cndmask_b32 v{x}, v{x}, v{vNeg}, s[{sM+2*i}:{sM+2*i+1}]")
    def slow(first):
        for qb in range(2):
            m = vT + qb
            regs = [Sb(kb, qb) + i for kb in range(4) for i in range(4)]
            A(f"v_max3_f32 v{m}, v{regs[0]}, v{regs[1]}, v{regs[2]}")
            for x in range(3, 15, 2): A(f"v_max3_f32 v{m}, v{m}, v{regs[x]}, v{regs[x+1]}")
            A(f"v_max_f32 v{m}, v{m}, v{regs[15]}")
            A(xl_reduce("v_max_f32", m, vT + 2))
            if not first: A(f"v_max_f32 v{m}, 0, v{m}")
            for i in range(4): A(f"v_sub_f32 v{vNm+4*qb+i}, v{vNm+4*qb+i}, v{m}")
            if not first:
                A(f"v_sub_f32 v{vT+4+qb}, 0, v{m}\nv_exp_f32 v{vT+4+qb}, v{vT+4+qb}\ns_nop 0\nv_mul_f32 v{vLs+qb}, v{vLs+qb}, v{vT+4+qb}")
                for db in range(16):
                    for i in range(4): A(f"v_mul_f32 v{Ob(db,qb)+i}, v{Ob(db,qb)+i}, v{vT+4+qb}")
            for kb in range(4):
                for i in range(4): A(f"v_sub_f32 v{pb(kb,qb)+i}, v{Sb(kb,qb)+i}, v{m}")
            for kb in range(4):
                for i in range(4): A(f"v_exp_f32 v{pb(kb,qb)+i}, v{pb(kb,qb)+i}")
            A("s_nop 0")
            t = vTs + 2 * qb
            A(f"v_add_f32 v{t}, v{pb(0,qb)}, v{pb(0,qb)+1}")
            for x in range(2, 16): A(f"v_add_f32 v{t}, v{t}, v{pb(x>>2,qb)+(x&3)}")

    ws = f"s[{sWS}:{sWS+3}]"
    vFlag, vZ, vOneL = 30, 29, 24
    A(f"s_lshl_b32 s{sT0}, s{sW}, 13\ns_add_u32 s{sKl}, s{sT0}, 0x8000\ns_add_u32 s{sVb}, s{sT0}, {VS0}\ns_add_u32 s{sVl}, s{sVb}, 0x8000\ns_add_u32 s{sVe}, s{sVb}, {3*0x8000}\nv_subrev_u32 v26, s{sT0}, v{vL16}")
    A(f"v_add_u32 v{vKr}, 0x8000, v{vL16}\nv_mov_b32 v{vNeg}, 0x{f32bits(-1e30):08x}\nv_mov_b32 v{vZ}, 0\nv_mov_b64 v[{vFlag}:{vFlag+1}], 0\ns_mov_b32 s{sPub}, 0\ns_lshl_b32 s{sDiag}, s{sQ}, 1")
    A(f"s_mov_b32 s72, s{sKo}")
    A(advO)
    if opti("dbgst"): A(f"s_mov_b64 s[76:77], s[{r.sG}:{r.sG+1}]")
    A(f"v_and_b32 v{vT}, 15, v0\nv_lshrrev_b32 v28, 4, v0\nv_lshlrev_b32 v28, 2, v28\nv_sub_u32 v28, v{vT}, v28\ns_lshl_b32 s{sT0}, s{sW}, 5\nv_add_u32 v{vBase}, s{sT0}, v28")
    A(f"v_cmp_eq_u32 vcc, 0, v0\nv_mov_b32 v{vOneL}, {BIG}\ns_xor_b32 s{sFp}, s{sFo}, {64 << 7}\nv_cndmask_b32 v{vOneL}, v{vOneL}, 0, vcc")
    A(f"s_and_b32 s{sT0}, s2, 63\ns_lshr_b32 s{sT1}, s2, 7\ns_lshl_b32 s{sT1}, s{sT1}, 6\ns_or_b32 s{sT0}, s{sT0}, s{sT1}\ns_lshl_b32 s{sT0}, s{sT0}, 2\ns_add_u32 s46, s{sT0}, s{sW}\ns_mul_i32 s{sPo}, s46, {PART_STRIDE}\ns_add_u32 s{sPo}, s{sPo}, {WS_PART}")
    A(f"s_add_u32 s{sT0}, s{r.sOwn}, 1\ns_sub_u32 s{sT1}, 23, s{sT0}\ns_cmp_ge_u32 s{sT0}, 8\ns_cselect_b32 s{sT1}, s{sT1}, s{sT0}\ns_lshl_b32 s{sT1}, s{sT1}, 10\ns_add_u32 s{sFn}, s{r.sFh}, s{sT1}\ns_sub_u32 s{sFn}, s{sFn}, 8")
    A(f"s_cmp_eq_u32 s{sT0}, 16\ns_cselect_b32 s{sFn}, {BIG}, s{sFn}\ns_cmp_lg_u32 s{sW}, 3\ns_cselect_b32 s{sFn}, {BIG}, s{sFn}")
    A(f"s_or_b32 s{sT0}, s{sTy}, s{sW}\ns_cselect_b32 s79, {BIG}, 0\ns_add_u32 s79, s79, {WS_FLAG + 20}\ns_mov_b32 s80, {WS_FLAG + 20}")
    sTt, sN, sWb3, sCb3, sL3, sSp = 16, 17, 18, 19, 20, 24
    WT = opti('wt', 0)
    k3s = [f"s_and_b32 s{sN}, s2, 7", f"s_lshl_b32 s{sTt}, s{sN}, 2", f"s_bfe_u32 s{sN}, s2, {(2 << 16) | 3}", f"s_add_u32 s{sTt}, s{sTt}, s{sN}", f"s_lshr_b32 s{sN}, s2, 5", f"s_mul_i32 s25, s{sW}, {36*4096}",
           f"s_mul_i32 s{sWb3}, s{sN}, {144*4096}", f"s_add_u32 s{sWb3}, s{sWb3}, s25", f"s_add_u32 s{sWb3}, s{sWb3}, {WS_WO}", f"s_mul_i32 s{sCb3}, s{sTt}, {144*4096}", f"s_add_u32 s{sCb3}, s{sCb3}, s25", f"s_add_u32 s{sCb3}, s{sCb3}, {WS_CTX}",
           f"s_mov_b32 s85, {BIG}", f"v_lshlrev_b32 v25, 7, v0", f"s_lshr_b32 s86, s2, 7", f"s_lshl_b32 s86, s86, 3", f"s_add_u32 s86, s86, s{sI}", f"s_lshl_b32 s86, s86, 2", f"s_add_u32 s86, s86, s{sW}", f"s_lshl_b32 s86, s86, 13", f"s_add_u32 s86, s86, {WS_WO}",
           f"s_cmp_ge_u32 s2, 224\ns_cselect_b32 s{sWb3}, {BIG}, s{sWb3}",
           f"s_sub_u32 s{sSp}, s{sL}, 1", f"s_cmp_eq_u32 s{sMode}, 1\ns_cselect_b32 s{sSp}, s{sL}, s{sSp}", f"s_cmp_eq_u32 s{sTy}, {1 if WT else 5}\ns_cselect_b32 s{sSp}, {WT - 2}, s{sSp}",
           f"s_lshl_b32 s75, s{r.sOwn}, 1", f"s_add_u32 s75, s75, s{r.sWM}", f"s_mul_i32 s74, s75, {144*4096}", f"s_lshl_b32 s25, s{r.sWN}, 11", f"s_add_u32 s74, s74, s25", f"s_add_u32 s74, s74, {WS_CTX}"]
    vAcc, vR, vW = 16, 80, 176
    ND = 6
    AB = [128, 144, 160, 176, 240, 64, 80, 96, 112, 0, 16, 32, 48, 192, 208, 224]
    def wreg(k, u):
        if k < 16: return a(AB[k] + 4*u, 4)
        if k < 21: return v(vW + 16*(k-16) + 4*u, 4)
        if k < 29: return a(AB[7 + k - 21] + 4*u, 4)
        return a(AB[k - 29] + 4*u, 4)
    def wload(k, tmp=25): return [f"s_add_u32 s{tmp}, s{sWb3}, {k*4096}"] + [f"buffer_load_dwordx4 {wreg(k,u)}, v{vL16}, {ws}, s{tmp} offen offset:{u*1024} {flags('wld', 'sc1')} ; vm:w{k}" for u in range(4)]
    def wdma(k): return [f"s_add_u32 m0, s{sL3 + (k-21)//2}, {((k-21)&1)*4096}", f"s_add_u32 s25, s{sWb3}, {k*4096}"] + [f"buffer_load_dwordx4 v{vL16}, {ws}, s25 offen offset:{u*1024} {flags('wld', 'sc1')} lds" for u in range(4)]
    for i in range(vNm, vNm + 8, 2): A(f"v_mov_b64 {v(i,2)}, 0")
    Lloop = A.label("F2_loop"); Lqk = A.label("F2_qk"); Ltail = A.label("F2_tail"); Lfirst = A.label("F2_first")
    Lslow = A.label("F2_slow"); Lback = A.label("F2_back"); Lnm0 = A.label("F2_nm0"); Lnm1 = A.label("F2_nm1"); LA = A.label("F2_A"); Lnopark = A.label("F2_np"); Lpq = A.label("F2_pq"); Lnp2 = A.label("F2_np2")
    A(f"s_cmp_eq_u32 s{sTy}, 1\ns_cbranch_scc1 {LA}")
    for tk in range(2):
        so_ = 74 + tk
        if tk: A("s_add_u32 s46, s46, 512")
        A(f"s_mul_hi_u32 s47, s46, {(2**32 + 6)//7}\ns_mul_i32 s{sT0}, s47, 7\ns_sub_u32 s{sT0}, s46, s{sT0}")
        A(f"s_mul_i32 s{so_}, s{sT0}, 144\ns_add_u32 s{so_}, s{so_}, s47\ns_lshl_b32 s{so_}, s{so_}, 12\ns_add_u32 s{so_}, s{so_}, {WS_WO}\ns_cmp_ge_u32 s46, 1008\ns_cselect_b32 s{so_}, {BIG}, s{so_}")
    A(f"s_cmp_lg_u32 s{sMode}, 1\ns_cbranch_scc1 {Lnopark}")
    for q in range(64): A(f"v_accvgpr_mov_b32 a{r.aPark+q}, a{aQ+q}")
    Lpqx = A.label("F2_pqx")
    A(f"{Lpq}:\n" + r.bound(Lpqx) + f"buffer_load_dword v{vFlag}, v{vZ}, {ws}, s{sFo} offen offset:8 sc1\ns_waitcnt vmcnt(0)\nv_readfirstlane_b32 s{sT0}, v{vFlag}\ns_nop 3\ns_cmp_lg_u32 s{sT0}, 4\ns_cbranch_scc1 {Lpq}\n{Lpqx}:")
    A(f"s_lshl_b32 s{sT2}, s{sH}, 7\ns_lshl_b32 s{sT3}, s{sQ}, 3\ns_add_u32 s{sT2}, s{sT2}, s{sT3}\ns_lshl_b32 s{sT3}, s{sW}, 1\ns_add_u32 s{sT2}, s{sT2}, s{sT3}\ns_lshl_b32 s{sT2}, s{sT2}, 13\ns_add_u32 s{sT2}, s{sT2}, {WS_Q}")
    for f in range(16):
        A(f"buffer_load_dwordx4 {a(aQ+4*(2*(f&7)+(f>>3)),4)}, v{vL16}, {ws}, s{sT2} offen offset:{(f&3)*1024} sc1")
        if f & 3 == 3: A(f"s_add_u32 s{sT2}, s{sT2}, 4096")
    A(f"s_branch {Lnp2}\n{Lnopark}:\nWAITVMS wo\n{Lnp2}:")
    A(f"s_mov_b32 s{sT2}, 0x05040100\ns_mov_b32 s{sT3}, 0x07060302")
    for tk in range(2):
        for c in range(4):
            for m in range(4):
                A(f"v_perm_b32 v{184+16*tk+4*c+m}, v{216+16*tk+2*(2*m+1)+(c>>1)}, v{216+16*tk+2*(2*m)+(c>>1)}, s{sT2 if c % 2 == 0 else sT3}")
    for tk in range(2):
        for c in range(4): A(f"buffer_store_dwordx4 {v(184+16*tk+4*c,4)}, v{vL16}, {ws}, s{74+tk} offen offset:{c*1024} sc1")
    A("s_waitcnt vmcnt(8)")
    A(f"{LA}:")
    stamp(1)
    def qk_first(fill, more=[]):
        pl = [x for x in sched3(64, [[(rdK(f), max(0, 2*(f-16)+1), 2*(f-R)+3, 2*(f-R)+1, f"rd:{f}") for f in range(R, 32)] + [(advK, 2*(31-R)+4, 63, 2*(31-R)+4, "")], even(fill, 0, 63)] + more)]
        ev = {}
        add_ev(ev, [(-1, f"rd:{f}", rdK(f)) for f in range(R)])
        add_ev(ev, pl)
        phase(mfQK, ev, 0)
    zf = [f"v_mov_b64 {v(i,2)}, 0" for i in range(vO, vO + 128, 2)]
    A(f"v_mov_b32 v{vT}, 1\ns_cmp_eq_u32 s{sMode}, 2\ns_cselect_b32 s{sT0}, s{sFp}, {BIG}")
    QS = opti("qs", 8)
    be = p1["be"]; nb = max(k for k, x in enumerate(be) if x.startswith("buffer_store")) + 1
    qk_first(zf, [[("WAITVMS q", QS, QS, QS, ""), (f"buffer_atomic_add v{vT}, v{vOneL}, {ws}, s{sT0} offen offset:8 sc1", QS + 1, QS + 1, QS + 1, "")] + even(be[:nb], QS + 2, 30) + even(p1["vdma"], 31, 63), even(be[nb:], 31, 63), even(k3s, 0, 63)])
    A(f"s_waitcnt vmcnt(16) lgkmcnt(0)")
    A(f"buffer_atomic_add v{vT}, v{vOneL}, {ws}, s{sFn} offen sc1\ns_barrier")
    bq, bk, bv, bm = r.bq, r.bk, r.bv, r.bm
    A(f"{Lfirst}:")
    Ldis = A.label("F2_dis")
    if opti("cp3", 0): A(code_pf_items(A, Ldis, "CODE_END", 76, 25, f"s_mov_b32 s25, s{sW}", 22, 23, 3))
    for f in range(NK0): A(rdK(f))
    A(f"s_cmp_lt_u32 s{sJ}, s{sDiag}\ns_cbranch_scc1 {Lnm0}")
    mask_block()
    A(f"{Lnm0}:")
    slow(True)
    A(f"v_mov_b32 v{vLs}, 0\nv_mov_b32 v{vLs+1}, 0\nv_mov_b32 v{vT+1}, 1\ns_cmp_eq_u32 s{sPub}, 0\ns_waitcnt vmcnt({9 + opti('cp3', 0)})\ns_barrier\nbuffer_atomic_add v{vT+1}, v{vOneL}, {ws}, s79 offen sc1\ns_mov_b32 s79, {BIG}\ns_cbranch_scc1 {Lback}")
    A(f"s_mov_b32 s{sPub}, 0\ns_waitcnt vmcnt(0)\nbuffer_atomic_add v{vT+1}, v{vOneL}, {ws}, s{sFp} offen sc1\ns_branch {Lback}")
    p1["spins"]()
    A(f"{Lslow}:")
    slow(False)
    A(f"s_branch {Lback}")
    Lmask = A.label("F2_mask")
    A(f"{Lmask}:\ns_nop 7")
    mask_block()
    A(f".p2align 6\n{Lloop}:")
    if opti("itst"): A("s_memtime s[76:77]")
    def wait_load(upto=32):
        return [(2*f-1, "ph", "s_waitcnt") for f in range(WG, upto, WG)]
    drop = lambda pl: [x for x in pl if x[1] != "ph"]
    own = lambda rd, f0: [(rd(f), max(0, 2*(f-16)+1), max(2*(f-R)+3, f - f0 + 2), max(2*(f-R)+1, f - f0), f"rd:{f}") for f in range(f0, 32)]
    PK = opti("pk", 0)
    els = [(kb, qb, i) for kb in range(4) for qb in range(2) for i in range(4)]
    sm = []; seen = set(); pend = []
    for x, (kb, qb, i) in enumerate(els):
        sm.append(f"v_exp_f32 v{pb(kb,qb)+i}, v{Sb(kb,qb)+i}")
        sm += pend; pend = []
        if PK:
            if i & 1:
                t = vTs + 2*qb; rr = pb(kb, qb) + i - 1
                if t in seen: pend = [f"v_pk_add_f32 {v(t,2)}, {v(t,2)}, {v(rr,2)}"]
                elif i == 3: pend = [f"v_pk_add_f32 {v(t,2)}, {v(rr-2,2)}, {v(rr,2)}"]; seen.add(t)
        else:
            t = vTs + 2*qb + (i & 1); rr = pb(kb, qb) + i
            if t in seen: pend = [f"v_add_f32 v{t}, v{t}, v{rr}"]
            elif i >= 2: pend = [f"v_add_f32 v{t}, v{rr-2}, v{rr}"]; seen.add(t)
    VE = opti("ve", 57)
    chk = [f"v_add_f32 v{vTs}, v{vTs}, v{vTs+1}"] + pend + [f"v_add_f32 v{vTs+2}, v{vTs+2}, v{vTs+3}", f"v_max_f32 v{vT}, v{vTs}, v{vTs+2}", f"v_cmp_nge_f32 vcc, 0x44800000, v{vT}"]
    kd_ = [2*MPOS + 2*f if f < 4 else VE + 1 + (f - 4) * (62.0 - VE) / max(1, NK0 - 4) for f in range(NK0)]
    kx = [(rdK(f), max(2*MPOS, 2*(f+16)+1), 63, kd_[f], "rdx") for f in range(NK0)]
    pl = drop(sched3(64, [own(rdV, R), kx, even(sm, 0, VE) + even(chk, VE + 1, 61)], wait_load(MPOS) + [(2*MPOS-1, "sync", f"s_waitcnt vmcnt({10 if WT else 9}) lgkmcnt(0)\ns_barrier"),
              (61, "", f"s_cmp_eq_u32 s{sJ}, s{sSp}"), (62, "", f"s_cselect_b64 s[{sM}:{sM+1}], -1, vcc"), (63, "", f"s_cmp_lg_u64 s[{sM}:{sM+1}], 0")]))
    ev = {}
    add_ev(ev, pl)
    assert max(p for p, k, t in pl if k.startswith("rd:")) < 2*MPOS - 4
    assert max(p for p, k, t in pl if t.startswith("v_cmp_nge")) <= 61
    ABL[0] = 1
    phase(mfPV, ev, R)
    Lsp = A.label("F2_sp")
    if opti("itst"): A(f"s_mov_b32 m0, s{sJ}\ns_nop 1\nv_writelane_b32 v25, s76, m0")
    A(f"s_cbranch_scc1 {Lsp}")
    A(f"{Lqk}:")
    ladd = [f"v_add_f32 v{vLs}, v{vLs}, v{vTs}", f"v_add_f32 v{vLs+1}, v{vLs+1}, v{vTs+2}"]
    poll = f"buffer_load_dwordx2 v[{vFlag}:{vFlag+1}], v{vZ}, {ws}, s{sFo} offen sc1"
    def qk_phase(dm):
        ko = own(rdK, NK0)
        lastk = 2*(31-R)+3
        vx = [(advK, lastk, 63, lastk, "")] + [(rdV(f), max(lastk, 2*(f+16)+1), 63, 2*(32-R+f)+1, "rdx") for f in range(R)]
        pl = drop(sched3(64, [ko + vx, even(dm, 0, 61), even(ladd + [nextV, setVr] + cvts(), 0, 44)], wait_load() + [(50, "", f"s_add_u32 s{sJ}, s{sJ}, 1"), (63, "last", f"s_cmp_lt_u32 s{sJ}, s{sDiag}")]))
        assert not any(p == 63 and t.startswith("s_") and k != "last" for p, k, t in pl), [x for x in pl if x[0] == 63]
        for x in range(len(pl) - 1):
            if "m0" in pl[x][2] and pl[x][0] == pl[x+1][0] and pl[x+1][2].startswith("buffer_load"):
                pl[x] = (pl[x][0], pl[x][1], pl[x][2] + "\ns_nop 0")
        ev = {}
        add_ev(ev, pl)
        phase(mfQK, ev, NK0)
        A(f"s_cbranch_scc1 {Lloop}\ns_branch {Lmask}")
    qk_phase(nonop(dma("K")) + nonop(dma("V")) + [advO, poll] + ([f"buffer_load_dword v22, v25, {ws}, s85 offen", f"s_add_u32 s85, s85, {64*8192}"] if WT else []))
    ABL[0] = 0
    Lend1 = A.label("F2_e1"); Lw1 = A.label("F2_w1"); Lw2 = A.label("F2_w2"); Lwc = A.label("F2_wc"); Lwd = A.label("F2_wd")
    wpoll = f"buffer_load_dword v23, v{vZ}, {ws}, s80 offen sc1"
    def wcheck(L0, L1): A(f"{L0}:\nv_readfirstlane_b32 s{sT0}, v23\ns_nop 3\ns_cmp_eq_u32 s{sT0}, 128\ns_cbranch_scc1 {L1}\n" + r.bound(L1) + wpoll + f"\ns_waitcnt vmcnt(0)\ns_branch {L0}\n{L1}:")
    A(f"{Lsp}:\ns_cbranch_vccnz {Lslow}\n{Lback}:\ns_cmp_lg_u32 s{sJ}, s{sSp}\ns_cbranch_scc1 {Lqk}")
    A(f"{Ldis}:\ns_cmp_eq_u32 s{sJ}, s{sL}\ns_cbranch_scc1 {Ltail}\ns_add_u32 s{sT0}, s{sJ}, 1\ns_cmp_eq_u32 s{sT0}, s{sL}\ns_cbranch_scc1 {Lend1}")
    A(f"s_cmp_eq_u32 s{sJ}, {WT}\ns_cbranch_scc1 {Lw1}\n{wpoll}\ns_mov_b32 s{sSp}, {WT}\ns_branch {Lqk}")
    A(f"{Lw1}:\ns_sub_u32 s{sSp}, s{sL}, 1")
    wcheck(Lwc, Lwd)
    A(f"s_mov_b32 s85, s86\ns_branch {Lqk}")
    Lh = A.label("F2_h"); Lhs = A.label("F2_hs")
    A(f"{Lend1}:\ns_mov_b32 s{sSp}, s{sL}\ns_cmp_eq_u32 s{r.sOwn}, 0\ns_cselect_b32 s{sT1}, 1, 0\ns_or_b32 s{sT1}, s{sT1}, s{sW}\ns_lshl_b32 s{sT2}, s{sMode}, 1")
    A(f"{Lhs}:\ns_waitcnt vmcnt(0)\nv_readfirstlane_b32 s46, v{vFlag}\nv_readfirstlane_b32 s47, v{vFlag+1}\ns_nop 1\ns_or_b32 s47, s47, s{sT1}\ns_cmp_eq_u32 s46, s{sT2}\ns_cselect_b32 s47, s47, 0\ns_cmp_lg_u32 s47, 0\ns_cbranch_scc1 {Lh}")
    A(r.bound(Lh) + poll + f"\ns_branch {Lhs}\n{Lh}:")
    A(f"s_add_u32 s{sT2}, s{sBb}, {WS_KB - 1024}\ns_add_u32 s{sT3}, s{sBb}, {WS_VB - 2048}\ns_or_b32 s{sT0}, s{r.sOwn}, s{sW}\ns_cselect_b32 s{sT2}, s{sT2}, {BIG}\ns_cselect_b32 s{sT3}, s{sT3}, {BIG}")
    A(f"s_cmp_eq_u32 s{sMode}, 2\ns_cselect_b32 s{sPo}, s{sPo}, {BIG}\ns_mov_b32 s{sL3+2}, s{sKl}\ns_mov_b32 s{sL3+3}, s{sVl}\ns_xor_b32 s{sL3}, s{sKl}, s{sC8}")
    dm = [wpoll, f"s_add_u32 s{sT0}, s{sPo}, 16384", f"buffer_load_dwordx4 v[14:17], v{vL16}, {ws}, s{sT0} offen sc1"]
    for n in range(16):
        if n % 4 == 0: dm += [f"s_add_u32 m0, s{sL3 + 2 + (n >> 3)}, {(n & 4) * 1024}", f"s_add_u32 s{sT0}, s{sPo}, {n * 1024}"]
        dm.append(f"buffer_load_dwordx4 v{vL16}, {ws}, s{sT0} offen offset:{(n&3)*1024} sc1 lds")
    dm += [f"buffer_load_dwordx4 {a(bk,4)}, v{vL16}, {ws}, s{sT2} offen sc1"] + [f"buffer_load_dwordx2 {a(bm+4*db+2,2)}, v{vL16}, {ws}, s{sT3} offen offset:{db*1024+8} sc1" for db in range(2)]
    dm += [f"s_mov_b32 s{sVl}, s{sVn}", f"s_mov_b32 s{sL3+1}, s{sVn}"]
    qk_phase(dm)
    def pv_last(fill):
        ev = {}
        add_ev(ev, [(2*(f-R)+1, f"rd:{f}", rdV(f)) for f in range(R, 32)])
        add_ev(ev, [(p, "", t) for p, t in fill])
        phase(mfPV, ev, R)
    def pack(qb, g):
        r0, r1 = Ob(2*g, qb), Ob(2*g+1, qb)
        return [f"v_cvt_pk_bf16_f32 v{r0}, v{r0}, v{r0+1}", f"v_cvt_pk_bf16_f32 v{r0+1}, v{r0+2}, v{r0+3}", f"v_cvt_pk_bf16_f32 v{r0+2}, v{r1}, v{r1+1}", f"v_cvt_pk_bf16_f32 v{r0+3}, v{r1+2}, v{r1+3}"]
    Lt1 = A.label("K2_t1"); Lt0 = A.label("K2_t0"); Lst = A.label("K2_store"); Lbt = A.label("F2_bt")
    perm = [(ks, 2*g + d) for g in range(8) for ks in range(2) for d in range(2)]
    def rdV2(f): return f"ds_read_b128 {fr(f)}, v{vVr} offset:{(16*perm[f][0] + perm[f][1])*1024}"
    def mfPV2(f):
        ks, db = perm[f]
        return [f"{MF} {v(Ob(db,qb),4)}, {fr(f)}, {v(Pf(ks,qb),4)}, {v(Ob(db,qb),4)}" for qb in qo(f)]
    A(f"{Ltail}:")
    stamp(2)
    A(nextV); A(setVr)
    A(f"s_cmp_eq_u32 s{sMode}, 1\ns_cbranch_scc1 {Lt1}")
    for f in range(R): A(rdV2(f))
    for t in ladd: A(t)
    for t in cvts(): A(t)
    if opti("itst"): A(f"v_lshlrev_b32 v22, 2, v0\ns_lshl_b32 s{sT3}, s2, 8\ns_add_u32 s{sT3}, s{sT3}, {201*MB}\nbuffer_store_dword v25, v22, {ws}, s{sT3} offen")
    A("s_waitcnt vmcnt(0)")
    wcheck(A.label("F2_wc2"), A.label("F2_wd2"))
    A(f"s_lshl_b32 s{sT0}, s{sH}, 15\ns_add_u32 s{sT0}, s{sT0}, s74\ns_mov_b32 s{sT3}, 0xffff0000\ns_cmp_eq_u32 s{sMode}, 0\ns_cbranch_scc1 {Lt0}")
    fA, fB = (10, 12), (18, 20)
    LATE = []
    def final(merge):
        fac = []
        for qb in range(2):
            if merge:
                fac += [f"v_min_f32 v8, v{vNm+4*qb}, v{14+qb}", f"v_sub_f32 v{fA[qb]}, v8, v{vNm+4*qb}", f"v_sub_f32 v{fB[qb]}, v8, v{14+qb}", f"v_exp_f32 v{fA[qb]}, v{fA[qb]}", f"v_exp_f32 v{fB[qb]}, v{fB[qb]}\ns_nop 0",
                        f"v_mul_f32 v{vLs+qb}, v{vLs+qb}, v{fA[qb]}", f"v_fmac_f32 v{vLs+qb}, v{16+qb}, v{fB[qb]}"]
            fac += split_items([xl_reduce("v_add_f32", vLs+qb, 8)])
            fac += [f"v_rcp_f32 v{vLs+qb}, v{vLs+qb}\ns_nop 0", f"v_mul_f32 v{vLs+qb}, v{vLs+qb}, v{vG+qb}"]
            if merge: fac += [f"v_mul_f32 v{fA[qb]}, v{fA[qb]}, v{vLs+qb}", f"v_mul_f32 v{fB[qb]}, v{fB[qb]}, v{vLs+qb}", f"v_mov_b32 v{fA[qb]+1}, v{fA[qb]}", f"v_mov_b32 v{fB[qb]+1}, v{fB[qb]}"]
            else: fac += [f"v_mov_b32 v{fA[qb]}, v{vLs+qb}", f"v_mov_b32 v{fA[qb]+1}, v{vLs+qb}"]
        items = [(x, 0) for x in fac]
        for g in range(8):
            rdy = max(8*g + 7 + 8, 16 if merge else 0)
            for qb in range(2):
                n = qb * 8 + g
                for hh in range(4):
                    o = Ob(2*g + (hh >> 1), qb) + 2 * (hh & 1); rr = vS + 4*n + hh; t = (8, 14)[hh & 1]
                    if merge: l = [f"v_lshlrev_b32 v{t}, 16, v{rr}", f"v_and_b32 v{t+1}, s{sT3}, v{rr}", f"v_pk_mul_f32 {v(o,2)}, {v(o,2)}, {v(fA[qb],2)}", f"v_pk_fma_f32 {v(o,2)}, {v(t,2)}, {v(fB[qb],2)}, {v(o,2)}"]
                    else: l = [f"v_pk_mul_f32 {v(o,2)}, {v(o,2)}, {v(fA[qb],2)}"]
                    items += [(x, rdy) for x in l]
                items += [(x, rdy) for x in pack(qb, g)]
                if qb == 0: items.append((f"s_add_u32 s{sT1}, s{sT0}, {g*4096}", rdy))
                items.append((f"buffer_store_dwordx4 {v(Ob(2*g,qb),4)}, v{vL16}, {ws}, s{sT1} offen offset:{qb*1024} sc1", rdy))
        clock = 0.0; inph = []; rest = []
        RATE = float(opt("erate", "2.0"))
        for x, rdy in items:
            clock = max(clock + cost(x) / RATE, rdy)
            if clock < 63.5 and not rest: inph.append((x, rdy, 63, clock, ""))
            else: rest.append(x)
        strs = [[(rdV2(f), max(0, 2*(f-16)+1), 2*(f-R)+3, 2*(f-R)+1, f"rd:{f}") for f in range(R, 32)], inph, even(wload(5) + wload(6) + wload(7) + wload(8), 0, 63)]
        fixed = wait_load()
        if merge:
            A(f"v_add_u32 v22, s{sL3+2}, v{vL16}\nv_add_u32 v23, s{sL3+3}, v{vL16}")
            strs.append([(f"ds_read_b128 {v(vS + 4*(8*(x&1) + (x>>1)), 4)}, v{22 + (x&1)} offset:{(x>>1)*1024}", 0, 11, x * 0.7, "rdx") for x in range(16)])
            fixed = [x for x in fixed if x[0] != 15] + [(15, "sync", "s_waitcnt lgkmcnt(0)")]
        ev = {}
        add_ev(ev, drop(sched3(64, strs, fixed)))
        phase(mfPV2, ev, R)
        A("s_nop 7")
        more = wdma(21) + wdma(22) + wdma(23) + wdma(24) + ["s_waitcnt vmcnt(36)"] + wload(9) + wload(10) + wload(11) + wload(12)
        if opti("late", 0):
            for x in rest: A(x)
            LATE[:] = more
            return
        step = max(1, len(rest) // len(more)) if merge else 2
        for k, x in enumerate(rest):
            A(x)
            if k % step == step - 1 and more: A(more.pop(0))
        for x in more: A(x)
    final(True)
    A(f"s_branch {Lbt}\n{Lt0}:")
    final(False)
    A(f"s_branch {Lbt}")
    A(f"{Lt1}:")
    for f in range(R): A(rdV(f))
    for t in ladd: A(t)
    for t in cvts(): A(t)
    A(f"s_mov_b32 s{sQ}, s{sI}\ns_lshl_b32 s{sK+2}, s{sI}, 16\ns_add_u32 s{sK+2}, s{sK+2}, 0x10000\ns_mov_b32 s{sV+2}, s{sK+2}")
    pv_last(sched(64, [(dma("K") + dma("V") + [advO], 0, 62), ([f"v_accvgpr_mov_b32 a{aQ+q}, a{r.aPark+q}" for q in range(64)], 0, 63)], None))
    A(f"v_mov_b32 v{vT}, v{vNm}\nv_mov_b32 v{vT+1}, v{vNm+4}\nv_mov_b32 v{vT+2}, v{vLs}\nv_mov_b32 v{vT+3}, v{vLs+1}")
    for i in range(vNm, vNm + 8): A(f"v_mov_b32 v{i}, 0")
    A(f"s_mov_b32 s{sPub}, 1\ns_mov_b32 s{sMode}, 0\ns_mov_b32 s{sJ}, 0\ns_lshl_b32 s{sDiag}, s{sQ}, 1\ns_add_u32 s{sL}, s{sDiag}, 1\ns_mov_b32 s{sSp}, s{sDiag}")
    A(f"s_add_u32 s{sT2}, s{sPo}, 16384\nbuffer_store_dwordx4 {v(vT,4)}, v{vL16}, {ws}, s{sT2} offen sc1")
    A("s_waitcnt vmcnt(17)\ns_barrier")
    fill = []
    prevz = []
    for qb in range(2):
        for g in range(8):
            n = qb * 8 + g
            fill += pack(qb, g)
            t = f"s_add_u32 s{sT2}, s{sPo}, {(n>>2)*4096}\n" if n & 3 == 0 else ""
            fill.append(t + f"buffer_store_dwordx4 {v(Ob(2*g,qb),4)}, v{vL16}, {ws}, s{sT2} offen offset:{(n&3)*1024} sc1")
            fill += prevz
            r0, r1 = Ob(2*g, qb), Ob(2*g+1, qb)
            prevz = [f"v_mov_b64 {v(x,2)}, 0" for x in (r1, r1+2, r0, r0+2)]
    fill += ["s_nop 1"] + prevz
    qk_first(fill)
    A(f"s_waitcnt vmcnt(17) lgkmcnt(0)\ns_barrier\ns_branch {Lfirst}")
    A(f"{Lbt}:")
    bS, bP = 64, 96
    for e in range(2):
        A(f"{MF} {v(bS+8*e,4)}, {a(bk+4*(e+1),4)}, {a(bq+4*e,4)}, 0")
        A(f"{MF} {v(bS+8*e+4,4)}, {a(bk+4*e,4)}, {a(bq+4*e,4)}, 0")
    for i in range(4):
        A(f"v_subrev_u32 v{vT+2}, {i}, v28\nv_and_b32 v{vT+2}, 0x80000001, v{vT+2}\nv_bfrev_b32 v{vT+2}, v{vT+2}")
        A(f"v_cmp_eq_u32 s[{sM+2*i}:{sM+2*i+1}], 0, v{vT+2}\nv_cmp_eq_u32 s[{sM1+2*i}:{sM1+2*i+1}], 1, v{vT+2}")
    A(f"v_cmp_gt_u32 vcc, 48, v0\ns_nop 0")
    def each(fn):
        for e in range(2): A(fn(e))
    m = lambda e: vT + e
    tt = lambda e: vT + 4 + e
    l = lambda e: vT + 8 + e
    for e in (1, 0):
        s0 = bS + 8 * e
        if e == 0:
            A(f"s_or_b32 s{sT0}, s{r.sOwn}, s{sW}")
            for i in range(4): A(f"s_cselect_b64 s[{sM1+2*i}:{sM1+2*i+1}], s[{sM1+2*i}:{sM1+2*i+1}], 0")
        for i in range(4):
            A(f"v_cndmask_b32 v{s0+i}, v{vNeg}, v{s0+i}, s[{sM+2*i}:{sM+2*i+1}]")
            A(f"v_cndmask_b32 v{s0+4+i}, v{vNeg}, v{s0+4+i}, s[{sM1+2*i}:{sM1+2*i+1}]")
        A(f"v_max3_f32 v{m(e)}, v{s0}, v{s0+1}, v{s0+2}\nv_max3_f32 v{m(e)}, v{m(e)}, v{s0+3}, v{s0+4}\nv_max3_f32 v{m(e)}, v{m(e)}, v{s0+5}, v{s0+6}\nv_max_f32 v{m(e)}, v{m(e)}, v{s0+7}")
    def xl4(op, rg):
        for sw in ("v_permlane16_swap_b32", "v_permlane32_swap_b32"):
            each(lambda e: f"v_mov_b32 v{tt(e)}, v{rg(e)}")
            A("s_nop 1")
            each(lambda e: f"{sw} v{rg(e)}, v{tt(e)}")
            A("s_nop 1")
            each(lambda e: f"{op} v{rg(e)}, v{rg(e)}, v{tt(e)}")
    xl4("v_max_f32", m)
    for e in range(2):
        s0 = bS + 8 * e
        for i in range(8): A(f"v_sub_f32 v{s0+i}, v{s0+i}, v{m(e)}")
        for i in range(8): A(f"v_exp_f32 v{s0+i}, v{s0+i}")
    for e in range(2):
        s0 = bS + 8 * e
        lo, hi = (s0, s0 + 4) if e == 0 else (s0 + 4, s0)
        A(f"v_cvt_pk_bf16_f32 v{bP+4*e}, v{lo}, v{lo+1}\nv_cvt_pk_bf16_f32 v{bP+4*e+1}, v{lo+2}, v{lo+3}\nv_cvt_pk_bf16_f32 v{bP+4*e+2}, v{hi}, v{hi+1}\nv_cvt_pk_bf16_f32 v{bP+4*e+3}, v{hi+2}, v{hi+3}")
        A(f"v_add_f32 v{l(e)}, v{s0}, v{s0+1}")
        for i in range(2, 8): A(f"v_add_f32 v{l(e)}, v{l(e)}, v{s0+i}")
        for db in range(2):
            A(f"{MF} {v(s0+4*db,4)}, {a((bm if e == 0 else bv)+4*db,4)}, {v(bP+4*e,4)}, 0")
    xl4("v_add_f32", l)
    each(lambda e: f"v_rcp_f32 v{l(e)}, v{l(e)}\nv_sub_f32 v{vG+e}, 1.0, v{vG+e}\nv_mul_f32 v{l(e)}, v{l(e)}, v{vG+e}")
    A(f"s_lshl_b32 s{sT0}, s{sH}, 12\ns_add_u32 s{sT0}, s{sT0}, s74\ns_add_u32 s{sT0}, s{sT0}, {128*4096}")
    for e in range(2):
        o = bS + 8 * e
        for i in range(8): A(f"v_mul_f32 v{o+i}, v{o+i}, v{l(e)}")
        A(f"v_cvt_pk_bf16_f32 v{o}, v{o}, v{o+1}\nv_cvt_pk_bf16_f32 v{o+1}, v{o+2}, v{o+3}\nv_cvt_pk_bf16_f32 v{o+2}, v{o+4}, v{o+5}\nv_cvt_pk_bf16_f32 v{o+3}, v{o+6}, v{o+7}")
        A(f"v_cndmask_b32 v{o+2}, 0, v{o+2}, vcc\nv_cndmask_b32 v{o+3}, 0, v{o+3}, vcc")
        A(f"buffer_store_dwordx4 {v(o,4)}, v{vL16}, {ws}, s{sT0} offen offset:{e*1024} sc1")
    stamp(3)
    Lsig = A.label("F3_sig"); Lw = A.label("F3_w"); Lwx = A.label("F3_wx"); Lc = A.label("F3_c"); Lcx = A.label("F3_cx")
    def line_of(dst, tile): return f"s_and_b32 s{dst}, s{tile}, 7\ns_lshr_b32 s{sT3}, s{tile}, 3\ns_lshl_b32 s{sT3}, s{sT3}, 6\ns_or_b32 s{dst}, s{dst}, s{sT3}\ns_lshl_b32 s{dst}, s{dst}, 7\ns_add_u32 s{dst}, s{dst}, {WS_FLAG + 16}"
    A(line_of(sT2, 75))
    A(f"v_mov_b32 v{vT}, 1\ns_cmp_lt_u32 s2, 224\ns_cbranch_scc1 {Lw}\ns_waitcnt vmcnt(0)\nbuffer_atomic_add v{vT}, v{vOneL}, {ws}, s{sT2} offen sc1\ns_branch {Lst}")
    A(f"{Lw}:")
    def cload(k): return [f"s_add_u32 s{sT0}, s{sCb3}, {k*4096}"] + [f"buffer_load_dwordx4 {v(vR + 16*(k % ND) + 4*t, 4)}, v{vL16}, {ws}, s{sT0} offen offset:{t*1024} {flags('cld', 'sc1')} ; vm:c{k}" for t in range(4)]
    A("s_waitcnt vmcnt(40)")
    for k in (13, 14):
        for t in wload(k): A(t)
    A(f"v_mov_b32 v15, v{vZ}\ns_waitcnt vmcnt(8)\nbuffer_atomic_add v{vT}, v{vOneL}, {ws}, s{sT2} offen sc1")
    for t in LATE: A(t)
    A("s_waitcnt vmcnt(30)")
    for k in range(15, 21):
        for t in wload(k): A(t)
    A("s_waitcnt vmcnt(24)")
    for k in range(25, 29):
        for t in wdma(k): A(t)
    A(f"s_waitcnt vmcnt(32)")
    for k in range(5):
        for t in wload(k): A(t)
    A(f"{Lwx}:")
    for q in range(4): A(f"v_add_u32 v{9+q}, s{sL3+q}, v{vL16}")
    A(line_of(sT2, sTt))
    stamp(4)
    A(f"{Lc}:\n" + r.bound(Lcx) + f"buffer_load_dword v14, v15, {ws}, s{sT2} offen sc1\ns_waitcnt vmcnt(0)\nv_readfirstlane_b32 s{sT0}, v14\ns_nop 3\ns_cmp_lg_u32 s{sT0}, 32\ns_cbranch_scc1 {Lc}\n{Lcx}:")
    stamp(5)
    A("VMSEED")
    for k in range(ND):
        for t in cload(k): A(t)
    for k in range(36):
        A(f"WAITVM c{k}" + (f",w{k}" if k >= 29 else "") + (" lgkmcnt(0)" if k == 21 else ""))
        for u in range(4):
            for tt in range(4):
                t = tt if u % 2 == 0 else 3 - tt
                c = v(vAcc + 4*(4*u+t), 4)
                A(f"{MF} {c}, {wreg(k,u)}, {v(vR + 16*(k % ND) + 4*t, 4)}, {c if k else 0}")
        if k + ND < 36:
            for t in cload(k + ND): A(t)
        if k % 3 == 2 and 29 + k // 3 < 36:
            for t in wload(29 + k // 3): A(t)
        if 10 <= k < 18:
            kk = 21 + k - 10
            for u in range(4): A(f"ds_read_b128 {wreg(kk,u)}, v{9 + (kk-21)//2} offset:{((kk-21)&1)*4096 + u*1024}")
    A("VMEND")
    stamp(6)
    vt = 2
    A(f"v_and_b32 v{vt}, 15, v0\nv_mul_u32_u24 v{vt}, 272, v{vt}\nv_lshrrev_b32 v{vt+1}, 4, v0\nv_lshl_add_u32 v{vt}, v{vt+1}, 6, v{vt}\ns_mul_i32 s{sT0}, s{sW}, {64*272}\nv_add_u32 v{vt}, s{sT0}, v{vt}")
    A(f"v_lshrrev_b32 v{vt+1}, 2, v0\ns_lshl_b32 s{sT0}, s{sW}, 4\nv_add_u32 v{vt+1}, s{sT0}, v{vt+1}\nv_mul_u32_u24 v{vt+2}, 272, v{vt+1}\nv_and_b32 v{vt+3}, 3, v0\nv_lshl_add_u32 v{vt+2}, v{vt+3}, 6, v{vt+2}")
    A(f"v_mul_u32_u24 v{vt+4}, 896, v{vt+1}\nv_lshl_add_u32 v{vt+4}, v{vt+3}, 5, v{vt+4}")
    A(f"s_mul_i32 s{sT0}, s{sTt}, {64*896}\ns_lshl_b32 s{sT1}, s{sN}, 7\ns_add_u32 s{sT0}, s{sT0}, s{sT1}")
    A(f"s_mov_b64 s[{sK}:{sK+1}], s[{r.sOut}:{r.sOut+1}]\ns_mov_b32 s{sK+2}, {2048*896}\ns_barrier")
    for u in range(4):
        for t in range(4):
            A(f"ds_write_b128 v{vt}, {v(vAcc+4*(4*u+t),4)} offset:{t*16*272 + u*16}")
    A("s_waitcnt lgkmcnt(0)\ns_barrier")
    for p in range(4):
        for c in range(4):
            A(f"ds_read_b128 {v(vR + 16*p + 4*c, 4)}, v{vt+2} offset:{p*64*272 + c*16}")
    A("s_waitcnt lgkmcnt(8)")
    for i in range(0, 16, 2): A(f"v_pk_add_f32 {v(vR+i,2)}, {v(vR+i,2)}, {v(vR+16+i,2)}")
    A("s_waitcnt lgkmcnt(0)")
    for i in range(0, 16, 2): A(f"v_pk_add_f32 {v(vR+32+i,2)}, {v(vR+32+i,2)}, {v(vR+48+i,2)}")
    for i in range(0, 16, 2): A(f"v_pk_add_f32 {v(vR+i,2)}, {v(vR+i,2)}, {v(vR+32+i,2)}")
    for i in range(4):
        A(f"v_cvt_pk_bf16_f32 v{vR+64+2*i}, v{vR+i}, v{vR+4+i}\nv_cvt_pk_bf16_f32 v{vR+64+2*i+1}, v{vR+8+i}, v{vR+12+i}")
    A(f"buffer_store_dwordx4 {v(vR+64,4)}, v{vt+4}, s[{sK}:{sK+3}], s{sT0} offen {flags('ost', '')}\nbuffer_store_dwordx4 {v(vR+68,4)}, v{vt+4}, s[{sK}:{sK+3}], s{sT0} offen offset:16 {flags('ost', '')}")
    A(f"{Lst}:")
    if stamps:
        A("s_waitcnt vmcnt(0)")
        stamp(7)
        A("s_waitcnt lgkmcnt(0)")
        if opti("dbgst"):
            for q, x in enumerate(SR[1:]): A(f"s_sub_u32 s{x}, s{x}, s{SR[0]}")
            for q, x in enumerate(SR): A(f"v_mov_b32 v{4+q}, s{x}")
            A(f"s_xor_b32 s{sT3}, s2, 8\ns_lshr_b32 s{sT2}, s{sT3}, 1\ns_and_b32 s{sT3}, s{sT3}, 0xffbf\ns_cselect_b32 s{sT2}, 0x1000, s{sT2}\nv_mov_b32 v12, 0")
            A(f"s_mov_b64 s[{sK}:{sK+1}], s[76:77]\ns_movk_i32 s{sK+2}, 256")
            for q in range(1, 8): A(f"buffer_store_dword v{4+q}, v12, s[{sK}:{sK+3}], s{sT2} offen offset:{4*q}")
        for q, x in enumerate(SR): A(f"v_mov_b32 v{4+q}, s{x}")
        A(f"v_mov_b32 v12, 0\ns_lshl_b32 s{sT3}, s2, 5\ns_add_u32 s{sT3}, s{sT3}, {200*MB}")
        A(f"buffer_store_dwordx4 v[4:7], v12, {ws}, s{sT3} offen\nbuffer_store_dwordx4 v[8:11], v12, {ws}, s{sT3} offen offset:16")
    A(f"{Lend}:\ns_endpgm")
```

```python
from asmlib import *
from k1 import MB, WS_K, WS_V, WS_Q, WS_KB, WS_VB, WS_FLAG, WS_CTX, WS_PART, WS_WO, WS_SIZE, f32bits, LOG2E, MF
from f1a import R_, gen_part1, SPLIT

R = opti("R", 12)
WG = opti("wg", 4)
NK0 = opti("nk0", 8)
SN = opti("sn", 1)
MPOS = 24
PART_STRIDE = 17 * 1024

def gen_f1(A, name="f1_kernel", stamps=False):
    Lend = A.label("F_end")
    p1 = gen_part1(A, name, stamps, Lend)
    r = R_
    sK, sV, sWS = r.sK, r.sV, r.sO
    sW, sH, sI, sTy = r.sW, r.sH, r.sI, r.sP
    sKo, sWrap = r.sKo, r.sWrap
    sKl, sVl = 28, 29
    sVs, sVrs, sVd = 30, 31, 32
    sQ, sJ, sL, sMode = r.sQ, r.sJ, r.sL, r.sMode
    sDiag, sPub, sPo, sFp, sFn = 33, 34, 35, 44, 45
    sFo = r.sFo
    sT0, sT1, sT2, sT3 = r.sT0, r.sT1, r.sT2, r.sT3
    sC8 = r.sC8
    sM = 36; sM1 = 66
    sBb = p1["sBb"]
    SR = r.SR
    vL16, vDm, vKr, vVr, vBase, vD, vNeg = 1, 2, 3, 4, 27, 6, 7
    vT = 8
    vG = 32; vTs = 34; vLs = 38; vNm = 40
    vP = 48; vS = 64; vp = 96; vO = 128
    aQ = r.aQ; aF = r.aF
    VS0 = 65536
    BIG = 0x40000000
    def stamp(i):
        if stamps and not opti("p2st"): A(f"{'s_memtime' if opti('cyc') else 's_memrealtime'} s[{SR[i]}:{SR[i]+1}]")
    def Ob(db, qb): return vO + 4 * (2 * db + qb)
    def Sb(kb, qb): return vS + 4 * (2 * kb + qb)
    def pb(kb, qb): return vp + 4 * (2 * kb + qb)
    def Pf(ks, qb): return vP + 4 * (2 * ks + qb)
    def fr(f): return a(aF + 4 * (f % 16), 4)
    def kmap(f): return (f & 3, f >> 2) if SN else (f >> 3, f & 7)
    def qo(f): return (1, 0) if (SN and f & 1) else (0, 1)
    def rdK(f): return f"ds_read_b128 {fr(f)}, v{vKr} offset:{(8*kmap(f)[0] + kmap(f)[1])*1024}"
    def rdV(f): return f"ds_read_b128 {fr(f)}, v{vVr} offset:{f*1024}"

    vDm2 = 5
    sVn, sVe, sVb = sVs, sVrs, sVd
    def dma(kind, so=sKo):
        srd, lb = (sK, sKl) if kind == "K" else (sV, sVl)
        out = []
        for p in range(8):
            if p == 0: out.append(f"s_mov_b32 m0, s{lb}\ns_nop 0" if kind == "K" else f"s_mov_b32 m0, s{lb}\ns_nop 0")
            if p == 4: out.append(f"s_add_u32 m0, s{lb}, 4096\ns_nop 0")
            out.append(f"buffer_load_dwordx4 v{vDm if p < 4 else vDm2}, s[{srd}:{srd+3}], s{so} offen offset:{(p&3)*1024} {flags('kvld', 'sc1')} lds")
        out.append(f"s_xor_b32 s{lb}, s{lb}, s{sC8}" if kind == "K" else f"s_mov_b32 s{sVl}, s{sVn}")
        return out
    def nonop(l): return [x.replace("\ns_nop 0", "") for x in l]
    advO = f"s_add_u32 s{sKo}, s{sKo}, s{sC8}\ns_cmp_eq_u32 s{sKo}, s{sWrap}\ns_cselect_b32 s{sKo}, 0, s{sKo}"
    nextV = f"s_add_u32 s{sVn}, s{sVl}, s{sC8}\ns_cmp_eq_u32 s{sVn}, s{sVe}\ns_cselect_b32 s{sVn}, s{sVb}, s{sVn}"
    setVr = f"v_add_u32 v{vVr}, s{sVn}, v26"
    advK = f"v_xor_b32 v{vKr}, 0x8000, v{vKr}"

    ABL = [0]
    def phase(mf, events, pre):
        order = list(range(pre))
        done = -1
        def emit(lst):
            nonlocal done
            for kind, text in lst:
                ab = opt("abl", "") if ABL[0] else ""
                skip = ("e" in ab and text.startswith("v_exp")) or ("a" in ab and text.startswith("v_add_f32")) or ("c" in ab and text.startswith("v_cvt")) or ("d" in ab and text.startswith("buffer_load")) or ("r" in ab and text.startswith("ds_read")) or ("b" in ab and "s_barrier" in text)
                if not skip: A(text)
                if kind.startswith("rd:"): order.append(int(kind[3:]))
                elif kind == "rdx": order.append(-1)
                elif kind == "sync": done = len(order) - 1
        def need_wait(f):
            nonlocal done
            if f < 32 and order.index(f) > done:
                need = order.index(f)
                for g in range(f + 1, min(32, (f // WG + 1) * WG)):
                    if g in order: need = max(need, order.index(g))
                cnt = len(order) - 1 - need
                assert cnt <= 15
                A(f"s_waitcnt lgkmcnt({cnt})"); done = need
        emit(events.get(-1, []))
        need_wait(0)
        for f in range(32):
            m = mf(f)
            A(m[0]); emit(events.get(2 * f, []))
            A(m[1])
            lst = events.get(2 * f + 1, [])
            if not any(k == "sync" for k, t in lst): need_wait(f + 1)
            emit(lst)
    def add_ev(ev, items):
        for p, k, t in items: ev.setdefault(p, []).append((k, t))
    def mfQK(f):
        kb, ds = kmap(f)
        return [f"{MF} {v(Sb(kb,qb),4)}, {fr(f)}, {a(aQ+4*(2*ds+qb),4)}, {v(vNm+4*qb,4) if ds == 0 else v(Sb(kb,qb),4)}" for qb in qo(f)]
    def mfPV(f):
        ks, db = f >> 4, f & 15
        return [f"{MF} {v(Ob(db,qb),4)}, {fr(f)}, {v(Pf(ks,qb),4)}, {v(Ob(db,qb),4)}" for qb in qo(f)]
    def cvts():
        out = []
        for ks in range(2):
            for qb in range(2):
                for hh in range(2):
                    src = pb(2*ks+hh, qb)
                    out.append(f"v_cvt_pk_bf16_f32 v{Pf(ks,qb)+2*hh}, v{src}, v{src+1}")
                    out.append(f"v_cvt_pk_bf16_f32 v{Pf(ks,qb)+2*hh+1}, v{src+2}, v{src+3}")
        return out
    def xl_reduce(op, r, t):
        return (f"v_mov_b32 v{t}, v{r}\ns_nop 1\nv_permlane16_swap_b32 v{r}, v{t}\ns_nop 1\n{op} v{r}, v{r}, v{t}\n"
                f"v_mov_b32 v{t}, v{r}\ns_nop 1\nv_permlane32_swap_b32 v{r}, v{t}\ns_nop 1\n{op} v{r}, v{r}, v{t}")
    def mask_block():
        A(f"s_sub_u32 s{sT0}, s{sJ}, s{sDiag}\ns_lshl_b32 s{sT0}, s{sT0}, 6\nv_subrev_u32 v{vD}, s{sT0}, v{vBase}")
        for c in range(-1, 4):
            for i in range(4):
                A(f"v_cmp_gt_i32 s[{sM+2*i}:{sM+2*i+1}], {16*c+i}, v{vD}")
            A("s_nop 0")
            for i in range(4):
                for qb in range(2):
                    kb = c + qb
                    if 0 <= kb < 4:
                        x = Sb(kb, qb) + i
                        A(f"v_cndmask_b32 v{x}, v{x}, v{vNeg}, s[{sM+2*i}:{sM+2*i+1}]")
    def slow(first):
        for qb in range(2):
            m = vT + qb
            regs = [Sb(kb, qb) + i for kb in range(4) for i in range(4)]
            A(f"v_max3_f32 v{m}, v{regs[0]}, v{regs[1]}, v{regs[2]}")
            for x in range(3, 15, 2): A(f"v_max3_f32 v{m}, v{m}, v{regs[x]}, v{regs[x+1]}")
            A(f"v_max_f32 v{m}, v{m}, v{regs[15]}")
            A(xl_reduce("v_max_f32", m, vT + 2))
            if not first: A(f"v_max_f32 v{m}, 0, v{m}")
            for i in range(4): A(f"v_sub_f32 v{vNm+4*qb+i}, v{vNm+4*qb+i}, v{m}")
            if not first:
                A(f"v_sub_f32 v{vT+4+qb}, 0, v{m}\nv_exp_f32 v{vT+4+qb}, v{vT+4+qb}\ns_nop 0\nv_mul_f32 v{vLs+qb}, v{vLs+qb}, v{vT+4+qb}")
                for db in range(16):
                    for i in range(4): A(f"v_mul_f32 v{Ob(db,qb)+i}, v{Ob(db,qb)+i}, v{vT+4+qb}")
            for kb in range(4):
                for i in range(4): A(f"v_sub_f32 v{pb(kb,qb)+i}, v{Sb(kb,qb)+i}, v{m}")
            for kb in range(4):
                for i in range(4): A(f"v_exp_f32 v{pb(kb,qb)+i}, v{pb(kb,qb)+i}")
            A("s_nop 0")
            t = vTs + 2 * qb
            A(f"v_add_f32 v{t}, v{pb(0,qb)}, v{pb(0,qb)+1}")
            for x in range(2, 16): A(f"v_add_f32 v{t}, v{t}, v{pb(x>>2,qb)+(x&3)}")

    ws = f"s[{sWS}:{sWS+3}]"
    vFlag, vZ, vOneL = 30, 29, 24
    A(f"s_lshl_b32 s{sT0}, s{sW}, 13\ns_add_u32 s{sKl}, s{sT0}, 0x8000\ns_add_u32 s{sVb}, s{sT0}, {VS0}\ns_add_u32 s{sVl}, s{sVb}, 0x8000\ns_add_u32 s{sVe}, s{sVb}, {3*0x8000}\nv_subrev_u32 v26, s{sT0}, v{vL16}")
    A(f"v_add_u32 v{vKr}, 0x8000, v{vL16}\nv_mov_b32 v{vNeg}, 0x{f32bits(-1e30):08x}\nv_mov_b32 v{vZ}, 0\nv_mov_b64 v[{vFlag}:{vFlag+1}], 0\ns_mov_b32 s{sPub}, 0\ns_lshl_b32 s{sDiag}, s{sQ}, 1")
    A(f"s_mov_b32 s72, s{sKo}")
    A(advO)
    if opti("dbgst"): A(f"s_mov_b64 s[76:77], s[{r.sG}:{r.sG+1}]")
    A(f"v_and_b32 v{vT}, 15, v0\nv_lshrrev_b32 v28, 4, v0\nv_lshlrev_b32 v28, 2, v28\nv_sub_u32 v28, v{vT}, v28\ns_lshl_b32 s{sT0}, s{sW}, 5\nv_add_u32 v{vBase}, s{sT0}, v28")
    A(f"v_cmp_eq_u32 vcc, 0, v0\nv_mov_b32 v{vOneL}, {BIG}\ns_xor_b32 s{sFp}, s{sFo}, {64 << 7}\nv_cndmask_b32 v{vOneL}, v{vOneL}, 0, vcc")
    A(f"s_and_b32 s{sT0}, s2, 63\ns_lshr_b32 s{sT1}, s2, 7\ns_lshl_b32 s{sT1}, s{sT1}, 6\ns_or_b32 s{sT0}, s{sT0}, s{sT1}\ns_lshl_b32 s{sT0}, s{sT0}, 2\ns_add_u32 s46, s{sT0}, s{sW}\ns_mul_i32 s{sPo}, s46, {PART_STRIDE}\ns_add_u32 s{sPo}, s{sPo}, {WS_PART}")
    A(f"s_add_u32 s{sT0}, s{r.sOwn}, 1\ns_sub_u32 s{sT1}, 23, s{sT0}\ns_cmp_ge_u32 s{sT0}, 8\ns_cselect_b32 s{sT1}, s{sT1}, s{sT0}\ns_lshl_b32 s{sT1}, s{sT1}, 10\ns_add_u32 s{sFn}, s{r.sFh}, s{sT1}\ns_sub_u32 s{sFn}, s{sFn}, 8")
    A(f"s_cmp_eq_u32 s{sT0}, 16\ns_cselect_b32 s{sFn}, {BIG}, s{sFn}\ns_cmp_lg_u32 s{sW}, 3\ns_cselect_b32 s{sFn}, {BIG}, s{sFn}")
    A(f"s_or_b32 s{sT0}, s{sTy}, s{sW}\ns_cselect_b32 s79, {BIG}, 0\ns_add_u32 s79, s79, {WS_FLAG + 20}\ns_mov_b32 s80, {WS_FLAG + 20}")
    sTt, sN, sWb3, sCb3, sL3, sSp = 16, 17, 18, 19, 20, 24
    WT = opti('wt', 0)
    if opti("map", 2) == 2:
        k3a = [f"s_and_b32 s25, s2, 1", f"s_lshl_b32 s25, s25, 2", f"s_lshr_b32 s87, s2, 6", f"s_add_u32 s{sN}, s25, s87", f"s_add_u32 s25, s25, s{sI}",
               f"s_cmp_eq_u32 s87, 3\ns_cselect_b32 s{sN}, 3, s{sN}\ns_cselect_b32 s{sTt}, s25, s{sI}",
               f"s_bfe_u32 s25, s2, {(2 << 16) | 1}", f"s_lshl_b32 s25, s25, 3", f"s_add_u32 s{sTt}, s{sTt}, s25", f"s_cmp_ge_u32 s2, 224\ns_cselect_b32 s87, 1, 0"]
    elif opti("map", 2) == 1:
        k3a = [f"s_lshr_b32 s{sN}, s2, 7", f"s_lshl_b32 s{sN}, s{sN}, 3", f"s_add_u32 s{sN}, s{sN}, s{sI}", f"s_and_b32 s25, s{sN}, 1", f"s_lshr_b32 s{sN}, s{sN}, 1",
               f"s_cmp_ge_u32 s{sN}, 6\ns_cselect_b32 s87, s{sTy}, 0", f"s_cmp_eq_u32 s{sN}, 7\ns_cselect_b32 s{sTt}, 1, s{sTy}\ns_cselect_b32 s{sN}, 6, s{sN}",
               f"s_lshl_b32 s{sTt}, s{sTt}, 1", f"s_add_u32 s{sTt}, s{sTt}, s25", f"s_and_b32 s25, s2, 7", f"s_lshl_b32 s25, s25, 2", f"s_add_u32 s{sTt}, s{sTt}, s25"]
    else:
        k3a = [f"s_and_b32 s{sN}, s2, 7", f"s_lshl_b32 s{sTt}, s{sN}, 2", f"s_bfe_u32 s{sN}, s2, {(2 << 16) | 3}", f"s_add_u32 s{sTt}, s{sTt}, s{sN}", f"s_lshr_b32 s{sN}, s2, 5", f"s_cmp_ge_u32 s2, 224\ns_cselect_b32 s87, 1, 0"]
    k3s = k3a + [f"s_mul_i32 s25, s{sW}, {36*4096}",
           f"s_mul_i32 s{sWb3}, s{sN}, {144*4096}", f"s_add_u32 s{sWb3}, s{sWb3}, s25", f"s_add_u32 s{sWb3}, s{sWb3}, {WS_WO}", f"s_mul_i32 s{sCb3}, s{sTt}, {144*4096}", f"s_add_u32 s{sCb3}, s{sCb3}, s25", f"s_add_u32 s{sCb3}, s{sCb3}, {WS_CTX}",
           f"s_mov_b32 s85, {BIG}", f"v_lshlrev_b32 v25, 7, v0", f"s_lshr_b32 s86, s2, 7", f"s_lshl_b32 s86, s86, 3", f"s_add_u32 s86, s86, s{sI}", f"s_lshl_b32 s86, s86, 2", f"s_add_u32 s86, s86, s{sW}", f"s_lshl_b32 s86, s86, 13", f"s_add_u32 s86, s86, {WS_WO}",
           f"s_cmp_lg_u32 s87, 0\ns_cselect_b32 s{sWb3}, {BIG}, s{sWb3}",
           f"s_sub_u32 s{sSp}, s{sL}, 1", f"s_cmp_eq_u32 s{sMode}, 1\ns_cselect_b32 s{sSp}, s{sL}, s{sSp}", f"s_cmp_eq_u32 s{sTy}, {1 if WT else 5}\ns_cselect_b32 s{sSp}, {WT - 2}, s{sSp}",
           f"s_lshl_b32 s75, s{r.sOwn}, 1", f"s_add_u32 s75, s75, s{r.sWM}", f"s_mul_i32 s74, s75, {144*4096}", f"s_lshl_b32 s25, s{r.sWN}, 11", f"s_add_u32 s74, s74, s25", f"s_add_u32 s74, s74, {WS_CTX}"]
    vAcc, vR, vW = 16, 80, 176
    ND = 6
    AB = [128, 144, 160, 176, 240, 64, 80, 96, 112, 0, 16, 32, 48, 192, 208, 224]
    def wreg(k, u):
        if k < 16: return a(AB[k] + 4*u, 4)
        if k < 21: return v(vW + 16*(k-16) + 4*u, 4)
        if k < 29: return a(AB[7 + k - 21] + 4*u, 4)
        return a(AB[k - 29] + 4*u, 4)
    def wload(k, tmp=25): return [f"s_add_u32 s{tmp}, s{sWb3}, {k*4096}"] + [f"buffer_load_dwordx4 {wreg(k,u)}, v{vL16}, {ws}, s{tmp} offen offset:{u*1024} {flags('wld', 'sc1')} ; vm:w{k}" for u in range(4)]
    def wdma(k): return [f"s_add_u32 m0, s{sL3 + (k-21)//2}, {((k-21)&1)*4096}", f"s_add_u32 s25, s{sWb3}, {k*4096}"] + [f"buffer_load_dwordx4 v{vL16}, {ws}, s25 offen offset:{u*1024} {flags('wld', 'sc1')} lds" for u in range(4)]
    for i in range(vNm, vNm + 8, 2): A(f"v_mov_b64 {v(i,2)}, 0")
    Lloop = A.label("F2_loop"); Lqk = A.label("F2_qk"); Ltail = A.label("F2_tail"); Lfirst = A.label("F2_first")
    Lslow = A.label("F2_slow"); Lback = A.label("F2_back"); Lnm0 = A.label("F2_nm0"); Lnm1 = A.label("F2_nm1"); LA = A.label("F2_A"); Lnopark = A.label("F2_np"); Lpq = A.label("F2_pq"); Lnp2 = A.label("F2_np2")
    A(f"s_cmp_eq_u32 s{sTy}, 1\ns_cbranch_scc1 {LA}")
    for tk in range(2):
        so_ = 74 + tk
        if tk: A("s_add_u32 s46, s46, 512")
        A(f"s_mul_hi_u32 s47, s46, {(2**32 + 6)//7}\ns_mul_i32 s{sT0}, s47, 7\ns_sub_u32 s{sT0}, s46, s{sT0}")
        A(f"s_mul_i32 s{so_}, s{sT0}, 144\ns_add_u32 s{so_}, s{so_}, s47\ns_lshl_b32 s{so_}, s{so_}, 12\ns_add_u32 s{so_}, s{so_}, {WS_WO}\ns_cmp_ge_u32 s46, 1008\ns_cselect_b32 s{so_}, {BIG}, s{so_}")
    A(f"s_cmp_lg_u32 s{sMode}, 1\ns_cbranch_scc1 {Lnopark}")
    for q in range(64): A(f"v_accvgpr_mov_b32 a{r.aPark+q}, a{aQ+q}")
    Lpqx = A.label("F2_pqx")
    A(f"{Lpq}:\n" + r.bound(Lpqx) + f"buffer_load_dword v{vFlag}, v{vZ}, {ws}, s{sFo} offen offset:8 sc1\ns_waitcnt vmcnt(0)\nv_readfirstlane_b32 s{sT0}, v{vFlag}\ns_nop 3\ns_cmp_lg_u32 s{sT0}, 4\ns_cbranch_scc1 {Lpq}\n{Lpqx}:")
    A(f"s_lshl_b32 s{sT2}, s{sH}, 7\ns_lshl_b32 s{sT3}, s{sQ}, 3\ns_add_u32 s{sT2}, s{sT2}, s{sT3}\ns_lshl_b32 s{sT3}, s{sW}, 1\ns_add_u32 s{sT2}, s{sT2}, s{sT3}\ns_lshl_b32 s{sT2}, s{sT2}, 13\ns_add_u32 s{sT2}, s{sT2}, {WS_Q}")
    for f in range(16):
        A(f"buffer_load_dwordx4 {a(aQ+4*(2*(f&7)+(f>>3)),4)}, v{vL16}, {ws}, s{sT2} offen offset:{(f&3)*1024} sc1")
        if f & 3 == 3: A(f"s_add_u32 s{sT2}, s{sT2}, 4096")
    A(f"s_branch {Lnp2}\n{Lnopark}:\nWAITVMS wo\n{Lnp2}:")
    A(f"s_mov_b32 s{sT2}, 0x05040100\ns_mov_b32 s{sT3}, 0x07060302")
    for tk in range(2):
        for c in range(4):
            for m in range(4):
                A(f"v_perm_b32 v{184+16*tk+4*c+m}, v{216+16*tk+2*(2*m+1)+(c>>1)}, v{216+16*tk+2*(2*m)+(c>>1)}, s{sT2 if c % 2 == 0 else sT3}")
    for tk in range(2):
        for c in range(4): A(f"buffer_store_dwordx4 {v(184+16*tk+4*c,4)}, v{vL16}, {ws}, s{74+tk} offen offset:{c*1024} sc1")
    A("s_waitcnt vmcnt(8)")
    A(f"{LA}:")
    stamp(1)
    def qk_first(fill, more=[]):
        pl = [x for x in sched3(64, [[(rdK(f), max(0, 2*(f-16)+1), 2*(f-R)+3, 2*(f-R)+1, f"rd:{f}") for f in range(R, 32)] + [(advK, 2*(31-R)+4, 63, 2*(31-R)+4, "")], even(fill, 0, 63)] + more)]
        ev = {}
        add_ev(ev, [(-1, f"rd:{f}", rdK(f)) for f in range(R)])
        add_ev(ev, pl)
        phase(mfQK, ev, 0)
    zf = [f"v_mov_b64 {v(i,2)}, 0" for i in range(vO, vO + 128, 2)]
    A(f"v_mov_b32 v{vT}, 1\ns_cmp_eq_u32 s{sMode}, 2\ns_cselect_b32 s{sT0}, s{sFp}, {BIG}")
    QS = opti("qs", 8)
    be = p1["be"]; nb = max(k for k, x in enumerate(be) if x.startswith("buffer_store")) + 1
    qk_first(zf, [[("WAITVMS q", QS, QS, QS, ""), (f"buffer_atomic_add v{vT}, v{vOneL}, {ws}, s{sT0} offen offset:8 sc1", QS + 1, QS + 1, QS + 1, "")] + even(be[:nb], QS + 2, 30) + even(p1["vdma"], 31, 63), even(be[nb:], 31, 63), even(k3s, 0, 63)])
    A(f"s_waitcnt vmcnt(16) lgkmcnt(0)")
    A(f"buffer_atomic_add v{vT}, v{vOneL}, {ws}, s{sFn} offen sc1\ns_barrier")
    bq, bk, bv, bm = r.bq, r.bk, r.bv, r.bm
    A(f"{Lfirst}:")
    Ldis = A.label("F2_dis")
    if opti("cp3", 0): A(code_pf_items(A, Ldis, "CODE_END", 76, 25, f"s_mov_b32 s25, s{sW}", 22, 23, 3))
    for f in range(NK0): A(rdK(f))
    A(f"s_cmp_lt_u32 s{sJ}, s{sDiag}\ns_cbranch_scc1 {Lnm0}")
    mask_block()
    A(f"{Lnm0}:")
    slow(True)
    A(f"v_mov_b32 v{vLs}, 0\nv_mov_b32 v{vLs+1}, 0\nv_mov_b32 v{vT+1}, 1\ns_cmp_eq_u32 s{sPub}, 0\ns_waitcnt vmcnt({9 + opti('cp3', 0)})\ns_barrier\nbuffer_atomic_add v{vT+1}, v{vOneL}, {ws}, s79 offen sc1\ns_mov_b32 s79, {BIG}\ns_cbranch_scc1 {Lback}")
    A(f"s_mov_b32 s{sPub}, 0\ns_waitcnt vmcnt(0)\nbuffer_atomic_add v{vT+1}, v{vOneL}, {ws}, s{sFp} offen sc1\ns_branch {Lback}")
    p1["spins"]()
    A(f"{Lslow}:")
    slow(False)
    A(f"s_branch {Lback}")
    Lmask = A.label("F2_mask")
    A(f"{Lmask}:\ns_nop 7")
    mask_block()
    A(f".p2align 6\n{Lloop}:")
    if opti("itst"): A("s_memtime s[76:77]")
    def wait_load(upto=32):
        return [(2*f-1, "ph", "s_waitcnt") for f in range(WG, upto, WG)]
    drop = lambda pl: [x for x in pl if x[1] != "ph"]
    own = lambda rd, f0: [(rd(f), max(0, 2*(f-16)+1), max(2*(f-R)+3, f - f0 + 2), max(2*(f-R)+1, f - f0), f"rd:{f}") for f in range(f0, 32)]
    PK = opti("pk", 0)
    els = [(kb, qb, i) for kb in range(4) for qb in range(2) for i in range(4)]
    sm = []; seen = set(); pend = []
    for x, (kb, qb, i) in enumerate(els):
        sm.append(f"v_exp_f32 v{pb(kb,qb)+i}, v{Sb(kb,qb)+i}")
        sm += pend; pend = []
        if PK:
            if i & 1:
                t = vTs + 2*qb; rr = pb(kb, qb) + i - 1
                if t in seen: pend = [f"v_pk_add_f32 {v(t,2)}, {v(t,2)}, {v(rr,2)}"]
                elif i == 3: pend = [f"v_pk_add_f32 {v(t,2)}, {v(rr-2,2)}, {v(rr,2)}"]; seen.add(t)
        else:
            t = vTs + 2*qb + (i & 1); rr = pb(kb, qb) + i
            if t in seen: pend = [f"v_add_f32 v{t}, v{t}, v{rr}"]
            elif i >= 2: pend = [f"v_add_f32 v{t}, v{rr-2}, v{rr}"]; seen.add(t)
    VE = opti("ve", 57)
    chk = [f"v_add_f32 v{vTs}, v{vTs}, v{vTs+1}"] + pend + [f"v_add_f32 v{vTs+2}, v{vTs+2}, v{vTs+3}", f"v_max_f32 v{vT}, v{vTs}, v{vTs+2}", f"v_cmp_nge_f32 vcc, 0x44800000, v{vT}"]
    kd_ = [2*MPOS + 2*f if f < 4 else VE + 1 + (f - 4) * (62.0 - VE) / max(1, NK0 - 4) for f in range(NK0)]
    kx = [(rdK(f), max(2*MPOS, 2*(f+16)+1), 63, kd_[f], "rdx") for f in range(NK0)]
    pl = drop(sched3(64, [own(rdV, R), kx, even(sm, 0, VE) + even(chk, VE + 1, 61)], wait_load(MPOS) + [(2*MPOS-1, "sync", f"s_waitcnt vmcnt({10 if WT else 9}) lgkmcnt(0)\ns_barrier"),
              (61, "", f"s_cmp_eq_u32 s{sJ}, s{sSp}"), (62, "", f"s_cselect_b64 s[{sM}:{sM+1}], -1, vcc"), (63, "", f"s_cmp_lg_u64 s[{sM}:{sM+1}], 0")]))
    ev = {}
    add_ev(ev, pl)
    assert max(p for p, k, t in pl if k.startswith("rd:")) < 2*MPOS - 4
    assert max(p for p, k, t in pl if t.startswith("v_cmp_nge")) <= 61
    ABL[0] = 1
    phase(mfPV, ev, R)
    Lsp = A.label("F2_sp")
    if opti("itst"): A(f"s_mov_b32 m0, s{sJ}\ns_nop 1\nv_writelane_b32 v25, s76, m0")
    A(f"s_cbranch_scc1 {Lsp}")
    A(f"{Lqk}:")
    ladd = [f"v_add_f32 v{vLs}, v{vLs}, v{vTs}", f"v_add_f32 v{vLs+1}, v{vLs+1}, v{vTs+2}"]
    poll = f"buffer_load_dwordx2 v[{vFlag}:{vFlag+1}], v{vZ}, {ws}, s{sFo} offen sc1"
    def qk_phase(dm):
        ko = own(rdK, NK0)
        lastk = 2*(31-R)+3
        vx = [(advK, lastk, 63, lastk, "")] + [(rdV(f), max(lastk, 2*(f+16)+1), 63, 2*(32-R+f)+1, "rdx") for f in range(R)]
        pl = drop(sched3(64, [ko + vx, even(dm, 0, 61), even(ladd + [nextV, setVr] + cvts(), 0, 44)], wait_load() + [(50, "", f"s_add_u32 s{sJ}, s{sJ}, 1"), (63, "last", f"s_cmp_lt_u32 s{sJ}, s{sDiag}")]))
        assert not any(p == 63 and t.startswith("s_") and k != "last" for p, k, t in pl), [x for x in pl if x[0] == 63]
        for x in range(len(pl) - 1):
            if "m0" in pl[x][2] and pl[x][0] == pl[x+1][0] and pl[x+1][2].startswith("buffer_load"):
                pl[x] = (pl[x][0], pl[x][1], pl[x][2] + "\ns_nop 0")
        ev = {}
        add_ev(ev, pl)
        phase(mfQK, ev, NK0)
        A(f"s_cbranch_scc1 {Lloop}\ns_branch {Lmask}")
    qk_phase(nonop(dma("K")) + nonop(dma("V")) + [advO, poll] + ([f"buffer_load_dword v22, v25, {ws}, s85 offen", f"s_add_u32 s85, s85, {64*8192}"] if WT else []))
    ABL[0] = 0
    Lend1 = A.label("F2_e1"); Lw1 = A.label("F2_w1"); Lw2 = A.label("F2_w2"); Lwc = A.label("F2_wc"); Lwd = A.label("F2_wd")
    wpoll = f"buffer_load_dword v23, v{vZ}, {ws}, s80 offen sc1"
    def wcheck(L0, L1): A(f"{L0}:\nv_readfirstlane_b32 s{sT0}, v23\ns_nop 3\ns_cmp_eq_u32 s{sT0}, 128\ns_cbranch_scc1 {L1}\n" + r.bound(L1) + wpoll + f"\ns_waitcnt vmcnt(0)\ns_branch {L0}\n{L1}:")
    A(f"{Lsp}:\ns_cbranch_vccnz {Lslow}\n{Lback}:\ns_cmp_lg_u32 s{sJ}, s{sSp}\ns_cbranch_scc1 {Lqk}")
    A(f"{Ldis}:\ns_cmp_eq_u32 s{sJ}, s{sL}\ns_cbranch_scc1 {Ltail}\ns_add_u32 s{sT0}, s{sJ}, 1\ns_cmp_eq_u32 s{sT0}, s{sL}\ns_cbranch_scc1 {Lend1}")
    A(f"s_cmp_eq_u32 s{sJ}, {WT}\ns_cbranch_scc1 {Lw1}\n{wpoll}\ns_mov_b32 s{sSp}, {WT}\ns_branch {Lqk}")
    A(f"{Lw1}:\ns_sub_u32 s{sSp}, s{sL}, 1")
    wcheck(Lwc, Lwd)
    A(f"s_mov_b32 s85, s86\ns_branch {Lqk}")
    Lh = A.label("F2_h"); Lhs = A.label("F2_hs")
    A(f"{Lend1}:\ns_mov_b32 s{sSp}, s{sL}\ns_cmp_eq_u32 s{r.sOwn}, 0\ns_cselect_b32 s{sT1}, 1, 0\ns_or_b32 s{sT1}, s{sT1}, s{sW}\ns_lshl_b32 s{sT2}, s{sMode}, 1")
    A(f"{Lhs}:\ns_waitcnt vmcnt(0)\nv_readfirstlane_b32 s46, v{vFlag}\nv_readfirstlane_b32 s47, v{vFlag+1}\ns_nop 1\ns_or_b32 s47, s47, s{sT1}\ns_cmp_eq_u32 s46, s{sT2}\ns_cselect_b32 s47, s47, 0\ns_cmp_lg_u32 s47, 0\ns_cbranch_scc1 {Lh}")
    A(r.bound(Lh) + poll + f"\ns_branch {Lhs}\n{Lh}:")
    A(f"s_add_u32 s{sT2}, s{sBb}, {WS_KB - 1024}\ns_add_u32 s{sT3}, s{sBb}, {WS_VB - 2048}\ns_or_b32 s{sT0}, s{r.sOwn}, s{sW}\ns_cselect_b32 s{sT2}, s{sT2}, {BIG}\ns_cselect_b32 s{sT3}, s{sT3}, {BIG}")
    A(f"s_cmp_eq_u32 s{sMode}, 2\ns_cselect_b32 s{sPo}, s{sPo}, {BIG}\ns_mov_b32 s{sL3+2}, s{sKl}\ns_mov_b32 s{sL3+3}, s{sVl}\ns_xor_b32 s{sL3}, s{sKl}, s{sC8}")
    dm = [wpoll, f"s_add_u32 s{sT0}, s{sPo}, 16384", f"buffer_load_dwordx4 v[14:17], v{vL16}, {ws}, s{sT0} offen sc1"]
    for n in range(16):
        if n % 4 == 0: dm += [f"s_add_u32 m0, s{sL3 + 2 + (n >> 3)}, {(n & 4) * 1024}", f"s_add_u32 s{sT0}, s{sPo}, {n * 1024}"]
        dm.append(f"buffer_load_dwordx4 v{vL16}, {ws}, s{sT0} offen offset:{(n&3)*1024} sc1 lds")
    dm += [f"buffer_load_dwordx4 {a(bk,4)}, v{vL16}, {ws}, s{sT2} offen sc1"] + [f"buffer_load_dwordx2 {a(bm+4*db+2,2)}, v{vL16}, {ws}, s{sT3} offen offset:{db*1024+8} sc1" for db in range(2)]
    dm += [f"s_mov_b32 s{sVl}, s{sVn}", f"s_mov_b32 s{sL3+1}, s{sVn}"]
    qk_phase(dm)
    def pv_last(fill):
        ev = {}
        add_ev(ev, [(2*(f-R)+1, f"rd:{f}", rdV(f)) for f in range(R, 32)])
        add_ev(ev, [(p, "", t) for p, t in fill])
        phase(mfPV, ev, R)
    def pack(qb, g):
        r0, r1 = Ob(2*g, qb), Ob(2*g+1, qb)
        return [f"v_cvt_pk_bf16_f32 v{r0}, v{r0}, v{r0+1}", f"v_cvt_pk_bf16_f32 v{r0+1}, v{r0+2}, v{r0+3}", f"v_cvt_pk_bf16_f32 v{r0+2}, v{r1}, v{r1+1}", f"v_cvt_pk_bf16_f32 v{r0+3}, v{r1+2}, v{r1+3}"]
    Lt1 = A.label("K2_t1"); Lt0 = A.label("K2_t0"); Lst = A.label("K2_store"); Lbt = A.label("F2_bt")
    perm = [(ks, 2*g + d) for g in range(8) for ks in range(2) for d in range(2)]
    def rdV2(f): return f"ds_read_b128 {fr(f)}, v{vVr} offset:{(16*perm[f][0] + perm[f][1])*1024}"
    def mfPV2(f):
        ks, db = perm[f]
        return [f"{MF} {v(Ob(db,qb),4)}, {fr(f)}, {v(Pf(ks,qb),4)}, {v(Ob(db,qb),4)}" for qb in qo(f)]
    A(f"{Ltail}:")
    stamp(2)
    A(nextV); A(setVr)
    A(f"s_cmp_eq_u32 s{sMode}, 1\ns_cbranch_scc1 {Lt1}")
    for f in range(R): A(rdV2(f))
    for t in ladd: A(t)
    for t in cvts(): A(t)
    if opti("itst"): A(f"v_lshlrev_b32 v22, 2, v0\ns_lshl_b32 s{sT3}, s2, 8\ns_add_u32 s{sT3}, s{sT3}, {201*MB}\nbuffer_store_dword v25, v22, {ws}, s{sT3} offen")
    A("s_waitcnt vmcnt(0)")
    wcheck(A.label("F2_wc2"), A.label("F2_wd2"))
    A(f"s_lshl_b32 s{sT0}, s{sH}, 15\ns_add_u32 s{sT0}, s{sT0}, s74\ns_mov_b32 s{sT3}, 0xffff0000\ns_cmp_eq_u32 s{sMode}, 0\ns_cbranch_scc1 {Lt0}")
    fA, fB = (10, 12), (18, 20)
    LATE = []
    def final(merge):
        fac = []
        for qb in range(2):
            if merge:
                fac += [f"v_min_f32 v8, v{vNm+4*qb}, v{14+qb}", f"v_sub_f32 v{fA[qb]}, v8, v{vNm+4*qb}", f"v_sub_f32 v{fB[qb]}, v8, v{14+qb}", f"v_exp_f32 v{fA[qb]}, v{fA[qb]}", f"v_exp_f32 v{fB[qb]}, v{fB[qb]}\ns_nop 0",
                        f"v_mul_f32 v{vLs+qb}, v{vLs+qb}, v{fA[qb]}", f"v_fmac_f32 v{vLs+qb}, v{16+qb}, v{fB[qb]}"]
            fac += split_items([xl_reduce("v_add_f32", vLs+qb, 8)])
            fac += [f"v_rcp_f32 v{vLs+qb}, v{vLs+qb}\ns_nop 0", f"v_mul_f32 v{vLs+qb}, v{vLs+qb}, v{vG+qb}"]
            if merge: fac += [f"v_mul_f32 v{fA[qb]}, v{fA[qb]}, v{vLs+qb}", f"v_mul_f32 v{fB[qb]}, v{fB[qb]}, v{vLs+qb}", f"v_mov_b32 v{fA[qb]+1}, v{fA[qb]}", f"v_mov_b32 v{fB[qb]+1}, v{fB[qb]}"]
            else: fac += [f"v_mov_b32 v{fA[qb]}, v{vLs+qb}", f"v_mov_b32 v{fA[qb]+1}, v{vLs+qb}"]
        items = [(x, 0) for x in fac]
        for g in range(8):
            rdy = max(8*g + 7 + 8, 16 if merge else 0)
            for qb in range(2):
                n = qb * 8 + g
                for hh in range(4):
                    o = Ob(2*g + (hh >> 1), qb) + 2 * (hh & 1); rr = vS + 4*n + hh; t = (8, 14)[hh & 1]
                    if merge: l = [f"v_lshlrev_b32 v{t}, 16, v{rr}", f"v_and_b32 v{t+1}, s{sT3}, v{rr}", f"v_pk_mul_f32 {v(o,2)}, {v(o,2)}, {v(fA[qb],2)}", f"v_pk_fma_f32 {v(o,2)}, {v(t,2)}, {v(fB[qb],2)}, {v(o,2)}"]
                    else: l = [f"v_pk_mul_f32 {v(o,2)}, {v(o,2)}, {v(fA[qb],2)}"]
                    items += [(x, rdy) for x in l]
                items += [(x, rdy) for x in pack(qb, g)]
                if qb == 0: items.append((f"s_add_u32 s{sT1}, s{sT0}, {g*4096}", rdy))
                items.append((f"buffer_store_dwordx4 {v(Ob(2*g,qb),4)}, v{vL16}, {ws}, s{sT1} offen offset:{qb*1024} sc1", rdy))
        clock = 0.0; inph = []; rest = []
        RATE = float(opt("erate", "2.0"))
        for x, rdy in items:
            clock = max(clock + cost(x) / RATE, rdy)
            if clock < 63.5 and not rest: inph.append((x, rdy, 63, clock, ""))
            else: rest.append(x)
        strs = [[(rdV2(f), max(0, 2*(f-16)+1), 2*(f-R)+3, 2*(f-R)+1, f"rd:{f}") for f in range(R, 32)], inph, even(wload(5) + wload(6) + wload(7) + wload(8), 0, 63)]
        fixed = wait_load()
        if merge:
            A(f"v_add_u32 v22, s{sL3+2}, v{vL16}\nv_add_u32 v23, s{sL3+3}, v{vL16}")
            strs.append([(f"ds_read_b128 {v(vS + 4*(8*(x&1) + (x>>1)), 4)}, v{22 + (x&1)} offset:{(x>>1)*1024}", 0, 11, x * 0.7, "rdx") for x in range(16)])
            fixed = [x for x in fixed if x[0] != 15] + [(15, "sync", "s_waitcnt lgkmcnt(0)")]
        ev = {}
        add_ev(ev, drop(sched3(64, strs, fixed)))
        phase(mfPV2, ev, R)
        A("s_nop 7")
        more = wdma(21) + wdma(22) + wdma(23) + wdma(24) + ["s_waitcnt vmcnt(36)"] + wload(9) + wload(10) + wload(11) + wload(12)
        if opti("late", 0):
            for x in rest: A(x)
            LATE[:] = more
            return
        step = max(1, len(rest) // len(more)) if merge else 2
        for k, x in enumerate(rest):
            A(x)
            if k % step == step - 1 and more: A(more.pop(0))
        for x in more: A(x)
    final(True)
    A(f"s_branch {Lbt}\n{Lt0}:")
    final(False)
    A(f"s_branch {Lbt}")
    A(f"{Lt1}:")
    for f in range(R): A(rdV(f))
    for t in ladd: A(t)
    for t in cvts(): A(t)
    A(f"s_mov_b32 s{sQ}, s{sI}\ns_lshl_b32 s{sK+2}, s{sI}, 16\ns_add_u32 s{sK+2}, s{sK+2}, 0x10000\ns_mov_b32 s{sV+2}, s{sK+2}")
    pv_last(sched(64, [(dma("K") + dma("V") + [advO], 0, 62), ([f"v_accvgpr_mov_b32 a{aQ+q}, a{r.aPark+q}" for q in range(64)], 0, 63)], None))
    A(f"v_mov_b32 v{vT}, v{vNm}\nv_mov_b32 v{vT+1}, v{vNm+4}\nv_mov_b32 v{vT+2}, v{vLs}\nv_mov_b32 v{vT+3}, v{vLs+1}")
    for i in range(vNm, vNm + 8): A(f"v_mov_b32 v{i}, 0")
    A(f"s_mov_b32 s{sPub}, 1\ns_mov_b32 s{sMode}, 0\ns_mov_b32 s{sJ}, 0\ns_lshl_b32 s{sDiag}, s{sQ}, 1\ns_add_u32 s{sL}, s{sDiag}, 1\ns_mov_b32 s{sSp}, s{sDiag}")
    A(f"s_add_u32 s{sT2}, s{sPo}, 16384\nbuffer_store_dwordx4 {v(vT,4)}, v{vL16}, {ws}, s{sT2} offen sc1")
    A("s_waitcnt vmcnt(17)\ns_barrier")
    fill = []
    prevz = []
    for qb in range(2):
        for g in range(8):
            n = qb * 8 + g
            fill += pack(qb, g)
            t = f"s_add_u32 s{sT2}, s{sPo}, {(n>>2)*4096}\n" if n & 3 == 0 else ""
            fill.append(t + f"buffer_store_dwordx4 {v(Ob(2*g,qb),4)}, v{vL16}, {ws}, s{sT2} offen offset:{(n&3)*1024} sc1")
            fill += prevz
            r0, r1 = Ob(2*g, qb), Ob(2*g+1, qb)
            prevz = [f"v_mov_b64 {v(x,2)}, 0" for x in (r1, r1+2, r0, r0+2)]
    fill += ["s_nop 1"] + prevz
    qk_first(fill)
    A(f"s_waitcnt vmcnt(17) lgkmcnt(0)\ns_barrier\ns_branch {Lfirst}")
    A(f"{Lbt}:")
    bS, bP = 64, 96
    for e in range(2):
        A(f"{MF} {v(bS+8*e,4)}, {a(bk+4*(e+1),4)}, {a(bq+4*e,4)}, 0")
        A(f"{MF} {v(bS+8*e+4,4)}, {a(bk+4*e,4)}, {a(bq+4*e,4)}, 0")
    for i in range(4):
        A(f"v_subrev_u32 v{vT+2}, {i}, v28\nv_and_b32 v{vT+2}, 0x80000001, v{vT+2}\nv_bfrev_b32 v{vT+2}, v{vT+2}")
        A(f"v_cmp_eq_u32 s[{sM+2*i}:{sM+2*i+1}], 0, v{vT+2}\nv_cmp_eq_u32 s[{sM1+2*i}:{sM1+2*i+1}], 1, v{vT+2}")
    A(f"v_cmp_gt_u32 vcc, 48, v0\ns_nop 0")
    def each(fn):
        for e in range(2): A(fn(e))
    m = lambda e: vT + e
    tt = lambda e: vT + 4 + e
    l = lambda e: vT + 8 + e
    for e in (1, 0):
        s0 = bS + 8 * e
        if e == 0:
            A(f"s_or_b32 s{sT0}, s{r.sOwn}, s{sW}")
            for i in range(4): A(f"s_cselect_b64 s[{sM1+2*i}:{sM1+2*i+1}], s[{sM1+2*i}:{sM1+2*i+1}], 0")
        for i in range(4):
            A(f"v_cndmask_b32 v{s0+i}, v{vNeg}, v{s0+i}, s[{sM+2*i}:{sM+2*i+1}]")
            A(f"v_cndmask_b32 v{s0+4+i}, v{vNeg}, v{s0+4+i}, s[{sM1+2*i}:{sM1+2*i+1}]")
        A(f"v_max3_f32 v{m(e)}, v{s0}, v{s0+1}, v{s0+2}\nv_max3_f32 v{m(e)}, v{m(e)}, v{s0+3}, v{s0+4}\nv_max3_f32 v{m(e)}, v{m(e)}, v{s0+5}, v{s0+6}\nv_max_f32 v{m(e)}, v{m(e)}, v{s0+7}")
    def xl4(op, rg):
        for sw in ("v_permlane16_swap_b32", "v_permlane32_swap_b32"):
            each(lambda e: f"v_mov_b32 v{tt(e)}, v{rg(e)}")
            A("s_nop 1")
            each(lambda e: f"{sw} v{rg(e)}, v{tt(e)}")
            A("s_nop 1")
            each(lambda e: f"{op} v{rg(e)}, v{rg(e)}, v{tt(e)}")
    xl4("v_max_f32", m)
    for e in range(2):
        s0 = bS + 8 * e
        for i in range(8): A(f"v_sub_f32 v{s0+i}, v{s0+i}, v{m(e)}")
        for i in range(8): A(f"v_exp_f32 v{s0+i}, v{s0+i}")
    for e in range(2):
        s0 = bS + 8 * e
        lo, hi = (s0, s0 + 4) if e == 0 else (s0 + 4, s0)
        A(f"v_cvt_pk_bf16_f32 v{bP+4*e}, v{lo}, v{lo+1}\nv_cvt_pk_bf16_f32 v{bP+4*e+1}, v{lo+2}, v{lo+3}\nv_cvt_pk_bf16_f32 v{bP+4*e+2}, v{hi}, v{hi+1}\nv_cvt_pk_bf16_f32 v{bP+4*e+3}, v{hi+2}, v{hi+3}")
        A(f"v_add_f32 v{l(e)}, v{s0}, v{s0+1}")
        for i in range(2, 8): A(f"v_add_f32 v{l(e)}, v{l(e)}, v{s0+i}")
        for db in range(2):
            A(f"{MF} {v(s0+4*db,4)}, {a((bm if e == 0 else bv)+4*db,4)}, {v(bP+4*e,4)}, 0")
    xl4("v_add_f32", l)
    each(lambda e: f"v_rcp_f32 v{l(e)}, v{l(e)}\nv_sub_f32 v{vG+e}, 1.0, v{vG+e}\nv_mul_f32 v{l(e)}, v{l(e)}, v{vG+e}")
    A(f"s_lshl_b32 s{sT0}, s{sH}, 12\ns_add_u32 s{sT0}, s{sT0}, s74\ns_add_u32 s{sT0}, s{sT0}, {128*4096}")
    for e in range(2):
        o = bS + 8 * e
        for i in range(8): A(f"v_mul_f32 v{o+i}, v{o+i}, v{l(e)}")
        A(f"v_cvt_pk_bf16_f32 v{o}, v{o}, v{o+1}\nv_cvt_pk_bf16_f32 v{o+1}, v{o+2}, v{o+3}\nv_cvt_pk_bf16_f32 v{o+2}, v{o+4}, v{o+5}\nv_cvt_pk_bf16_f32 v{o+3}, v{o+6}, v{o+7}")
        A(f"v_cndmask_b32 v{o+2}, 0, v{o+2}, vcc\nv_cndmask_b32 v{o+3}, 0, v{o+3}, vcc")
        A(f"buffer_store_dwordx4 {v(o,4)}, v{vL16}, {ws}, s{sT0} offen offset:{e*1024} sc1")
    stamp(3)
    Lsig = A.label("F3_sig"); Lw = A.label("F3_w"); Lwx = A.label("F3_wx"); Lc = A.label("F3_c"); Lcx = A.label("F3_cx")
    def line_of(dst, tile): return f"s_and_b32 s{dst}, s{tile}, 7\ns_lshr_b32 s{sT3}, s{tile}, 3\ns_lshl_b32 s{sT3}, s{sT3}, 6\ns_or_b32 s{dst}, s{dst}, s{sT3}\ns_lshl_b32 s{dst}, s{dst}, 7\ns_add_u32 s{dst}, s{dst}, {WS_FLAG + 16}"
    A(line_of(sT2, 75))
    A(f"v_mov_b32 v{vT}, 1\ns_cmp_eq_u32 s87, 0\ns_cbranch_scc1 {Lw}\ns_waitcnt vmcnt(0)\nbuffer_atomic_add v{vT}, v{vOneL}, {ws}, s{sT2} offen sc1\ns_branch {Lst}")
    A(f"{Lw}:")
    def cload(k): return [f"s_add_u32 s{sT0}, s{sCb3}, {k*4096}"] + [f"buffer_load_dwordx4 {v(vR + 16*(k % ND) + 4*t, 4)}, v{vL16}, {ws}, s{sT0} offen offset:{t*1024} {flags('cld', 'sc1')} ; vm:c{k}" for t in range(4)]
    A("s_waitcnt vmcnt(40)")
    for k in (13, 14):
        for t in wload(k): A(t)
    A(f"v_mov_b32 v15, v{vZ}\ns_waitcnt vmcnt(8)\nbuffer_atomic_add v{vT}, v{vOneL}, {ws}, s{sT2} offen sc1")
    for t in LATE: A(t)
    A("s_waitcnt vmcnt(30)")
    for k in range(15, 21):
        for t in wload(k): A(t)
    A("s_waitcnt vmcnt(24)")
    for k in range(25, 29):
        for t in wdma(k): A(t)
    A(f"s_waitcnt vmcnt(32)")
    for k in range(5):
        for t in wload(k): A(t)
    A(f"{Lwx}:")
    for q in range(4): A(f"v_add_u32 v{9+q}, s{sL3+q}, v{vL16}")
    A(line_of(sT2, sTt))
    stamp(4)
    A(f"{Lc}:\n" + r.bound(Lcx) + f"buffer_load_dword v14, v15, {ws}, s{sT2} offen sc1\ns_waitcnt vmcnt(0)\nv_readfirstlane_b32 s{sT0}, v14\ns_nop 3\ns_cmp_lg_u32 s{sT0}, 32\ns_cbranch_scc1 {Lc}\n{Lcx}:")
    stamp(5)
    A("VMSEED")
    for k in range(ND):
        for t in cload(k): A(t)
    for k in range(36):
        A(f"WAITVM c{k}" + (f",w{k}" if k >= 29 else "") + (" lgkmcnt(0)" if k == 21 else ""))
        for u in range(4):
            for tt in range(4):
                t = tt if u % 2 == 0 else 3 - tt
                c = v(vAcc + 4*(4*u+t), 4)
                A(f"{MF} {c}, {wreg(k,u)}, {v(vR + 16*(k % ND) + 4*t, 4)}, {c if k else 0}")
        if k + ND < 36:
            for t in cload(k + ND): A(t)
        if k % 3 == 2 and 29 + k // 3 < 36:
            for t in wload(29 + k // 3): A(t)
        if 10 <= k < 18:
            kk = 21 + k - 10
            for u in range(4): A(f"ds_read_b128 {wreg(kk,u)}, v{9 + (kk-21)//2} offset:{((kk-21)&1)*4096 + u*1024}")
    A("VMEND")
    stamp(6)
    vt = 2
    A(f"v_and_b32 v{vt}, 15, v0\nv_mul_u32_u24 v{vt}, 272, v{vt}\nv_lshrrev_b32 v{vt+1}, 4, v0\nv_lshl_add_u32 v{vt}, v{vt+1}, 6, v{vt}\ns_mul_i32 s{sT0}, s{sW}, {64*272}\nv_add_u32 v{vt}, s{sT0}, v{vt}")
    A(f"v_lshrrev_b32 v{vt+1}, 2, v0\ns_lshl_b32 s{sT0}, s{sW}, 4\nv_add_u32 v{vt+1}, s{sT0}, v{vt+1}\nv_mul_u32_u24 v{vt+2}, 272, v{vt+1}\nv_and_b32 v{vt+3}, 3, v0\nv_lshl_add_u32 v{vt+2}, v{vt+3}, 6, v{vt+2}")
    A(f"v_mul_u32_u24 v{vt+4}, 896, v{vt+1}\nv_lshl_add_u32 v{vt+4}, v{vt+3}, 5, v{vt+4}")
    A(f"s_mul_i32 s{sT0}, s{sTt}, {64*896}\ns_lshl_b32 s{sT1}, s{sN}, 7\ns_add_u32 s{sT0}, s{sT0}, s{sT1}")
    A(f"s_mov_b64 s[{sK}:{sK+1}], s[{r.sOut}:{r.sOut+1}]\ns_mov_b32 s{sK+2}, {2048*896}\ns_barrier")
    for u in range(4):
        for t in range(4):
            A(f"ds_write_b128 v{vt}, {v(vAcc+4*(4*u+t),4)} offset:{t*16*272 + u*16}")
    A("s_waitcnt lgkmcnt(0)\ns_barrier")
    for p in range(4):
        for c in range(4):
            A(f"ds_read_b128 {v(vR + 16*p + 4*c, 4)}, v{vt+2} offset:{p*64*272 + c*16}")
    A("s_waitcnt lgkmcnt(8)")
    for i in range(0, 16, 2): A(f"v_pk_add_f32 {v(vR+i,2)}, {v(vR+i,2)}, {v(vR+16+i,2)}")
    A("s_waitcnt lgkmcnt(0)")
    for i in range(0, 16, 2): A(f"v_pk_add_f32 {v(vR+32+i,2)}, {v(vR+32+i,2)}, {v(vR+48+i,2)}")
    for i in range(0, 16, 2): A(f"v_pk_add_f32 {v(vR+i,2)}, {v(vR+i,2)}, {v(vR+32+i,2)}")
    for i in range(4):
        A(f"v_cvt_pk_bf16_f32 v{vR+64+2*i}, v{vR+i}, v{vR+4+i}\nv_cvt_pk_bf16_f32 v{vR+64+2*i+1}, v{vR+8+i}, v{vR+12+i}")
    A(f"buffer_store_dwordx4 {v(vR+64,4)}, v{vt+4}, s[{sK}:{sK+3}], s{sT0} offen {flags('ost', '')}\nbuffer_store_dwordx4 {v(vR+68,4)}, v{vt+4}, s[{sK}:{sK+3}], s{sT0} offen offset:16 {flags('ost', '')}")
    A(f"{Lst}:")
    if stamps:
        A("s_waitcnt vmcnt(0)")
        stamp(7)
        A("s_waitcnt lgkmcnt(0)")
        if opti("dbgst"):
            for q, x in enumerate(SR[1:]): A(f"s_sub_u32 s{x}, s{x}, s{SR[0]}")
            for q, x in enumerate(SR): A(f"v_mov_b32 v{4+q}, s{x}")
            A(f"s_xor_b32 s{sT3}, s2, 8\ns_lshr_b32 s{sT2}, s{sT3}, 1\ns_and_b32 s{sT3}, s{sT3}, 0xffbf\ns_cselect_b32 s{sT2}, 0x1000, s{sT2}\nv_mov_b32 v12, 0")
            A(f"s_mov_b64 s[{sK}:{sK+1}], s[76:77]\ns_movk_i32 s{sK+2}, 256")
            for q in range(1, 8): A(f"buffer_store_dword v{4+q}, v12, s[{sK}:{sK+3}], s{sT2} offen offset:{4*q}")
        for q, x in enumerate(SR): A(f"v_mov_b32 v{4+q}, s{x}")
        A(f"v_mov_b32 v12, 0\ns_lshl_b32 s{sT3}, s2, 5\ns_add_u32 s{sT3}, s{sT3}, {200*MB}")
        A(f"buffer_store_dwordx4 v[4:7], v12, {ws}, s{sT3} offen\nbuffer_store_dwordx4 v[8:11], v12, {ws}, s{sT3} offen offset:16")
    A(f"{Lend}:\ns_endpgm")
```

```python
from asmlib import *
from k1 import MB, WS_K, WS_V, WS_Q, WS_KB, WS_VB, WS_FLAG, WS_CTX, WS_PART, WS_WO, WS_SIZE, f32bits, LOG2E, MF
from f1a import R_, gen_part1, SPLIT

R = opti("R", 12)
WG = opti("wg", 4)
NK0 = opti("nk0", 8)
SN = opti("sn", 1)
MPOS = 24
PART_STRIDE = 17 * 1024

def gen_f1(A, name="f1_kernel", stamps=False):
    Lend = A.label("F_end")
    p1 = gen_part1(A, name, stamps, Lend)
    r = R_
    sK, sV, sWS = r.sK, r.sV, r.sO
    sW, sH, sI, sTy = r.sW, r.sH, r.sI, r.sP
    sKo, sWrap = r.sKo, r.sWrap
    sKl, sVl = 28, 29
    sVs, sVrs, sVd = 30, 31, 32
    sQ, sJ, sL, sMode = r.sQ, r.sJ, r.sL, r.sMode
    sDiag, sPub, sPo, sFp, sFn = 33, 34, 35, 44, 45
    sFo = r.sFo
    sT0, sT1, sT2, sT3 = r.sT0, r.sT1, r.sT2, r.sT3
    sC8 = r.sC8
    sM = 36; sM1 = 66
    sBb = p1["sBb"]
    SR = r.SR
    vL16, vDm, vKr, vVr, vBase, vD, vNeg = 1, 2, 3, 4, 27, 6, 7
    vT = 8
    vG = 32; vTs = 34; vLs = 38; vNm = 40
    vP = 48; vS = 64; vp = 96; vO = 128
    aQ = r.aQ; aF = r.aF
    VS0 = 65536
    BIG = 0x40000000
    def stamp(i):
        if stamps and not opti("p2st"): A(f"{'s_memtime' if opti('cyc') else 's_memrealtime'} s[{SR[i]}:{SR[i]+1}]")
    def Ob(db, qb): return vO + 4 * (2 * db + qb)
    def Sb(kb, qb): return vS + 4 * (2 * kb + qb)
    def pb(kb, qb): return vp + 4 * (2 * kb + qb)
    def Pf(ks, qb): return vP + 4 * (2 * ks + qb)
    def fr(f): return a(aF + 4 * (f % 16), 4)
    def kmap(f): return (f & 3, f >> 2) if SN else (f >> 3, f & 7)
    def qo(f): return (1, 0) if (SN and f & 1) else (0, 1)
    def rdK(f): return f"ds_read_b128 {fr(f)}, v{vKr} offset:{(8*kmap(f)[0] + kmap(f)[1])*1024}"
    def rdV(f): return f"ds_read_b128 {fr(f)}, v{vVr} offset:{f*1024}"

    vDm2 = 5
    sVn, sVe, sVb = sVs, sVrs, sVd
    def dma(kind, so=sKo):
        srd, lb = (sK, sKl) if kind == "K" else (sV, sVl)
        out = []
        for p in range(8):
            if p == 0: out.append(f"s_mov_b32 m0, s{lb}\ns_nop 0" if kind == "K" else f"s_mov_b32 m0, s{lb}\ns_nop 0")
            if p == 4: out.append(f"s_add_u32 m0, s{lb}, 4096\ns_nop 0")
            out.append(f"buffer_load_dwordx4 v{vDm if p < 4 else vDm2}, s[{srd}:{srd+3}], s{so} offen offset:{(p&3)*1024} {flags('kvld', 'sc1')} lds")
        out.append(f"s_xor_b32 s{lb}, s{lb}, s{sC8}" if kind == "K" else f"s_mov_b32 s{sVl}, s{sVn}")
        return out
    def nonop(l): return [x.replace("\ns_nop 0", "") for x in l]
    advO = f"s_add_u32 s{sKo}, s{sKo}, s{sC8}\ns_cmp_eq_u32 s{sKo}, s{sWrap}\ns_cselect_b32 s{sKo}, 0, s{sKo}"
    nextV = f"s_add_u32 s{sVn}, s{sVl}, s{sC8}\ns_cmp_eq_u32 s{sVn}, s{sVe}\ns_cselect_b32 s{sVn}, s{sVb}, s{sVn}"
    setVr = f"v_add_u32 v{vVr}, s{sVn}, v26"
    advK = f"v_xor_b32 v{vKr}, 0x8000, v{vKr}"

    ABL = [0]
    def phase(mf, events, pre):
        order = list(range(pre))
        done = -1
        def emit(lst):
            nonlocal done
            for kind, text in lst:
                ab = opt("abl", "") if ABL[0] else ""
                skip = ("e" in ab and text.startswith("v_exp")) or ("a" in ab and text.startswith("v_add_f32")) or ("c" in ab and text.startswith("v_cvt")) or ("d" in ab and text.startswith("buffer_load")) or ("r" in ab and text.startswith("ds_read")) or ("b" in ab and "s_barrier" in text)
                if not skip: A(text)
                if kind.startswith("rd:"): order.append(int(kind[3:]))
                elif kind == "rdx": order.append(-1)
                elif kind == "sync": done = len(order) - 1
        def need_wait(f):
            nonlocal done
            if f < 32 and order.index(f) > done:
                need = order.index(f)
                for g in range(f + 1, min(32, (f // WG + 1) * WG)):
                    if g in order: need = max(need, order.index(g))
                cnt = len(order) - 1 - need
                assert cnt <= 15
                A(f"s_waitcnt lgkmcnt({cnt})"); done = need
        emit(events.get(-1, []))
        need_wait(0)
        for f in range(32):
            m = mf(f)
            A(m[0]); emit(events.get(2 * f, []))
            A(m[1])
            lst = events.get(2 * f + 1, [])
            if not any(k == "sync" for k, t in lst): need_wait(f + 1)
            emit(lst)
    def add_ev(ev, items):
        for p, k, t in items: ev.setdefault(p, []).append((k, t))
    def mfQK(f):
        kb, ds = kmap(f)
        return [f"{MF} {v(Sb(kb,qb),4)}, {fr(f)}, {a(aQ+4*(2*ds+qb),4)}, {v(vNm+4*qb,4) if ds == 0 else v(Sb(kb,qb),4)}" for qb in qo(f)]
    def mfPV(f):
        ks, db = f >> 4, f & 15
        return [f"{MF} {v(Ob(db,qb),4)}, {fr(f)}, {v(Pf(ks,qb),4)}, {v(Ob(db,qb),4)}" for qb in qo(f)]
    def cvts():
        out = []
        for ks in range(2):
            for qb in range(2):
                for hh in range(2):
                    src = pb(2*ks+hh, qb)
                    out.append(f"v_cvt_pk_bf16_f32 v{Pf(ks,qb)+2*hh}, v{src}, v{src+1}")
                    out.append(f"v_cvt_pk_bf16_f32 v{Pf(ks,qb)+2*hh+1}, v{src+2}, v{src+3}")
        return out
    def xl_reduce(op, r, t):
        return (f"v_mov_b32 v{t}, v{r}\ns_nop 1\nv_permlane16_swap_b32 v{r}, v{t}\ns_nop 1\n{op} v{r}, v{r}, v{t}\n"
                f"v_mov_b32 v{t}, v{r}\ns_nop 1\nv_permlane32_swap_b32 v{r}, v{t}\ns_nop 1\n{op} v{r}, v{r}, v{t}")
    def mask_block():
        A(f"s_sub_u32 s{sT0}, s{sJ}, s{sDiag}\ns_lshl_b32 s{sT0}, s{sT0}, 6\nv_subrev_u32 v{vD}, s{sT0}, v{vBase}")
        for c in range(-1, 4):
            for i in range(4):
                A(f"v_cmp_gt_i32 s[{sM+2*i}:{sM+2*i+1}], {16*c+i}, v{vD}")
            A("s_nop 0")
            for i in range(4):
                for qb in range(2):
                    kb = c + qb
                    if 0 <= kb < 4:
                        x = Sb(kb, qb) + i
                        A(f"v_cndmask_b32 v{x}, v{x}, v{vNeg}, s[{sM+2*i}:{sM+2*i+1}]")
    def slow(first):
        for qb in range(2):
            m = vT + qb
            regs = [Sb(kb, qb) + i for kb in range(4) for i in range(4)]
            A(f"v_max3_f32 v{m}, v{regs[0]}, v{regs[1]}, v{regs[2]}")
            for x in range(3, 15, 2): A(f"v_max3_f32 v{m}, v{m}, v{regs[x]}, v{regs[x+1]}")
            A(f"v_max_f32 v{m}, v{m}, v{regs[15]}")
            A(xl_reduce("v_max_f32", m, vT + 2))
            if not first: A(f"v_max_f32 v{m}, 0, v{m}")
            for i in range(4): A(f"v_sub_f32 v{vNm+4*qb+i}, v{vNm+4*qb+i}, v{m}")
            if not first:
                A(f"v_sub_f32 v{vT+4+qb}, 0, v{m}\nv_exp_f32 v{vT+4+qb}, v{vT+4+qb}\ns_nop 0\nv_mul_f32 v{vLs+qb}, v{vLs+qb}, v{vT+4+qb}")
                for db in range(16):
                    for i in range(4): A(f"v_mul_f32 v{Ob(db,qb)+i}, v{Ob(db,qb)+i}, v{vT+4+qb}")
            for kb in range(4):
                for i in range(4): A(f"v_sub_f32 v{pb(kb,qb)+i}, v{Sb(kb,qb)+i}, v{m}")
            for kb in range(4):
                for i in range(4): A(f"v_exp_f32 v{pb(kb,qb)+i}, v{pb(kb,qb)+i}")
            A("s_nop 0")
            t = vTs + 2 * qb
            A(f"v_add_f32 v{t}, v{pb(0,qb)}, v{pb(0,qb)+1}")
            for x in range(2, 16): A(f"v_add_f32 v{t}, v{t}, v{pb(x>>2,qb)+(x&3)}")

    ws = f"s[{sWS}:{sWS+3}]"
    vFlag, vZ, vOneL = 30, 29, 24
    A(f"s_lshl_b32 s{sT0}, s{sW}, 13\ns_add_u32 s{sKl}, s{sT0}, 0x8000\ns_add_u32 s{sVb}, s{sT0}, {VS0}\ns_add_u32 s{sVl}, s{sVb}, 0x8000\ns_add_u32 s{sVe}, s{sVb}, {3*0x8000}\nv_subrev_u32 v26, s{sT0}, v{vL16}")
    A(f"v_add_u32 v{vKr}, 0x8000, v{vL16}\nv_mov_b32 v{vNeg}, 0x{f32bits(-1e30):08x}\nv_mov_b32 v{vZ}, 0\nv_mov_b64 v[{vFlag}:{vFlag+1}], 0\ns_mov_b32 s{sPub}, 0\ns_lshl_b32 s{sDiag}, s{sQ}, 1")
    A(f"s_mov_b32 s72, s{sKo}")
    A(advO)
    if opti("dbgst"): A(f"s_mov_b64 s[76:77], s[{r.sG}:{r.sG+1}]")
    A(f"v_and_b32 v{vT}, 15, v0\nv_lshrrev_b32 v28, 4, v0\nv_lshlrev_b32 v28, 2, v28\nv_sub_u32 v28, v{vT}, v28\ns_lshl_b32 s{sT0}, s{sW}, 5\nv_add_u32 v{vBase}, s{sT0}, v28")
    A(f"v_cmp_eq_u32 vcc, 0, v0\nv_mov_b32 v{vOneL}, {BIG}\ns_xor_b32 s{sFp}, s{sFo}, {64 << 7}\nv_cndmask_b32 v{vOneL}, v{vOneL}, 0, vcc")
    A(f"s_and_b32 s{sT0}, s2, 63\ns_lshr_b32 s{sT1}, s2, 7\ns_lshl_b32 s{sT1}, s{sT1}, 6\ns_or_b32 s{sT0}, s{sT0}, s{sT1}\ns_lshl_b32 s{sT0}, s{sT0}, 2\ns_add_u32 s46, s{sT0}, s{sW}\ns_mul_i32 s{sPo}, s46, {PART_STRIDE}\ns_add_u32 s{sPo}, s{sPo}, {WS_PART}")
    A(f"s_add_u32 s{sT0}, s{r.sOwn}, 1\ns_sub_u32 s{sT1}, 23, s{sT0}\ns_cmp_ge_u32 s{sT0}, 8\ns_cselect_b32 s{sT1}, s{sT1}, s{sT0}\ns_lshl_b32 s{sT1}, s{sT1}, 10\ns_add_u32 s{sFn}, s{r.sFh}, s{sT1}\ns_sub_u32 s{sFn}, s{sFn}, 8")
    A(f"s_cmp_eq_u32 s{sT0}, 16\ns_cselect_b32 s{sFn}, {BIG}, s{sFn}\ns_cmp_lg_u32 s{sW}, 3\ns_cselect_b32 s{sFn}, {BIG}, s{sFn}")
    A(f"s_or_b32 s{sT0}, s{sTy}, s{sW}\ns_cselect_b32 s79, {BIG}, 0\ns_add_u32 s79, s79, {WS_FLAG + 20}\ns_mov_b32 s80, {WS_FLAG + 20}")
    sTt, sN, sWb3, sCb3, sL3, sSp = 16, 17, 18, 19, 20, 24
    WT = opti('wt', 0)
    if opti("map", 2) == 2:
        k3a = [f"s_and_b32 s25, s2, 1", f"s_lshl_b32 s25, s25, 2", f"s_lshr_b32 s87, s2, 6", f"s_add_u32 s{sN}, s25, s87", f"s_add_u32 s25, s25, s{sI}",
               f"s_cmp_eq_u32 s87, 3\ns_cselect_b32 s{sN}, 3, s{sN}\ns_cselect_b32 s{sTt}, s25, s{sI}",
               f"s_bfe_u32 s25, s2, {(2 << 16) | 1}", f"s_lshl_b32 s25, s25, 3", f"s_add_u32 s{sTt}, s{sTt}, s25", f"s_cmp_ge_u32 s2, 224\ns_cselect_b32 s87, 1, 0"]
    elif opti("map", 2) == 1:
        k3a = [f"s_lshr_b32 s{sN}, s2, 7", f"s_lshl_b32 s{sN}, s{sN}, 3", f"s_add_u32 s{sN}, s{sN}, s{sI}", f"s_and_b32 s25, s{sN}, 1", f"s_lshr_b32 s{sN}, s{sN}, 1",
               f"s_cmp_ge_u32 s{sN}, 6\ns_cselect_b32 s87, s{sTy}, 0", f"s_cmp_eq_u32 s{sN}, 7\ns_cselect_b32 s{sTt}, 1, s{sTy}\ns_cselect_b32 s{sN}, 6, s{sN}",
               f"s_lshl_b32 s{sTt}, s{sTt}, 1", f"s_add_u32 s{sTt}, s{sTt}, s25", f"s_and_b32 s25, s2, 7", f"s_lshl_b32 s25, s25, 2", f"s_add_u32 s{sTt}, s{sTt}, s25"]
    else:
        k3a = [f"s_and_b32 s{sN}, s2, 7", f"s_lshl_b32 s{sTt}, s{sN}, 2", f"s_bfe_u32 s{sN}, s2, {(2 << 16) | 3}", f"s_add_u32 s{sTt}, s{sTt}, s{sN}", f"s_lshr_b32 s{sN}, s2, 5", f"s_cmp_ge_u32 s2, 224\ns_cselect_b32 s87, 1, 0"]
    k3s = k3a + [f"s_mul_i32 s25, s{sW}, {36*4096}",
           f"s_mul_i32 s{sWb3}, s{sN}, {144*4096}", f"s_add_u32 s{sWb3}, s{sWb3}, s25", f"s_add_u32 s{sWb3}, s{sWb3}, {WS_WO}", f"s_mul_i32 s{sCb3}, s{sTt}, {144*4096}", f"s_add_u32 s{sCb3}, s{sCb3}, s25", f"s_add_u32 s{sCb3}, s{sCb3}, {WS_CTX}",
           f"s_mov_b32 s85, {BIG}", f"v_lshlrev_b32 v25, 7, v0", f"s_lshr_b32 s86, s2, 7", f"s_lshl_b32 s86, s86, 3", f"s_add_u32 s86, s86, s{sI}", f"s_lshl_b32 s86, s86, 2", f"s_add_u32 s86, s86, s{sW}", f"s_lshl_b32 s86, s86, 13", f"s_add_u32 s86, s86, {WS_WO}",
           f"s_cmp_lg_u32 s87, 0\ns_cselect_b32 s{sWb3}, {BIG}, s{sWb3}",
           f"s_sub_u32 s{sSp}, s{sL}, 1", f"s_cmp_eq_u32 s{sMode}, 1\ns_cselect_b32 s{sSp}, s{sL}, s{sSp}", f"s_cmp_eq_u32 s{sTy}, {1 if WT else 5}\ns_cselect_b32 s{sSp}, {WT - 2}, s{sSp}",
           f"s_lshl_b32 s75, s{r.sOwn}, 1", f"s_add_u32 s75, s75, s{r.sWM}", f"s_mul_i32 s74, s75, {144*4096}", f"s_lshl_b32 s25, s{r.sWN}, 11", f"s_add_u32 s74, s74, s25", f"s_add_u32 s74, s74, {WS_CTX}"]
    vAcc, vR, vW = 16, 80, 176
    ND = 6
    AB = [128, 144, 160, 176, 240, 64, 80, 96, 112, 0, 16, 32, 48, 192, 208, 224]
    def wreg(k, u):
        if k < 16: return a(AB[k] + 4*u, 4)
        if k < 21: return v(vW + 16*(k-16) + 4*u, 4)
        if k < 29: return a(AB[7 + k - 21] + 4*u, 4)
        return a(AB[k - 29] + 4*u, 4)
    def wload(k, tmp=25): return [f"s_add_u32 s{tmp}, s{sWb3}, {k*4096}"] + [f"buffer_load_dwordx4 {wreg(k,u)}, v{vL16}, {ws}, s{tmp} offen offset:{u*1024} {flags('wld', 'sc1')} ; vm:w{k}" for u in range(4)]
    def wdma(k): return [f"s_add_u32 m0, s{sL3 + (k-21)//2}, {((k-21)&1)*4096}", f"s_add_u32 s25, s{sWb3}, {k*4096}"] + [f"buffer_load_dwordx4 v{vL16}, {ws}, s25 offen offset:{u*1024} {flags('wld', 'sc1')} lds" for u in range(4)]
    for i in range(vNm, vNm + 8, 2): A(f"v_mov_b64 {v(i,2)}, 0")
    Lloop = A.label("F2_loop"); Lqk = A.label("F2_qk"); Ltail = A.label("F2_tail"); Lfirst = A.label("F2_first")
    Lslow = A.label("F2_slow"); Lback = A.label("F2_back"); Lnm0 = A.label("F2_nm0"); Lnm1 = A.label("F2_nm1"); LA = A.label("F2_A"); Lnopark = A.label("F2_np"); Lpq = A.label("F2_pq"); Lnp2 = A.label("F2_np2")
    A(f"s_cmp_eq_u32 s{sTy}, 1\ns_cbranch_scc1 {LA}")
    for tk in range(2):
        so_ = 74 + tk
        if tk: A("s_add_u32 s46, s46, 512")
        A(f"s_mul_hi_u32 s47, s46, {(2**32 + 6)//7}\ns_mul_i32 s{sT0}, s47, 7\ns_sub_u32 s{sT0}, s46, s{sT0}")
        A(f"s_mul_i32 s{so_}, s{sT0}, 144\ns_add_u32 s{so_}, s{so_}, s47\ns_lshl_b32 s{so_}, s{so_}, 12\ns_add_u32 s{so_}, s{so_}, {WS_WO}\ns_cmp_ge_u32 s46, 1008\ns_cselect_b32 s{so_}, {BIG}, s{so_}")
    A(f"s_cmp_lg_u32 s{sMode}, 1\ns_cbranch_scc1 {Lnopark}")
    for q in range(64): A(f"v_accvgpr_mov_b32 a{r.aPark+q}, a{aQ+q}")
    Lpqx = A.label("F2_pqx")
    A(f"{Lpq}:\n" + r.bound(Lpqx) + f"buffer_load_dword v{vFlag}, v{vZ}, {ws}, s{sFo} offen offset:8 sc1\ns_waitcnt vmcnt(0)\nv_readfirstlane_b32 s{sT0}, v{vFlag}\ns_nop 3\ns_cmp_lg_u32 s{sT0}, 4\ns_cbranch_scc1 {Lpq}\n{Lpqx}:")
    A(f"s_lshl_b32 s{sT2}, s{sH}, 7\ns_lshl_b32 s{sT3}, s{sQ}, 3\ns_add_u32 s{sT2}, s{sT2}, s{sT3}\ns_lshl_b32 s{sT3}, s{sW}, 1\ns_add_u32 s{sT2}, s{sT2}, s{sT3}\ns_lshl_b32 s{sT2}, s{sT2}, 13\ns_add_u32 s{sT2}, s{sT2}, {WS_Q}")
    for f in range(16):
        A(f"buffer_load_dwordx4 {a(aQ+4*(2*(f&7)+(f>>3)),4)}, v{vL16}, {ws}, s{sT2} offen offset:{(f&3)*1024} sc1")
        if f & 3 == 3: A(f"s_add_u32 s{sT2}, s{sT2}, 4096")
    A(f"s_branch {Lnp2}\n{Lnopark}:\nWAITVMS wo\n{Lnp2}:")
    A(f"s_mov_b32 s{sT2}, 0x05040100\ns_mov_b32 s{sT3}, 0x07060302")
    for tk in range(2):
        for c in range(4):
            for m in range(4):
                A(f"v_perm_b32 v{184+16*tk+4*c+m}, v{216+16*tk+2*(2*m+1)+(c>>1)}, v{216+16*tk+2*(2*m)+(c>>1)}, s{sT2 if c % 2 == 0 else sT3}")
    for tk in range(2):
        for c in range(4): A(f"buffer_store_dwordx4 {v(184+16*tk+4*c,4)}, v{vL16}, {ws}, s{74+tk} offen offset:{c*1024} sc1")
    A("s_waitcnt vmcnt(8)")
    A(f"{LA}:")
    stamp(1)
    def qk_first(fill, more=[]):
        pl = [x for x in sched3(64, [[(rdK(f), max(0, 2*(f-16)+1), 2*(f-R)+3, 2*(f-R)+1, f"rd:{f}") for f in range(R, 32)] + [(advK, 2*(31-R)+4, 63, 2*(31-R)+4, "")], even(fill, 0, 63)] + more)]
        ev = {}
        add_ev(ev, [(-1, f"rd:{f}", rdK(f)) for f in range(R)])
        add_ev(ev, pl)
        phase(mfQK, ev, 0)
    zf = [f"v_mov_b64 {v(i,2)}, 0" for i in range(vO, vO + 128, 2)]
    A(f"v_mov_b32 v{vT}, 1\ns_cmp_eq_u32 s{sMode}, 2\ns_cselect_b32 s{sT0}, s{sFp}, {BIG}")
    QS = opti("qs", 8)
    be = p1["be"]; nb = max(k for k, x in enumerate(be) if x.startswith("buffer_store")) + 1
    qk_first(zf, [[("WAITVMS q", QS, QS, QS, ""), (f"buffer_atomic_add v{vT}, v{vOneL}, {ws}, s{sT0} offen offset:8 sc1", QS + 1, QS + 1, QS + 1, "")] + even(be[:nb], QS + 2, 30) + even(p1["vdma"], 31, 63), even(be[nb:], 31, 63), even(k3s, 0, 63)])
    A(f"s_waitcnt vmcnt(16) lgkmcnt(0)")
    A(f"buffer_atomic_add v{vT}, v{vOneL}, {ws}, s{sFn} offen sc1\ns_barrier")
    bq, bk, bv, bm = r.bq, r.bk, r.bv, r.bm
    A(f"{Lfirst}:")
    Ldis = A.label("F2_dis")
    if opti("cp3", 0): A(code_pf_items(A, Ldis, "CODE_END", 76, 25, f"s_mov_b32 s25, s{sW}", 22, 23, 3))
    for f in range(NK0): A(rdK(f))
    A(f"s_cmp_lt_u32 s{sJ}, s{sDiag}\ns_cbranch_scc1 {Lnm0}")
    mask_block()
    A(f"{Lnm0}:")
    slow(True)
    A(f"v_mov_b32 v{vLs}, 0\nv_mov_b32 v{vLs+1}, 0\nv_mov_b32 v{vT+1}, 1\ns_cmp_eq_u32 s{sPub}, 0\ns_waitcnt vmcnt({9 + opti('cp3', 0)})\ns_barrier\nbuffer_atomic_add v{vT+1}, v{vOneL}, {ws}, s79 offen sc1\ns_mov_b32 s79, {BIG}\ns_cbranch_scc1 {Lback}")
    A(f"s_mov_b32 s{sPub}, 0\ns_waitcnt vmcnt(0)\nbuffer_atomic_add v{vT+1}, v{vOneL}, {ws}, s{sFp} offen sc1\ns_branch {Lback}")
    p1["spins"]()
    A(f"{Lslow}:")
    slow(False)
    A(f"s_branch {Lback}")
    Lmask = A.label("F2_mask")
    A(f"{Lmask}:\ns_nop 7")
    mask_block()
    A(f".p2align 6\n{Lloop}:")
    if opti("itst"): A("s_memtime s[76:77]")
    def wait_load(upto=32):
        return [(2*f-1, "ph", "s_waitcnt") for f in range(WG, upto, WG)]
    drop = lambda pl: [x for x in pl if x[1] != "ph"]
    own = lambda rd, f0: [(rd(f), max(0, 2*(f-16)+1), max(2*(f-R)+3, f - f0 + 2), max(2*(f-R)+1, f - f0), f"rd:{f}") for f in range(f0, 32)]
    PK = opti("pk", 0)
    els = [(kb, qb, i) for kb in range(4) for qb in range(2) for i in range(4)]
    sm = []; seen = set(); pend = []
    for x, (kb, qb, i) in enumerate(els):
        sm.append(f"v_exp_f32 v{pb(kb,qb)+i}, v{Sb(kb,qb)+i}")
        sm += pend; pend = []
        if PK:
            if i & 1:
                t = vTs + 2*qb; rr = pb(kb, qb) + i - 1
                if t in seen: pend = [f"v_pk_add_f32 {v(t,2)}, {v(t,2)}, {v(rr,2)}"]
                elif i == 3: pend = [f"v_pk_add_f32 {v(t,2)}, {v(rr-2,2)}, {v(rr,2)}"]; seen.add(t)
        else:
            t = vTs + 2*qb + (i & 1); rr = pb(kb, qb) + i
            if t in seen: pend = [f"v_add_f32 v{t}, v{t}, v{rr}"]
            elif i >= 2: pend = [f"v_add_f32 v{t}, v{rr-2}, v{rr}"]; seen.add(t)
    VE = opti("ve", 57)
    chk = [f"v_add_f32 v{vTs}, v{vTs}, v{vTs+1}"] + pend + [f"v_add_f32 v{vTs+2}, v{vTs+2}, v{vTs+3}", f"v_max_f32 v{vT}, v{vTs}, v{vTs+2}", f"v_cmp_nge_f32 vcc, 0x44800000, v{vT}"]
    kd_ = [2*MPOS + 2*f if f < 4 else VE + 1 + (f - 4) * (62.0 - VE) / max(1, NK0 - 4) for f in range(NK0)]
    kx = [(rdK(f), max(2*MPOS, 2*(f+16)+1), 63, kd_[f], "rdx") for f in range(NK0)]
    pl = drop(sched3(64, [own(rdV, R), kx, even(sm, 0, VE) + even(chk, VE + 1, 61)], wait_load(MPOS) + [(2*MPOS-1, "sync", f"s_waitcnt vmcnt({10 if WT else 9}) lgkmcnt(0)\ns_barrier"),
              (61, "", f"s_cmp_eq_u32 s{sJ}, s{sSp}"), (62, "", f"s_cselect_b64 s[{sM}:{sM+1}], -1, vcc"), (63, "", f"s_cmp_lg_u64 s[{sM}:{sM+1}], 0")]))
    ev = {}
    add_ev(ev, pl)
    assert max(p for p, k, t in pl if k.startswith("rd:")) < 2*MPOS - 4
    assert max(p for p, k, t in pl if t.startswith("v_cmp_nge")) <= 61
    ABL[0] = 1
    phase(mfPV, ev, R)
    Lsp = A.label("F2_sp")
    if opti("itst"): A(f"s_mov_b32 m0, s{sJ}\ns_nop 1\nv_writelane_b32 v25, s76, m0")
    A(f"s_cbranch_scc1 {Lsp}")
    A(f"{Lqk}:")
    ladd = [f"v_add_f32 v{vLs}, v{vLs}, v{vTs}", f"v_add_f32 v{vLs+1}, v{vLs+1}, v{vTs+2}"]
    poll = f"buffer_load_dwordx2 v[{vFlag}:{vFlag+1}], v{vZ}, {ws}, s{sFo} offen sc1"
    def qk_phase(dm):
        ko = own(rdK, NK0)
        lastk = 2*(31-R)+3
        vx = [(advK, lastk, 63, lastk, "")] + [(rdV(f), max(lastk, 2*(f+16)+1), 63, 2*(32-R+f)+1, "rdx") for f in range(R)]
        pl = drop(sched3(64, [ko + vx, even(dm, 0, 61), even(ladd + [nextV, setVr] + cvts(), 0, 44)], wait_load() + [(50, "", f"s_add_u32 s{sJ}, s{sJ}, 1"), (63, "last", f"s_cmp_lt_u32 s{sJ}, s{sDiag}")]))
        assert not any(p == 63 and t.startswith("s_") and k != "last" for p, k, t in pl), [x for x in pl if x[0] == 63]
        for x in range(len(pl) - 1):
            if "m0" in pl[x][2] and pl[x][0] == pl[x+1][0] and pl[x+1][2].startswith("buffer_load"):
                pl[x] = (pl[x][0], pl[x][1], pl[x][2] + "\ns_nop 0")
        ev = {}
        add_ev(ev, pl)
        phase(mfQK, ev, NK0)
        A(f"s_cbranch_scc1 {Lloop}\ns_branch {Lmask}")
    qk_phase(nonop(dma("K")) + nonop(dma("V")) + [advO, poll] + ([f"buffer_load_dword v22, v25, {ws}, s85 offen", f"s_add_u32 s85, s85, {64*8192}"] if WT else []))
    ABL[0] = 0
    Lend1 = A.label("F2_e1"); Lw1 = A.label("F2_w1"); Lw2 = A.label("F2_w2"); Lwc = A.label("F2_wc"); Lwd = A.label("F2_wd")
    wpoll = f"buffer_load_dword v23, v{vZ}, {ws}, s80 offen sc1"
    def wcheck(L0, L1): A(f"{L0}:\nv_readfirstlane_b32 s{sT0}, v23\ns_nop 3\ns_cmp_eq_u32 s{sT0}, 128\ns_cbranch_scc1 {L1}\n" + r.bound(L1) + wpoll + f"\ns_waitcnt vmcnt(0)\ns_branch {L0}\n{L1}:")
    A(f"{Lsp}:\ns_cbranch_vccnz {Lslow}\n{Lback}:\ns_cmp_lg_u32 s{sJ}, s{sSp}\ns_cbranch_scc1 {Lqk}")
    A(f"{Ldis}:\ns_cmp_eq_u32 s{sJ}, s{sL}\ns_cbranch_scc1 {Ltail}\ns_add_u32 s{sT0}, s{sJ}, 1\ns_cmp_eq_u32 s{sT0}, s{sL}\ns_cbranch_scc1 {Lend1}")
    A(f"s_cmp_eq_u32 s{sJ}, {WT}\ns_cbranch_scc1 {Lw1}\n{wpoll}\ns_mov_b32 s{sSp}, {WT}\ns_branch {Lqk}")
    A(f"{Lw1}:\ns_sub_u32 s{sSp}, s{sL}, 1")
    wcheck(Lwc, Lwd)
    A(f"s_mov_b32 s85, s86\ns_branch {Lqk}")
    Lh = A.label("F2_h"); Lhs = A.label("F2_hs")
    A(f"{Lend1}:\ns_mov_b32 s{sSp}, s{sL}\ns_cmp_eq_u32 s{r.sOwn}, 0\ns_cselect_b32 s{sT1}, 1, 0\ns_or_b32 s{sT1}, s{sT1}, s{sW}\ns_lshl_b32 s{sT2}, s{sMode}, 1")
    A(f"{Lhs}:\ns_waitcnt vmcnt(0)\nv_readfirstlane_b32 s46, v{vFlag}\nv_readfirstlane_b32 s47, v{vFlag+1}\ns_nop 1\ns_or_b32 s47, s47, s{sT1}\ns_cmp_eq_u32 s46, s{sT2}\ns_cselect_b32 s47, s47, 0\ns_cmp_lg_u32 s47, 0\ns_cbranch_scc1 {Lh}")
    A(r.bound(Lh) + poll + f"\ns_branch {Lhs}\n{Lh}:")
    A(f"s_add_u32 s{sT2}, s{sBb}, {WS_KB - 1024}\ns_add_u32 s{sT3}, s{sBb}, {WS_VB - 2048}\ns_or_b32 s{sT0}, s{r.sOwn}, s{sW}\ns_cselect_b32 s{sT2}, s{sT2}, {BIG}\ns_cselect_b32 s{sT3}, s{sT3}, {BIG}")
    A(f"s_cmp_eq_u32 s{sMode}, 2\ns_cselect_b32 s{sPo}, s{sPo}, {BIG}\ns_mov_b32 s{sL3+2}, s{sKl}\ns_mov_b32 s{sL3+3}, s{sVl}\ns_xor_b32 s{sL3}, s{sKl}, s{sC8}")
    dm = [wpoll, f"s_add_u32 s{sT0}, s{sPo}, 16384", f"buffer_load_dwordx4 v[14:17], v{vL16}, {ws}, s{sT0} offen sc1"]
    for n in range(16):
        if n % 4 == 0: dm += [f"s_add_u32 m0, s{sL3 + 2 + (n >> 3)}, {(n & 4) * 1024}", f"s_add_u32 s{sT0}, s{sPo}, {n * 1024}"]
        dm.append(f"buffer_load_dwordx4 v{vL16}, {ws}, s{sT0} offen offset:{(n&3)*1024} sc1 lds")
    dm += [f"buffer_load_dwordx4 {a(bk,4)}, v{vL16}, {ws}, s{sT2} offen sc1"] + [f"buffer_load_dwordx2 {a(bm+4*db+2,2)}, v{vL16}, {ws}, s{sT3} offen offset:{db*1024+8} sc1" for db in range(2)]
    dm += [f"s_mov_b32 s{sVl}, s{sVn}", f"s_mov_b32 s{sL3+1}, s{sVn}"]
    qk_phase(dm)
    def pv_last(fill):
        ev = {}
        add_ev(ev, [(2*(f-R)+1, f"rd:{f}", rdV(f)) for f in range(R, 32)])
        add_ev(ev, [(p, "", t) for p, t in fill])
        phase(mfPV, ev, R)
    def pack(qb, g):
        r0, r1 = Ob(2*g, qb), Ob(2*g+1, qb)
        return [f"v_cvt_pk_bf16_f32 v{r0}, v{r0}, v{r0+1}", f"v_cvt_pk_bf16_f32 v{r0+1}, v{r0+2}, v{r0+3}", f"v_cvt_pk_bf16_f32 v{r0+2}, v{r1}, v{r1+1}", f"v_cvt_pk_bf16_f32 v{r0+3}, v{r1+2}, v{r1+3}"]
    Lt1 = A.label("K2_t1"); Lt0 = A.label("K2_t0"); Lst = A.label("K2_store"); Lbt = A.label("F2_bt")
    perm = [(ks, 2*g + d) for g in range(8) for ks in range(2) for d in range(2)]
    def rdV2(f): return f"ds_read_b128 {fr(f)}, v{vVr} offset:{(16*perm[f][0] + perm[f][1])*1024}"
    def mfPV2(f):
        ks, db = perm[f]
        return [f"{MF} {v(Ob(db,qb),4)}, {fr(f)}, {v(Pf(ks,qb),4)}, {v(Ob(db,qb),4)}" for qb in qo(f)]
    A(f"{Ltail}:")
    stamp(2)
    A(nextV); A(setVr)
    A(f"s_cmp_eq_u32 s{sMode}, 1\ns_cbranch_scc1 {Lt1}")
    for f in range(R): A(rdV2(f))
    for t in ladd: A(t)
    for t in cvts(): A(t)
    if opti("itst"): A(f"v_lshlrev_b32 v22, 2, v0\ns_lshl_b32 s{sT3}, s2, 8\ns_add_u32 s{sT3}, s{sT3}, {201*MB}\nbuffer_store_dword v25, v22, {ws}, s{sT3} offen")
    A("s_waitcnt vmcnt(0)")
    wcheck(A.label("F2_wc2"), A.label("F2_wd2"))
    A(f"s_lshl_b32 s{sT0}, s{sH}, 15\ns_add_u32 s{sT0}, s{sT0}, s74\ns_mov_b32 s{sT3}, 0xffff0000\ns_cmp_eq_u32 s{sMode}, 0\ns_cbranch_scc1 {Lt0}")
    fA, fB = (10, 12), (18, 20)
    LATE = []
    PW_ = opti('pw', 4)
    def final(merge):
        fac = []
        for qb in range(2):
            if merge:
                fac += [f"v_min_f32 v8, v{vNm+4*qb}, v{14+qb}", f"v_sub_f32 v{fA[qb]}, v8, v{vNm+4*qb}", f"v_sub_f32 v{fB[qb]}, v8, v{14+qb}", f"v_exp_f32 v{fA[qb]}, v{fA[qb]}", f"v_exp_f32 v{fB[qb]}, v{fB[qb]}\ns_nop 0",
                        f"v_mul_f32 v{vLs+qb}, v{vLs+qb}, v{fA[qb]}", f"v_fmac_f32 v{vLs+qb}, v{16+qb}, v{fB[qb]}"]
            fac += split_items([xl_reduce("v_add_f32", vLs+qb, 8)])
            fac += [f"v_rcp_f32 v{vLs+qb}, v{vLs+qb}\ns_nop 0", f"v_mul_f32 v{vLs+qb}, v{vLs+qb}, v{vG+qb}"]
            if merge: fac += [f"v_mul_f32 v{fA[qb]}, v{fA[qb]}, v{vLs+qb}", f"v_mul_f32 v{fB[qb]}, v{fB[qb]}, v{vLs+qb}", f"v_mov_b32 v{fA[qb]+1}, v{fA[qb]}", f"v_mov_b32 v{fB[qb]+1}, v{fB[qb]}"]
            else: fac += [f"v_mov_b32 v{fA[qb]}, v{vLs+qb}", f"v_mov_b32 v{fA[qb]+1}, v{vLs+qb}"]
        items = [(x, 0) for x in fac]
        for g in range(8):
            rdy = max(8*g + 7 + 8, 16 if merge else 0)
            for qb in range(2):
                n = qb * 8 + g
                for hh in range(4):
                    o = Ob(2*g + (hh >> 1), qb) + 2 * (hh & 1); rr = vS + 4*n + hh; t = (8, 14)[hh & 1]
                    if merge: l = [f"v_lshlrev_b32 v{t}, 16, v{rr}", f"v_and_b32 v{t+1}, s{sT3}, v{rr}", f"v_pk_mul_f32 {v(o,2)}, {v(o,2)}, {v(fA[qb],2)}", f"v_pk_fma_f32 {v(o,2)}, {v(t,2)}, {v(fB[qb],2)}, {v(o,2)}"]
                    else: l = [f"v_pk_mul_f32 {v(o,2)}, {v(o,2)}, {v(fA[qb],2)}"]
                    items += [(x, rdy) for x in l]
                items += [(x, rdy) for x in pack(qb, g)]
                if qb == 0: items.append((f"s_add_u32 s{sT1}, s{sT0}, {g*4096}", rdy))
                items.append((f"buffer_store_dwordx4 {v(Ob(2*g,qb),4)}, v{vL16}, {ws}, s{sT1} offen offset:{qb*1024} sc1", rdy))
        clock = 0.0; inph = []; rest = []
        RATE = float(opt("erate", "2.0"))
        for x, rdy in items:
            clock = max(clock + cost(x) / RATE, rdy)
            if clock < 63.5 and not rest: inph.append((x, rdy, 63, clock, ""))
            else: rest.append(x)
        strs = [[(rdV2(f), max(0, 2*(f-16)+1), 2*(f-R)+3, 2*(f-R)+1, f"rd:{f}") for f in range(R, 32)], inph] + ([even([x for k in range(5, 5 + PW_) for x in wload(k)], 0, opti('pwe', 63))] if PW_ else [])
        fixed = wait_load()
        if merge:
            A(f"v_add_u32 v22, s{sL3+2}, v{vL16}\nv_add_u32 v23, s{sL3+3}, v{vL16}")
            strs.append([(f"ds_read_b128 {v(vS + 4*(8*(x&1) + (x>>1)), 4)}, v{22 + (x&1)} offset:{(x>>1)*1024}", 0, 11, x * 0.7, "rdx") for x in range(16)])
            fixed = [x for x in fixed if x[0] != 15] + [(15, "sync", "s_waitcnt lgkmcnt(0)")]
        ev = {}
        add_ev(ev, drop(sched3(64, strs, fixed)))
        phase(mfPV2, ev, R)
        A("s_nop 7")
        more = wdma(21) + wdma(22) + wdma(23) + wdma(24) + ["s_waitcnt vmcnt(36)"] + wload(9) + wload(10) + wload(11) + wload(12)
        if opti("late", 1):
            for x in rest: A(x)
            LATE[:] = [x for k in range(5 + PW_, 9) for x in wload(k)] + ["s_waitcnt vmcnt(24)"] + more
            return
        step = max(1, len(rest) // len(more)) if merge else 2
        for k, x in enumerate(rest):
            A(x)
            if k % step == step - 1 and more: A(more.pop(0))
        for x in more: A(x)
    final(True)
    A(f"s_branch {Lbt}\n{Lt0}:")
    final(False)
    A(f"s_branch {Lbt}")
    A(f"{Lt1}:")
    for f in range(R): A(rdV(f))
    for t in ladd: A(t)
    for t in cvts(): A(t)
    A(f"s_mov_b32 s{sQ}, s{sI}\ns_lshl_b32 s{sK+2}, s{sI}, 16\ns_add_u32 s{sK+2}, s{sK+2}, 0x10000\ns_mov_b32 s{sV+2}, s{sK+2}")
    pv_last(sched(64, [(dma("K") + dma("V") + [advO], 0, 62), ([f"v_accvgpr_mov_b32 a{aQ+q}, a{r.aPark+q}" for q in range(64)], 0, 63)], None))
    A(f"v_mov_b32 v{vT}, v{vNm}\nv_mov_b32 v{vT+1}, v{vNm+4}\nv_mov_b32 v{vT+2}, v{vLs}\nv_mov_b32 v{vT+3}, v{vLs+1}")
    for i in range(vNm, vNm + 8): A(f"v_mov_b32 v{i}, 0")
    A(f"s_mov_b32 s{sPub}, 1\ns_mov_b32 s{sMode}, 0\ns_mov_b32 s{sJ}, 0\ns_lshl_b32 s{sDiag}, s{sQ}, 1\ns_add_u32 s{sL}, s{sDiag}, 1\ns_mov_b32 s{sSp}, s{sDiag}")
    A(f"s_add_u32 s{sT2}, s{sPo}, 16384\nbuffer_store_dwordx4 {v(vT,4)}, v{vL16}, {ws}, s{sT2} offen sc1")
    A("s_waitcnt vmcnt(17)\ns_barrier")
    fill = []
    prevz = []
    for qb in range(2):
        for g in range(8):
            n = qb * 8 + g
            fill += pack(qb, g)
            t = f"s_add_u32 s{sT2}, s{sPo}, {(n>>2)*4096}\n" if n & 3 == 0 else ""
            fill.append(t + f"buffer_store_dwordx4 {v(Ob(2*g,qb),4)}, v{vL16}, {ws}, s{sT2} offen offset:{(n&3)*1024} sc1")
            fill += prevz
            r0, r1 = Ob(2*g, qb), Ob(2*g+1, qb)
            prevz = [f"v_mov_b64 {v(x,2)}, 0" for x in (r1, r1+2, r0, r0+2)]
    fill += ["s_nop 1"] + prevz
    qk_first(fill)
    A(f"s_waitcnt vmcnt(17) lgkmcnt(0)\ns_barrier\ns_branch {Lfirst}")
    A(f"{Lbt}:")
    bS, bP = 64, 96
    for e in range(2):
        A(f"{MF} {v(bS+8*e,4)}, {a(bk+4*(e+1),4)}, {a(bq+4*e,4)}, 0")
        A(f"{MF} {v(bS+8*e+4,4)}, {a(bk+4*e,4)}, {a(bq+4*e,4)}, 0")
    for i in range(4):
        A(f"v_subrev_u32 v{vT+2}, {i}, v28\nv_and_b32 v{vT+2}, 0x80000001, v{vT+2}\nv_bfrev_b32 v{vT+2}, v{vT+2}")
        A(f"v_cmp_eq_u32 s[{sM+2*i}:{sM+2*i+1}], 0, v{vT+2}\nv_cmp_eq_u32 s[{sM1+2*i}:{sM1+2*i+1}], 1, v{vT+2}")
    A(f"v_cmp_gt_u32 vcc, 48, v0\ns_nop 0")
    def each(fn):
        for e in range(2): A(fn(e))
    m = lambda e: vT + e
    tt = lambda e: vT + 4 + e
    l = lambda e: vT + 8 + e
    for e in (1, 0):
        s0 = bS + 8 * e
        if e == 0:
            A(f"s_or_b32 s{sT0}, s{r.sOwn}, s{sW}")
            for i in range(4): A(f"s_cselect_b64 s[{sM1+2*i}:{sM1+2*i+1}], s[{sM1+2*i}:{sM1+2*i+1}], 0")
        for i in range(4):
            A(f"v_cndmask_b32 v{s0+i}, v{vNeg}, v{s0+i}, s[{sM+2*i}:{sM+2*i+1}]")
            A(f"v_cndmask_b32 v{s0+4+i}, v{vNeg}, v{s0+4+i}, s[{sM1+2*i}:{sM1+2*i+1}]")
        A(f"v_max3_f32 v{m(e)}, v{s0}, v{s0+1}, v{s0+2}\nv_max3_f32 v{m(e)}, v{m(e)}, v{s0+3}, v{s0+4}\nv_max3_f32 v{m(e)}, v{m(e)}, v{s0+5}, v{s0+6}\nv_max_f32 v{m(e)}, v{m(e)}, v{s0+7}")
    def xl4(op, rg):
        for sw in ("v_permlane16_swap_b32", "v_permlane32_swap_b32"):
            each(lambda e: f"v_mov_b32 v{tt(e)}, v{rg(e)}")
            A("s_nop 1")
            each(lambda e: f"{sw} v{rg(e)}, v{tt(e)}")
            A("s_nop 1")
            each(lambda e: f"{op} v{rg(e)}, v{rg(e)}, v{tt(e)}")
    xl4("v_max_f32", m)
    for e in range(2):
        s0 = bS + 8 * e
        for i in range(8): A(f"v_sub_f32 v{s0+i}, v{s0+i}, v{m(e)}")
        for i in range(8): A(f"v_exp_f32 v{s0+i}, v{s0+i}")
    for e in range(2):
        s0 = bS + 8 * e
        lo, hi = (s0, s0 + 4) if e == 0 else (s0 + 4, s0)
        A(f"v_cvt_pk_bf16_f32 v{bP+4*e}, v{lo}, v{lo+1}\nv_cvt_pk_bf16_f32 v{bP+4*e+1}, v{lo+2}, v{lo+3}\nv_cvt_pk_bf16_f32 v{bP+4*e+2}, v{hi}, v{hi+1}\nv_cvt_pk_bf16_f32 v{bP+4*e+3}, v{hi+2}, v{hi+3}")
        A(f"v_add_f32 v{l(e)}, v{s0}, v{s0+1}")
        for i in range(2, 8): A(f"v_add_f32 v{l(e)}, v{l(e)}, v{s0+i}")
        for db in range(2):
            A(f"{MF} {v(s0+4*db,4)}, {a((bm if e == 0 else bv)+4*db,4)}, {v(bP+4*e,4)}, 0")
    xl4("v_add_f32", l)
    each(lambda e: f"v_rcp_f32 v{l(e)}, v{l(e)}\nv_sub_f32 v{vG+e}, 1.0, v{vG+e}\nv_mul_f32 v{l(e)}, v{l(e)}, v{vG+e}")
    A(f"s_lshl_b32 s{sT0}, s{sH}, 12\ns_add_u32 s{sT0}, s{sT0}, s74\ns_add_u32 s{sT0}, s{sT0}, {128*4096}")
    for e in range(2):
        o = bS + 8 * e
        for i in range(8): A(f"v_mul_f32 v{o+i}, v{o+i}, v{l(e)}")
        A(f"v_cvt_pk_bf16_f32 v{o}, v{o}, v{o+1}\nv_cvt_pk_bf16_f32 v{o+1}, v{o+2}, v{o+3}\nv_cvt_pk_bf16_f32 v{o+2}, v{o+4}, v{o+5}\nv_cvt_pk_bf16_f32 v{o+3}, v{o+6}, v{o+7}")
        A(f"v_cndmask_b32 v{o+2}, 0, v{o+2}, vcc\nv_cndmask_b32 v{o+3}, 0, v{o+3}, vcc")
        A(f"buffer_store_dwordx4 {v(o,4)}, v{vL16}, {ws}, s{sT0} offen offset:{e*1024} sc1")
    stamp(3)
    Lsig = A.label("F3_sig"); Lw = A.label("F3_w"); Lwx = A.label("F3_wx"); Lc = A.label("F3_c"); Lcx = A.label("F3_cx")
    def line_of(dst, tile): return f"s_and_b32 s{dst}, s{tile}, 7\ns_lshr_b32 s{sT3}, s{tile}, 3\ns_lshl_b32 s{sT3}, s{sT3}, 6\ns_or_b32 s{dst}, s{dst}, s{sT3}\ns_lshl_b32 s{dst}, s{dst}, 7\ns_add_u32 s{dst}, s{dst}, {WS_FLAG + 16}"
    A(line_of(sT2, 75))
    A(f"v_mov_b32 v{vT}, 1\ns_cmp_eq_u32 s87, 0\ns_cbranch_scc1 {Lw}\ns_waitcnt vmcnt(0)\nbuffer_atomic_add v{vT}, v{vOneL}, {ws}, s{sT2} offen sc1\ns_branch {Lst}")
    A(f"{Lw}:")
    def cload(k): return [f"s_add_u32 s{sT0}, s{sCb3}, {k*4096}"] + [f"buffer_load_dwordx4 {v(vR + 16*(k % ND) + 4*t, 4)}, v{vL16}, {ws}, s{sT0} offen offset:{t*1024} {flags('cld', 'sc1')} ; vm:c{k}" for t in range(4)]
    A("s_waitcnt vmcnt(40)")
    for k in (13, 14):
        for t in wload(k): A(t)
    A(f"v_mov_b32 v15, v{vZ}\ns_waitcnt vmcnt(8)\nbuffer_atomic_add v{vT}, v{vOneL}, {ws}, s{sT2} offen sc1")
    for t in LATE: A(t)
    A("s_waitcnt vmcnt(30)")
    for k in range(15, 21):
        for t in wload(k): A(t)
    A("s_waitcnt vmcnt(24)")
    for k in range(25, 29):
        for t in wdma(k): A(t)
    A(f"s_waitcnt vmcnt(32)")
    for k in range(5):
        for t in wload(k): A(t)
    A(f"{Lwx}:")
    for q in range(4): A(f"v_add_u32 v{9+q}, s{sL3+q}, v{vL16}")
    A(line_of(sT2, sTt))
    stamp(4)
    A(f"{Lc}:\n" + r.bound(Lcx) + f"buffer_load_dword v14, v15, {ws}, s{sT2} offen sc1\ns_waitcnt vmcnt(0)\nv_readfirstlane_b32 s{sT0}, v14\ns_nop 3\ns_cmp_lg_u32 s{sT0}, 32\ns_cbranch_scc1 {Lc}\n{Lcx}:")
    stamp(5)
    A("VMSEED")
    for k in range(ND):
        for t in cload(k): A(t)
    for k in range(36):
        A(f"WAITVM c{k}" + (f",w{k}" if k >= 29 else "") + (" lgkmcnt(0)" if k == 21 else ""))
        for u in range(4):
            for tt in range(4):
                t = tt if u % 2 == 0 else 3 - tt
                c = v(vAcc + 4*(4*u+t), 4)
                A(f"{MF} {c}, {wreg(k,u)}, {v(vR + 16*(k % ND) + 4*t, 4)}, {c if k else 0}")
        if k + ND < 36:
            for t in cload(k + ND): A(t)
        if k % 3 == 2 and 29 + k // 3 < 36:
            for t in wload(29 + k // 3): A(t)
        if 10 <= k < 18:
            kk = 21 + k - 10
            for u in range(4): A(f"ds_read_b128 {wreg(kk,u)}, v{9 + (kk-21)//2} offset:{((kk-21)&1)*4096 + u*1024}")
    A("VMEND")
    stamp(6)
    vt = 2
    A(f"v_and_b32 v{vt}, 15, v0\nv_mul_u32_u24 v{vt}, 272, v{vt}\nv_lshrrev_b32 v{vt+1}, 4, v0\nv_lshl_add_u32 v{vt}, v{vt+1}, 6, v{vt}\ns_mul_i32 s{sT0}, s{sW}, {64*272}\nv_add_u32 v{vt}, s{sT0}, v{vt}")
    A(f"v_lshrrev_b32 v{vt+1}, 2, v0\ns_lshl_b32 s{sT0}, s{sW}, 4\nv_add_u32 v{vt+1}, s{sT0}, v{vt+1}\nv_mul_u32_u24 v{vt+2}, 272, v{vt+1}\nv_and_b32 v{vt+3}, 3, v0\nv_lshl_add_u32 v{vt+2}, v{vt+3}, 6, v{vt+2}")
    A(f"v_mul_u32_u24 v{vt+4}, 896, v{vt+1}\nv_lshl_add_u32 v{vt+4}, v{vt+3}, 5, v{vt+4}")
    A(f"s_mul_i32 s{sT0}, s{sTt}, {64*896}\ns_lshl_b32 s{sT1}, s{sN}, 7\ns_add_u32 s{sT0}, s{sT0}, s{sT1}")
    A(f"s_mov_b64 s[{sK}:{sK+1}], s[{r.sOut}:{r.sOut+1}]\ns_mov_b32 s{sK+2}, {2048*896}\ns_barrier")
    for u in range(4):
        for t in range(4):
            A(f"ds_write_b128 v{vt}, {v(vAcc+4*(4*u+t),4)} offset:{t*16*272 + u*16}")
    A("s_waitcnt lgkmcnt(0)\ns_barrier")
    for p in range(4):
        for c in range(4):
            A(f"ds_read_b128 {v(vR + 16*p + 4*c, 4)}, v{vt+2} offset:{p*64*272 + c*16}")
    A("s_waitcnt lgkmcnt(8)")
    for i in range(0, 16, 2): A(f"v_pk_add_f32 {v(vR+i,2)}, {v(vR+i,2)}, {v(vR+16+i,2)}")
    A("s_waitcnt lgkmcnt(0)")
    for i in range(0, 16, 2): A(f"v_pk_add_f32 {v(vR+32+i,2)}, {v(vR+32+i,2)}, {v(vR+48+i,2)}")
    for i in range(0, 16, 2): A(f"v_pk_add_f32 {v(vR+i,2)}, {v(vR+i,2)}, {v(vR+32+i,2)}")
    for i in range(4):
        A(f"v_cvt_pk_bf16_f32 v{vR+64+2*i}, v{vR+i}, v{vR+4+i}\nv_cvt_pk_bf16_f32 v{vR+64+2*i+1}, v{vR+8+i}, v{vR+12+i}")
    A(f"buffer_store_dwordx4 {v(vR+64,4)}, v{vt+4}, s[{sK}:{sK+3}], s{sT0} offen {flags('ost', '')}\nbuffer_store_dwordx4 {v(vR+68,4)}, v{vt+4}, s[{sK}:{sK+3}], s{sT0} offen offset:16 {flags('ost', '')}")
    A(f"{Lst}:")
    if stamps:
        A("s_waitcnt vmcnt(0)")
        stamp(7)
        A("s_waitcnt lgkmcnt(0)")
        if opti("dbgst"):
            for q, x in enumerate(SR[1:]): A(f"s_sub_u32 s{x}, s{x}, s{SR[0]}")
            for q, x in enumerate(SR): A(f"v_mov_b32 v{4+q}, s{x}")
            A(f"s_xor_b32 s{sT3}, s2, 8\ns_lshr_b32 s{sT2}, s{sT3}, 1\ns_and_b32 s{sT3}, s{sT3}, 0xffbf\ns_cselect_b32 s{sT2}, 0x1000, s{sT2}\nv_mov_b32 v12, 0")
            A(f"s_mov_b64 s[{sK}:{sK+1}], s[76:77]\ns_movk_i32 s{sK+2}, 256")
            for q in range(1, 8): A(f"buffer_store_dword v{4+q}, v12, s[{sK}:{sK+3}], s{sT2} offen offset:{4*q}")
        for q, x in enumerate(SR): A(f"v_mov_b32 v{4+q}, s{x}")
        A(f"v_mov_b32 v12, 0\ns_lshl_b32 s{sT3}, s2, 5\ns_add_u32 s{sT3}, s{sT3}, {200*MB}")
        A(f"buffer_store_dwordx4 v[4:7], v12, {ws}, s{sT3} offen\nbuffer_store_dwordx4 v[8:11], v12, {ws}, s{sT3} offen offset:16")
    A(f"{Lend}:\ns_endpgm")
```

```python
from asmlib import *
from k1 import MB, WS_K, WS_V, WS_Q, WS_KB, WS_VB, WS_FLAG, WS_CTX, WS_PART, WS_WO, WS_SIZE, f32bits, LOG2E, MF
import math
SPLIT = opti("split", 19)

class R_:
    sC, sWk, sXx, sWq, sWb, sO, sG = 28, 32, 36, 40, 44, 48, 68
    sW, sWM, sWN, sI, sH, sP = 60, 61, 62, 63, 64, 65
    sT0, sT1, sT2, sT3 = 81, 82, 83, 84
    sC8 = 90
    sK, sV = 8, 12
    sQs = 20
    sQ, sJ, sL, sMode = 4, 5, 6, 7
    sOwn = 88
    sFo, sFh = 100, 101
    sKo, sVo, sWrap = 26, 27, 3
    SR = [52, 54, 56, 58, 92, 94, 96, 0]
    sOut = 98
    aQ, aF = 64, 0
    bq, bk, bv, bm = 192, 200, 212, 220
    aPark = 128
    sSp = 78
    @staticmethod
    def bound(exit_label): return f"s_add_u32 s78, s78, 1\ns_cmp_gt_u32 s78, 0x40000\ns_cbranch_scc1 {exit_label}\n"

def gen_part1(A, name, stamps, Lend):
    r = R_
    sC, sWk, sXx, sWq, sWb, sO, sG = r.sC, r.sWk, r.sXx, r.sWq, r.sWb, r.sO, r.sG
    sW, sWM, sWN, sT, sH, sP = r.sW, r.sWM, r.sWN, r.sI, r.sH, r.sP
    sT0, sT1, sT2, sT3, sC8 = r.sT0, r.sT1, r.sT2, r.sT3, r.sC8
    sXo1, sWo1, sXo2, sQo2, sBo2 = 66, 67, 72, 73, 74
    sXl, sWl = 76, 77
    sCnt, sWd, sWrs = 78, 79, 80
    sWlw1, sBl, sWls = 85, 89, 86
    sOb = 87
    sI0, sI1 = 16, 17
    sAo = 75; sBb = 91
    vLane16 = 1
    vXd1, vWd1, vXd2, vBd2 = 2, 3, 4, 6
    vWb1 = 7; vXr = 8; vWr = 16; vT = 26; vXb = 30; vWb2 = 31
    vOne0 = 24
    vPoll = 25
    WS0 = 65536
    so = f"s[{sO}:{sO+3}]"
    def stamp(i, p2=False):
        if stamps and (opti("p2st") == int(p2)): A(f"{'s_memtime' if opti('cyc') else 's_memrealtime'} s[{r.SR[i]}:{r.SR[i]+1}]")
    def acc1(i, j, isV):
        n, sec = ((8 * (i >> 1) + j, i & 1) if isV else (4 * i + (j >> 1), j & 1))
        if not sec: return v(128 + 4 * n, 4)
        return a(128 + 4 * n, 4) if n < 8 else v(32 + 4 * (n - 8), 4)
    def pk4(r0, r1, d=None):
        d = r0 if d is None else d
        return [f"v_cvt_pk_bf16_f32 v{d}, v{r0}, v{r0+1}", f"v_cvt_pk_bf16_f32 v{d+1}, v{r0+2}, v{r0+3}", f"v_cvt_pk_bf16_f32 v{d+2}, v{r1}, v{r1+1}", f"v_cvt_pk_bf16_f32 v{d+3}, v{r1+2}, v{r1+3}"]
    def pack1(n):
        r0 = 128 + 4 * n
        if n >= 8: return pk4(r0, 32 + 4 * (n - 8))
        p = pk4(r0, vT)
        return p[:2] + [f"v_accvgpr_read_b32 v{vT+q}, a{128+4*n+q}" for q in range(4)] + p[2:]
    X1 = [0, 64]; W1 = [32, 96]

    A(f".globl {name}\n.p2align 8\n.type {name},@function\n{name}:")
    A(f"s_cmp_ge_u32 s2, 256\ns_cbranch_scc1 {Lend}")
    stamp(0); stamp(0, 2)
    A("s_load_dwordx16 s[4:19], s[0:1], 0\ns_load_dwordx4 s[20:23], s[0:1], 64\ns_load_dwordx4 s[24:27], s[0:1], 88\ns_load_dwordx2 s[98:99], s[0:1], 80")
    CPE = opti("cpe", 1)
    if CPE:
        Lp = A.label("PC")
        A(f"s_getpc_b64 s[72:73]\n{Lp}:\ns_sub_u32 s72, s72, {Lp} - {name}\ns_subb_u32 s73, s73, 0\ns_bfe_u32 s74, s2, {(2 << 16) | 3}\ns_lshl_b32 s74, s74, 15\nv_lshlrev_b32 v14, 7, v0\nv_add_u32 v14, s74, v14\nv_min_u32 v14, CODE_END - {name} - 4, v14\nglobal_load_dword v15, v14, s[72:73]")
    A(f"v_lshrrev_b32 v{vT}, 6, v0\ns_nop 0\nv_readfirstlane_b32 s{sW}, v{vT}\nv_cmp_eq_u32 vcc, 0, v0\nv_and_b32 v0, 63, v0")
    A(f"s_and_b32 s{sT0}, s2, 7\ns_bfe_u32 s{sT}, s2, {(3 << 16) | 3}\ns_bfe_u32 s{sP}, s2, {(1 << 16) | 6}\ns_lshr_b32 s{sT1}, s2, 7\ns_lshl_b32 s{sH}, s{sT0}, 1\ns_add_u32 s{sH}, s{sH}, s{sT1}")
    A(f"v_mov_b32 v{vOne0}, 0x40000000\nv_cndmask_b32 v{vOne0}, v{vOne0}, 0, vcc".replace(", 0, vcc", ", 0, vcc"))
    A(f"s_lshr_b32 s{sWM}, s{sW}, 1\ns_and_b32 s{sWN}, s{sW}, 1")
    A(f"v_lshrrev_b32 v{vT}, 4, v0\ns_lshl_b32 s{sT0}, s{sWN}, 2\nv_add_u32 v{vT}, s{sT0}, v{vT}")
    A(f"v_and_b32 v{vT+1}, 7, v0\nv_xor_b32 v{vT}, v{vT}, v{vT+1}\nv_lshlrev_b32 v{vT}, 4, v{vT}")
    A(f"v_lshrrev_b32 v{vT+1}, 3, v0\ns_lshl_b32 s{sT0}, s{sW}, 3\nv_add_u32 v{vT+1}, s{sT0}, v{vT+1}")
    A(f"v_lshl_add_u32 v{vXd1}, v{vT+1}, 11, v{vT}")
    A(f"v_mul_u32_u24 v{vXd2}, 896, v{vT+1}\nv_add_u32 v{vXd2}, v{vXd2}, v{vT}")
    A(f"v_lshrrev_b32 v{vT}, 5, v0\ns_lshl_b32 s{sT0}, s{sWN}, 1\nv_add_u32 v{vT}, s{sT0}, v{vT}")
    A(f"s_lshl_b32 s{sT0}, s{sWM}, 2\nv_or_b32 v{vT+1}, s{sT0}, v{vT}\nv_lshlrev_b32 v{vT+1}, 1, v{vT+1}")
    A(f"v_and_b32 v{vT+2}, 31, v0\nv_xor_b32 v{vT+1}, v{vT+1}, v{vT+2}\nv_lshlrev_b32 v{vT+1}, 4, v{vT+1}")
    A(f"s_lshl_b32 s{sT0}, s{sWM}, 3\nv_add_u32 v{vT}, s{sT0}, v{vT}")
    A(f"v_lshl_add_u32 v{vWd1}, v{vT}, 13, v{vT+1}")
    A(f"s_lshl_b32 s{sXo1}, s{sT}, 19\ns_lshl_b32 s{sWo1}, s{sH}, 9\ns_mov_b32 s{sC8}, 0x8000")
    A(f"s_lshl_b32 s{sXl}, s{sW}, 10\ns_lshl_b32 s{sWlw1}, s{sWM}, 2\ns_add_u32 s{sWlw1}, s{sWlw1}, s{sWN}\ns_lshl_b32 s{sWlw1}, s{sWlw1}, 10\ns_mov_b32 s{sWls}, {WS0}")
    A(f"s_mov_b32 s{sC+3}, 0x00020000\ns_mov_b32 s{sWk+3}, 0x00020000\ns_mov_b32 s{sC+2}, {2048*2048}\ns_mov_b32 s{sWk+2}, {1024*8192}\ns_cmp_eq_u32 s{sP}, 0")
    A("s_waitcnt lgkmcnt(0)")
    A(f"s_mov_b64 s[{sC}:{sC+1}], s[6:7]\ns_cselect_b64 s[{sWk}:{sWk+1}], s[10:11], s[12:13]")

    def dmaX(ph, tag='x'):
        out = []
        if ph == 1:
            for p in range(8):
                out.append(f"s_add_u32 m0, s{sXl}, {p*4096}\ns_add_u32 s{sT0}, s{sXo1}, {p*32*2048}\nbuffer_load_dwordx4 v{vXd1}, s[{sC}:{sC+3}], s{sT0} offen lds ; vm:{tag}")
            out.append(f"s_add_u32 s{sXo1}, s{sXo1}, 128\ns_xor_b32 s{sXl}, s{sXl}, s{sC8}")
        else:
            for p in range(4):
                out.append(f"s_add_u32 m0, s{sXl}, {p*4096}\ns_add_u32 s{sT0}, s{sXo2}, {p*32*896}\nbuffer_load_dwordx4 v{vXd2}, s[{sXx}:{sXx+3}], s{sT0} offen lds ; vm:{tag}")
            for p in range(4):
                out.append(f"s_add_u32 m0, s{sBl}, {16384 + p*4096}\ns_add_u32 s{sT0}, s{sBo2}, {p*16*2688}\nbuffer_load_dwordx4 v{vBd2}, s[{sWb}:{sWb+3}], s{sT0} offen lds ; vm:{tag}")
            out.append(f"s_add_u32 s{sXo2}, s{sXo2}, 128\ns_add_u32 s{sBo2}, s{sBo2}, {64*2688}\ns_xor_b32 s{sXl}, s{sXl}, s{sC8}\ns_xor_b32 s{sBl}, s{sBl}, s{sC8}")
        return out
    def dmaW(ph, tag='w'):
        srd, run = (sWk, sWo1) if ph == 1 else (sWq, sQo2)
        out = [f"s_add_u32 s{sWl}, s{sWls}, s{sWlw1}"]
        for g in range(2):
            for p in range(4):
                out.append(f"s_add_u32 m0, s{sWl}, {g*2048 + p*8192}\ns_add_u32 s{sT1}, s{run}, {(4*g + 16*p)*8192}\nbuffer_load_dwordx4 v{vWd1}, s[{srd}:{srd+3}], s{sT1} offen lds ; vm:{tag}")
        out.append(f"s_add_u32 s{run}, s{run}, {64*8192}\ns_add_u32 s{sWls}, s{sWls}, s{sC8}\ns_cmp_eq_u32 s{sWls}, {WS0 + 3*0x8000}\ns_cselect_b32 s{sWls}, {WS0}, s{sWls}")
        return out
    def xr(i, ks): return a((160 if i < 4 else 192) + 8 * (i & 3) + 4 * ks, 4)
    def wr(par, j, ks): return 64 * par + 32 * ks + 4 * j
    def readsX(half): return [f"ds_read_b128 {xr(i, ks)}, v{vXr+ks} offset:{i*2048}" for i in range(4*half, 4*half+4) for ks in range(2)]
    def readsW(par): return [f"ds_read_b64_tr_b16 {a(wr(par,j,ks)+2*t,2)}, v{vWr+j} offset:{ks*16384+t*2048}" for j in range(8) for ks in range(2) for t in range(2)]
    def readsA(par):
        x = readsX(0); return x[:2] + readsW(par) + x[2:]
    def mf1(par, half, isV, first=False):
        out = []; n = 0
        for i in range(4*half, 4*half+4):
            for jj in range(8):
                j = jj if i % 2 == 0 else 7 - jj
                c = acc1(i, j, isV)
                for q, ks in enumerate((0, 1) if n % 2 == 0 else (1, 0)):
                    x, w = xr(i, ks), a(wr(par, j, ks), 4); ci = 0 if (first and q == 0) else c
                    out.append(f"{MF} {c}, {x}, {w}, {ci}" if isV else f"{MF} {c}, {w}, {x}, {ci}")
                n += 1
        return out
    advW = [f"s_add_u32 s{sWrs}, s{sWrs}, 1\ns_cmp_eq_u32 s{sWrs}, 3\ns_cselect_b32 s{sWrs}, 0, s{sWrs}\ns_cselect_b32 s{sWd}, {(-2*0x8000) & 0xffffffff}, s{sC8}"] + [f"v_add_u32 v{vWr+j}, s{sWd}, v{vWr+j}" for j in range(8)]
    advX = [f"v_xor_b32 v{vXr+i}, 0x8000, v{vXr+i}" for i in range(2)]
    def gfr(k): return a(252 - 4 * k, 4)

    for t in dmaX(1) + dmaW(1): A(t)
    sWi = sAo
    A(f"s_lshr_b32 s{sWi}, s2, 3\ns_lshl_b32 s{sWi}, s{sWi}, 2\ns_add_u32 s{sWi}, s{sWi}, s{sW}\ns_mov_b32 s{sT2}, s{sWi}")
    NCP = code_prefetch(A, name, "CODE_END", 16, sT2, 14, 15, 15) if not CPE else 0
    for t in dmaX(1) + dmaW(1): A(t)
    A(f"v_and_b32 v{vT}, 15, v0\nv_lshrrev_b32 v{vT+1}, 4, v0\nv_lshrrev_b32 v{vT+2}, 1, v{vT}\nv_xor_b32 v{vT+2}, v{vT+2}, v{vT+1}")
    A(f"v_lshlrev_b32 v{vT+2}, 4, v{vT+2}\nv_lshl_add_u32 v{vXb}, v{vT}, 7, v{vT+2}")
    A(f"v_lshrrev_b32 v{vT+2}, 2, v{vT}\nv_and_b32 v{vT+3}, 1, v{vT+1}\nv_lshl_or_b32 v{vT+3}, v{vT+3}, 2, v{vT+2}\nv_lshl_add_u32 v{vT+2}, v{vT+1}, 3, v{vT+2}")
    A(f"v_and_b32 v{vT}, 3, v0\nv_lshlrev_b32 v{vT}, 3, v{vT}\nv_lshl_add_u32 v{vT}, v{vT+3}, 5, v{vT}")
    A(f"v_lshl_add_u32 v{vWb1}, v{vT+2}, 9, v{vT}\nv_lshl_add_u32 v{vWb2}, v{vT+2}, 8, v{vT}")
    A(f"s_lshl_b32 s{sT2}, s{sWM}, 14\nv_add_u32 v{vXr}, s{sT2}, v{vXb}\nv_xor_b32 v{vXr+1}, 64, v{vXr}")
    A(f"s_lshl_b32 s{sT2}, s{sWN}, 8\ns_add_u32 s{sT2}, s{sT2}, {WS0}\nv_add_u32 v{vWr}, s{sT2}, v{vWb1}\ns_mov_b32 s{sWrs}, 0\ns_mov_b32 s{sCnt}, 1")
    for j in range(1, 8): A(f"v_xor_b32 v{vWr+j}, {j << 5}, v{vWr}")
    su0 = [f"s_mov_b32 s{q+3}, 0x00020000" for q in (sXx, sWq, sWb, sO, sG)]
    su0.append(f"s_mov_b32 s{sXx+2}, {2048*896}\ns_mov_b32 s{sWq+2}, {448*8192}\ns_mov_b32 s{sWb+2}, {448*2688}\ns_mov_b32 s{sO+2}, {WS_SIZE}\ns_mov_b32 s{sG+2}, 896")
    su0.append(f"s_mov_b64 s[{sXx}:{sXx+1}], s[4:5]\ns_mov_b64 s[{sWq}:{sWq+1}], s[8:9]\ns_mov_b64 s[{sWb}:{sWb+1}], s[18:19]\ns_mov_b64 s[{sO}:{sO+1}], s[26:27]\ns_mov_b64 s[{sG}:{sG+1}], s[22:23]")
    su0.append("s_mov_b64 s[18:19], s[14:15]\ns_mov_b64 s[0:1], s[20:21]")
    vPq, vPb, vPx = 11, 12, 10
    sPq, sPb, sPx = 5, 6, 4
    sFq, sFb, sFx = 12, 20, 8
    PF = opti("pf", 6); PFM = opti("pfm", 7)
    LW = opti("lw", 2)
    su0.append(f"s_lshl_b32 s{sT2}, s{sWi}, {LW}\nv_and_b32 v{vT}, {(1 << LW) - 1}, v0\nv_add_u32 v{vT}, s{sT2}, v{vT}\nv_min_u32 v{vT}, {(112 << LW) - 1}, v{vT}\nv_lshrrev_b32 v{vT+1}, 3, v{vT}\nv_and_b32 v{vT}, 7, v{vT}\nv_lshlrev_b32 v{vT}, 7, v{vT}\nv_lshl_add_u32 v{vPq}, v{vT+1}, 13, v{vT}")
    su0.append(f"s_and_b32 s{sT3}, s2, 7\ns_lshl_b32 s{sPq}, s{sT3}, 10\ns_mul_i32 s{sPb}, s{sT3}, 112\ns_lshl_b32 s{sPx}, s2, 2\ns_add_u32 s{sPx}, s{sPx}, s{sW}\ns_mul_i32 s{sPx}, s{sPx}, {2*896}\nv_min_u32 v{vPx}, 13, v0\nv_lshlrev_b32 v{vPx}, 7, v{vPx}\ns_sub_u32 s{sPx}, s{sPx}, {opti('xd', 0) * 0x1000000}")
    su0.append(f"v_mul_u32_u24 v{vPb}, 2688, v{vT+1}\nv_lshrrev_b32 v{vT+1}, 8, v{vT}\nv_min_u32 v{vT+1}, 2, v{vT+1}\nv_mul_u32_u24 v{vT+1}, 896, v{vT+1}\nv_add_u32 v{vPb}, v{vPb}, v{vT+1}\nv_bfe_u32 v{vT+1}, v{vT}, 7, 1\nv_mul_u32_u24 v{vT+1}, 116, v{vT+1}\nv_add_u32 v{vPb}, v{vPb}, v{vT+1}")
    allst = [(sFx, sXx, vPx, sPx, 0x1000000), (sFq, sWq, vPq, sPq, (14 << LW)*8192), (sFb, sWb, vPb, sPb, (14 << LW)*2688)]
    streams = [x for k, x in enumerate(allst) if PF and PFM >> k & 1]
    for f, src, vo, run, step in streams:
        su0.append(f"s_mov_b64 s[{f}:{f+1}], s[{src}:{src+1}]\ns_mov_b32 s{f+2}, 0\ns_mov_b32 s{f+3}, 0x00020000\ns_sub_u32 s{run}, s{run}, {(PF-2)*step}")
    su0.append(f"s_lshl_b32 s{r.sFo}, s2, 7\ns_add_u32 s{r.sFo}, s{r.sFo}, {WS_FLAG}\ns_and_b32 s{r.sFh}, s2, 0x87\ns_lshl_b32 s{r.sFh}, s{r.sFh}, 7\ns_add_u32 s{r.sFh}, s{r.sFh}, {WS_FLAG + 12}")
    su0.append(f"v_mov_b64 v[{vT}:{vT+1}], 0\nv_mov_b64 v[{vT+2}:{vT+3}], 0\nv_lshlrev_b32 v{vLane16}, 4, v0")
    zst = [f"buffer_store_dwordx4 v[{vT}:{vT+3}], v{vOne0}, {so}, s{r.sFo} offen sc1", f"buffer_store_dwordx4 v[{vT}:{vT+3}], v{vOne0}, {so}, s{r.sFo} offen offset:16 sc1", f"buffer_load_dword v13, v{vLane16}, s[{sG}:{sG+3}], 0 offen"]
    NPF = len(streams)
    def pf():
        if not streams: return []
        out = [f"s_cmp_eq_u32 s{sCnt}, {PF}\n" + "\n".join(f"s_cselect_b32 s{f+2}, s{src+2}, s{f+2}" for f, src, vo, run, step in streams)]
        for f, src, vo, run, step in streams:
            out.append(f"buffer_load_dword v13, v{vo}, s[{f}:{f+3}], s{run} offen\ns_add_u32 s{run}, s{run}, {step}")
        return out
    su1 = [f"s_lshl_b32 s{sQo2}, s{sH}, 9",
           f"v_lshrrev_b32 v{vT}, 4, v0\ns_lshl_b32 s{sT2}, s{sWN}, 2\nv_or_b32 v{vT+1}, s{sT2}, v{vT}\nv_lshlrev_b32 v{vT+1}, 1, v{vT+1}",
           f"v_and_b32 v{vT+2}, 15, v0\nv_xor_b32 v{vT+1}, v{vT+1}, v{vT+2}",
           f"s_lshl_b32 s{sT2}, s{sWN}, 1\ns_add_u32 s{sT2}, s{sT2}, s{sWM}\ns_lshl_b32 s{sT3}, s{sT2}, 2\nv_add_u32 v{vT}, s{sT3}, v{vT}\ns_lshl_b32 s{sBl}, s{sT2}, 10",
           f"v_lshrrev_b32 v{vT+2}, 2, v{vT+1}\nv_add_u32 v{vT+3}, 1, v{vT+2}\nv_and_b32 v{vT+3}, 4, v{vT+3}\nv_mul_u32_u24 v{vT+2}, 896, v{vT+2}\nv_lshl_add_u32 v{vT+2}, v{vT+3}, 28, v{vT+2}",
           f"v_and_b32 v{vT+1}, 3, v{vT+1}\nv_lshl_add_u32 v{vT+2}, v{vT+1}, 4, v{vT+2}",
           f"v_mul_u32_u24 v{vBd2}, 2688, v{vT}\nv_add_u32 v{vBd2}, v{vBd2}, v{vT+2}",
           f"s_sub_u32 s{sT2}, 15, s{sT}\ns_cmp_eq_u32 s{sP}, 1\ns_cselect_b32 s{r.sOwn}, s{sT2}, s{sT}",
           f"s_mul_i32 s{sXo2}, s{r.sOwn}, {128*896}\ns_mul_i32 s{sBo2}, s{sH}, 56",
           f"s_lshl_b32 s{sOb}, s{sH}, 7\ns_lshl_b32 s{sT3}, s{sT}, 4\ns_add_u32 s{sOb}, s{sOb}, s{sT3}\ns_lshl_b32 s{sT3}, s{sWM}, 3\ns_add_u32 s{sOb}, s{sOb}, s{sT3}\ns_lshl_b32 s{sOb}, s{sOb}, 13",
           f"s_add_u32 s{sT2}, s{sP}, 12\ns_lshl_b32 s{sT3}, s{sWN}, s{sT2}\ns_add_u32 s{sOb}, s{sOb}, s{sT3}\ns_lshl_b32 s{sT3}, s{sP}, 24\ns_add_u32 s{sOb}, s{sOb}, s{sT3}",
           f"s_lshl_b32 s{sT3}, s{sP}, 12\ns_sub_u32 s{sI0}, 8192, s{sT3}\ns_add_u32 s{sI1}, 8192, s{sT3}",
           f"s_lshl_b32 s{sBb}, s{sH}, 7\ns_lshl_b32 s{sT3}, s{r.sOwn}, 3\ns_add_u32 s{sBb}, s{sBb}, s{sT3}\ns_lshl_b32 s{sT3}, s{sW}, 1\ns_add_u32 s{sBb}, s{sBb}, s{sT3}"]
    if opti("p2z") & 1: su1.append(f"s_mov_b32 s{sXx+2}, 0\ns_mov_b32 s{sWq+2}, 0\ns_mov_b32 s{sWb+2}, 0")
    if opti("p2z") & 4: su1.append(f"s_mov_b32 s{sWb+2}, 0")
    if opti("p2z") & 2: su1.append(f"s_add_u32 s{sOb}, s{sOb}, 0x40000000")
    gl = [f"v_and_b32 v{vPoll}, 48, v0", f"s_mov_b64 s[8:9], s[{sG}:{sG+1}]", "s_movk_i32 s10, 896", "s_mov_b32 s11, 0x00020000"] + [f"buffer_load_dwordx4 {gfr(ks)}, v{vPoll}, s[8:11], 0 offen offset:{ks*64}" for ks in range(8)]
    gl2 = [f"buffer_load_dwordx4 {gfr(ks)}, v{vPoll}, s[8:11], 0 offen offset:{ks*64} ; vm:g" for ks in range(8, 14)]
    A(f"s_waitcnt vmcnt({16+NCP})\ns_barrier")
    stamp(1); stamp(1, 2)
    for t in readsA(0): A(t)
    LVe = A.label("F_Ve"); Lph2 = A.label("F_ph2")
    A(f"s_cmp_eq_u32 s{sP}, 1\ns_cbranch_scc1 {LVe}")
    def st1(n):
        t = f"buffer_store_dwordx4 {v(128+4*n,4)}, v{vLane16}, {so}, s{sOb} offen offset:{(n&3)*1024} sc1 ; vm:st"
        if n & 3 == 3: t += f"\ns_add_u32 s{sOb}, s{sOb}, s{sI0 if (n >> 2) % 2 == 0 else sI1}"
        return t
    NE = opti("ne", 12)

    vBr = 10
    def setup2():
        t = [f"s_lshl_b32 s{sT2}, s{sW}, 12\nv_add_u32 v{vXr}, s{sT2}, v{vXb}\nv_xor_b32 v{vXr+1}, 64, v{vXr}", f"v_add_u32 v{vWr}, {WS0 + 0x8000}, v{vWb1}"]
        t += [f"v_xor_b32 v{vWr+j}, {j << 5}, v{vWr}" for j in range(1, 8)]
        t += [f"v_add_u32 v{vBr}, 16384, v{vWb2}"] + [f"v_xor_b32 v{vBr+u}, {u << 5}, v{vBr}" for u in range(1, 6)]
        return t
    def adv2(stage):
        d = 0x8000 if (stage + 1) % 3 else -2 * 0x8000
        return [f"v_xor_b32 v{vXr+i}, 0x8000, v{vXr+i}" for i in range(8)] + [f"v_add_u32 v{vWr+j}, 0x{d & 0xffffffff:x}, v{vWr+j}" for j in range(8)]
    MIGK = opti("migk", 8)
    def mig_k(j): return MIGK - 2 + (j % 4)
    def accq(j, e, k=99):
        if j >= 11:
            n = 2*(j-11) + e
            return ("v", 40 + 4*n if n < 2 else 64 + 4*(n-2))
        return ("a", 64 + 4 * (2*j + e)) if k <= mig_k(j) else ("v", 128 + 4 * (2*j + e))
    def accb(u, e): return (96 + 16 * e + 4 * u) if u < 4 else (48 + 8 * e + 4 * (u - 4))
    def xfrag(k, e): return a((160 + 8 * (k & 1) if k < 13 else 176) + 4 * e, 4)
    def ring(n): return 4 * (n % 16)
    def frag_reads(k, q, n):
        ks = k & 1; d = ring(n)
        if q < 16: return [f"ds_read_b64_tr_b16 {a(d+2*t,2)}, v{vWr+(q&7)} offset:{ks*16384 + t*2048 + (q>>3)*256}" for t in range(2)]
        return [f"ds_read_b64_tr_b16 {a(d+2*t,2)}, v{vBr+q-16} offset:{ks*8192 + t*1024}" for t in range(2)]
    def x_reads(k): return [f"ds_read_b128 {xfrag(k, e)}, v{vXr+(k&1)} offset:{e*2048}" for e in range(2)]
    def step_mf(k, q, n):
        first = k == 0; out = []
        for e in ((1, 0) if (opti("sn", 1) and q & 1 == 0) else (0, 1)):
            if q < 0:
                c = v(32 + 4*e, 4); out.append((f"{MF} {c}, {gfr(k)}, {xfrag(k,e)}, {0 if first else c}", [f"x{k}.1"]))
                continue
            w = a(ring(n), 4)
            if q < 16: kk, rr = accq(q, e, k); c = rng(kk, rr, 4)
            else: c = v(accb(q-16, e), 4)
            ci = 0 if first else c
            out.append((f"{MF} {c}, {xfrag(k,e)}, {w}, {ci}" if q >= 20 else f"{MF} {c}, {w}, {xfrag(k,e)}, {ci}", [f"f{k}.{q}.1"]))
        return out
    RA = opti("ra", 6); NPRE = opti("npre", 3); BP = 92 - 2 * opti("rb", 4) - 1
    def rd_items(k, q, n): return [(f"f{k}.{q}.{t}", x) for t, x in enumerate(frag_reads(k, q, n))]
    def xr_items(k): return [(f"x{k}.{e}", x) for e, x in enumerate(x_reads(k))]
    def pre_reads(st):
        k = 2 * st
        if st < 6: return xr_items(k) + [y for q in range(NPRE) for y in rd_items(k, q, 44*st + q)]
        return xr_items(k) + xr_items(k + 1) + [y for n in range(NPRE) for y in rd_items(k + (n & 1), n >> 1, 44*st + n)]

    for isV in (0, 1):
        Lloop = A.label("F_loop")
        def partA(t, extra, first=False):
            interleave(A, mf1((t-1) & 1, 1, isV, first), sched(64, [(readsA(t & 1), 0, 50)] + extra))
        def partB(t, dw, first=False, extra=[]):
            A("s_waitcnt lgkmcnt(0)")
            interleave(A, mf1(t & 1, 0, isV, first), sched(64, [(readsX(1) + advX + advW, 0, 50), (dw, 0, 60)] + extra))
        if isV: A(f"{LVe}:")
        partB(0, dmaW(1), True, [(su0, 0, 58), (zst, 61, 63)])
        A("s_waitcnt vmcnt(11) lgkmcnt(0)\ns_barrier")
        stamp(2, 2)
        partA(1, [(dmaX(1), 0, 60)], True)
        partB(1, dmaW(1))
        A(f"s_mov_b32 s{sCnt}, 2\ns_waitcnt vmcnt(8) lgkmcnt(0)\ns_barrier")
        stamp(3, 2)
        A(f".p2align 6\n{Lloop}:")
        if opti("p2st") == 2:
            Lq = A.label("q"); A(f"s_cmp_lg_u32 s{sCnt}, 6\ns_cbranch_scc1 {Lq}"); stamp(4, 2); A(f"{Lq}:")
        for t in (2, 3):
            partA(t, [(dmaX(1) + pf(), 0, 63)])
            partB(t, dmaW(1))
            A(f"s_add_u32 s{sCnt}, s{sCnt}, 1\ns_cmp_lt_u32 s{sCnt}, 14\ns_waitcnt vmcnt({8+NPF}) lgkmcnt(0)\ns_barrier")
        A(f"s_cbranch_scc1 {Lloop}")
        stamp(5, 2)
        partA(14, [(dmaX(1) + gl, 0, 63), (su1, 0, 63)])
        partB(14, dmaW(2))
        A(f"s_waitcnt vmcnt(16) lgkmcnt(0)\ns_barrier")
        init = [f"s_mov_b64 s[{sG}:{sG+1}], s[24:25]", f"s_movk_i32 s{sG+2}, 256", f"s_lshl_b32 s{sT3}, s{sT}, 12", f"v_mov_b32 v{vT}, 1", f"buffer_atomic_add v{vT}, v{vOne0}, s[{sG}:{sG+3}], s{sT3} offen sc1"]
        partA(15, [(dmaX(2) + init, 0, 63)])
        grp = lambda q: [x for n in (range(8*q+7, 8*q-1, -1) if isV else range(8*q, 8*q+8)) for x in pack1(n)]
        partB(15, dmaW(2), extra=[(grp(0), 40, 63)])
        A(f"s_waitcnt vmcnt(9) lgkmcnt(0)\ns_barrier")
        stamp(2); stamp(0, True); stamp(6, 2)
        st = [even(setup2(), 0, 16), even(dmaX(2), 0, opti('nes', 22) - 2) + even([st1(n) for n in range(NE)], opti('nes', 22), 63), [(x, 50, 63, 52 + k, "") for k, (i_, x) in enumerate(pre_reads(0))],
              even(grp(1), 4, 30) + even(grp(2), 40, 63)]
        interleave(A, mf1(1, 1, isV), [(p, t) for p, k, t in sched3(64, st)])
        if not isV: A(f"s_branch {Lph2}")
    A(f"{Lph2}:")
    A(f"VMSEED w17*8 x17*8 st*{NE}")
    stamp(1, True)
    stq = [st1(n) for n in range(NE, 32)]
    per = [int(x) for x in opt("trk", "7/7/6").split("/")]
    lastp = [x for n in range(31, 23, -1) for x in pack1(n)]
    sK, sV = r.sK, r.sV
    att = [f"s_lshl_b32 s{sT2}, s{sT}, 1", f"s_sub_u32 s{sT3}, 32, s{sT2}",
           f"s_min_u32 s{r.sL}, s{sT3}, {SPLIT}",
           f"s_lshl_b32 s{r.sWrap}, s{sT3}, 15",
           f"s_cmp_gt_u32 s{sT3}, {SPLIT}\ns_cselect_b32 s{r.sMode}, 1, 0",
           f"s_and_b32 s{r.sQs+2}, s{r.sMode}, s{sP}", f"s_mul_i32 s{r.sQs+2}, s{r.sQs+2}, {WS_SIZE}",
           f"s_mov_b64 s[{r.sQs}:{r.sQs+1}], s[{sO}:{sO+1}]", f"s_mov_b32 s{r.sQs+3}, 0x00020000",
           f"s_lshl_b32 s{r.sMode}, s{r.sMode}, s{sP}",
           f"s_sub_u32 s{r.sQ}, 15, s{sT}",
           f"s_cmp_eq_u32 s{r.sMode}, 1\ns_cselect_b32 s{r.sQ}, s{r.sQ}, s{r.sOwn}\ns_cselect_b32 s{r.sJ}, {SPLIT}, 0\ns_cselect_b32 s{r.sWrap}, s{r.sWrap}, -1",
           f"s_add_u32 s{sT2}, s{sT2}, 2",
           f"s_cmp_eq_u32 s{sP}, 1\ns_cselect_b32 s{r.sL}, s{r.sL}, s{sT2}",
           f"s_lshl_b32 s{sK+2}, s{r.sL}, 15",
           f"s_cmp_eq_u32 s{r.sMode}, 1\ns_cselect_b32 s{r.sL}, s{sT3}, s{r.sL}\ns_cselect_b32 s{sK+2}, {MB}, s{sK+2}",
           f"s_sub_u32 s{r.sL}, s{r.sL}, 1", f"s_mov_b32 s{sV+2}, s{sK+2}", f"s_mov_b32 s{sK+3}, 0x00020000", f"s_mov_b32 s{sV+3}, 0x00020000",
           f"s_lshl_b32 s{sT2}, s{sH}, 20",
           f"s_add_u32 s{sK}, s{sO}, s{sT2};@\ns_addc_u32 s{sK+1}, s{sO+1}, 0;@\ns_add_u32 s{sV}, s{sK}, {WS_V};@\ns_addc_u32 s{sV+1}, s{sK+1}, 0",
           f"s_lshl_b32 s{r.sVo}, s{r.sJ}, 15", f"s_add_u32 s{r.sKo}, s{r.sVo}, s{sC8}",
           f"s_cmp_eq_u32 s{r.sKo}, s{r.sWrap}\ns_cselect_b32 s{r.sKo}, 0, s{r.sKo}",
           f"s_lshl_b32 s{sT2}, s{sW}, 13", f"v_add_u32 v2, s{sT2}, v{vLane16}", f"v_add_u32 v5, 4096, v2", f"s_mov_b32 s{sXo1}, s{sT2}"]
    def atomic_items(l): return [(t.replace(";@", ""), ) for t in l]
    def evenk(items, lo, hi):
        n = len(items); return [(t.replace(";@", ""), lo, hi, lo + (k + 0.5) * (hi - lo + 1) / n - 0.5, "") for k, t in enumerate(items)]
    def kv(srd, sof, lds, tag):
        out = []
        for p in range(8):
            if p % 4 == 0: out.append(f"s_add_u32 m0, s{sXo1}, {lds + p*1024}\ns_nop 0")
            out.append(f"buffer_load_dwordx4 v{2 if p < 4 else 5}, s[{srd}:{srd+3}], s{sof} offen offset:{(p&3)*1024} {flags('kvld', 'sc1')} lds ; vm:{tag}")
        return out
    scale_setup = [f"v_mov_b32 v{vT}, 0x{f32bits(LOG2E/16.0):08x}", f"v_mov_b32 v{vT+1}, v{vT}", f"v_mov_b32 v{vT+2}, 0x{f32bits(LOG2E/math.sqrt(28.0)):08x}", f"v_mov_b32 v{vT+3}, v{vT+2}", "v_cmp_gt_u32 vcc, 48, v0",
                   f"s_lshl_b32 s{sAo}, s{sBb}, 13", f"s_add_u32 s{sAo}, s{sAo}, {WS_Q}", f"s_add_u32 s{sWd}, s{sAo}, 8192", f"s_lshl_b32 s{sBb}, s{sBb}, 10"]
    def qepi(ds):
        out = []
        for e in range(2):
            regs = []
            for j in (2*ds, 2*ds+1):
                kk, rr = accq(j, e)
                if kk == "a":
                    tb = 128 + 16 * (ds % 4) + 8 * e + 4 * (j & 1)
                    out += [f"v_accvgpr_read_b32 v{tb+q}, a{rr+q}" for q in range(4)]; rr = tb
                regs.append(rr)
            for rr in regs: out += [f"v_pk_mul_f32 {v(rr+2*q,2)}, {v(rr+2*q,2)}, {v(vT,2)}" for q in range(2)]
            out.append(("R", regs))
        res = [x for x in out if not isinstance(x, tuple)]
        for e, regs in enumerate([x[1] for x in out if isinstance(x, tuple)]):
            res += pk4(regs[0], regs[1])
            res += [f"v_accvgpr_write_b32 a{r.aQ+4*(2*ds+e)+q}, v{regs[0]+q}" for q in range(4)]
            if ds == 4: res.append(f"s_add_u32 s{sAo if e == 0 else sWd}, s{sAo if e == 0 else sWd}, 4096")
            res.append(f"buffer_store_dwordx4 {v(regs[0],4)}, v{vLane16}, s[{r.sQs}:{r.sQs+3}], s{sAo if e == 0 else sWd} offen offset:{(ds&3)*1024} sc1 ; vm:q")
        return res

    sW1, sW2 = sC, sWk
    sWoS = (22 + 52, 23 + 52)
    wos = [f"s_and_b32 s{sT2}, s2, 63", f"s_lshr_b32 s{sT3}, s2, 7", f"s_lshl_b32 s{sT3}, s{sT3}, 6", f"s_or_b32 s{sT2}, s{sT2}, s{sT3}", f"s_lshl_b32 s{sT2}, s{sT2}, 2", f"s_add_u32 s{sT2}, s{sT2}, s{sW}",
           f"s_mul_hi_u32 s{sT3}, s{sT2}, {(2**32 + 6)//7}", f"s_mul_i32 s16, s{sT3}, {32*896 - 7*128}", f"s_lshl_b32 s{sT3}, s{sT2}, 7", f"s_add_u32 s16, s16, s{sT3}", f"s_add_u32 s17, s16, {16*896}",
           f"s_add_u32 s{sT2}, s{sT2}, 512", f"s_mul_hi_u32 s{sT3}, s{sT2}, {(2**32 + 6)//7}", f"s_mul_i32 s24, s{sT3}, {32*896 - 7*128}", f"s_mul_i32 s25, s{sT3}, {28*896 - 7*128}", f"s_sub_u32 s25, s25, {128*28*896}",
           f"s_mov_b64 s[{sW1}:{sW1+1}], s[18:19]", f"s_mov_b32 s{sW1+2}, {4096*896}",
           f"s_cmp_ge_u32 s{sT3}, 128\ns_cselect_b32 s24, s25, s24\ns_cselect_b64 s[{sW2}:{sW2+1}], s[0:1], s[18:19]\ns_cselect_b32 s{sW2+2}, {448*896}, s{sW1+2}",
           f"s_lshl_b32 s{sT3}, s{sT2}, 7", f"s_add_u32 s24, s24, s{sT3}", f"s_add_u32 s25, s24, {16*896}",
           f"s_cmp_eq_u32 s{sP}, 1\ns_cselect_b32 s{sW1+2}, 0, s{sW1+2}\ns_cselect_b32 s{sW2+2}, 0, s{sW2+2}",
           f"v_lshrrev_b32 v{vXb}, 4, v0", f"v_mul_u32_u24 v{vXb}, {4*896}, v{vXb}", f"v_and_b32 v{vT+3}, 15, v0", f"v_lshl_add_u32 v{vXb}, v{vT+3}, 3, v{vXb}"]
    wol = [f"buffer_load_dwordx2 {v(216+16*tk+2*jj,2)}, v{vXb}, s[{(sW1, sW2)[tk]}:{(sW1, sW2)[tk]+3}], s{(16, 24)[tk] + (jj >> 2)} offen offset:{(jj&3)*896} ; vm:wo" for tk in range(2) for jj in range(8)]
    SG = len(per)
    order = [i_ for i_, x in pre_reads(0)]; done = -1
    Lsp1 = A.label("F_sp1"); Lsp1r = A.label("F_sp1r"); Lsp2 = A.label("F_sp2"); Lsp2r = A.label("F_sp2r")
    for st in range(7):
        t = 16 + st
        k0 = 2 * st
        if st < 6:
            seq = [(k, q) for k in (k0, k0 + 1) for q in range(-1, 22)]
        else:
            seq = [(k0, -1), (k0 + 1, -1)] + [(k, q) for q in range(22) for k in (k0, k0 + 1)]
        frs = [x for x in seq if x[1] >= 0]
        slot = {x: 44 * st + n for n, x in enumerate(frs)}
        posd = {x: 2 * n for n, x in enumerate(seq)}
        ms = []
        for (k, q) in seq: ms += step_mf(k, q, slot.get((k, q)))
        rd = []
        for n, (k, q) in enumerate(frs):
            if n < NPRE: continue
            if st < 6 and k & 1 and q == 0:
                for i_, x in xr_items(k): rd.append((x, 2, 40, posd[(k, q)] - 2*RA - 2, "rd:" + i_))
            lo = 0 if n < 16 else posd[frs[n - 16]] + 1
            d = min(max(posd[(k, q)] - 2*RA, (n - NPRE) + 0.0), BP - 5 - (43 - n) * 1.0)
            for tt, (i_, x) in enumerate(rd_items(k, q, slot[(k, q)])): rd.append((x, lo, min(posd[(k, q)] - 3, BP - 4), max(lo, d + 0.5 * tt), "rd:" + i_))
        nxt = []
        if st < 6:
            nxt = even(adv2(t), BP - 3, BP + 1) + [(x, BP + 1, 91, BP + 1.5 + k * 0.7, "rd:" + i_) for k, (i_, x) in enumerate(pre_reads(st + 1))]
        mine = [stq.pop(0) for _ in range(per[st])] if st < len(per) else []
        strs = [rd + nxt]
        vm = []
        if st >= 1 and t + 1 <= 22: vm += dmaX(2, f"x{t+1}")
        if st == 0: vm += gl2
        vm += mine
        if st == 2: vm += [f"v_mov_b32 v{vPoll}, 0", f"buffer_load_dword v{vPoll}, v{vPoll}, s[{sG}:{sG+3}], 0 offen sc1 ; vm:pi"]
        if t + 2 <= 22: vm += dmaW(2, f"w{t+2}")
        PKP = opti("pkp", 75); CK = opti("ck", 16)
        if st == 5:
            strs.append([(f"v_mov_b32 v{vPoll}, 0", PKP, PKP, PKP, ""), (f"buffer_load_dword v{vPoll}, v{vPoll}, {so}, s{r.sFh} offen sc1 ; vm:pk", PKP + 1, PKP + 1, PKP + 1, "")])
        if st == 6: strs.append(even(kv(sK, r.sVo, 0x8000, "k0"), CK + 1, CK + 20) + even(wol, CK + 22, BP - 2))
        if vm: strs.append(even(vm, 0, BP - 2 if st != 5 else PKP - 2))
        mg = []
        for (k, q) in frs:
            if q < 11 and k == mig_k(q):
                p0 = posd[(k, q)] + 1 + 8
                mg += [(f"v_accvgpr_read_b32 v{128+8*q+x}, a{64+8*q+x}", p0, min(91, p0 + 30), p0 + x, "") for x in range(8)]
        if mg: strs.append(mg)
        if st == 0: strs.append(even(lastp, 0, 26))
        if st == 1: strs.append(evenk(att, 2, 88))
        if st == 4: strs.append(evenk(wos, 2, BP - 2))
        if st == 5: strs.append(even(scale_setup, BP + 5, 91))
        sync = {6: "WAITVM k0 lgkmcnt(0)\ns_barrier"}.get(st, f"WAITVM x{t+1},w{t+1} lgkmcnt(0)\ns_barrier")
        fixed = [(BP, "sync", sync)] + [(g, "ph", "s_waitcnt") for g in range(3, BP - 2, 4)]
        if st == SG:
            fixed.append((BP + 2, "", f"v_readfirstlane_b32 s{sT2}, v{vPoll}\nv_mov_b32 v{vT}, 1\ns_cmp_lt_u32 s{sT2}, 32\ns_cbranch_scc1 {Lsp1}\n{Lsp1r}:\nbuffer_atomic_add v{vT}, v{vOne0}, {so}, s{r.sFh} offen sc1 ; vm:at"))
        if st == 6:
            fixed.append((CK, "", f"WAITVM pk\nv_readfirstlane_b32 s{sT2}, v{vPoll}\ns_nop 0\ns_cmp_lg_u32 s{sT2}, 16\ns_cbranch_scc1 {Lsp2}\n{Lsp2r}:"))
        if st == 6:
            ep = []
            for ds in range(8):
                dn = posd[(k0 + 1, 2*ds + 1)] + 1 + 8
                l = qepi(ds)
                ep += [(x, dn, 91, min(91, dn + ds * 0.8 + 9.0 * k / len(l)), "") for k, x in enumerate(l)]
            strs.append(ep)
            strs.append(even(kv(sK, r.sKo, 0, "k1"), BP + 1, 91))
        pl = sched3(92, strs, fixed)
        ev = {}
        for p, k, x in pl:
            if k != "ph": ev.setdefault(p, []).append((k, x))
        def need(g):
            nonlocal done
            if g >= 92: return
            idx = max(order.index(x) for x in ms[g][1])
            if idx > done:
                if g % 4 == 0 and g + 2 < 92 and all(x in order for x in ms[g+2][1]): idx = max(idx, max(order.index(x) for x in ms[g+2][1]))
                cnt = len(order) - 1 - idx
                assert cnt <= 15, cnt
                A(f"s_waitcnt lgkmcnt({cnt})"); done = idx
        need(0)
        for g in range(92):
            A(ms[g][0])
            lst = ev.get(g, [])
            if not any(k == "sync" for k, x in lst): need(g + 1)
            for k, x in lst:
                A(x)
                if k.startswith("rd:"): order.append(k[3:])
                elif k == "sync": done = len(order) - 1
        if st == 5: stamp(3); stamp(7, 2)
        if st < 6: stamp(2 + st, True)
    assert not stq
    A(f"v_mul_f32 v32, 0x{f32bits(-LOG2E):08x}, v32\nv_mul_f32 v33, 0x{f32bits(-LOG2E):08x}, v36\nv_exp_f32 v32, v32\nv_exp_f32 v33, v33\nv_mov_b32 v34, v{vT+2}\nv_add_f32 v32, 1.0, v32\nv_add_f32 v33, 1.0, v33\nv_rcp_f32 v32, v32\nv_rcp_f32 v33, v33")
    be = [f"s_add_u32 s{sT2}, s{sBb}, {WS_KB}", f"s_add_u32 s{sT3}, s{sBb}, {WS_VB}", "v_cmp_gt_u32 vcc, 48, v0"]
    r0, r1 = accb(2, 1), accb(3, 1)
    be += pk4(r0, r1) + [f"buffer_store_dwordx4 {v(r0,4)}, v{vLane16}, {so}, s{sT2} offen offset:1024 sc1"] + [f"v_accvgpr_write_b32 a{r.bk+8+q}, v{r0+q}" for q in range(4)]
    for db in range(2):
        r0, r1 = accb(4+db, 0), accb(4+db, 1)
        be += pk4(r0, r1) + [f"buffer_store_dwordx4 {v(r0,4)}, v{vLane16}, {so}, s{sT3} offen offset:{db*1024} sc1"]
        be += [f"v_accvgpr_write_b32 a{r.bv+4*db+q}, v{r0+q}" for q in range(4)] + [f"v_accvgpr_write_b32 a{r.bm+4*db+q}, v{r0+q}" for q in range(2)]
    r0, r1 = accb(2, 0), accb(3, 0)
    be += pk4(r0, r1) + [f"v_accvgpr_write_b32 a{r.bk+4+q}, v{r0+q}" for q in range(4)]
    for e in range(2):
        r0, r1 = accb(0, e), accb(1, e)
        be += [f"v_mul_f32 v{r0+q}, v34, v{r0+q}" for q in range(8)] + pk4(r0, r1)
        be += [f"v_cndmask_b32 v{r0+2}, 0, v{r0+2}, vcc", f"v_cndmask_b32 v{r0+3}, 0, v{r0+3}, vcc"] + [f"v_accvgpr_write_b32 a{r.bq+4*e+q}, v{r0+q}" for q in range(4)]
    vdma = kv(sV, r.sVo, WS0 + 2*0x8000, "v0") + kv(sV, 72, WS0, "v1")
    A("VMEND")
    def spins():
        A(f"{Lsp1}:\n" + r.bound(Lsp1r) + f"v_mov_b32 v{vPoll}, 0\nbuffer_load_dword v{vPoll}, v{vPoll}, s[{sG}:{sG+3}], 0 offen sc1\ns_waitcnt vmcnt(0)\nv_readfirstlane_b32 s{sT2}, v{vPoll}\ns_nop 3\ns_cmp_lt_u32 s{sT2}, 32\ns_cbranch_scc1 {Lsp1}\ns_branch {Lsp1r}")
        A(f"{Lsp2}:\n" + r.bound(Lsp2r) + f"v_mov_b32 v{vPoll}, 0\nbuffer_load_dword v{vPoll}, v{vPoll}, {so}, s{r.sFh} offen sc1\ns_waitcnt vmcnt(0)\nv_readfirstlane_b32 s{sT2}, v{vPoll}\ns_nop 3\ns_cmp_lg_u32 s{sT2}, 16\ns_cbranch_scc1 {Lsp2}\ns_branch {Lsp2r}")
    return dict(spins=spins, sBb=sBb, be=be, vdma=vdma)
```

```python
from asmlib import *
from k1 import MB, WS_K, WS_V, WS_Q, WS_KB, WS_VB, WS_FLAG, WS_CTX, WS_PART, WS_WO, WS_SIZE, f32bits, LOG2E, MF
from f1a import R_, gen_part1, SPLIT

R = opti("R", 12)
WG = opti("wg", 4)
NK0 = opti("nk0", 8)
SN = opti("sn", 2)
MPOS = 24
PART_STRIDE = 17 * 1024

def gen_f1(A, name="f1_kernel", stamps=False):
    Lend = A.label("F_end")
    p1 = gen_part1(A, name, stamps, Lend)
    r = R_
    sK, sV, sWS = r.sK, r.sV, r.sO
    sW, sH, sI, sTy = r.sW, r.sH, r.sI, r.sP
    sKo, sWrap = r.sKo, r.sWrap
    sKl, sVl = 28, 29
    sVs, sVrs, sVd = 30, 31, 32
    sQ, sJ, sL, sMode = r.sQ, r.sJ, r.sL, r.sMode
    sDiag, sPub, sPo, sFp, sFn = 33, 34, 35, 44, 45
    sFo = r.sFo
    sT0, sT1, sT2, sT3 = r.sT0, r.sT1, r.sT2, r.sT3
    sC8 = r.sC8
    sM = 36; sM1 = 66
    sBb = p1["sBb"]
    SR = r.SR
    vL16, vDm, vKr, vVr, vBase, vD, vNeg = 1, 2, 3, 4, 27, 6, 7
    vT = 8
    vG = 32; vTs = 34; vLs = 38; vNm = 40
    vP = 48; vS = 64; vp = 96; vO = 128
    aQ = r.aQ; aF = r.aF
    VS0 = 65536
    BIG = 0x40000000
    def stamp(i):
        if opti("st1"): i = {1: 4, 2: 5, 5: 6, 7: 7}.get(i)
        if stamps and not opti("p2st") and i is not None: A(f"{'s_memtime' if opti('cyc') else 's_memrealtime'} s[{SR[i]}:{SR[i]+1}]")
    def Ob(db, qb): return vO + 4 * (2 * db + qb)
    def Sb(kb, qb): return vS + 4 * (2 * kb + qb)
    def pb(kb, qb): return vp + 4 * (2 * kb + qb)
    def Pf(ks, qb): return vP + 4 * (2 * ks + qb)
    def fr(f): return a(aF + 4 * (f % 16), 4)
    def kmap(f): return (f & 3, f >> 2) if SN == 1 else (f >> 3, f & 7)
    def vmap(f): return (f & 1, f >> 1) if SN == 2 else (f >> 4, f & 15)
    def pairs(f):
        if SN != 2: return [(f, qb) for qb in qo(f)]
        qa = (f >> 1) & 1
        return [(f, qa), (f + 1, qa)] if f % 2 == 0 else [(f, 1 - qa), (f - 1, 1 - qa)]
    def qo(f): return (1, 0) if (SN and f & 1) else (0, 1)
    def rdK(f): return f"ds_read_b128 {fr(f)}, v{vKr} offset:{(8*kmap(f)[0] + kmap(f)[1])*1024}"
    def rdV(f): return f"ds_read_b128 {fr(f)}, v{vVr} offset:{(16*vmap(f)[0] + vmap(f)[1])*1024}"

    vDm2 = 5
    sVn, sVe, sVb = sVs, sVrs, sVd
    def dma(kind, so=sKo):
        srd, lb = (sK, sKl) if kind == "K" else (sV, sVl)
        out = []
        for p in range(8):
            if p == 0: out.append(f"s_mov_b32 m0, s{lb}\ns_nop 0" if kind == "K" else f"s_mov_b32 m0, s{lb}\ns_nop 0")
            if p == 4: out.append(f"s_add_u32 m0, s{lb}, 4096\ns_nop 0")
            out.append(f"buffer_load_dwordx4 v{vDm if p < 4 else vDm2}, s[{srd}:{srd+3}], s{so} offen offset:{(p&3)*1024} {flags('kvld', 'sc1')} lds")
        out.append(f"s_xor_b32 s{lb}, s{lb}, s{sC8}" if kind == "K" else f"s_mov_b32 s{sVl}, s{sVn}")
        return out
    def nonop(l): return [x.replace("\ns_nop 0", "") for x in l]
    advO = f"s_add_u32 s{sKo}, s{sKo}, s{sC8}\ns_cmp_eq_u32 s{sKo}, s{sWrap}\ns_cselect_b32 s{sKo}, 0, s{sKo}"
    nextV = f"s_add_u32 s{sVn}, s{sVl}, s{sC8}\ns_cmp_eq_u32 s{sVn}, s{sVe}\ns_cselect_b32 s{sVn}, s{sVb}, s{sVn}"
    setVr = f"v_add_u32 v{vVr}, s{sVn}, v26"
    advK = f"v_xor_b32 v{vKr}, 0x8000, v{vKr}"

    ABL = [0]
    def phase(mf, events, pre):
        order = list(range(pre))
        done = -1
        def emit(lst):
            nonlocal done
            for kind, text in lst:
                ab = opt("abl", "") if ABL[0] else ""
                skip = ("e" in ab and text.startswith("v_exp")) or ("a" in ab and text.startswith("v_add_f32")) or ("c" in ab and text.startswith("v_cvt")) or ("d" in ab and text.startswith("buffer_load")) or ("r" in ab and text.startswith("ds_read")) or ("b" in ab and "s_barrier" in text)
                if not skip: A(text)
                if kind.startswith("rd:"): order.append(int(kind[3:]))
                elif kind == "rdx": order.append(-1)
                elif kind == "sync": done = len(order) - 1
        def need_wait(f):
            nonlocal done
            if f < 32 and max(order.index(f), order.index(f | 1)) > done:
                need = max(order.index(f), order.index(f | 1))
                for g in range(f + 1, min(32, (f // WG + 1) * WG)):
                    if g in order: need = max(need, order.index(g))
                cnt = len(order) - 1 - need
                assert cnt <= 15
                A(f"s_waitcnt lgkmcnt({cnt})"); done = need
        emit(events.get(-1, []))
        need_wait(0)
        for f in range(32):
            m = mf(f)
            A(m[0]); emit(events.get(2 * f, []))
            A(m[1])
            lst = events.get(2 * f + 1, [])
            if not any(k == "sync" for k, t in lst): need_wait(f + 1)
            emit(lst)
    def add_ev(ev, items):
        for p, k, t in items: ev.setdefault(p, []).append((k, t))
    def mfQK(f):
        out = []
        for n, (g, qb) in enumerate(pairs(f)):
            kb, ds = kmap(g)
            first = (ds == 0) if SN != 2 else (ds < 2 and n == 0)
            out.append(f"{MF} {v(Sb(kb,qb),4)}, {fr(g)}, {a(aQ+4*(2*ds+qb),4)}, {v(vNm+4*qb,4) if first else v(Sb(kb,qb),4)}")
        return out
    def mfPV(f):
        return [f"{MF} {v(Ob(vmap(g)[1],qb),4)}, {fr(g)}, {v(Pf(vmap(g)[0],qb),4)}, {v(Ob(vmap(g)[1],qb),4)}" for g, qb in pairs(f)]
    def cvts():
        out = []
        for ks in range(2):
            for qb in range(2):
                for hh in range(2):
                    src = pb(2*ks+hh, qb)
                    out.append(f"v_cvt_pk_bf16_f32 v{Pf(ks,qb)+2*hh}, v{src}, v{src+1}")
                    out.append(f"v_cvt_pk_bf16_f32 v{Pf(ks,qb)+2*hh+1}, v{src+2}, v{src+3}")
        return out
    def xl_reduce(op, r, t):
        return (f"v_mov_b32 v{t}, v{r}\ns_nop 1\nv_permlane16_swap_b32 v{r}, v{t}\ns_nop 1\n{op} v{r}, v{r}, v{t}\n"
                f"v_mov_b32 v{t}, v{r}\ns_nop 1\nv_permlane32_swap_b32 v{r}, v{t}\ns_nop 1\n{op} v{r}, v{r}, v{t}")
    def mask_block():
        A(f"s_sub_u32 s{sT0}, s{sJ}, s{sDiag}\ns_lshl_b32 s{sT0}, s{sT0}, 6\nv_subrev_u32 v{vD}, s{sT0}, v{vBase}")
        for c in range(-1, 4):
            for i in range(4):
                A(f"v_cmp_gt_i32 s[{sM+2*i}:{sM+2*i+1}], {16*c+i}, v{vD}")
            A("s_nop 0")
            for i in range(4):
                for qb in range(2):
                    kb = c + qb
                    if 0 <= kb < 4:
                        x = Sb(kb, qb) + i
                        A(f"v_cndmask_b32 v{x}, v{x}, v{vNeg}, s[{sM+2*i}:{sM+2*i+1}]")
    def slow(first):
        for qb in range(2):
            m = vT + qb
            regs = [Sb(kb, qb) + i for kb in range(4) for i in range(4)]
            A(f"v_max3_f32 v{m}, v{regs[0]}, v{regs[1]}, v{regs[2]}")
            for x in range(3, 15, 2): A(f"v_max3_f32 v{m}, v{m}, v{regs[x]}, v{regs[x+1]}")
            A(f"v_max_f32 v{m}, v{m}, v{regs[15]}")
            A(xl_reduce("v_max_f32", m, vT + 2))
            if not first: A(f"v_max_f32 v{m}, 0, v{m}")
            for i in range(4): A(f"v_sub_f32 v{vNm+4*qb+i}, v{vNm+4*qb+i}, v{m}")
            if not first:
                A(f"v_sub_f32 v{vT+4+qb}, 0, v{m}\nv_exp_f32 v{vT+4+qb}, v{vT+4+qb}\ns_nop 0\nv_mul_f32 v{vLs+qb}, v{vLs+qb}, v{vT+4+qb}")
                for db in range(16):
                    for i in range(4): A(f"v_mul_f32 v{Ob(db,qb)+i}, v{Ob(db,qb)+i}, v{vT+4+qb}")
            for kb in range(4):
                for i in range(4): A(f"v_sub_f32 v{pb(kb,qb)+i}, v{Sb(kb,qb)+i}, v{m}")
            for kb in range(4):
                for i in range(4): A(f"v_exp_f32 v{pb(kb,qb)+i}, v{pb(kb,qb)+i}")
            A("s_nop 0")
            t = vTs + 2 * qb
            A(f"v_add_f32 v{t}, v{pb(0,qb)}, v{pb(0,qb)+1}")
            for x in range(2, 16): A(f"v_add_f32 v{t}, v{t}, v{pb(x>>2,qb)+(x&3)}")

    ws = f"s[{sWS}:{sWS+3}]"
    vFlag, vZ, vOneL = 30, 29, 24
    A(f"s_lshl_b32 s{sT0}, s{sW}, 13\ns_add_u32 s{sKl}, s{sT0}, 0x8000\ns_add_u32 s{sVb}, s{sT0}, {VS0}\ns_add_u32 s{sVl}, s{sVb}, 0x8000\ns_add_u32 s{sVe}, s{sVb}, {3*0x8000}\nv_subrev_u32 v26, s{sT0}, v{vL16}")
    A(f"v_add_u32 v{vKr}, 0x8000, v{vL16}\nv_mov_b32 v{vNeg}, 0x{f32bits(-1e30):08x}\nv_mov_b32 v{vZ}, 0\nv_mov_b64 v[{vFlag}:{vFlag+1}], 0\ns_mov_b32 s{sPub}, 0\ns_lshl_b32 s{sDiag}, s{sQ}, 1")
    A(f"s_mov_b32 s72, s{sKo}")
    A(advO)
    if opti("dbgst"): A(f"s_mov_b64 s[76:77], s[{r.sG}:{r.sG+1}]")
    A(f"v_and_b32 v{vT}, 15, v0\nv_lshrrev_b32 v28, 4, v0\nv_lshlrev_b32 v28, 2, v28\nv_sub_u32 v28, v{vT}, v28\ns_lshl_b32 s{sT0}, s{sW}, 5\nv_add_u32 v{vBase}, s{sT0}, v28")
    A(f"v_cmp_eq_u32 vcc, 0, v0\nv_mov_b32 v{vOneL}, {BIG}\ns_xor_b32 s{sFp}, s{sFo}, {64 << 7}\nv_cndmask_b32 v{vOneL}, v{vOneL}, 0, vcc")
    A(f"s_and_b32 s{sT0}, s2, 63\ns_lshr_b32 s{sT1}, s2, 7\ns_lshl_b32 s{sT1}, s{sT1}, 6\ns_or_b32 s{sT0}, s{sT0}, s{sT1}\ns_lshl_b32 s{sT0}, s{sT0}, 2\ns_add_u32 s46, s{sT0}, s{sW}\ns_mul_i32 s{sPo}, s46, {PART_STRIDE}\ns_add_u32 s{sPo}, s{sPo}, {WS_PART}")
    A(f"s_add_u32 s{sT0}, s{r.sOwn}, 1\ns_sub_u32 s{sT1}, 23, s{sT0}\ns_cmp_ge_u32 s{sT0}, 8\ns_cselect_b32 s{sT1}, s{sT1}, s{sT0}\ns_lshl_b32 s{sT1}, s{sT1}, 10\ns_add_u32 s{sFn}, s{r.sFh}, s{sT1}\ns_sub_u32 s{sFn}, s{sFn}, 8")
    A(f"s_cmp_eq_u32 s{sT0}, 16\ns_cselect_b32 s{sFn}, {BIG}, s{sFn}\ns_cmp_lg_u32 s{sW}, 3\ns_cselect_b32 s{sFn}, {BIG}, s{sFn}")
    A(f"s_or_b32 s{sT0}, s{sTy}, s{sW}\ns_cselect_b32 s79, {BIG}, 0\ns_add_u32 s79, s79, {WS_FLAG + 20}\ns_mov_b32 s80, {WS_FLAG + 20}")
    sTt, sN, sWb3, sCb3, sL3, sSp = 16, 17, 18, 19, 20, 24
    WT = opti('wt', 0)
    if opti("map", 2) == 2:
        k3a = [f"s_and_b32 s25, s2, 1", f"s_lshl_b32 s25, s25, 2", f"s_lshr_b32 s87, s2, 6", f"s_add_u32 s{sN}, s25, s87", f"s_add_u32 s25, s25, s{sI}",
               f"s_cmp_eq_u32 s87, 3\ns_cselect_b32 s{sN}, 3, s{sN}\ns_cselect_b32 s{sTt}, s25, s{sI}",
               f"s_bfe_u32 s25, s2, {(2 << 16) | 1}", f"s_lshl_b32 s25, s25, 3", f"s_add_u32 s{sTt}, s{sTt}, s25", f"s_cmp_ge_u32 s2, 224\ns_cselect_b32 s87, 1, 0"]
    elif opti("map", 2) == 1:
        k3a = [f"s_lshr_b32 s{sN}, s2, 7", f"s_lshl_b32 s{sN}, s{sN}, 3", f"s_add_u32 s{sN}, s{sN}, s{sI}", f"s_and_b32 s25, s{sN}, 1", f"s_lshr_b32 s{sN}, s{sN}, 1",
               f"s_cmp_ge_u32 s{sN}, 6\ns_cselect_b32 s87, s{sTy}, 0", f"s_cmp_eq_u32 s{sN}, 7\ns_cselect_b32 s{sTt}, 1, s{sTy}\ns_cselect_b32 s{sN}, 6, s{sN}",
               f"s_lshl_b32 s{sTt}, s{sTt}, 1", f"s_add_u32 s{sTt}, s{sTt}, s25", f"s_and_b32 s25, s2, 7", f"s_lshl_b32 s25, s25, 2", f"s_add_u32 s{sTt}, s{sTt}, s25"]
    else:
        k3a = [f"s_and_b32 s{sN}, s2, 7", f"s_lshl_b32 s{sTt}, s{sN}, 2", f"s_bfe_u32 s{sN}, s2, {(2 << 16) | 3}", f"s_add_u32 s{sTt}, s{sTt}, s{sN}", f"s_lshr_b32 s{sN}, s2, 5", f"s_cmp_ge_u32 s2, 224\ns_cselect_b32 s87, 1, 0"]
    k3s = k3a + [f"s_mul_i32 s25, s{sW}, {36*4096}",
           f"s_mul_i32 s{sWb3}, s{sN}, {144*4096}", f"s_add_u32 s{sWb3}, s{sWb3}, s25", f"s_add_u32 s{sWb3}, s{sWb3}, {WS_WO}", f"s_mul_i32 s{sCb3}, s{sTt}, {144*4096}", f"s_add_u32 s{sCb3}, s{sCb3}, s25", f"s_add_u32 s{sCb3}, s{sCb3}, {WS_CTX}",
           f"s_mov_b32 s85, {BIG}", f"v_lshlrev_b32 v25, 7, v0", f"s_lshr_b32 s86, s2, 7", f"s_lshl_b32 s86, s86, 3", f"s_add_u32 s86, s86, s{sI}", f"s_lshl_b32 s86, s86, 2", f"s_add_u32 s86, s86, s{sW}", f"s_lshl_b32 s86, s86, 13", f"s_add_u32 s86, s86, {WS_WO}",
           f"s_cmp_lg_u32 s87, 0\ns_cselect_b32 s{sWb3}, {BIG}, s{sWb3}",
           f"s_sub_u32 s{sSp}, s{sL}, 1", f"s_cmp_eq_u32 s{sMode}, 1\ns_cselect_b32 s{sSp}, s{sL}, s{sSp}", f"s_cmp_eq_u32 s{sTy}, {1 if WT else 5}\ns_cselect_b32 s{sSp}, {WT - 2}, s{sSp}",
           f"s_lshl_b32 s75, s{r.sOwn}, 1", f"s_add_u32 s75, s75, s{r.sWM}", f"s_mul_i32 s74, s75, {144*4096}", f"s_lshl_b32 s25, s{r.sWN}, 11", f"s_add_u32 s74, s74, s25", f"s_add_u32 s74, s74, {WS_CTX}"]
    vAcc, vR, vW = 16, 80, 176
    ND = 6
    AB = [128, 144, 160, 176, 240, 64, 80, 96, 112, 0, 16, 32, 48, 192, 208, 224]
    def wreg(k, u):
        if k < 16: return a(AB[k] + 4*u, 4)
        if k < 21: return v(vW + 16*(k-16) + 4*u, 4)
        if k < 29: return a(AB[7 + k - 21] + 4*u, 4)
        return a(AB[k - 29] + 4*u, 4)
    def wload(k, tmp=25): return [f"s_add_u32 s{tmp}, s{sWb3}, {k*4096}"] + [f"buffer_load_dwordx4 {wreg(k,u)}, v{vL16}, {ws}, s{tmp} offen offset:{u*1024} {flags('wld', 'sc1')} ; vm:w{k}" for u in range(4)]
    def wdma(k): return [f"s_add_u32 m0, s{sL3 + (k-21)//2}, {((k-21)&1)*4096}", f"s_add_u32 s25, s{sWb3}, {k*4096}"] + [f"buffer_load_dwordx4 v{vL16}, {ws}, s25 offen offset:{u*1024} {flags('wld', 'sc1')} lds" for u in range(4)]
    for i in range(vNm, vNm + 8, 2): A(f"v_mov_b64 {v(i,2)}, 0")
    Lloop = A.label("F2_loop"); Lqk = A.label("F2_qk"); Ltail = A.label("F2_tail"); Lfirst = A.label("F2_first")
    Lslow = A.label("F2_slow"); Lback = A.label("F2_back"); Lnm0 = A.label("F2_nm0"); Lnm1 = A.label("F2_nm1"); LA = A.label("F2_A"); Lnopark = A.label("F2_np"); Lpq = A.label("F2_pq"); Lnp2 = A.label("F2_np2")
    A(f"s_cmp_eq_u32 s{sTy}, 1\ns_cbranch_scc1 {LA}")
    for tk in range(2):
        so_ = 74 + tk
        if tk: A("s_add_u32 s46, s46, 512")
        A(f"s_mul_hi_u32 s47, s46, {(2**32 + 6)//7}\ns_mul_i32 s{sT0}, s47, 7\ns_sub_u32 s{sT0}, s46, s{sT0}")
        A(f"s_mul_i32 s{so_}, s{sT0}, 144\ns_add_u32 s{so_}, s{so_}, s47\ns_lshl_b32 s{so_}, s{so_}, 12\ns_add_u32 s{so_}, s{so_}, {WS_WO}\ns_cmp_ge_u32 s46, 1008\ns_cselect_b32 s{so_}, {BIG}, s{so_}")
    A(f"s_cmp_lg_u32 s{sMode}, 1\ns_cbranch_scc1 {Lnopark}")
    for q in range(64): A(f"v_accvgpr_mov_b32 a{r.aPark+q}, a{aQ+q}")
    Lpqx = A.label("F2_pqx")
    A(f"{Lpq}:\n" + r.bound(Lpqx) + f"buffer_load_dword v{vFlag}, v{vZ}, {ws}, s{sFo} offen offset:8 sc1\ns_waitcnt vmcnt(0)\nv_readfirstlane_b32 s{sT0}, v{vFlag}\ns_nop 3\ns_cmp_lg_u32 s{sT0}, 4\ns_cbranch_scc1 {Lpq}\n{Lpqx}:")
    A(f"s_lshl_b32 s{sT2}, s{sH}, 7\ns_lshl_b32 s{sT3}, s{sQ}, 3\ns_add_u32 s{sT2}, s{sT2}, s{sT3}\ns_lshl_b32 s{sT3}, s{sW}, 1\ns_add_u32 s{sT2}, s{sT2}, s{sT3}\ns_lshl_b32 s{sT2}, s{sT2}, 13\ns_add_u32 s{sT2}, s{sT2}, {WS_Q}")
    for f in range(16):
        A(f"buffer_load_dwordx4 {a(aQ+4*(2*(f&7)+(f>>3)),4)}, v{vL16}, {ws}, s{sT2} offen offset:{(f&3)*1024} sc1")
        if f & 3 == 3: A(f"s_add_u32 s{sT2}, s{sT2}, 4096")
    A(f"s_branch {Lnp2}\n{Lnopark}:\nWAITVMS wo\n{Lnp2}:")
    A(f"s_mov_b32 s{sT2}, 0x05040100\ns_mov_b32 s{sT3}, 0x07060302")
    for tk in range(2):
        for c in range(4):
            for m in range(4):
                A(f"v_perm_b32 v{184+16*tk+4*c+m}, v{216+16*tk+2*(2*m+1)+(c>>1)}, v{216+16*tk+2*(2*m)+(c>>1)}, s{sT2 if c % 2 == 0 else sT3}")
    for tk in range(2):
        for c in range(4): A(f"buffer_store_dwordx4 {v(184+16*tk+4*c,4)}, v{vL16}, {ws}, s{74+tk} offen offset:{c*1024} sc1")
    A("s_waitcnt vmcnt(8)")
    A(f"{LA}:")
    stamp(1)
    def qk_first(fill, more=[]):
        pl = [x for x in sched3(64, [[(rdK(f), max(0, 2*((f-16)|1)+1), 2*(f-R)+3, 2*(f-R)+1, f"rd:{f}") for f in range(R, 32)] + [(advK, 2*(31-R)+4, 63, 2*(31-R)+4, "")], even(fill, 0, 63)] + more)]
        ev = {}
        add_ev(ev, [(-1, f"rd:{f}", rdK(f)) for f in range(R)])
        add_ev(ev, pl)
        phase(mfQK, ev, 0)
    zf = [f"v_mov_b64 {v(i,2)}, 0" for i in range(vO, vO + 128, 2)]
    A(f"v_mov_b32 v{vT}, 1\ns_cmp_eq_u32 s{sMode}, 2\ns_cselect_b32 s{sT0}, s{sFp}, {BIG}")
    QS = opti("qs", 8)
    be = p1["be"]; nb = max(k for k, x in enumerate(be) if x.startswith("buffer_store")) + 1
    qk_first(zf, [[("WAITVMS q", QS, QS, QS, ""), (f"buffer_atomic_add v{vT}, v{vOneL}, {ws}, s{sT0} offen offset:8 sc1", QS + 1, QS + 1, QS + 1, "")] + even(be[:nb], QS + 2, 30) + even(p1["vdma"], 31, 63), even(be[nb:], 31, 63), even(k3s, 0, 63)])
    A(f"s_waitcnt vmcnt(16) lgkmcnt(0)")
    A(f"buffer_atomic_add v{vT}, v{vOneL}, {ws}, s{sFn} offen sc1\ns_barrier")
    bq, bk, bv, bm = r.bq, r.bk, r.bv, r.bm
    A(f"{Lfirst}:")
    Ldis = A.label("F2_dis")
    if opti("cp3", 0): A(code_pf_items(A, Ldis, "CODE_END", 76, 25, f"s_mov_b32 s25, s{sW}", 22, 23, 3))
    for f in range(NK0): A(rdK(f))
    A(f"s_cmp_lt_u32 s{sJ}, s{sDiag}\ns_cbranch_scc1 {Lnm0}")
    mask_block()
    A(f"{Lnm0}:")
    slow(True)
    A(f"v_mov_b32 v{vLs}, 0\nv_mov_b32 v{vLs+1}, 0\nv_mov_b32 v{vT+1}, 1\ns_cmp_eq_u32 s{sPub}, 0\ns_waitcnt vmcnt({9 + opti('cp3', 0)})\ns_barrier\nbuffer_atomic_add v{vT+1}, v{vOneL}, {ws}, s79 offen sc1\ns_mov_b32 s79, {BIG}\ns_cbranch_scc1 {Lback}")
    A(f"s_mov_b32 s{sPub}, 0\ns_waitcnt vmcnt(0)\nbuffer_atomic_add v{vT+1}, v{vOneL}, {ws}, s{sFp} offen sc1\ns_branch {Lback}")
    p1["spins"]()
    A(f"{Lslow}:")
    slow(False)
    A(f"s_branch {Lback}")
    Lmask = A.label("F2_mask")
    A(f"{Lmask}:\ns_nop 7")
    mask_block()
    A(f".p2align 6\n{Lloop}:")
    if opti("itst"): A("s_memtime s[76:77]")
    def wait_load(upto=32):
        return [(2*f-1, "ph", "s_waitcnt") for f in range(WG, upto, WG)]
    drop = lambda pl: [x for x in pl if x[1] != "ph"]
    own = lambda rd, f0: [(rd(f), max(0, 2*((f-16)|1)+1), max(2*(f-R)+3, f - f0 + 2), max(2*(f-R)+1, f - f0), f"rd:{f}") for f in range(f0, 32)]
    PK = opti("pk", 0)
    els = [(kb, qb, i) for kb in range(4) for qb in range(2) for i in range(4)]
    sm = []; seen = set(); pend = []
    for x, (kb, qb, i) in enumerate(els):
        sm.append(f"v_exp_f32 v{pb(kb,qb)+i}, v{Sb(kb,qb)+i}")
        sm += pend; pend = []
        if PK:
            if i & 1:
                t = vTs + 2*qb; rr = pb(kb, qb) + i - 1
                if t in seen: pend = [f"v_pk_add_f32 {v(t,2)}, {v(t,2)}, {v(rr,2)}"]
                elif i == 3: pend = [f"v_pk_add_f32 {v(t,2)}, {v(rr-2,2)}, {v(rr,2)}"]; seen.add(t)
        else:
            t = vTs + 2*qb + (i & 1); rr = pb(kb, qb) + i
            if t in seen: pend = [f"v_add_f32 v{t}, v{t}, v{rr}"]
            elif i >= 2: pend = [f"v_add_f32 v{t}, v{rr-2}, v{rr}"]; seen.add(t)
    VE = opti("ve", 57)
    chk = [f"v_add_f32 v{vTs}, v{vTs}, v{vTs+1}"] + pend + [f"v_add_f32 v{vTs+2}, v{vTs+2}, v{vTs+3}", f"v_max_f32 v{vT}, v{vTs}, v{vTs+2}", f"v_cmp_nge_f32 vcc, 0x44800000, v{vT}"]
    kd_ = [2*MPOS + 2*f if f < 4 else VE + 1 + (f - 4) * (62.0 - VE) / max(1, NK0 - 4) for f in range(NK0)]
    kx = [(rdK(f), max(2*MPOS, 2*((f+16)|1)+1), 63, kd_[f], "rdx") for f in range(NK0)]
    pl = drop(sched3(64, [own(rdV, R), kx, even(sm, 0, VE) + even(chk, VE + 1, 61)], wait_load(MPOS) + [(2*MPOS-1, "sync", f"s_waitcnt vmcnt({10 if WT else 9}) lgkmcnt(0)\ns_barrier"),
              (61, "", f"s_cmp_eq_u32 s{sJ}, s{sSp}"), (62, "", f"s_cselect_b64 s[{sM}:{sM+1}], -1, vcc"), (63, "", f"s_cmp_lg_u64 s[{sM}:{sM+1}], 0")]))
    ev = {}
    add_ev(ev, pl)
    assert max(p for p, k, t in pl if k.startswith("rd:")) < 2*MPOS - 4
    assert max(p for p, k, t in pl if t.startswith("v_cmp_nge")) <= 61
    ABL[0] = 1
    phase(mfPV, ev, R)
    Lsp = A.label("F2_sp")
    if opti("itst"): A(f"s_mov_b32 m0, s{sJ}\ns_nop 1\nv_writelane_b32 v25, s76, m0")
    A(f"s_cbranch_scc1 {Lsp}")
    A(f"{Lqk}:")
    ladd = [f"v_add_f32 v{vLs}, v{vLs}, v{vTs}", f"v_add_f32 v{vLs+1}, v{vLs+1}, v{vTs+2}"]
    poll = f"buffer_load_dwordx2 v[{vFlag}:{vFlag+1}], v{vZ}, {ws}, s{sFo} offen sc1"
    def qk_phase(dm):
        ko = own(rdK, NK0)
        lastk = 2*(31-R)+3
        vx = [(advK, lastk, 63, lastk, "")] + [(rdV(f), max(lastk, 2*((f+16)|1)+1), 63, 2*(32-R+f)+1, "rdx") for f in range(R)]
        pl = drop(sched3(64, [ko + vx, even(dm, 0, 61), even(ladd + [nextV, setVr] + cvts(), 0, 44)], wait_load() + [(50, "", f"s_add_u32 s{sJ}, s{sJ}, 1"), (63, "last", f"s_cmp_lt_u32 s{sJ}, s{sDiag}")]))
        assert not any(p == 63 and t.startswith("s_") and k != "last" for p, k, t in pl), [x for x in pl if x[0] == 63]
        for x in range(len(pl) - 1):
            if "m0" in pl[x][2] and pl[x][0] == pl[x+1][0] and pl[x+1][2].startswith("buffer_load"):
                pl[x] = (pl[x][0], pl[x][1], pl[x][2] + "\ns_nop 0")
        ev = {}
        add_ev(ev, pl)
        phase(mfQK, ev, NK0)
        A(f"s_cbranch_scc1 {Lloop}\ns_branch {Lmask}")
    qk_phase(nonop(dma("K")) + nonop(dma("V")) + [advO, poll] + ([f"buffer_load_dword v22, v25, {ws}, s85 offen", f"s_add_u32 s85, s85, {64*8192}"] if WT else []))
    ABL[0] = 0
    Lend1 = A.label("F2_e1"); Lw1 = A.label("F2_w1"); Lw2 = A.label("F2_w2"); Lwc = A.label("F2_wc"); Lwd = A.label("F2_wd")
    wpoll = f"buffer_load_dword v23, v{vZ}, {ws}, s80 offen sc1"
    def wcheck(L0, L1): A(f"{L0}:\nv_readfirstlane_b32 s{sT0}, v23\ns_nop 3\ns_cmp_eq_u32 s{sT0}, 128\ns_cbranch_scc1 {L1}\n" + r.bound(L1) + wpoll + f"\ns_waitcnt vmcnt(0)\ns_branch {L0}\n{L1}:")
    A(f"{Lsp}:\ns_cbranch_vccnz {Lslow}\n{Lback}:\ns_cmp_lg_u32 s{sJ}, s{sSp}\ns_cbranch_scc1 {Lqk}")
    A(f"{Ldis}:\ns_cmp_eq_u32 s{sJ}, s{sL}\ns_cbranch_scc1 {Ltail}\ns_add_u32 s{sT0}, s{sJ}, 1\ns_cmp_eq_u32 s{sT0}, s{sL}\ns_cbranch_scc1 {Lend1}")
    A(f"s_cmp_eq_u32 s{sJ}, {WT}\ns_cbranch_scc1 {Lw1}\n{wpoll}\ns_mov_b32 s{sSp}, {WT}\ns_branch {Lqk}")
    A(f"{Lw1}:\ns_sub_u32 s{sSp}, s{sL}, 1")
    wcheck(Lwc, Lwd)
    A(f"s_mov_b32 s85, s86\ns_branch {Lqk}")
    Lh = A.label("F2_h"); Lhs = A.label("F2_hs")
    A(f"{Lend1}:\ns_mov_b32 s{sSp}, s{sL}\ns_cmp_eq_u32 s{r.sOwn}, 0\ns_cselect_b32 s{sT1}, 1, 0\ns_or_b32 s{sT1}, s{sT1}, s{sW}\ns_lshl_b32 s{sT2}, s{sMode}, 1")
    A(f"{Lhs}:\ns_waitcnt vmcnt(0)\nv_readfirstlane_b32 s46, v{vFlag}\nv_readfirstlane_b32 s47, v{vFlag+1}\ns_nop 1\ns_or_b32 s47, s47, s{sT1}\ns_cmp_eq_u32 s46, s{sT2}\ns_cselect_b32 s47, s47, 0\ns_cmp_lg_u32 s47, 0\ns_cbranch_scc1 {Lh}")
    A(r.bound(Lh) + poll + f"\ns_branch {Lhs}\n{Lh}:")
    A(f"s_add_u32 s{sT2}, s{sBb}, {WS_KB - 1024}\ns_add_u32 s{sT3}, s{sBb}, {WS_VB - 2048}\ns_or_b32 s{sT0}, s{r.sOwn}, s{sW}\ns_cselect_b32 s{sT2}, s{sT2}, {BIG}\ns_cselect_b32 s{sT3}, s{sT3}, {BIG}")
    A(f"s_cmp_eq_u32 s{sMode}, 2\ns_cselect_b32 s{sPo}, s{sPo}, {BIG}\ns_mov_b32 s{sL3+2}, s{sKl}\ns_mov_b32 s{sL3+3}, s{sVl}\ns_xor_b32 s{sL3}, s{sKl}, s{sC8}")
    dm = [wpoll, f"s_add_u32 s{sT0}, s{sPo}, 16384", f"buffer_load_dwordx4 v[14:17], v{vL16}, {ws}, s{sT0} offen sc1"]
    for n in range(16):
        if n % 4 == 0: dm += [f"s_add_u32 m0, s{sL3 + 2 + (n >> 3)}, {(n & 4) * 1024}", f"s_add_u32 s{sT0}, s{sPo}, {n * 1024}"]
        dm.append(f"buffer_load_dwordx4 v{vL16}, {ws}, s{sT0} offen offset:{(n&3)*1024} sc1 lds")
    dm += [f"buffer_load_dwordx4 {a(bk,4)}, v{vL16}, {ws}, s{sT2} offen sc1"] + [f"buffer_load_dwordx2 {a(bm+4*db+2,2)}, v{vL16}, {ws}, s{sT3} offen offset:{db*1024+8} sc1" for db in range(2)]
    dm += [f"s_mov_b32 s{sVl}, s{sVn}", f"s_mov_b32 s{sL3+1}, s{sVn}"]
    qk_phase(dm)
    def pv_last(fill):
        ev = {}
        add_ev(ev, [(2*(f-R)+1, f"rd:{f}", rdV(f)) for f in range(R, 32)])
        add_ev(ev, [(p, "", t) for p, t in fill])
        phase(mfPV, ev, R)
    def pack(qb, g):
        r0, r1 = Ob(2*g, qb), Ob(2*g+1, qb)
        return [f"v_cvt_pk_bf16_f32 v{r0}, v{r0}, v{r0+1}", f"v_cvt_pk_bf16_f32 v{r0+1}, v{r0+2}, v{r0+3}", f"v_cvt_pk_bf16_f32 v{r0+2}, v{r1}, v{r1+1}", f"v_cvt_pk_bf16_f32 v{r0+3}, v{r1+2}, v{r1+3}"]
    Lt1 = A.label("K2_t1"); Lt0 = A.label("K2_t0"); Lst = A.label("K2_store"); Lbt = A.label("F2_bt")
    perm = [(ks, 2*g + d) for g in range(8) for ks in range(2) for d in range(2)]
    def rdV2(f): return rdV(f) if SN == 2 else f"ds_read_b128 {fr(f)}, v{vVr} offset:{(16*perm[f][0] + perm[f][1])*1024}"
    def mfPV2(f):
        if SN == 2: return mfPV(f)
        ks, db = perm[f]
        return [f"{MF} {v(Ob(db,qb),4)}, {fr(f)}, {v(Pf(ks,qb),4)}, {v(Ob(db,qb),4)}" for qb in qo(f)]
    A(f"{Ltail}:")
    stamp(2)
    A(nextV); A(setVr)
    A(f"s_cmp_eq_u32 s{sMode}, 1\ns_cbranch_scc1 {Lt1}")
    for f in range(R): A(rdV2(f))
    for t in ladd: A(t)
    for t in cvts(): A(t)
    if opti("itst"): A(f"v_lshlrev_b32 v22, 2, v0\ns_lshl_b32 s{sT3}, s2, 8\ns_add_u32 s{sT3}, s{sT3}, {201*MB}\nbuffer_store_dword v25, v22, {ws}, s{sT3} offen")
    A("s_waitcnt vmcnt(0)")
    wcheck(A.label("F2_wc2"), A.label("F2_wd2"))
    A(f"s_lshl_b32 s{sT0}, s{sH}, 15\ns_add_u32 s{sT0}, s{sT0}, s74\ns_mov_b32 s{sT3}, 0xffff0000\ns_cmp_eq_u32 s{sMode}, 0\ns_cbranch_scc1 {Lt0}")
    fA, fB = (10, 12), (18, 20)
    LATE = []
    PW_ = opti('pw', 4)
    def final(merge):
        fac = []
        for qb in range(2):
            if merge:
                fac += [f"v_min_f32 v8, v{vNm+4*qb}, v{14+qb}", f"v_sub_f32 v{fA[qb]}, v8, v{vNm+4*qb}", f"v_sub_f32 v{fB[qb]}, v8, v{14+qb}", f"v_exp_f32 v{fA[qb]}, v{fA[qb]}", f"v_exp_f32 v{fB[qb]}, v{fB[qb]}\ns_nop 0",
                        f"v_mul_f32 v{vLs+qb}, v{vLs+qb}, v{fA[qb]}", f"v_fmac_f32 v{vLs+qb}, v{16+qb}, v{fB[qb]}"]
            fac += split_items([xl_reduce("v_add_f32", vLs+qb, 8)])
            fac += [f"v_rcp_f32 v{vLs+qb}, v{vLs+qb}\ns_nop 0", f"v_mul_f32 v{vLs+qb}, v{vLs+qb}, v{vG+qb}"]
            if merge: fac += [f"v_mul_f32 v{fA[qb]}, v{fA[qb]}, v{vLs+qb}", f"v_mul_f32 v{fB[qb]}, v{fB[qb]}, v{vLs+qb}", f"v_mov_b32 v{fA[qb]+1}, v{fA[qb]}", f"v_mov_b32 v{fB[qb]+1}, v{fB[qb]}"]
            else: fac += [f"v_mov_b32 v{fA[qb]}, v{vLs+qb}", f"v_mov_b32 v{fA[qb]+1}, v{vLs+qb}"]
        items = [(x, 0) for x in fac]
        for g in range(8):
            rdy = max(8*g + 7 + 8, 16 if merge else 0)
            for qb in range(2):
                n = qb * 8 + g
                for hh in range(4):
                    o = Ob(2*g + (hh >> 1), qb) + 2 * (hh & 1); rr = vS + 4*n + hh; t = (8, 14)[hh & 1]
                    if merge: l = [f"v_lshlrev_b32 v{t}, 16, v{rr}", f"v_and_b32 v{t+1}, s{sT3}, v{rr}", f"v_pk_mul_f32 {v(o,2)}, {v(o,2)}, {v(fA[qb],2)}", f"v_pk_fma_f32 {v(o,2)}, {v(t,2)}, {v(fB[qb],2)}, {v(o,2)}"]
                    else: l = [f"v_pk_mul_f32 {v(o,2)}, {v(o,2)}, {v(fA[qb],2)}"]
                    items += [(x, rdy) for x in l]
                items += [(x, rdy) for x in pack(qb, g)]
                if qb == 0: items.append((f"s_add_u32 s{sT1}, s{sT0}, {g*4096}", rdy))
                items.append((f"buffer_store_dwordx4 {v(Ob(2*g,qb),4)}, v{vL16}, {ws}, s{sT1} offen offset:{qb*1024} sc1", rdy))
        clock = 0.0; inph = []; rest = []
        RATE = float(opt("erate", "2.0"))
        for x, rdy in items:
            clock = max(clock + cost(x) / RATE, rdy)
            if clock < 63.5 and not rest: inph.append((x, rdy, 63, clock, ""))
            else: rest.append(x)
        strs = [[(rdV2(f), max(0, 2*((f-16)|1)+1), 2*(f-R)+3, 2*(f-R)+1, f"rd:{f}") for f in range(R, 32)], inph] + ([even([x for k in range(5, 5 + PW_) for x in wload(k)], 0, opti('pwe', 63))] if PW_ else [])
        fixed = wait_load()
        if merge:
            A(f"v_add_u32 v22, s{sL3+2}, v{vL16}\nv_add_u32 v23, s{sL3+3}, v{vL16}")
            strs.append([(f"ds_read_b128 {v(vS + 4*(8*(x&1) + (x>>1)), 4)}, v{22 + (x&1)} offset:{(x>>1)*1024}", 0, 11, x * 0.7, "rdx") for x in range(16)])
            fixed = [x for x in fixed if x[0] != 15] + [(15, "sync", "s_waitcnt lgkmcnt(0)")]
        ev = {}
        add_ev(ev, drop(sched3(64, strs, fixed)))
        phase(mfPV2, ev, R)
        A("s_nop 7")
        more = wdma(21) + wdma(22) + wdma(23) + wdma(24) + ["s_waitcnt vmcnt(36)"] + wload(9) + wload(10) + wload(11) + wload(12)
        if opti("late", 1):
            for x in rest: A(x)
            LATE[:] = [x for k in range(5 + PW_, 9) for x in wload(k)] + ["s_waitcnt vmcnt(24)"] + more
            return
        step = max(1, len(rest) // len(more)) if merge else 2
        for k, x in enumerate(rest):
            A(x)
            if k % step == step - 1 and more: A(more.pop(0))
        for x in more: A(x)
    final(True)
    A(f"s_branch {Lbt}\n{Lt0}:")
    final(False)
    A(f"s_branch {Lbt}")
    A(f"{Lt1}:")
    for f in range(R): A(rdV(f))
    for t in ladd: A(t)
    for t in cvts(): A(t)
    A(f"s_mov_b32 s{sQ}, s{sI}\ns_lshl_b32 s{sK+2}, s{sI}, 16\ns_add_u32 s{sK+2}, s{sK+2}, 0x10000\ns_mov_b32 s{sV+2}, s{sK+2}")
    pv_last(sched(64, [(dma("K") + dma("V") + [advO], 0, 62), ([f"v_accvgpr_mov_b32 a{aQ+q}, a{r.aPark+q}" for q in range(64)], 0, 63)], None))
    A(f"v_mov_b32 v{vT}, v{vNm}\nv_mov_b32 v{vT+1}, v{vNm+4}\nv_mov_b32 v{vT+2}, v{vLs}\nv_mov_b32 v{vT+3}, v{vLs+1}")
    for i in range(vNm, vNm + 8): A(f"v_mov_b32 v{i}, 0")
    A(f"s_mov_b32 s{sPub}, 1\ns_mov_b32 s{sMode}, 0\ns_mov_b32 s{sJ}, 0\ns_lshl_b32 s{sDiag}, s{sQ}, 1\ns_add_u32 s{sL}, s{sDiag}, 1\ns_mov_b32 s{sSp}, s{sDiag}")
    A(f"s_add_u32 s{sT2}, s{sPo}, 16384\nbuffer_store_dwordx4 {v(vT,4)}, v{vL16}, {ws}, s{sT2} offen sc1")
    A("s_waitcnt vmcnt(17)\ns_barrier")
    fill = []
    prevz = []
    for qb in range(2):
        for g in range(8):
            n = qb * 8 + g
            fill += pack(qb, g)
            t = f"s_add_u32 s{sT2}, s{sPo}, {(n>>2)*4096}\n" if n & 3 == 0 else ""
            fill.append(t + f"buffer_store_dwordx4 {v(Ob(2*g,qb),4)}, v{vL16}, {ws}, s{sT2} offen offset:{(n&3)*1024} sc1")
            fill += prevz
            r0, r1 = Ob(2*g, qb), Ob(2*g+1, qb)
            prevz = [f"v_mov_b64 {v(x,2)}, 0" for x in (r1, r1+2, r0, r0+2)]
    fill += ["s_nop 1"] + prevz
    qk_first(fill)
    A(f"s_waitcnt vmcnt(17) lgkmcnt(0)\ns_barrier\ns_branch {Lfirst}")
    A(f"{Lbt}:")
    bS, bP = 64, 96
    for e in range(2):
        A(f"{MF} {v(bS+8*e,4)}, {a(bk+4*(e+1),4)}, {a(bq+4*e,4)}, 0")
        A(f"{MF} {v(bS+8*e+4,4)}, {a(bk+4*e,4)}, {a(bq+4*e,4)}, 0")
    for i in range(4):
        A(f"v_subrev_u32 v{vT+2}, {i}, v28\nv_and_b32 v{vT+2}, 0x80000001, v{vT+2}\nv_bfrev_b32 v{vT+2}, v{vT+2}")
        A(f"v_cmp_eq_u32 s[{sM+2*i}:{sM+2*i+1}], 0, v{vT+2}\nv_cmp_eq_u32 s[{sM1+2*i}:{sM1+2*i+1}], 1, v{vT+2}")
    A(f"v_cmp_gt_u32 vcc, 48, v0\ns_nop 0")
    def each(fn):
        for e in range(2): A(fn(e))
    m = lambda e: vT + e
    tt = lambda e: vT + 4 + e
    l = lambda e: vT + 8 + e
    for e in (1, 0):
        s0 = bS + 8 * e
        if e == 0:
            A(f"s_or_b32 s{sT0}, s{r.sOwn}, s{sW}")
            for i in range(4): A(f"s_cselect_b64 s[{sM1+2*i}:{sM1+2*i+1}], s[{sM1+2*i}:{sM1+2*i+1}], 0")
        for i in range(4):
            A(f"v_cndmask_b32 v{s0+i}, v{vNeg}, v{s0+i}, s[{sM+2*i}:{sM+2*i+1}]")
            A(f"v_cndmask_b32 v{s0+4+i}, v{vNeg}, v{s0+4+i}, s[{sM1+2*i}:{sM1+2*i+1}]")
        A(f"v_max3_f32 v{m(e)}, v{s0}, v{s0+1}, v{s0+2}\nv_max3_f32 v{m(e)}, v{m(e)}, v{s0+3}, v{s0+4}\nv_max3_f32 v{m(e)}, v{m(e)}, v{s0+5}, v{s0+6}\nv_max_f32 v{m(e)}, v{m(e)}, v{s0+7}")
    def xl4(op, rg):
        for sw in ("v_permlane16_swap_b32", "v_permlane32_swap_b32"):
            each(lambda e: f"v_mov_b32 v{tt(e)}, v{rg(e)}")
            A("s_nop 1")
            each(lambda e: f"{sw} v{rg(e)}, v{tt(e)}")
            A("s_nop 1")
            each(lambda e: f"{op} v{rg(e)}, v{rg(e)}, v{tt(e)}")
    xl4("v_max_f32", m)
    for e in range(2):
        s0 = bS + 8 * e
        for i in range(8): A(f"v_sub_f32 v{s0+i}, v{s0+i}, v{m(e)}")
        for i in range(8): A(f"v_exp_f32 v{s0+i}, v{s0+i}")
    for e in range(2):
        s0 = bS + 8 * e
        lo, hi = (s0, s0 + 4) if e == 0 else (s0 + 4, s0)
        A(f"v_cvt_pk_bf16_f32 v{bP+4*e}, v{lo}, v{lo+1}\nv_cvt_pk_bf16_f32 v{bP+4*e+1}, v{lo+2}, v{lo+3}\nv_cvt_pk_bf16_f32 v{bP+4*e+2}, v{hi}, v{hi+1}\nv_cvt_pk_bf16_f32 v{bP+4*e+3}, v{hi+2}, v{hi+3}")
        A(f"v_add_f32 v{l(e)}, v{s0}, v{s0+1}")
        for i in range(2, 8): A(f"v_add_f32 v{l(e)}, v{l(e)}, v{s0+i}")
        for db in range(2):
            A(f"{MF} {v(s0+4*db,4)}, {a((bm if e == 0 else bv)+4*db,4)}, {v(bP+4*e,4)}, 0")
    xl4("v_add_f32", l)
    each(lambda e: f"v_rcp_f32 v{l(e)}, v{l(e)}\nv_sub_f32 v{vG+e}, 1.0, v{vG+e}\nv_mul_f32 v{l(e)}, v{l(e)}, v{vG+e}")
    A(f"s_lshl_b32 s{sT0}, s{sH}, 12\ns_add_u32 s{sT0}, s{sT0}, s74\ns_add_u32 s{sT0}, s{sT0}, {128*4096}")
    for e in range(2):
        o = bS + 8 * e
        for i in range(8): A(f"v_mul_f32 v{o+i}, v{o+i}, v{l(e)}")
        A(f"v_cvt_pk_bf16_f32 v{o}, v{o}, v{o+1}\nv_cvt_pk_bf16_f32 v{o+1}, v{o+2}, v{o+3}\nv_cvt_pk_bf16_f32 v{o+2}, v{o+4}, v{o+5}\nv_cvt_pk_bf16_f32 v{o+3}, v{o+6}, v{o+7}")
        A(f"v_cndmask_b32 v{o+2}, 0, v{o+2}, vcc\nv_cndmask_b32 v{o+3}, 0, v{o+3}, vcc")
        A(f"buffer_store_dwordx4 {v(o,4)}, v{vL16}, {ws}, s{sT0} offen offset:{e*1024} sc1")
    stamp(3)
    Lsig = A.label("F3_sig"); Lw = A.label("F3_w"); Lwx = A.label("F3_wx"); Lc = A.label("F3_c"); Lcx = A.label("F3_cx")
    def line_of(dst, tile): return f"s_and_b32 s{dst}, s{tile}, 7\ns_lshr_b32 s{sT3}, s{tile}, 3\ns_lshl_b32 s{sT3}, s{sT3}, 6\ns_or_b32 s{dst}, s{dst}, s{sT3}\ns_lshl_b32 s{dst}, s{dst}, 7\ns_add_u32 s{dst}, s{dst}, {WS_FLAG + 16}"
    A(line_of(sT2, 75))
    A(f"v_mov_b32 v{vT}, 1\ns_cmp_eq_u32 s87, 0\ns_cbranch_scc1 {Lw}\ns_waitcnt vmcnt(0)\nbuffer_atomic_add v{vT}, v{vOneL}, {ws}, s{sT2} offen sc1\ns_branch {Lst}")
    A(f"{Lw}:")
    def cload(k): return [f"s_add_u32 s{sT0}, s{sCb3}, {k*4096}"] + [f"buffer_load_dwordx4 {v(vR + 16*(k % ND) + 4*t, 4)}, v{vL16}, {ws}, s{sT0} offen offset:{t*1024} {flags('cld', 'sc1')} ; vm:c{k}" for t in range(4)]
    A("s_waitcnt vmcnt(40)")
    for k in (13, 14):
        for t in wload(k): A(t)
    A(f"v_mov_b32 v15, v{vZ}\ns_waitcnt vmcnt(8)\nbuffer_atomic_add v{vT}, v{vOneL}, {ws}, s{sT2} offen sc1")
    for t in LATE: A(t)
    A("s_waitcnt vmcnt(30)")
    for k in range(15, 21):
        for t in wload(k): A(t)
    A("s_waitcnt vmcnt(24)")
    for k in range(25, 29):
        for t in wdma(k): A(t)
    A(f"s_waitcnt vmcnt(32)")
    for k in range(5):
        for t in wload(k): A(t)
    A(f"{Lwx}:")
    for q in range(4): A(f"v_add_u32 v{9+q}, s{sL3+q}, v{vL16}")
    A(line_of(sT2, sTt))
    stamp(4)
    A(f"{Lc}:\n" + r.bound(Lcx) + f"buffer_load_dword v14, v15, {ws}, s{sT2} offen sc1\ns_waitcnt vmcnt(0)\nv_readfirstlane_b32 s{sT0}, v14\ns_nop 3\ns_cmp_lg_u32 s{sT0}, 32\ns_cbranch_scc1 {Lc}\n{Lcx}:")
    stamp(5)
    A("VMSEED")
    for k in range(ND):
        for t in cload(k): A(t)
    for k in range(36):
        A(f"WAITVM c{k}" + (f",w{k}" if k >= 29 else "") + (" lgkmcnt(0)" if k == 21 else ""))
        for u in range(4):
            for tt in range(4):
                t = tt if u % 2 == 0 else 3 - tt
                c = v(vAcc + 4*(4*u+t), 4)
                A(f"{MF} {c}, {wreg(k,u)}, {v(vR + 16*(k % ND) + 4*t, 4)}, {c if k else 0}")
        if k + ND < 36:
            for t in cload(k + ND): A(t)
        if k % 3 == 2 and 29 + k // 3 < 36:
            for t in wload(29 + k // 3): A(t)
        if 10 <= k < 18:
            kk = 21 + k - 10
            for u in range(4): A(f"ds_read_b128 {wreg(kk,u)}, v{9 + (kk-21)//2} offset:{((kk-21)&1)*4096 + u*1024}")
    A("VMEND")
    stamp(6)
    vt = 2
    A(f"v_and_b32 v{vt}, 15, v0\nv_mul_u32_u24 v{vt}, 272, v{vt}\nv_lshrrev_b32 v{vt+1}, 4, v0\nv_lshl_add_u32 v{vt}, v{vt+1}, 6, v{vt}\ns_mul_i32 s{sT0}, s{sW}, {64*272}\nv_add_u32 v{vt}, s{sT0}, v{vt}")
    A(f"v_lshrrev_b32 v{vt+1}, 2, v0\ns_lshl_b32 s{sT0}, s{sW}, 4\nv_add_u32 v{vt+1}, s{sT0}, v{vt+1}\nv_mul_u32_u24 v{vt+2}, 272, v{vt+1}\nv_and_b32 v{vt+3}, 3, v0\nv_lshl_add_u32 v{vt+2}, v{vt+3}, 6, v{vt+2}")
    A(f"v_mul_u32_u24 v{vt+4}, 896, v{vt+1}\nv_lshl_add_u32 v{vt+4}, v{vt+3}, 5, v{vt+4}")
    A(f"s_mul_i32 s{sT0}, s{sTt}, {64*896}\ns_lshl_b32 s{sT1}, s{sN}, 7\ns_add_u32 s{sT0}, s{sT0}, s{sT1}")
    A(f"s_mov_b64 s[{sK}:{sK+1}], s[{r.sOut}:{r.sOut+1}]\ns_mov_b32 s{sK+2}, {2048*896}\ns_barrier")
    for u in range(4):
        for t in range(4):
            A(f"ds_write_b128 v{vt}, {v(vAcc+4*(4*u+t),4)} offset:{t*16*272 + u*16}")
    A("s_waitcnt lgkmcnt(0)\ns_barrier")
    for p in range(4):
        for c in range(4):
            A(f"ds_read_b128 {v(vR + 16*p + 4*c, 4)}, v{vt+2} offset:{p*64*272 + c*16}")
    A("s_waitcnt lgkmcnt(8)")
    for i in range(0, 16, 2): A(f"v_pk_add_f32 {v(vR+i,2)}, {v(vR+i,2)}, {v(vR+16+i,2)}")
    A("s_waitcnt lgkmcnt(0)")
    for i in range(0, 16, 2): A(f"v_pk_add_f32 {v(vR+32+i,2)}, {v(vR+32+i,2)}, {v(vR+48+i,2)}")
    for i in range(0, 16, 2): A(f"v_pk_add_f32 {v(vR+i,2)}, {v(vR+i,2)}, {v(vR+32+i,2)}")
    for i in range(4):
        A(f"v_cvt_pk_bf16_f32 v{vR+64+2*i}, v{vR+i}, v{vR+4+i}\nv_cvt_pk_bf16_f32 v{vR+64+2*i+1}, v{vR+8+i}, v{vR+12+i}")
    A(f"buffer_store_dwordx4 {v(vR+64,4)}, v{vt+4}, s[{sK}:{sK+3}], s{sT0} offen {flags('ost', '')}\nbuffer_store_dwordx4 {v(vR+68,4)}, v{vt+4}, s[{sK}:{sK+3}], s{sT0} offen offset:16 {flags('ost', '')}")
    A(f"{Lst}:")
    if stamps:
        A("s_waitcnt vmcnt(0)")
        stamp(7)
        A("s_waitcnt lgkmcnt(0)")
        if opti("dbgst"):
            for q, x in enumerate(SR[1:]): A(f"s_sub_u32 s{x}, s{x}, s{SR[0]}")
            for q, x in enumerate(SR): A(f"v_mov_b32 v{4+q}, s{x}")
            A(f"s_xor_b32 s{sT3}, s2, 8\ns_lshr_b32 s{sT2}, s{sT3}, 1\ns_and_b32 s{sT3}, s{sT3}, 0xffbf\ns_cselect_b32 s{sT2}, 0x1000, s{sT2}\nv_mov_b32 v12, 0")
            A(f"s_mov_b64 s[{sK}:{sK+1}], s[76:77]\ns_movk_i32 s{sK+2}, 256")
            for q in range(1, 8): A(f"buffer_store_dword v{4+q}, v12, s[{sK}:{sK+3}], s{sT2} offen offset:{4*q}")
        for q, x in enumerate(SR): A(f"v_mov_b32 v{4+q}, s{x}")
        A(f"v_mov_b32 v12, 0\ns_lshl_b32 s{sT3}, s2, 5\ns_add_u32 s{sT3}, s{sT3}, {200*MB}")
        A(f"buffer_store_dwordx4 v[4:7], v12, {ws}, s{sT3} offen\nbuffer_store_dwordx4 v[8:11], v12, {ws}, s{sT3} offen offset:16")
    A(f"{Lend}:\ns_endpgm")
```

```python
from asmlib import *
from k1 import MB, WS_K, WS_V, WS_Q, WS_KB, WS_VB, WS_FLAG, WS_CTX, WS_PART, WS_WO, WS_SIZE, f32bits, LOG2E, MF
from f1a import R_, gen_part1, SPLIT

R = opti("R", 12)
WG = opti("wg", 4)
NK0 = opti("nk0", 8)
SN = opti("sn", 2)
MPOS = 24
PART_STRIDE = 17 * 1024

def gen_f1(A, name="f1_kernel", stamps=False):
    Lend = A.label("F_end")
    p1 = gen_part1(A, name, stamps, Lend)
    r = R_
    sK, sV, sWS = r.sK, r.sV, r.sO
    sW, sH, sI, sTy = r.sW, r.sH, r.sI, r.sP
    sKo, sWrap = r.sKo, r.sWrap
    sKl, sVl = 28, 29
    sVs, sVrs, sVd = 30, 31, 32
    sQ, sJ, sL, sMode = r.sQ, r.sJ, r.sL, r.sMode
    sDiag, sPub, sPo, sFp, sFn = 33, 34, 35, 44, 45
    sFo = r.sFo
    sT0, sT1, sT2, sT3 = r.sT0, r.sT1, r.sT2, r.sT3
    sC8 = r.sC8
    sM = 36; sM1 = 66
    sBb = p1["sBb"]
    SR = r.SR
    vL16, vDm, vKr, vVr, vBase, vD, vNeg = 1, 2, 3, 4, 27, 6, 7
    vT = 8
    vG = 32; vTs = 34; vLs = 38; vNm = 40
    vP = 48; vS = 64; vp = 96; vO = 128
    aQ = r.aQ; aF = r.aF
    VS0 = 65536
    BIG = 0x40000000
    def stamp(i):
        if opti("st1"): i = {1: 4, 2: 5, 5: 6, 7: 7}.get(i)
        if stamps and not opti("p2st") and i is not None: A(f"{'s_memtime' if opti('cyc') else 's_memrealtime'} s[{SR[i]}:{SR[i]+1}]")
    def Ob(db, qb): return vO + 4 * (2 * db + qb)
    def Sb(kb, qb): return vS + 4 * (2 * kb + qb)
    def pb(kb, qb): return vp + 4 * (2 * kb + qb)
    def Pf(ks, qb): return vP + 4 * (2 * ks + qb)
    def fr(f): return a(aF + 4 * (f % 16), 4)
    def kmap(f): return (f & 3, f >> 2) if SN == 1 else (f >> 3, f & 7)
    def vmap(f): return (f & 1, f >> 1) if SN == 2 else (f >> 4, f & 15)
    def pairs(f):
        if SN != 2: return [(f, qb) for qb in qo(f)]
        qa = (f >> 1) & 1
        return [(f, qa), (f + 1, qa)] if f % 2 == 0 else [(f, 1 - qa), (f - 1, 1 - qa)]
    def qo(f): return (1, 0) if (SN and f & 1) else (0, 1)
    def rdK(f): return f"ds_read_b128 {fr(f)}, v{vKr} offset:{(8*kmap(f)[0] + kmap(f)[1])*1024}"
    def rdV(f): return f"ds_read_b128 {fr(f)}, v{vVr} offset:{(16*vmap(f)[0] + vmap(f)[1])*1024}"

    vDm2 = 5
    sVn, sVe, sVb = sVs, sVrs, sVd
    def dma(kind, so=sKo):
        srd, lb = (sK, sKl) if kind == "K" else (sV, sVl)
        out = []
        for p in range(8):
            if p == 0: out.append(f"s_mov_b32 m0, s{lb}\ns_nop 0" if kind == "K" else f"s_mov_b32 m0, s{lb}\ns_nop 0")
            if p == 4: out.append(f"s_add_u32 m0, s{lb}, 4096\ns_nop 0")
            out.append(f"buffer_load_dwordx4 v{vDm if p < 4 else vDm2}, s[{srd}:{srd+3}], s{so} offen offset:{(p&3)*1024} {flags('kvld', 'sc1')} lds")
        out.append(f"s_xor_b32 s{lb}, s{lb}, s{sC8}" if kind == "K" else f"s_mov_b32 s{sVl}, s{sVn}")
        return out
    def nonop(l): return [x.replace("\ns_nop 0", "") for x in l]
    advO = f"s_add_u32 s{sKo}, s{sKo}, s{sC8}\ns_cmp_eq_u32 s{sKo}, s{sWrap}\ns_cselect_b32 s{sKo}, 0, s{sKo}"
    nextV = f"s_add_u32 s{sVn}, s{sVl}, s{sC8}\ns_cmp_eq_u32 s{sVn}, s{sVe}\ns_cselect_b32 s{sVn}, s{sVb}, s{sVn}"
    setVr = f"v_add_u32 v{vVr}, s{sVn}, v26"
    advK = f"v_xor_b32 v{vKr}, 0x8000, v{vKr}"

    ABL = [0]
    def phase(mf, events, pre):
        order = list(range(pre))
        done = -1
        def emit(lst):
            nonlocal done
            for kind, text in lst:
                ab = opt("abl", "") if ABL[0] else ""
                skip = ("e" in ab and text.startswith("v_exp")) or ("a" in ab and text.startswith("v_add_f32")) or ("c" in ab and text.startswith("v_cvt")) or ("d" in ab and text.startswith("buffer_load")) or ("r" in ab and text.startswith("ds_read")) or ("b" in ab and "s_barrier" in text)
                if not skip: A(text)
                if kind.startswith("rd:"): order.append(int(kind[3:]))
                elif kind == "rdx": order.append(-1)
                elif kind == "sync": done = len(order) - 1
        def need_wait(f):
            nonlocal done
            if f < 32 and max(order.index(f), order.index(f | 1)) > done:
                need = max(order.index(f), order.index(f | 1))
                for g in range(f + 1, min(32, (f // WG + 1) * WG)):
                    if g in order: need = max(need, order.index(g))
                cnt = len(order) - 1 - need
                assert cnt <= 15
                A(f"s_waitcnt lgkmcnt({cnt})"); done = need
        emit(events.get(-1, []))
        need_wait(0)
        for f in range(32):
            m = mf(f)
            A(m[0]); emit(events.get(2 * f, []))
            A(m[1])
            lst = events.get(2 * f + 1, [])
            if not any(k == "sync" for k, t in lst): need_wait(f + 1)
            emit(lst)
    def add_ev(ev, items):
        for p, k, t in items: ev.setdefault(p, []).append((k, t))
    def mfQK(f):
        out = []
        for n, (g, qb) in enumerate(pairs(f)):
            kb, ds = kmap(g)
            first = (ds == 0) if SN != 2 else (ds < 2 and n == 0)
            out.append(f"{MF} {v(Sb(kb,qb),4)}, {fr(g)}, {a(aQ+4*(2*ds+qb),4)}, {v(vNm+4*qb,4) if first else v(Sb(kb,qb),4)}")
        return out
    def mfPV(f):
        return [f"{MF} {v(Ob(vmap(g)[1],qb),4)}, {fr(g)}, {v(Pf(vmap(g)[0],qb),4)}, {v(Ob(vmap(g)[1],qb),4)}" for g, qb in pairs(f)]
    def cvts():
        out = []
        for ks in range(2):
            for qb in range(2):
                for hh in range(2):
                    src = pb(2*ks+hh, qb)
                    out.append(f"v_cvt_pk_bf16_f32 v{Pf(ks,qb)+2*hh}, v{src}, v{src+1}")
                    out.append(f"v_cvt_pk_bf16_f32 v{Pf(ks,qb)+2*hh+1}, v{src+2}, v{src+3}")
        return out
    def xl_reduce(op, r, t):
        return (f"v_mov_b32 v{t}, v{r}\ns_nop 1\nv_permlane16_swap_b32 v{r}, v{t}\ns_nop 1\n{op} v{r}, v{r}, v{t}\n"
                f"v_mov_b32 v{t}, v{r}\ns_nop 1\nv_permlane32_swap_b32 v{r}, v{t}\ns_nop 1\n{op} v{r}, v{r}, v{t}")
    def mask_block():
        A(f"s_sub_u32 s{sT0}, s{sJ}, s{sDiag}\ns_lshl_b32 s{sT0}, s{sT0}, 6\nv_subrev_u32 v{vD}, s{sT0}, v{vBase}")
        for c in range(-1, 4):
            for i in range(4):
                A(f"v_cmp_gt_i32 s[{sM+2*i}:{sM+2*i+1}], {16*c+i}, v{vD}")
            A("s_nop 0")
            for i in range(4):
                for qb in range(2):
                    kb = c + qb
                    if 0 <= kb < 4:
                        x = Sb(kb, qb) + i
                        A(f"v_cndmask_b32 v{x}, v{x}, v{vNeg}, s[{sM+2*i}:{sM+2*i+1}]")
    def slow(first):
        for qb in range(2):
            m = vT + qb
            regs = [Sb(kb, qb) + i for kb in range(4) for i in range(4)]
            A(f"v_max3_f32 v{m}, v{regs[0]}, v{regs[1]}, v{regs[2]}")
            for x in range(3, 15, 2): A(f"v_max3_f32 v{m}, v{m}, v{regs[x]}, v{regs[x+1]}")
            A(f"v_max_f32 v{m}, v{m}, v{regs[15]}")
            A(xl_reduce("v_max_f32", m, vT + 2))
            if not first: A(f"v_max_f32 v{m}, 0, v{m}")
            for i in range(4): A(f"v_sub_f32 v{vNm+4*qb+i}, v{vNm+4*qb+i}, v{m}")
            if not first:
                A(f"v_sub_f32 v{vT+4+qb}, 0, v{m}\nv_exp_f32 v{vT+4+qb}, v{vT+4+qb}\ns_nop 0\nv_mul_f32 v{vLs+qb}, v{vLs+qb}, v{vT+4+qb}")
                for db in range(16):
                    for i in range(4): A(f"v_mul_f32 v{Ob(db,qb)+i}, v{Ob(db,qb)+i}, v{vT+4+qb}")
            for kb in range(4):
                for i in range(4): A(f"v_sub_f32 v{pb(kb,qb)+i}, v{Sb(kb,qb)+i}, v{m}")
            for kb in range(4):
                for i in range(4): A(f"v_exp_f32 v{pb(kb,qb)+i}, v{pb(kb,qb)+i}")
            A("s_nop 0")
            t = vTs + 2 * qb
            A(f"v_add_f32 v{t}, v{pb(0,qb)}, v{pb(0,qb)+1}")
            for x in range(2, 16): A(f"v_add_f32 v{t}, v{t}, v{pb(x>>2,qb)+(x&3)}")

    ws = f"s[{sWS}:{sWS+3}]"
    vFlag, vZ, vOneL = 30, 29, 24
    A(f"s_lshl_b32 s{sT0}, s{sW}, 13\ns_add_u32 s{sKl}, s{sT0}, 0x8000\ns_add_u32 s{sVb}, s{sT0}, {VS0}\ns_add_u32 s{sVl}, s{sVb}, 0x8000\ns_add_u32 s{sVe}, s{sVb}, {3*0x8000}\nv_subrev_u32 v26, s{sT0}, v{vL16}")
    A(f"v_add_u32 v{vKr}, 0x8000, v{vL16}\nv_mov_b32 v{vNeg}, 0x{f32bits(-1e30):08x}\nv_mov_b32 v{vZ}, 0\nv_mov_b64 v[{vFlag}:{vFlag+1}], 0\ns_mov_b32 s{sPub}, 0\ns_lshl_b32 s{sDiag}, s{sQ}, 1")
    A(f"s_mov_b32 s72, s{sKo}")
    A(advO)
    if opti("dbgst"): A(f"s_mov_b64 s[76:77], s[{r.sG}:{r.sG+1}]")
    A(f"v_and_b32 v{vT}, 15, v0\nv_lshrrev_b32 v28, 4, v0\nv_lshlrev_b32 v28, 2, v28\nv_sub_u32 v28, v{vT}, v28\ns_lshl_b32 s{sT0}, s{sW}, 5\nv_add_u32 v{vBase}, s{sT0}, v28")
    A(f"v_cmp_eq_u32 vcc, 0, v0\nv_mov_b32 v{vOneL}, {BIG}\ns_xor_b32 s{sFp}, s{sFo}, {64 << 7}\nv_cndmask_b32 v{vOneL}, v{vOneL}, 0, vcc")
    A(f"s_and_b32 s{sT0}, s2, 63\ns_lshr_b32 s{sT1}, s2, 7\ns_lshl_b32 s{sT1}, s{sT1}, 6\ns_or_b32 s{sT0}, s{sT0}, s{sT1}\ns_lshl_b32 s{sT0}, s{sT0}, 2\ns_add_u32 s46, s{sT0}, s{sW}\ns_mul_i32 s{sPo}, s46, {PART_STRIDE}\ns_add_u32 s{sPo}, s{sPo}, {WS_PART}")
    A(f"s_add_u32 s{sT0}, s{r.sOwn}, 1\ns_sub_u32 s{sT1}, 23, s{sT0}\ns_cmp_ge_u32 s{sT0}, 8\ns_cselect_b32 s{sT1}, s{sT1}, s{sT0}\ns_lshl_b32 s{sT1}, s{sT1}, 10\ns_add_u32 s{sFn}, s{r.sFh}, s{sT1}\ns_sub_u32 s{sFn}, s{sFn}, 8")
    A(f"s_cmp_eq_u32 s{sT0}, 16\ns_cselect_b32 s{sFn}, {BIG}, s{sFn}\ns_cmp_lg_u32 s{sW}, 3\ns_cselect_b32 s{sFn}, {BIG}, s{sFn}")
    A(f"s_or_b32 s{sT0}, s{sTy}, s{sW}\ns_cselect_b32 s79, {BIG}, 0\ns_add_u32 s79, s79, {WS_FLAG + 20}\ns_mov_b32 s80, {WS_FLAG + 20}")
    sTt, sN, sWb3, sCb3, sL3, sSp = 16, 17, 18, 19, 20, 24
    WT = opti('wt', 0)
    if opti("map", 2) == 2:
        k3a = [f"s_and_b32 s25, s2, 1", f"s_lshl_b32 s25, s25, 2", f"s_lshr_b32 s87, s2, 6", f"s_add_u32 s{sN}, s25, s87", f"s_add_u32 s25, s25, s{sI}",
               f"s_cmp_eq_u32 s87, 3\ns_cselect_b32 s{sN}, 3, s{sN}\ns_cselect_b32 s{sTt}, s25, s{sI}",
               f"s_bfe_u32 s25, s2, {(2 << 16) | 1}", f"s_lshl_b32 s25, s25, 3", f"s_add_u32 s{sTt}, s{sTt}, s25", f"s_cmp_ge_u32 s2, 224\ns_cselect_b32 s87, 1, 0"]
    elif opti("map", 2) == 1:
        k3a = [f"s_lshr_b32 s{sN}, s2, 7", f"s_lshl_b32 s{sN}, s{sN}, 3", f"s_add_u32 s{sN}, s{sN}, s{sI}", f"s_and_b32 s25, s{sN}, 1", f"s_lshr_b32 s{sN}, s{sN}, 1",
               f"s_cmp_ge_u32 s{sN}, 6\ns_cselect_b32 s87, s{sTy}, 0", f"s_cmp_eq_u32 s{sN}, 7\ns_cselect_b32 s{sTt}, 1, s{sTy}\ns_cselect_b32 s{sN}, 6, s{sN}",
               f"s_lshl_b32 s{sTt}, s{sTt}, 1", f"s_add_u32 s{sTt}, s{sTt}, s25", f"s_and_b32 s25, s2, 7", f"s_lshl_b32 s25, s25, 2", f"s_add_u32 s{sTt}, s{sTt}, s25"]
    else:
        k3a = [f"s_and_b32 s{sN}, s2, 7", f"s_lshl_b32 s{sTt}, s{sN}, 2", f"s_bfe_u32 s{sN}, s2, {(2 << 16) | 3}", f"s_add_u32 s{sTt}, s{sTt}, s{sN}", f"s_lshr_b32 s{sN}, s2, 5", f"s_cmp_ge_u32 s2, 224\ns_cselect_b32 s87, 1, 0"]
    k3s = k3a + [f"s_mul_i32 s25, s{sW}, {36*4096}",
           f"s_mul_i32 s{sWb3}, s{sN}, {144*4096}", f"s_add_u32 s{sWb3}, s{sWb3}, s25", f"s_add_u32 s{sWb3}, s{sWb3}, {WS_WO}", f"s_mul_i32 s{sCb3}, s{sTt}, {144*4096}", f"s_add_u32 s{sCb3}, s{sCb3}, s25", f"s_add_u32 s{sCb3}, s{sCb3}, {WS_CTX}",
           f"s_mov_b32 s85, {BIG}", f"v_lshlrev_b32 v25, 7, v0", f"s_lshr_b32 s86, s2, 7", f"s_lshl_b32 s86, s86, 3", f"s_add_u32 s86, s86, s{sI}", f"s_lshl_b32 s86, s86, 2", f"s_add_u32 s86, s86, s{sW}", f"s_lshl_b32 s86, s86, 13", f"s_add_u32 s86, s86, {WS_WO}",
           f"s_cmp_lg_u32 s87, 0\ns_cselect_b32 s{sWb3}, {BIG}, s{sWb3}",
           f"s_sub_u32 s{sSp}, s{sL}, 1", f"s_cmp_eq_u32 s{sMode}, 1\ns_cselect_b32 s{sSp}, s{sL}, s{sSp}", f"s_cmp_eq_u32 s{sTy}, {1 if WT else 5}\ns_cselect_b32 s{sSp}, {WT - 2}, s{sSp}",
           f"s_lshl_b32 s75, s{r.sOwn}, 1", f"s_add_u32 s75, s75, s{r.sWM}", f"s_mul_i32 s74, s75, {144*4096}", f"s_lshl_b32 s25, s{r.sWN}, 11", f"s_add_u32 s74, s74, s25", f"s_add_u32 s74, s74, {WS_CTX}"]
    vAcc, vR, vW = 16, 80, 176
    ND = 6
    AB = [128, 144, 160, 176, 240, 64, 80, 96, 112, 0, 16, 32, 48, 192, 208, 224]
    def wreg(k, u):
        if k < 16: return a(AB[k] + 4*u, 4)
        if k < 21: return v(vW + 16*(k-16) + 4*u, 4)
        if k < 29: return a(AB[7 + k - 21] + 4*u, 4)
        return a(AB[k - 29] + 4*u, 4)
    def wload(k, tmp=25): return [f"s_add_u32 s{tmp}, s{sWb3}, {k*4096}"] + [f"buffer_load_dwordx4 {wreg(k,u)}, v{vL16}, {ws}, s{tmp} offen offset:{u*1024} {flags('wld', 'sc1')} ; vm:w{k}" for u in range(4)]
    def wdma(k): return [f"s_add_u32 m0, s{sL3 + (k-21)//2}, {((k-21)&1)*4096}", f"s_add_u32 s25, s{sWb3}, {k*4096}"] + [f"buffer_load_dwordx4 v{vL16}, {ws}, s25 offen offset:{u*1024} {flags('wld', 'sc1')} lds" for u in range(4)]
    for i in range(vNm, vNm + 8, 2): A(f"v_mov_b64 {v(i,2)}, 0")
    Lloop = A.label("F2_loop"); Lqk = A.label("F2_qk"); Ltail = A.label("F2_tail"); Lfirst = A.label("F2_first")
    Lslow = A.label("F2_slow"); Lback = A.label("F2_back"); Lnm0 = A.label("F2_nm0"); Lnm1 = A.label("F2_nm1"); LA = A.label("F2_A"); Lnopark = A.label("F2_np"); Lpq = A.label("F2_pq"); Lnp2 = A.label("F2_np2")
    A(f"s_cmp_eq_u32 s{sTy}, 1\ns_cbranch_scc1 {LA}")
    for tk in range(2):
        so_ = 74 + tk
        if tk: A("s_add_u32 s46, s46, 512")
        A(f"s_mul_hi_u32 s47, s46, {(2**32 + 6)//7}\ns_mul_i32 s{sT0}, s47, 7\ns_sub_u32 s{sT0}, s46, s{sT0}")
        A(f"s_mul_i32 s{so_}, s{sT0}, 144\ns_add_u32 s{so_}, s{so_}, s47\ns_lshl_b32 s{so_}, s{so_}, 12\ns_add_u32 s{so_}, s{so_}, {WS_WO}\ns_cmp_ge_u32 s46, 1008\ns_cselect_b32 s{so_}, {BIG}, s{so_}")
    A(f"s_cmp_lg_u32 s{sMode}, 1\ns_cbranch_scc1 {Lnopark}")
    for q in range(64): A(f"v_accvgpr_mov_b32 a{r.aPark+q}, a{aQ+q}")
    Lpqx = A.label("F2_pqx")
    A(f"{Lpq}:\n" + r.bound(Lpqx) + f"buffer_load_dword v{vFlag}, v{vZ}, {ws}, s{sFo} offen offset:8 sc1\ns_waitcnt vmcnt(0)\nv_readfirstlane_b32 s{sT0}, v{vFlag}\ns_nop 3\ns_cmp_lg_u32 s{sT0}, 4\ns_cbranch_scc1 {Lpq}\n{Lpqx}:")
    A(f"s_lshl_b32 s{sT2}, s{sH}, 7\ns_lshl_b32 s{sT3}, s{sQ}, 3\ns_add_u32 s{sT2}, s{sT2}, s{sT3}\ns_lshl_b32 s{sT3}, s{sW}, 1\ns_add_u32 s{sT2}, s{sT2}, s{sT3}\ns_lshl_b32 s{sT2}, s{sT2}, 13\ns_add_u32 s{sT2}, s{sT2}, {WS_Q}")
    for f in range(16):
        A(f"buffer_load_dwordx4 {a(aQ+4*(2*(f&7)+(f>>3)),4)}, v{vL16}, {ws}, s{sT2} offen offset:{(f&3)*1024} sc1")
        if f & 3 == 3: A(f"s_add_u32 s{sT2}, s{sT2}, 4096")
    A(f"s_branch {Lnp2}\n{Lnopark}:\nWAITVMS wo\n{Lnp2}:")
    A(f"s_mov_b32 s{sT2}, 0x05040100\ns_mov_b32 s{sT3}, 0x07060302")
    for tk in range(2):
        for c in range(4):
            for m in range(4):
                A(f"v_perm_b32 v{184+16*tk+4*c+m}, v{216+16*tk+2*(2*m+1)+(c>>1)}, v{216+16*tk+2*(2*m)+(c>>1)}, s{sT2 if c % 2 == 0 else sT3}")
    for tk in range(2):
        for c in range(4): A(f"buffer_store_dwordx4 {v(184+16*tk+4*c,4)}, v{vL16}, {ws}, s{74+tk} offen offset:{c*1024} sc1")
    A("s_waitcnt vmcnt(8)")
    A(f"{LA}:")
    stamp(1)
    def qk_first(fill, more=[]):
        pl = [x for x in sched3(64, [[(rdK(f), max(0, 2*((f-16)|1)+1), 2*(f-R)+3, 2*(f-R)+1, f"rd:{f}") for f in range(R, 32)] + [(advK, 2*(31-R)+4, 63, 2*(31-R)+4, "")], even(fill, 0, 63)] + more)]
        ev = {}
        add_ev(ev, [(-1, f"rd:{f}", rdK(f)) for f in range(R)])
        add_ev(ev, pl)
        phase(mfQK, ev, 0)
    zf = [f"v_mov_b64 {v(i,2)}, 0" for i in range(vO, vO + 128, 2)]
    A(f"v_mov_b32 v{vT}, 1\ns_cmp_eq_u32 s{sMode}, 2\ns_cselect_b32 s{sT0}, s{sFp}, {BIG}")
    QS = opti("qs", 8)
    be = p1["be"]; nb = max(k for k, x in enumerate(be) if x.startswith("buffer_store")) + 1
    qk_first(zf, [[("WAITVMS q", QS, QS, QS, ""), (f"buffer_atomic_add v{vT}, v{vOneL}, {ws}, s{sT0} offen offset:8 sc1", QS + 1, QS + 1, QS + 1, "")] + even(be[:nb], QS + 2, 30) + even(p1["vdma"], 31, 63), even(be[nb:], 31, 63), even(k3s, 0, 63)])
    A(f"s_waitcnt vmcnt(16) lgkmcnt(0)")
    A(f"buffer_atomic_add v{vT}, v{vOneL}, {ws}, s{sFn} offen sc1\ns_barrier")
    bq, bk, bv, bm = r.bq, r.bk, r.bv, r.bm
    A(f"{Lfirst}:")
    Ldis = A.label("F2_dis")
    if opti("cp3", 0): A(code_pf_items(A, Ldis, "CODE_END", 76, 25, f"s_mov_b32 s25, s{sW}", 22, 23, 3))
    for f in range(NK0): A(rdK(f))
    A(f"s_cmp_lt_u32 s{sJ}, s{sDiag}\ns_cbranch_scc1 {Lnm0}")
    mask_block()
    A(f"{Lnm0}:")
    slow(True)
    A(f"v_mov_b32 v{vLs}, 0\nv_mov_b32 v{vLs+1}, 0\nv_mov_b32 v{vT+1}, 1\ns_cmp_eq_u32 s{sPub}, 0\ns_waitcnt vmcnt({9 + opti('cp3', 0)})\ns_barrier\nbuffer_atomic_add v{vT+1}, v{vOneL}, {ws}, s79 offen sc1\ns_mov_b32 s79, {BIG}\ns_cbranch_scc1 {Lback}")
    A(f"s_mov_b32 s{sPub}, 0\ns_waitcnt vmcnt(0)\nbuffer_atomic_add v{vT+1}, v{vOneL}, {ws}, s{sFp} offen sc1\ns_branch {Lback}")
    p1["spins"]()
    A(f"{Lslow}:")
    slow(False)
    A(f"s_branch {Lback}")
    Lmask = A.label("F2_mask")
    A(f"{Lmask}:\ns_nop 7")
    mask_block()
    A(f".p2align 6\n{Lloop}:")
    if opti("itst"): A("s_memtime s[76:77]")
    def wait_load(upto=32):
        return [(2*f-1, "ph", "s_waitcnt") for f in range(WG, upto, WG)]
    drop = lambda pl: [x for x in pl if x[1] != "ph"]
    own = lambda rd, f0: [(rd(f), max(0, 2*((f-16)|1)+1), max(2*(f-R)+3, f - f0 + 2), max(2*(f-R)+1, f - f0), f"rd:{f}") for f in range(f0, 32)]
    PK = opti("pk", 0)
    els = [(kb, qb, i) for kb in range(4) for qb in range(2) for i in range(4)]
    sm = []; seen = set(); pend = []
    for x, (kb, qb, i) in enumerate(els):
        sm.append(f"v_exp_f32 v{pb(kb,qb)+i}, v{Sb(kb,qb)+i}")
        sm += pend; pend = []
        if PK:
            if i & 1:
                t = vTs + 2*qb; rr = pb(kb, qb) + i - 1
                if t in seen: pend = [f"v_pk_add_f32 {v(t,2)}, {v(t,2)}, {v(rr,2)}"]
                elif i == 3: pend = [f"v_pk_add_f32 {v(t,2)}, {v(rr-2,2)}, {v(rr,2)}"]; seen.add(t)
        else:
            t = vTs + 2*qb + (i & 1); rr = pb(kb, qb) + i
            if t in seen: pend = [f"v_add_f32 v{t}, v{t}, v{rr}"]
            elif i >= 2: pend = [f"v_add_f32 v{t}, v{rr-2}, v{rr}"]; seen.add(t)
    VE = opti("ve", 57)
    chk = [f"v_add_f32 v{vTs}, v{vTs}, v{vTs+1}"] + pend + [f"v_add_f32 v{vTs+2}, v{vTs+2}, v{vTs+3}", f"v_max_f32 v{vT}, v{vTs}, v{vTs+2}", f"v_cmp_nge_f32 vcc, 0x44800000, v{vT}"]
    kd_ = [2*MPOS + 2*f if f < 4 else VE + 1 + (f - 4) * (62.0 - VE) / max(1, NK0 - 4) for f in range(NK0)]
    kx = [(rdK(f), max(2*MPOS, 2*((f+16)|1)+1), 63, kd_[f], "rdx") for f in range(NK0)]
    pl = drop(sched3(64, [own(rdV, R), kx, even(sm, 0, VE) + even(chk, VE + 1, 61)], wait_load(MPOS) + [(2*MPOS-1, "sync", f"s_waitcnt vmcnt({10 if WT else 9}) lgkmcnt(0)\ns_barrier"),
              (61, "", f"s_cmp_eq_u32 s{sJ}, s{sSp}"), (62, "", f"s_cselect_b64 s[{sM}:{sM+1}], -1, vcc"), (63, "", f"s_cmp_lg_u64 s[{sM}:{sM+1}], 0")]))
    ev = {}
    add_ev(ev, pl)
    assert max(p for p, k, t in pl if k.startswith("rd:")) < 2*MPOS - 4
    assert max(p for p, k, t in pl if t.startswith("v_cmp_nge")) <= 61
    ABL[0] = 1
    phase(mfPV, ev, R)
    Lsp = A.label("F2_sp")
    if opti("itst"): A(f"s_mov_b32 m0, s{sJ}\ns_nop 1\nv_writelane_b32 v25, s76, m0")
    A(f"s_cbranch_scc1 {Lsp}")
    A(f"{Lqk}:")
    ladd = [f"v_add_f32 v{vLs}, v{vLs}, v{vTs}", f"v_add_f32 v{vLs+1}, v{vLs+1}, v{vTs+2}"]
    poll = f"buffer_load_dwordx2 v[{vFlag}:{vFlag+1}], v{vZ}, {ws}, s{sFo} offen sc1"
    def qk_phase(dm):
        ko = own(rdK, NK0)
        lastk = 2*(31-R)+3
        vx = [(advK, lastk, 63, lastk, "")] + [(rdV(f), max(lastk, 2*((f+16)|1)+1), 63, 2*(32-R+f)+1, "rdx") for f in range(R)]
        pl = drop(sched3(64, [ko + vx, even(dm, 0, 61), even(ladd + [nextV, setVr] + cvts(), 0, 44)], wait_load() + [(50, "", f"s_add_u32 s{sJ}, s{sJ}, 1"), (63, "last", f"s_cmp_lt_u32 s{sJ}, s{sDiag}")]))
        assert not any(p == 63 and t.startswith("s_") and k != "last" for p, k, t in pl), [x for x in pl if x[0] == 63]
        for x in range(len(pl) - 1):
            if "m0" in pl[x][2] and pl[x][0] == pl[x+1][0] and pl[x+1][2].startswith("buffer_load"):
                pl[x] = (pl[x][0], pl[x][1], pl[x][2] + "\ns_nop 0")
        ev = {}
        add_ev(ev, pl)
        phase(mfQK, ev, NK0)
        A(f"s_cbranch_scc1 {Lloop}\ns_branch {Lmask}")
    qk_phase(nonop(dma("K")) + nonop(dma("V")) + [advO, poll] + ([f"buffer_load_dword v22, v25, {ws}, s85 offen", f"s_add_u32 s85, s85, {64*8192}"] if WT else []))
    ABL[0] = 0
    Lend1 = A.label("F2_e1"); Lw1 = A.label("F2_w1"); Lw2 = A.label("F2_w2"); Lwc = A.label("F2_wc"); Lwd = A.label("F2_wd")
    wpoll = f"buffer_load_dword v23, v{vZ}, {ws}, s80 offen sc1"
    def wcheck(L0, L1): A(f"{L0}:\nv_readfirstlane_b32 s{sT0}, v23\ns_nop 3\ns_cmp_eq_u32 s{sT0}, 128\ns_cbranch_scc1 {L1}\n" + r.bound(L1) + wpoll + f"\ns_waitcnt vmcnt(0)\ns_branch {L0}\n{L1}:")
    A(f"{Lsp}:\ns_cbranch_vccnz {Lslow}\n{Lback}:\ns_cmp_lg_u32 s{sJ}, s{sSp}\ns_cbranch_scc1 {Lqk}")
    A(f"{Ldis}:\ns_cmp_eq_u32 s{sJ}, s{sL}\ns_cbranch_scc1 {Ltail}\ns_add_u32 s{sT0}, s{sJ}, 1\ns_cmp_eq_u32 s{sT0}, s{sL}\ns_cbranch_scc1 {Lend1}")
    A(f"s_cmp_eq_u32 s{sJ}, {WT}\ns_cbranch_scc1 {Lw1}\n{wpoll}\ns_mov_b32 s{sSp}, {WT}\ns_branch {Lqk}")
    A(f"{Lw1}:\ns_sub_u32 s{sSp}, s{sL}, 1")
    wcheck(Lwc, Lwd)
    A(f"s_mov_b32 s85, s86\ns_branch {Lqk}")
    Lh = A.label("F2_h"); Lhs = A.label("F2_hs")
    A(f"{Lend1}:\ns_mov_b32 s{sSp}, s{sL}\ns_cmp_eq_u32 s{r.sOwn}, 0\ns_cselect_b32 s{sT1}, 1, 0\ns_or_b32 s{sT1}, s{sT1}, s{sW}\ns_lshl_b32 s{sT2}, s{sMode}, 1")
    A(f"{Lhs}:\ns_waitcnt vmcnt(0)\nv_readfirstlane_b32 s46, v{vFlag}\nv_readfirstlane_b32 s47, v{vFlag+1}\ns_nop 1\ns_or_b32 s47, s47, s{sT1}\ns_cmp_eq_u32 s46, s{sT2}\ns_cselect_b32 s47, s47, 0\ns_cmp_lg_u32 s47, 0\ns_cbranch_scc1 {Lh}")
    A(r.bound(Lh) + poll + f"\ns_branch {Lhs}\n{Lh}:")
    A(f"s_add_u32 s{sT2}, s{sBb}, {WS_KB - 1024}\ns_add_u32 s{sT3}, s{sBb}, {WS_VB - 2048}\ns_or_b32 s{sT0}, s{r.sOwn}, s{sW}\ns_cselect_b32 s{sT2}, s{sT2}, {BIG}\ns_cselect_b32 s{sT3}, s{sT3}, {BIG}")
    A(f"s_cmp_eq_u32 s{sMode}, 2\ns_cselect_b32 s{sPo}, s{sPo}, {BIG}\ns_mov_b32 s{sL3+2}, s{sKl}\ns_mov_b32 s{sL3+3}, s{sVl}\ns_xor_b32 s{sL3}, s{sKl}, s{sC8}")
    dm = [wpoll, f"s_add_u32 s{sT0}, s{sPo}, 16384", f"buffer_load_dwordx4 v[14:17], v{vL16}, {ws}, s{sT0} offen sc1"]
    for n in range(16):
        if n % 4 == 0: dm += [f"s_add_u32 m0, s{sL3 + 2 + (n >> 3)}, {(n & 4) * 1024}", f"s_add_u32 s{sT0}, s{sPo}, {n * 1024}"]
        dm.append(f"buffer_load_dwordx4 v{vL16}, {ws}, s{sT0} offen offset:{(n&3)*1024} sc1 lds")
    dm += [f"buffer_load_dwordx4 {a(bk,4)}, v{vL16}, {ws}, s{sT2} offen sc1"] + [f"buffer_load_dwordx2 {a(bm+4*db+2,2)}, v{vL16}, {ws}, s{sT3} offen offset:{db*1024+8} sc1" for db in range(2)]
    dm += [f"s_mov_b32 s{sVl}, s{sVn}", f"s_mov_b32 s{sL3+1}, s{sVn}"]
    qk_phase(dm)
    def pv_last(fill):
        ev = {}
        add_ev(ev, [(2*(f-R)+1, f"rd:{f}", rdV(f)) for f in range(R, 32)])
        add_ev(ev, [(p, "", t) for p, t in fill])
        phase(mfPV, ev, R)
    def pack(qb, g):
        r0, r1 = Ob(2*g, qb), Ob(2*g+1, qb)
        return [f"v_cvt_pk_bf16_f32 v{r0}, v{r0}, v{r0+1}", f"v_cvt_pk_bf16_f32 v{r0+1}, v{r0+2}, v{r0+3}", f"v_cvt_pk_bf16_f32 v{r0+2}, v{r1}, v{r1+1}", f"v_cvt_pk_bf16_f32 v{r0+3}, v{r1+2}, v{r1+3}"]
    Lt1 = A.label("K2_t1"); Lt0 = A.label("K2_t0"); Lst = A.label("K2_store"); Lbt = A.label("F2_bt")
    perm = [(ks, 2*g + d) for g in range(8) for ks in range(2) for d in range(2)]
    def rdV2(f): return rdV(f) if SN == 2 else f"ds_read_b128 {fr(f)}, v{vVr} offset:{(16*perm[f][0] + perm[f][1])*1024}"
    def mfPV2(f):
        if SN == 2: return mfPV(f)
        ks, db = perm[f]
        return [f"{MF} {v(Ob(db,qb),4)}, {fr(f)}, {v(Pf(ks,qb),4)}, {v(Ob(db,qb),4)}" for qb in qo(f)]
    A(f"{Ltail}:")
    stamp(2)
    A(nextV); A(setVr)
    A(f"s_cmp_eq_u32 s{sMode}, 1\ns_cbranch_scc1 {Lt1}")
    for f in range(R): A(rdV2(f))
    for t in ladd: A(t)
    for t in cvts(): A(t)
    if opti("itst"): A(f"v_lshlrev_b32 v22, 2, v0\ns_lshl_b32 s{sT3}, s2, 8\ns_add_u32 s{sT3}, s{sT3}, {201*MB}\nbuffer_store_dword v25, v22, {ws}, s{sT3} offen")
    A("s_waitcnt vmcnt(0)")
    wcheck(A.label("F2_wc2"), A.label("F2_wd2"))
    A(f"s_lshl_b32 s{sT0}, s{sH}, 15\ns_add_u32 s{sT0}, s{sT0}, s74\ns_mov_b32 s{sT3}, 0xffff0000\ns_cmp_eq_u32 s{sMode}, 0\ns_cbranch_scc1 {Lt0}")
    fA, fB = (10, 12), (18, 20)
    LATE = []
    PW_ = opti('pw', 4)
    def final(merge):
        fac = []
        for qb in range(2):
            if merge:
                fac += [f"v_min_f32 v8, v{vNm+4*qb}, v{14+qb}", f"v_sub_f32 v{fA[qb]}, v8, v{vNm+4*qb}", f"v_sub_f32 v{fB[qb]}, v8, v{14+qb}", f"v_exp_f32 v{fA[qb]}, v{fA[qb]}", f"v_exp_f32 v{fB[qb]}, v{fB[qb]}\ns_nop 0",
                        f"v_mul_f32 v{vLs+qb}, v{vLs+qb}, v{fA[qb]}", f"v_fmac_f32 v{vLs+qb}, v{16+qb}, v{fB[qb]}"]
            fac += split_items([xl_reduce("v_add_f32", vLs+qb, 8)])
            fac += [f"v_rcp_f32 v{vLs+qb}, v{vLs+qb}\ns_nop 0", f"v_mul_f32 v{vLs+qb}, v{vLs+qb}, v{vG+qb}"]
            if merge: fac += [f"v_mul_f32 v{fA[qb]}, v{fA[qb]}, v{vLs+qb}", f"v_mul_f32 v{fB[qb]}, v{fB[qb]}, v{vLs+qb}", f"v_mov_b32 v{fA[qb]+1}, v{fA[qb]}", f"v_mov_b32 v{fB[qb]+1}, v{fB[qb]}"]
            else: fac += [f"v_mov_b32 v{fA[qb]}, v{vLs+qb}", f"v_mov_b32 v{fA[qb]+1}, v{vLs+qb}"]
        items = [(x, 0) for x in fac]
        for g in range(8):
            rdy = max(8*g + 7 + 8, 16 if merge else 0)
            for qb in range(2):
                n = qb * 8 + g
                for hh in range(4):
                    o = Ob(2*g + (hh >> 1), qb) + 2 * (hh & 1); rr = vS + 4*n + hh; t = (8, 14)[hh & 1]
                    if merge: l = [f"v_lshlrev_b32 v{t}, 16, v{rr}", f"v_and_b32 v{t+1}, s{sT3}, v{rr}", f"v_pk_mul_f32 {v(o,2)}, {v(o,2)}, {v(fA[qb],2)}", f"v_pk_fma_f32 {v(o,2)}, {v(t,2)}, {v(fB[qb],2)}, {v(o,2)}"]
                    else: l = [f"v_pk_mul_f32 {v(o,2)}, {v(o,2)}, {v(fA[qb],2)}"]
                    items += [(x, rdy) for x in l]
                items += [(x, rdy) for x in pack(qb, g)]
                if qb == 0: items.append((f"s_add_u32 s{sT1}, s{sT0}, {g*4096}", rdy))
                items.append((f"buffer_store_dwordx4 {v(Ob(2*g,qb),4)}, v{vL16}, {ws}, s{sT1} offen offset:{qb*1024} sc1", rdy))
        clock = 0.0; inph = []; rest = []
        RATE = float(opt("erate", "2.0"))
        for x, rdy in items:
            clock = max(clock + cost(x) / RATE, rdy)
            if clock < 63.5 and not rest: inph.append((x, rdy, 63, clock, ""))
            else: rest.append(x)
        strs = [[(rdV2(f), max(0, 2*((f-16)|1)+1), 2*(f-R)+3, 2*(f-R)+1, f"rd:{f}") for f in range(R, 32)], inph] + ([even([x for k in range(5, 5 + PW_) for x in wload(k)], 0, opti('pwe', 63))] if PW_ else [])
        fixed = wait_load()
        if merge:
            A(f"v_add_u32 v22, s{sL3+2}, v{vL16}\nv_add_u32 v23, s{sL3+3}, v{vL16}")
            strs.append([(f"ds_read_b128 {v(vS + 4*(8*(x&1) + (x>>1)), 4)}, v{22 + (x&1)} offset:{(x>>1)*1024}", 0, 11, x * 0.7, "rdx") for x in range(16)])
            fixed = [x for x in fixed if x[0] != 15] + [(15, "sync", "s_waitcnt lgkmcnt(0)")]
        ev = {}
        add_ev(ev, drop(sched3(64, strs, fixed)))
        phase(mfPV2, ev, R)
        A("s_nop 7")
        more = wdma(21) + wdma(22) + wdma(23) + wdma(24) + ["s_waitcnt vmcnt(36)"] + wload(9) + wload(10) + wload(11) + wload(12)
        if opti("late", 1):
            for x in rest: A(x)
            LATE[:] = [x for k in range(5 + PW_, 9) for x in wload(k)] + ["s_waitcnt vmcnt(24)"] + more
            return
        step = max(1, len(rest) // len(more)) if merge else 2
        for k, x in enumerate(rest):
            A(x)
            if k % step == step - 1 and more: A(more.pop(0))
        for x in more: A(x)
    final(True)
    A(f"s_branch {Lbt}\n{Lt0}:")
    final(False)
    A(f"s_branch {Lbt}")
    A(f"{Lt1}:")
    for f in range(R): A(rdV(f))
    for t in ladd: A(t)
    for t in cvts(): A(t)
    A(f"s_mov_b32 s{sQ}, s{sI}\ns_lshl_b32 s{sK+2}, s{sI}, 16\ns_add_u32 s{sK+2}, s{sK+2}, 0x10000\ns_mov_b32 s{sV+2}, s{sK+2}")
    pv_last(sched(64, [(dma("K") + dma("V") + [advO], 0, 62), ([f"v_accvgpr_mov_b32 a{aQ+q}, a{r.aPark+q}" for q in range(64)], 0, 63)], None))
    A(f"v_mov_b32 v{vT}, v{vNm}\nv_mov_b32 v{vT+1}, v{vNm+4}\nv_mov_b32 v{vT+2}, v{vLs}\nv_mov_b32 v{vT+3}, v{vLs+1}")
    for i in range(vNm, vNm + 8): A(f"v_mov_b32 v{i}, 0")
    A(f"s_mov_b32 s{sPub}, 1\ns_mov_b32 s{sMode}, 0\ns_mov_b32 s{sJ}, 0\ns_lshl_b32 s{sDiag}, s{sQ}, 1\ns_add_u32 s{sL}, s{sDiag}, 1\ns_mov_b32 s{sSp}, s{sDiag}")
    A(f"s_add_u32 s{sT2}, s{sPo}, 16384\nbuffer_store_dwordx4 {v(vT,4)}, v{vL16}, {ws}, s{sT2} offen sc1")
    A("s_waitcnt vmcnt(17)\ns_barrier")
    fill = []
    prevz = []
    for qb in range(2):
        for g in range(8):
            n = qb * 8 + g
            fill += pack(qb, g)
            t = f"s_add_u32 s{sT2}, s{sPo}, {(n>>2)*4096}\n" if n & 3 == 0 else ""
            fill.append(t + f"buffer_store_dwordx4 {v(Ob(2*g,qb),4)}, v{vL16}, {ws}, s{sT2} offen offset:{(n&3)*1024} sc1")
            fill += prevz
            r0, r1 = Ob(2*g, qb), Ob(2*g+1, qb)
            prevz = [f"v_mov_b64 {v(x,2)}, 0" for x in (r1, r1+2, r0, r0+2)]
    fill += ["s_nop 1"] + prevz
    qk_first(fill)
    A(f"s_waitcnt vmcnt(17) lgkmcnt(0)\ns_barrier\ns_branch {Lfirst}")
    A(f"{Lbt}:")
    bS, bP = 64, 96
    for e in range(2):
        A(f"{MF} {v(bS+8*e,4)}, {a(bk+4*(e+1),4)}, {a(bq+4*e,4)}, 0")
        A(f"{MF} {v(bS+8*e+4,4)}, {a(bk+4*e,4)}, {a(bq+4*e,4)}, 0")
    for i in range(4):
        A(f"v_subrev_u32 v{vT+2}, {i}, v28\nv_and_b32 v{vT+2}, 0x80000001, v{vT+2}\nv_bfrev_b32 v{vT+2}, v{vT+2}")
        A(f"v_cmp_eq_u32 s[{sM+2*i}:{sM+2*i+1}], 0, v{vT+2}\nv_cmp_eq_u32 s[{sM1+2*i}:{sM1+2*i+1}], 1, v{vT+2}")
    A(f"v_cmp_gt_u32 vcc, 48, v0\ns_nop 0")
    def each(fn):
        for e in range(2): A(fn(e))
    m = lambda e: vT + e
    tt = lambda e: vT + 4 + e
    l = lambda e: vT + 8 + e
    for e in (1, 0):
        s0 = bS + 8 * e
        if e == 0:
            A(f"s_or_b32 s{sT0}, s{r.sOwn}, s{sW}")
            for i in range(4): A(f"s_cselect_b64 s[{sM1+2*i}:{sM1+2*i+1}], s[{sM1+2*i}:{sM1+2*i+1}], 0")
        for i in range(4):
            A(f"v_cndmask_b32 v{s0+i}, v{vNeg}, v{s0+i}, s[{sM+2*i}:{sM+2*i+1}]")
            A(f"v_cndmask_b32 v{s0+4+i}, v{vNeg}, v{s0+4+i}, s[{sM1+2*i}:{sM1+2*i+1}]")
        A(f"v_max3_f32 v{m(e)}, v{s0}, v{s0+1}, v{s0+2}\nv_max3_f32 v{m(e)}, v{m(e)}, v{s0+3}, v{s0+4}\nv_max3_f32 v{m(e)}, v{m(e)}, v{s0+5}, v{s0+6}\nv_max_f32 v{m(e)}, v{m(e)}, v{s0+7}")
    def xl4(op, rg):
        for sw in ("v_permlane16_swap_b32", "v_permlane32_swap_b32"):
            each(lambda e: f"v_mov_b32 v{tt(e)}, v{rg(e)}")
            A("s_nop 1")
            each(lambda e: f"{sw} v{rg(e)}, v{tt(e)}")
            A("s_nop 1")
            each(lambda e: f"{op} v{rg(e)}, v{rg(e)}, v{tt(e)}")
    xl4("v_max_f32", m)
    for e in range(2):
        s0 = bS + 8 * e
        for i in range(8): A(f"v_sub_f32 v{s0+i}, v{s0+i}, v{m(e)}")
        for i in range(8): A(f"v_exp_f32 v{s0+i}, v{s0+i}")
    for e in range(2):
        s0 = bS + 8 * e
        lo, hi = (s0, s0 + 4) if e == 0 else (s0 + 4, s0)
        A(f"v_cvt_pk_bf16_f32 v{bP+4*e}, v{lo}, v{lo+1}\nv_cvt_pk_bf16_f32 v{bP+4*e+1}, v{lo+2}, v{lo+3}\nv_cvt_pk_bf16_f32 v{bP+4*e+2}, v{hi}, v{hi+1}\nv_cvt_pk_bf16_f32 v{bP+4*e+3}, v{hi+2}, v{hi+3}")
        A(f"v_add_f32 v{l(e)}, v{s0}, v{s0+1}")
        for i in range(2, 8): A(f"v_add_f32 v{l(e)}, v{l(e)}, v{s0+i}")
        for db in range(2):
            A(f"{MF} {v(s0+4*db,4)}, {a((bm if e == 0 else bv)+4*db,4)}, {v(bP+4*e,4)}, 0")
    xl4("v_add_f32", l)
    each(lambda e: f"v_rcp_f32 v{l(e)}, v{l(e)}\nv_sub_f32 v{vG+e}, 1.0, v{vG+e}\nv_mul_f32 v{l(e)}, v{l(e)}, v{vG+e}")
    A(f"s_lshl_b32 s{sT0}, s{sH}, 12\ns_add_u32 s{sT0}, s{sT0}, s74\ns_add_u32 s{sT0}, s{sT0}, {128*4096}")
    for e in range(2):
        o = bS + 8 * e
        for i in range(8): A(f"v_mul_f32 v{o+i}, v{o+i}, v{l(e)}")
        A(f"v_cvt_pk_bf16_f32 v{o}, v{o}, v{o+1}\nv_cvt_pk_bf16_f32 v{o+1}, v{o+2}, v{o+3}\nv_cvt_pk_bf16_f32 v{o+2}, v{o+4}, v{o+5}\nv_cvt_pk_bf16_f32 v{o+3}, v{o+6}, v{o+7}")
        A(f"v_cndmask_b32 v{o+2}, 0, v{o+2}, vcc\nv_cndmask_b32 v{o+3}, 0, v{o+3}, vcc")
        A(f"buffer_store_dwordx4 {v(o,4)}, v{vL16}, {ws}, s{sT0} offen offset:{e*1024} sc1")
    stamp(3)
    Lsig = A.label("F3_sig"); Lw = A.label("F3_w"); Lwx = A.label("F3_wx"); Lc = A.label("F3_c"); Lcx = A.label("F3_cx")
    def line_of(dst, tile): return f"s_and_b32 s{dst}, s{tile}, 7\ns_lshr_b32 s{sT3}, s{tile}, 3\ns_lshl_b32 s{sT3}, s{sT3}, 6\ns_or_b32 s{dst}, s{dst}, s{sT3}\ns_lshl_b32 s{dst}, s{dst}, 7\ns_add_u32 s{dst}, s{dst}, {WS_FLAG + 16}"
    A(line_of(sT2, 75))
    A(f"v_mov_b32 v{vT}, 1\ns_cmp_eq_u32 s87, 0\ns_cbranch_scc1 {Lw}\ns_waitcnt vmcnt(0)\nbuffer_atomic_add v{vT}, v{vOneL}, {ws}, s{sT2} offen sc1\ns_branch {Lst}")
    A(f"{Lw}:")
    def cload(k): return [f"s_add_u32 s{sT0}, s{sCb3}, {k*4096}"] + [f"buffer_load_dwordx4 {v(vR + 16*(k % ND) + 4*t, 4)}, v{2+t}, {ws}, s{sT0} offen {flags('cld', 'sc1')} ; vm:c{k}" for t in range(4)]
    groups = [wload(k) for k in (0, 1, 2, 3, 4)] + [wload(k) for k in range(5 + PW_, 21)] + [wdma(k) for k in range(21, 29)]
    NSIG = opti("nsig", 2); NPOL = opti("npol", 5)
    A(f"v_mov_b32 v15, v{vZ}")
    for q in range(4): A(f"v_add_u32 v{9+q}, s{sL3+q}, v{vL16}")
    A(f"s_lshl_b32 s{sT0}, s{sW}, 10\nv_add_u32 v2, s{sT0}, v{vL16}\nv_xor_b32 v3, 0x400, v2\nv_xor_b32 v4, 0x800, v2\nv_xor_b32 v5, 0xc00, v2")
    A(line_of(sT1, sTt))
    A("s_waitcnt vmcnt(30)")
    for n, g in enumerate(groups):
        if n == NSIG: A(f"s_waitcnt vmcnt({4*NSIG})\nbuffer_atomic_add v{vT}, v{vOneL}, {ws}, s{sT2} offen sc1")
        elif n > NSIG and n % 4 == 0 and n <= len(groups) - NPOL: A("s_waitcnt vmcnt(16)")
        if n == len(groups) - NPOL: A(f"buffer_load_dword v14, v15, {ws}, s{sT1} offen sc1")
        for t in g: A(t)
    stamp(4)
    A(f"s_waitcnt vmcnt({4*NPOL})\nv_readfirstlane_b32 s{sT0}, v14\ns_nop 3\ns_cmp_eq_u32 s{sT0}, 32\ns_cbranch_scc1 {Lcx}")
    A(f"{Lc}:\n" + r.bound(Lcx) + f"buffer_load_dword v14, v15, {ws}, s{sT1} offen sc1\ns_waitcnt vmcnt(0)\nv_readfirstlane_b32 s{sT0}, v14\ns_nop 3\ns_cmp_lg_u32 s{sT0}, 32\ns_cbranch_scc1 {Lc}\n{Lcx}:")
    stamp(5)
    A("VMSEED")
    for k in range(ND):
        for t in cload(k): A(t)
    for k in range(36):
        A(f"WAITVM c{k}" + (f",w{k}" if k >= 29 else "") + (" lgkmcnt(0)\ns_barrier" if k == 21 else ""))
        ms = []
        for u in range(4):
            for tt in range(4):
                t = tt if u % 2 == 0 else 3 - tt
                c = v(vAcc + 4*(4*u+t), 4)
                ms.append(f"{MF} {c}, {wreg(k,u)}, {v(vR + 16*(k % ND) + 4*t, 4)}, {c if k else 0}")
        fl = []
        if opti("k3i", 1):
            if k >= 1 and k - 1 + ND < 36: fl += cload(k - 1 + ND)
            if k % 3 == 2 and 29 + k // 3 < 36: fl += wload(29 + k // 3)
        if 10 <= k < 18:
            kk = 21 + k - 10
            fl += [f"ds_read_b128 {wreg(kk,u)}, v{9 + (kk-21)//2} offset:{((kk-21)&1)*4096 + u*1024}" for u in range(4)]
        interleave(A, ms, sched(16, [(fl, 0, 15)]))
        if not opti("k3i", 1):
            if k + ND < 36:
                for t in cload(k + ND): A(t)
            if k % 3 == 2 and 29 + k // 3 < 36:
                for t in wload(29 + k // 3): A(t)
    A("VMEND")
    stamp(6)
    A(f"s_mul_i32 s{sT1}, s{sW}, 12288\nv_add_u32 v6, s{sT1}, v{vL16}")
    for t in range(1, 4): A(f"s_xor_b32 s{sT1}, s{sW}, {t}\ns_mul_i32 s{sT1}, s{sT1}, 12288\nv_add_u32 v{9+t}, s{sT1}, v{vL16}")
    for t in range(1, 4):
        for u in range(4): A(f"ds_write_b128 v{9+t}, {v(vAcc+4*(4*u+t),4)} offset:{(t-1)*4096 + u*1024}")
    A(f"v_and_b32 v7, 15, v0\nv_mul_u32_u24 v7, 896, v7\nv_lshrrev_b32 v8, 4, v0\nv_lshl_add_u32 v7, v8, 5, v7")
    A(f"s_lshl_b32 s{sT0}, s{sTt}, 2\ns_add_u32 s{sT0}, s{sT0}, s{sW}\ns_mul_i32 s{sT0}, s{sT0}, {16*896}\ns_lshl_b32 s{sT1}, s{sN}, 7\ns_add_u32 s{sT0}, s{sT0}, s{sT1}")
    A(f"s_mov_b64 s[{sK}:{sK+1}], s[{r.sOut}:{r.sOut+1}]\ns_mov_b32 s{sK+2}, {2048*896}")
    A("s_waitcnt lgkmcnt(0)\ns_barrier")
    for x in range(12): A(f"ds_read_b128 {v(vR + 4*x, 4)}, v6 offset:{x*1024}")
    for p in range(3):
        A(f"s_waitcnt lgkmcnt({8 - 4*p})")
        for u in range(4):
            for h in range(2): A(f"v_pk_add_f32 {v(vAcc+16*u+2*h,2)}, {v(vAcc+16*u+2*h,2)}, {v(vR+16*p+4*u+2*h,2)}")
    for i in range(4):
        A(f"v_cvt_pk_bf16_f32 v{vR+64+2*i}, v{vAcc+i}, v{vAcc+16+i}\nv_cvt_pk_bf16_f32 v{vR+64+2*i+1}, v{vAcc+32+i}, v{vAcc+48+i}")
    A(f"buffer_store_dwordx4 {v(vR+64,4)}, v7, s[{sK}:{sK+3}], s{sT0} offen\nbuffer_store_dwordx4 {v(vR+68,4)}, v7, s[{sK}:{sK+3}], s{sT0} offen offset:16")
    A(f"{Lst}:")
    if stamps:
        A("s_waitcnt vmcnt(0)")
        stamp(7)
        A("s_waitcnt lgkmcnt(0)")
        if opti("dbgst"):
            for q, x in enumerate(SR[1:]): A(f"s_sub_u32 s{x}, s{x}, s{SR[0]}")
            for q, x in enumerate(SR): A(f"v_mov_b32 v{4+q}, s{x}")
            A(f"s_xor_b32 s{sT3}, s2, 8\ns_lshr_b32 s{sT2}, s{sT3}, 1\ns_and_b32 s{sT3}, s{sT3}, 0xffbf\ns_cselect_b32 s{sT2}, 0x1000, s{sT2}\nv_mov_b32 v12, 0")
            A(f"s_mov_b64 s[{sK}:{sK+1}], s[76:77]\ns_movk_i32 s{sK+2}, 256")
            for q in range(1, 8): A(f"buffer_store_dword v{4+q}, v12, s[{sK}:{sK+3}], s{sT2} offen offset:{4*q}")
        for q, x in enumerate(SR): A(f"v_mov_b32 v{4+q}, s{x}")
        A(f"v_mov_b32 v12, 0\ns_lshl_b32 s{sT3}, s2, 5\ns_add_u32 s{sT3}, s{sT3}, {200*MB}")
        A(f"buffer_store_dwordx4 v[4:7], v12, {ws}, s{sT3} offen\nbuffer_store_dwordx4 v[8:11], v12, {ws}, s{sT3} offen offset:16")
    A(f"{Lend}:\ns_endpgm")
```
